```python
import torch

def _softmax(x, axis=-1):
    return torch.softmax(x, dim=axis)
def _gelu(x):
    return torch.nn.functional.gelu(x, approximate="tanh")
def _silu(x):
    return torch.nn.functional.silu(x)
def _sigmoid(x):
    return torch.sigmoid(x)
def _layernorm(x, axis=-1, eps=1e-5):
    m = x.mean(dim=axis, keepdim=True)
    v = x.var(dim=axis, keepdim=True, unbiased=False)
    return (x - m) / torch.sqrt(v + eps)
def _scatter_add(tgt, idx, src, axis=0):
    return tgt.clone().index_add_(axis, idx, src)
def _segment_sum(src, seg, n):
    out = torch.zeros((n,) + src.shape[1:], dtype=src.dtype)
    return out.index_add_(0, seg, src)
def _pad(x, pw):
    flat = tuple(v for pair in reversed(pw) for v in pair)
    return torch.nn.functional.pad(x, flat)

kernel_name = 'gated_mix__linear_attn_block__sliding_block__prompt'

def setup_inputs():

    _w = (lambda a: (lambda t: t.to(torch.bfloat16) if t.is_floating_point() else t)(torch.as_tensor(a)))
    def _A_setup():
        B, S, D = 1, 2048, 1024
        return {
            "x": _w((lambda *s: torch.randn(*s, dtype=torch.bfloat16) * 0.05)(B, S, D)),
            "wqkv": _w((lambda *s: torch.randn(*s, dtype=torch.bfloat16) * 1.6)(D, 3 * D)),
            "wo": _w((lambda *s: torch.randn(*s, dtype=torch.bfloat16) * 0.4)(D, D)),
        }
    _A_in = _A_setup()

    def _B_setup():
        B, S, D = 1, 2048, 1024
        return {
            "x": _w((lambda *s: torch.randn(*s, dtype=torch.bfloat16) * 0.05)(B, S, D)),
            "wqkv": _w((lambda *s: torch.randn(*s, dtype=torch.bfloat16) * 0.8)(D, 3 * D)),
            "wo": _w((lambda *s: torch.randn(*s, dtype=torch.bfloat16) * 0.05)(D, D)),
        }
    _B_in = _B_setup()

    return {
        "A_x": _A_in["x"],
        "A_wqkv": _A_in["wqkv"],
        "A_wo": _A_in["wo"],
        "B_x": _B_in["x"],
        "B_wqkv": _B_in["wqkv"],
        "B_wo": _B_in["wo"],
        "gate_w": _w((lambda *s: torch.randn(*s, dtype=torch.bfloat16) * 0.05)(1024) * 16.0),
    }

def reference(A_x, A_wqkv, A_wo, B_x, B_wqkv, B_wo, gate_w):
    def _A_ref(x, wqkv, wo):
        B, S, D = x.shape
        H = 32; Dh = D // H
        qkv = (lambda x, *d: x.permute(*d))((x @ wqkv).reshape(B, S, 3, H, Dh), 2, 0, 3, 1, 4)
        q, k, v = qkv[0], qkv[1], qkv[2]
        phi = lambda t: torch.where(t > 0, t + 1, torch.exp(t)) + 1e-6
        pq, pk = phi(q), phi(k)
        kv = torch.einsum("bhsd,bhse->bhde", pk, v)
        z = torch.einsum("bhsd->bhd", pk)
        num = torch.einsum("bhqd,bhde->bhqe", pq, kv)
        den = torch.einsum("bhqd,bhd->bhq", pq, z)[..., None] + 1e-6
        o = num / den
        return (lambda x, *d: x.permute(*d))(o, 0, 2, 1, 3).reshape(B, S, D) @ wo

    def _B_ref(x, wqkv, wo):
        B, S, D = x.shape
        H = 32; Dh = D // H; W = 256
        qkv = (lambda x, *d: x.permute(*d))((x @ wqkv).reshape(B, S, 3, H, Dh), 2, 0, 3, 1, 4)
        q, k, v = qkv[0], qkv[1], qkv[2]
        scores = torch.einsum("bhqd,bhkd->bhqk", q, k) * (Dh ** -0.5)
        idx = torch.arange(S)
        mask = (idx[:, None] - idx[None, :] >= 0) & (idx[:, None] - idx[None, :] < W)
        scores = torch.where(mask[None, None], scores, -1e9)
        p = _softmax(scores, axis=-1)
        o = torch.einsum("bhqk,bhkd->bhqd", p, v)
        return (lambda x, *d: x.permute(*d))(o, 0, 2, 1, 3).reshape(B, S, D) @ wo

    x = A_x
    g = _sigmoid((x * gate_w).sum(-1, keepdims=True))
    a = _A_ref(x, A_wqkv, A_wo)
    b = _B_ref(x, B_wqkv, B_wo)
    return g * a + (1 - g) * b
```

```python
class Asm:
    def __init__(self):
        self.L = []
    def __call__(self, s):
        for line in s.strip("\n").split("\n"):
            self.L.append(line.strip() if line.strip().endswith(":") else "  " + line.strip())
    def label(self, n):
        self.L.append(n + ":")
    def text(self):
        return "\n".join(self.L) + "\n"

def vr(b, n=1):
    return f"v{b}" if n == 1 else f"v[{b}:{b+n-1}]"
def sr(b, n=1):
    return f"s{b}" if n == 1 else f"s[{b}:{b+n-1}]"

def schedule_waits(items, carry=None, cap=15):
    out = []
    q = list(carry or [])
    for it in items:
        need = -1
        if it.get('drain'):
            need = len(q) - 1
        else:
            for t in it.get('reads', ()):
                for idx, tag in enumerate(q):
                    if tag == t:
                        need = max(need, idx)
        if need >= 0:
            n = len(q) - 1 - need
            n = min(n, cap)
            out.append(f"s_waitcnt lgkmcnt({n})")
            q = q[len(q) - n:] if n else []
        if it.get('txt'):
            out.append(it['txt'])
        if it.get('loads') is not None:
            q.append(it['loads'])
    return out, q
```

```python
import sys, struct
from asm import *

NAME = "gated_mix__linear_attn_block__sliding_block__prompt"
WS_O = 0
WS_KV = 8 << 20
WS_PART = 16 << 20
WS_FLAG = 18 << 20
WS_G = 19 << 20
WS_PROF = 20 << 20
XSLOT = 32768; NXS = 3
WBASE = XSLOT * NXS; WSLOT = 24576
ACC = 0; XA = 192; XB = 208; WF = 224
V_XA0, V_XA1, V_WA0, V_WA1, V_LANE = 248, 249, 250, 251, 252
S_WAVE, S_RB, S_PAIR, S_BR, S_XCD, S_J = 40, 41, 42, 43, 44, 45
SRD_X, SRD_W, SRD_WS, SRD_DBG = "s[24:27]", "s[28:31]", "s[32:35]", "s[36:39]"
S_GA, S_GB, S_RT, S_CT = 76, 77, 78, 79
S_FLAG = 63
SPIN_MAX = 20000
def f2u(x): return struct.unpack("<I", struct.pack("<f", x))[0]
LOG2E = 1.4426950408889634

def acc(sb, j): return ACC + (sb * 6 + j) * 4

class Opt:
    pf = 4
    prof = False
    force_slow = False
    fstag = 0
    fpre = 4
    gload = 2
    await0 = True
    arot = True
    tmode = 2
    tpos = 0
    exp = 0
    afill = 0
    wovec = True
    xl2 = False
    na = 8
    fdepth = 8
    otouch = False
    wo_from = 3
    early = 2
    backoff = 4
    codepf = 3
    bprio = 1
    tailprio = 0
    aslist = False

def stamp(a, idx, opt):
    if not opt.prof: return
    a("s_memrealtime s[94:95]")
    a("s_waitcnt lgkmcnt(0)")
    a(f"v_writelane_b32 v255, s94, {idx}")

def cstamp(a, idx, opt):
    if not opt.prof: return
    a("s_memtime s[94:95]")
    a("s_waitcnt lgkmcnt(0)")
    a(f"v_writelane_b32 v255, s94, {idx}")

def prof_dump(a, opt, base):
    if not opt.prof: return
    a(f"""
    s_lshl_b32 s94, s2, 3
    s_add_u32 s94, s94, s{S_WAVE}
    s_lshl_b32 s94, s94, 8
    s_add_u32 s94, s94, {base}
    v_mbcnt_lo_u32_b32 v254, -1, 0
    v_mbcnt_hi_u32_b32 v254, -1, v254
    v_lshlrev_b32 v254, 2, v254
    buffer_store_dword v255, v254, {SRD_WS}, s94 offen
    """)

def k1_prologue(a, opt):
    a(f"""
    s_cmp_ge_u32 s2, 256
    s_cbranch_scc1 L1_end
    s_load_dwordx16 s[4:19], s[0:1], 0
    s_load_dwordx4 s[20:23], s[0:1], 64
    v_lshrrev_b32 v1, 6, v0
    s_and_b32 s{S_XCD}, s2, 7
    s_lshr_b32 s{S_J}, s2, 3
    v_readfirstlane_b32 s{S_WAVE}, v1
    s_lshr_b32 s{S_RB}, s{S_J}, 2
    s_and_b32 s{S_BR}, s{S_J}, 1
    s_bfe_u32 s{S_PAIR}, s{S_J}, 0x10001
    s_lshl_b32 s46, s{S_XCD}, 1
    s_add_u32 s{S_PAIR}, s{S_PAIR}, s46
    v_and_b32 v0, 63, v0
    s_lshl_b32 s46, s{S_BR}, 4
    s_add_u32 s46, s46, s{S_PAIR}
    s_lshl_b32 s46, s46, 3
    s_add_u32 s46, s46, s{S_RB}
    s_lshl_b32 s46, s46, 7
    s_add_u32 s{S_FLAG}, s46, {WS_FLAG}
    s_bfe_u32 s{S_CT}, s{S_J}, 0x30001
    s_and_b32 s46, s{S_XCD}, 1
    s_lshl_b32 s46, s46, 3
    s_add_u32 s{S_CT}, s{S_CT}, s46
    s_lshr_b32 s{S_RT}, s{S_J}, 4
    s_and_b32 s46, s{S_XCD}, 6
    s_add_u32 s{S_RT}, s{S_RT}, s46
    s_mov_b32 s26, 0x400000
    s_mov_b32 s27, 0x20000
    s_mov_b32 s30, 0x600000
    s_mov_b32 s31, 0x20000
    s_mov_b32 s34, 0x10000000
    s_mov_b32 s35, 0x20000
    s_mov_b32 s38, 256
    s_mov_b32 s39, 0x20000
    """)

def k1_srds(a):
    a(f"""
    s_waitcnt lgkmcnt(0)
    s_mov_b32 s24, s4
    s_and_b32 s25, s5, 0xffff
    s_cmp_eq_u32 s{S_BR}, 0
    s_cselect_b32 s28, s6, s12
    s_cselect_b32 s29, s7, s13
    s_and_b32 s29, s29, 0xffff
    s_mov_b32 s32, s22
    s_and_b32 s33, s23, 0xffff
    s_mov_b32 s36, s20
    s_and_b32 s37, s21, 0xffff
    """)

def consumer_substep(kk, wslot, btype, nxt_kk, nxt_wslot, barrier, extra=None):
    items = []
    def xread(grp, i, kk_):
        reg = (XA if grp == 0 else XB) + 4 * i
        sb = grp * 4 + i
        return dict(txt=f"ds_read_b128 {vr(reg,4)}, v{V_XA0 + kk_} offset:{sb*2048}", loads=('x', grp, i))
    def wread(j, t, kk_, ws):
        reg = WF + 4 * j + 2 * t
        off = ws * WSLOT + (j >> 1) * 8192 + kk_ * 4096 + t * 512
        return dict(txt=f"ds_read_b64_tr_b16 {vr(reg,2)}, v{V_WA0 + (j & 1)} offset:{off}", loads=('w', j, t))
    after = {m: [] for m in range(48)}
    after[0] += [wread(5, 0, kk, wslot)]
    after[1] += [wread(5, 1, kk, wslot)]
    for i in range(4): after[2 + 2 * i] += [xread(1, i, kk)]
    m0 = 24
    if barrier:
        after[24] += [dict(txt="s_barrier", drain=True)]
        m0 = 25
    xpos = [m0, m0 + 1, 29, 30]
    for i in range(4): after[xpos[i]] += [xread(0, i, nxt_kk)]
    for j in range(5):
        after[27 + 4 * j] += [wread(j, 0, nxt_kk, nxt_wslot)]
        after[28 + 4 * j] += [wread(j, 1, nxt_kk, nxt_wslot)]
    for m, txt in (extra or []):
        after[m].append(dict(txt=txt))
    m = 0
    for grp in range(2):
        for j in range(6):
            order = range(4) if j % 2 == 0 else [3, 2, 1, 0]
            for i in order:
                sb = grp * 4 + i
                xr = vr((XA if grp == 0 else XB) + 4 * i, 4); wr = vr(WF + 4 * j, 4)
                seg = j >> 1
                transposed = (seg == 0) or (seg == 1 and btype)
                A, B = (wr, xr) if transposed else (xr, wr)
                c = vr(acc(sb, j), 4)
                items.append(dict(txt=f"v_mfma_f32_16x16x32_bf16 {c}, {A}, {B}, {c}", reads={('x', grp, i), ('w', j, 0), ('w', j, 1)}))
                items += after[m]
                m += 1
    return items

def consumer_gemm(a, btype, tag):
    pre = [dict(txt=f"ds_read_b128 {vr(XA+4*i,4)}, v{V_XA0} offset:{i*2048}", loads=('x', 0, i)) for i in range(4)]
    def wr(j, t): return dict(txt=f"ds_read_b64_tr_b16 {vr(WF+4*j+2*t,2)}, v{V_WA0 + (j&1)} offset:{(j>>1)*8192 + t*512}", loads=('w', j, t))
    pre = [pre[0], pre[1], wr(0, 0), wr(0, 1), pre[2], pre[3]] + [wr(j, t) for j in range(1, 5) for t in range(2)]
    lines, q0 = schedule_waits(pre)
    a("s_mov_b32 s50, 8")
    a("s_mov_b32 s51, 0")
    for l in lines: a(l)
    a.label(f"L_gemm_{tag}")
    body = []
    for st in range(2):
        ex0 = [(10, "s_add_u32 s51, s51, 1"), (11, "s_cmp_eq_u32 s51, 3"), (12, f"s_cselect_b32 s52, {-2*XSLOT & 0xffffffff}, s53"), (13, "s_cselect_b32 s51, 0, s51"),
               (16, f"v_add_u32 v{V_XA0}, s52, v{V_XA0}")]
        ex1 = [(16, f"v_add_u32 v{V_XA1}, s52, v{V_XA1}")]
        if st == 1: ex1 += [(40, "s_sub_u32 s50, s50, 1"), (46, "s_cmp_lg_u32 s50, 0")]
        body += consumer_substep(0, st, btype, 1, st, False, ex0)
        body += consumer_substep(1, st, btype, 0, 1 - st, True, ex1)
    lines, q1 = schedule_waits(body, q0)
    assert q1 == q0, (q0, q1)
    for l in lines: a(l)
    a(f"s_cbranch_scc1 L_gemm_{tag}")

def consumer_setup(a, opt):
    if opt.prof: a("v_mov_b32 v255, 0")
    stamp(a, 22, opt)
    issue_w(a, "0", "s55"); issue_x(a, "0", "s54")
    a(f"""
    s_barrier
    v_and_b32 v1, 15, v0
    v_lshrrev_b32 v2, 4, v0
    v_bfe_u32 v3, v0, 1, 3
    v_xor_b32 v3, v2, v3
    v_lshlrev_b32 v3, 4, v3
    v_lshl_add_u32 v3, v1, 7, v3
    s_lshr_b32 s46, s{S_WAVE}, 1
    s_lshl_b32 s46, s46, 14
    v_add_u32 v{V_XA0}, s46, v3
    v_xor_b32 v{V_XA1}, 64, v{V_XA0}
    v_bfe_u32 v3, v0, 2, 2
    v_lshl_add_u32 v4, v2, 3, v3
    v_lshlrev_b32 v4, 7, v4
    v_bfe_u32 v5, v0, 3, 2
    s_and_b32 s46, s{S_WAVE}, 1
    s_lshl_b32 s46, s46, 1
    v_xor_b32 v5, s46, v5
    v_lshl_add_u32 v4, v5, 5, v4
    v_and_b32 v5, 3, v0
    v_lshl_add_u32 v4, v5, 3, v4
    v_add_u32 v{V_WA0}, {WBASE}, v4
    v_xor_b32 v{V_WA1}, 32, v{V_WA0}
    s_mov_b32 s53, {XSLOT}
    """)
    a(f"s_cmp_eq_u32 s{S_BR}, 0")
    a("s_cselect_b32 s46, 1.0, 0")
    a("s_nop 0")
    for sb in range(8):
        for j in range(6):
            for r in range(4):
                a(f"v_mov_b32 v{acc(sb,j)+r}, {'s46' if j < 4 else '0'}")

    a(f"""
    v_mov_b32 v{XA}, {LCNT}
    v_mov_b32 v{XA+1}, 1
    s_mov_b64 exec, 1
    s_waitcnt vmcnt(0)
    ds_add_u32 v{XA}, v{XA+1}
    s_mov_b64 exec, -1
    """)
    a.label("L_st0")
    a(f"""
    ds_read_b32 v{XA+2}, v{XA}
    s_waitcnt lgkmcnt(0)
    v_readfirstlane_b32 s46, v{XA+2}
    s_cmp_lt_u32 s46, 4
    s_cbranch_scc1 L_st0
    """)
    stamp(a, 20, opt)

LCNT = 147456
def dma_addrs(a):
    a(f"""
    s_and_b32 s46, s{S_WAVE}, 3
    v_lshrrev_b32 v1, 3, v0
    v_and_b32 v2, 7, v0
    v_and_b32 v3, 2, v1
    v_xor_b32 v3, v2, v3
    v_lshlrev_b32 v3, 4, v3
    v_mul_u32_u24 v4, 6144, v1
    s_lshl_b32 s47, s{S_PAIR}, 7
    s_mul_i32 s48, s46, {2*8*6144}
    s_add_u32 s47, s47, s48
    v_add3_u32 v20, v4, v3, s47
    v_xor_b32 v21, 64, v20
    v_add_u32 v21, {8*6144 - 1024}, v21
    v_lshrrev_b32 v3, 1, v1
    v_xor_b32 v3, v2, v3
    v_lshlrev_b32 v3, 4, v3
    s_lshl_b32 s47, s{S_RB}, 8
    s_lshl_b32 s48, s46, 6
    s_add_u32 s47, s47, s48
    v_add_u32 v4, s47, v1
    v_lshl_add_u32 v10, v4, 11, v3
    v_xor_b32 v11, 64, v10
    """)
    for i in (3, 2, 1):
        a(f"v_add_u32 v{10+i}, {i*16384 - i*1024}, v{10 + (i & 1)}")
    a(f"""
    s_lshl_b32 s54, s46, 13
    s_lshl_b32 s55, s46, 11
    s_add_u32 s55, s55, {WBASE}
    v_mov_b32 v{V_LANE}, v0
    """)
def issue_w(a, step_s, slot_off):
    for seg in range(3):
        a(f"s_add_u32 m0, {slot_off}, {seg*8192}")
        a(f"s_add_u32 s48, {step_s}, {seg*2048}")
        a(f"buffer_load_dwordx4 v20, {SRD_W}, s48 offen lds")
        a(f"buffer_load_dwordx4 v21, {SRD_W}, s48 offen offset:1024 lds")
def issue_x(a, step_s, slot_off, groups=(0, 1)):
    for g in groups:
        a(f"s_add_u32 m0, {slot_off}, {g*4096}")
        a(f"s_add_u32 s48, {step_s}, {g*65536}")
        for i in range(4):
            a(f"buffer_load_dwordx4 v{10+i}, {SRD_X}, s48 offen offset:{i*1024} lds")

def producer_gemm(a, opt):
    pf = opt.pf
    a(f"""
    v_mov_b32 v1, 0
    v_mov_b32 v2, {LCNT}
    ds_write_b32 v2, v1
    v_mul_u32_u24 v5, 0x5556, v0
    v_lshrrev_b32 v5, 16, v5
    v_mul_u32_u24 v6, 3, v5
    v_sub_u32 v6, v0, v6
    s_lshl_b32 s47, s{S_RB}, 3
    v_add_u32 v5, s47, v5
    v_mul_u32_u24 v5, 6144, v5
    v_lshl_add_u32 v5, v6, 11, v5
    s_lshl_b32 s47, s{S_PAIR}, 7
    v_add_u32 v30, s47, v5
    v_mov_b32 v7, 0x7f000000
    v_cmp_gt_u32 vcc, 24, v0
    s_lshl_b32 s47, {f"s{S_J}, 6" if opt.xl2 else "s2, 3"}
    v_add_u32 v5, s47, v0
    v_cndmask_b32 v30, v7, v30, vcc
    v_lshlrev_b32 v31, 11, v5
    v_cmp_gt_u32 vcc, {64 if opt.xl2 else 8}, v0
    s_add_u32 s62, s46, 1
    v_and_b32 v2, 31, v0
    v_cndmask_b32 v31, v7, v31, vcc
    v_lshlrev_b32 v2, 2, v2
    s_lshl_b32 s85, s{S_PAIR}, 1
    s_add_u32 s85, s85, s{S_BR}
    s_lshl_b32 s85, s85, 3
    s_cmp_eq_u32 s46, 1
    s_cselect_b32 s47, s{S_FLAG}, 0x10000000
    v_mov_b32 v36, 1
    s_mov_b32 s57, {64*6144}
    s_add_u32 s58, s55, {WSLOT}
    """)
    if opt.tmode >= 1:
        a(f"""
        v_and_b32 v4, 31, v0
        v_mul_u32_u24 v5, 0x5556, v4
        v_lshrrev_b32 v5, 16, v5
        v_mul_u32_u24 v6, 3, v5
        v_sub_u32 v6, v4, v6
        s_lshl_b32 s48, s{S_RB}, 3
        v_add_u32 v5, s48, v5
        v_mul_u32_u24 v5, 6144, v5
        v_lshl_add_u32 v5, v6, 11, v5
        v_lshrrev_b32 v6, 5, v0
        s_and_b32 s48, s{S_PAIR}, 14
        v_add_u32 v6, s48, v6
        v_lshl_add_u32 v5, v6, 7, v5
        s_add_u32 s48, s46, s{S_PAIR}
        s_bitcmp0_b32 {"s48" if opt.tmode == 2 else f"s{S_PAIR}"}, 0
        s_cselect_b32 s93, -1, 0
        s_and_b32 vcc_lo, s93, 0xffffff
        s_mov_b32 vcc_hi, vcc_lo
        v_cndmask_b32 v30, v7, v5, vcc
        v_and_b32 v4, 7, v0
        v_bfe_u32 v5, v0, 3, 1
        v_lshl_add_u32 v4, v5, 7, v4
        s_and_b32 s48, s2, 0xef
        s_lshl_b32 s48, s48, 3
        v_add_u32 v4, s48, v4
        v_lshlrev_b32 v4, 11, v4
        s_and_b32 vcc_lo, vcc_lo, 0xffff
        s_mov_b32 vcc_hi, 0
        v_cndmask_b32 v31, v7, v4, vcc
        """)
    def touch():
        a(f"""
        s_mul_i32 s60, s62, {64*6144}
        s_lshl_b32 s61, s62, 7
        buffer_load_dword v32, v30, {SRD_W}, s60 offen
        buffer_load_dword v33, v31, {SRD_X}, s61 offen
        s_add_u32 s62, s62, 4
        """)
    a(f"""
    s_getpc_b64 s[86:87]
    L_pc:
    s_sub_u32 s86, s86, L_pc-{NAME}_kernel
    s_subb_u32 s87, s87, 0
    v_and_b32 v37, 7, v0
    s_lshl_b32 s48, s{S_J}, 3
    v_add_u32 v37, s48, v37
    v_lshlrev_b32 v37, 7, v37
    v_min_u32 v37, L_code_end-{NAME}_kernel-4, v37
    """)
    if opt.codepf & 1:
        a(f"s_cmp_eq_u32 s46, 3\ns_cbranch_scc0 L_nocode\nglobal_load_dword v38, v37, s[86:87]")
        a.label("L_nocode")
    a(f"s_cmp_lt_u32 s46, {opt.early}\ns_cbranch_scc0 L_noearly")
    touch()
    a.label("L_noearly")
    a(f"""
    s_waitcnt lgkmcnt(0)
    s_barrier
    s_setprio 3
    """)
    if opt.prof: a("v_mov_b32 v255, 0")
    stamp(a, 21, opt)
    a(f"buffer_store_dword v1, v2, {SRD_WS}, s47 offen sc1")
    a(f"""
    s_cmp_eq_u32 s{S_BR}, 0
    s_cbranch_scc0 L_nosent
    s_lshl_b32 s47, s{S_PAIR}, 3
    s_add_u32 s47, s47, s{S_RB}
    s_lshl_b32 s47, s47, 2
    s_add_u32 s47, s47, s46
    s_lshl_b32 s47, s47, 12
    s_add_u32 s47, s47, {WS_PART}
    v_mov_b32 v40, -1
    v_mov_b32 v41, -1
    v_mov_b32 v42, -1
    v_mov_b32 v43, -1
    v_lshlrev_b32 v44, 4, v0
    v_and_b32 v45, 48, v0
    buffer_store_dwordx4 v[40:43], v44, {SRD_WS}, s47 offen sc1
    buffer_store_dwordx4 v[40:43], v44, {SRD_WS}, s47 offen offset:1024 sc1
    buffer_store_dwordx4 v[40:43], v45, {SRD_WS}, s47 offen offset:2048 sc1
    """)
    a.label("L_nosent")
    issue_w(a, "s57", "s58")
    a("s_mov_b32 s57, 128"); a(f"s_add_u32 s58, s54, {XSLOT}")
    issue_x(a, "s57", "s58")
    a("s_mov_b32 s57, 256"); a(f"s_add_u32 s58, s54, {2*XSLOT}")
    issue_x(a, "s57", "s58")
    a(f"s_cmp_lt_u32 s46, {opt.early}\ns_cbranch_scc1 L_nolate")
    touch()
    a("s_waitcnt vmcnt(10)\ns_branch L_late")
    a.label("L_nolate")
    a("s_waitcnt vmcnt(8)")
    a.label("L_late")
    a("s_barrier")
    stamp(a, 0, opt); cstamp(a, 30, opt)
    if opt.prof:
        a("s_getreg_b32 s94, hwreg(HW_REG_XCC_ID)\nv_writelane_b32 v255, s94, 33")
    a(f"""
    s_cmp_lt_u32 s46, 2
    s_cselect_b32 s80, s8, s14
    s_cselect_b32 s81, s9, s15
    s_and_b32 s81, s81, 0xffff
    s_mov_b32 s82, 0x200000
    s_mov_b32 s83, 0x20000
    s_and_b32 s84, s2, {0xef if opt.tmode else 0xff}
    s_lshl_b32 s84, s84, 1
    s_and_b32 s48, s46, 1
    s_add_u32 s84, s84, s48
    s_lshl_b32 s84, s84, 12
    v_lshlrev_b32 v34, 7, v0
    v_cmp_gt_u32 vcc, 16, v0
    s_nop 1
    v_cndmask_b32 v34, v7, v34, vcc
    """)
    if opt.tmode >= 1:
        a(f"""
        v_and_b32 v4, 15, v0
        v_lshlrev_b32 v4, 7, v4
        v_lshrrev_b32 v5, 4, v0
        v_lshl_add_u32 v4, v5, 17, v4
        s_mov_b32 vcc_lo, s93
        s_mov_b32 vcc_hi, 0
        v_cndmask_b32 v34, v7, v4, vcc
        """)
    a(f"""
    s_mov_b32 s50, 0
    s_mov_b32 s56, {2*64*6144}
    s_mov_b32 s57, {3*128}
    s_mov_b32 s58, s55
    s_mov_b32 s59, s54
    s_mov_b32 s51, 0
    """)
    a.label("L_prod")
    issue_w(a, "s56", "s58")
    ga, gb = {0: ((), (0, 1)), 1: ((0,), (1,)), 2: ((0, 1), ())}[opt.tpos]
    issue_x(a, "s57", "s59", ga)
    a(f"""
    s_and_b32 s47, s50, 3
    s_cmp_eq_u32 s47, s46
    s_cbranch_scc0 L_notouch
    s_cmp_lt_u32 s62, 16
    s_cbranch_scc0 L_lateturn
    """)
    touch()
    a(f"""
    s_cmp_eq_u32 s50, 1
    s_cbranch_scc0 L_noatom
    s_mov_b64 exec, 1
    buffer_atomic_add v36, off, {SRD_DBG}, s85 sc1
    s_mov_b64 exec, -1
    s_branch L_three
    """)
    a.label("L_noatom")
    a(f"""
    s_sub_u32 s47, s50, {opt.wo_from}
    s_cmp_lt_u32 s47, 8
    s_cselect_b32 s47, s84, 0x200000
    s_cselect_b32 s49, 2048, 0
    buffer_load_dword v35, v34, s[80:83], s47 offen
    s_add_u32 s84, s84, s49
    """)
    a.label("L_three")
    issue_x(a, "s57", "s59", gb)
    a("s_waitcnt vmcnt(11)\ns_branch L_touched")
    a.label("L_lateturn")
    if opt.codepf & 2:
        a("s_cmp_eq_u32 s50, 11\ns_cbranch_scc0 L_notouch\nglobal_load_dword v38, v37, s[86:87]")
        issue_x(a, "s57", "s59", gb)
        a("s_waitcnt vmcnt(9)\ns_branch L_touched")
    a.label("L_notouch")
    issue_x(a, "s57", "s59", gb)
    a("s_waitcnt vmcnt(8)")
    a.label("L_touched")
    a(f"""
    s_add_u32 s56, s56, {64*6144}
    s_add_u32 s57, s57, 128
    s_cmp_eq_u32 s58, s55
    s_cselect_b32 s58, {WSLOT}, 0
    s_add_u32 s58, s58, s55
    s_add_u32 s51, s51, 1
    s_cmp_eq_u32 s51, 3
    s_cselect_b32 s51, 0, s51
    s_lshl_b32 s59, s51, 15
    s_add_u32 s59, s59, s54
    s_add_u32 s50, s50, 1
    s_barrier
    """)
    if opt.prof:
        a("s_mov_b32 m0, s50"); stamp(a, "m0", opt)
    a("""
    s_cmp_lt_u32 s50, 13
    s_cbranch_scc1 L_prod
    """)
    issue_w(a, "s56", "s58")
    a(f"""
    s_lshl_b32 s47, s{S_RB}, 1
    s_add_u32 s47, s47, s{S_BR}
    s_lshl_b32 s47, s47, 4
    s_add_u32 s47, s47, s{S_PAIR}
    s_lshl_b32 s47, s47, 2
    s_add_u32 s47, s47, s46
    s_lshl_b32 s48, s47, 12
    v_lshlrev_b32 v1, 5, v0
    s_mov_b32 s64, s16
    s_and_b32 s65, s17, 0xffff
    s_mov_b32 s66, 2048
    s_mov_b32 s67, 0x20000
    v_and_b32 v225, 31, v0
    v_lshlrev_b32 v225, 3, v225
    buffer_load_dwordx4 v[200:203], v1, s[64:67], 0 offen
    buffer_load_dwordx4 v[204:207], v1, s[64:67], 0 offen offset:16
    buffer_load_dwordx4 v[208:211], v1, {SRD_X}, s48 offen
    buffer_load_dwordx4 v[212:215], v1, {SRD_X}, s48 offen offset:16
    buffer_load_dwordx4 v[216:219], v1, {SRD_X}, s48 offen offset:2048
    buffer_load_dwordx4 v[220:223], v1, {SRD_X}, s48 offen offset:2064
    buffer_load_dword v224, v225, {SRD_DBG}, 0 offen sc1
    """)
    if opt.wovec:
        a(f"""
        s_lshr_b32 s48, s{S_J}, 4
        s_cmp_eq_u32 s48, 0
        s_cselect_b32 s80, s8, s14
        s_cselect_b32 s81, s9, s15
        s_and_b32 s81, s81, 0xffff
        s_lshl_b32 s84, s{S_BR}, 2
        s_add_u32 s84, s84, s46
        s_lshl_b32 s84, s84, 18
        s_lshl_b32 s48, s{S_CT}, 7
        s_add_u32 s84, s84, s48
        s_add_u32 s49, s84, {64*2048}
        v_lshlrev_b32 v34, 11, v0
        s_waitcnt vmcnt(0)
        buffer_load_dword v226, v34, s[80:83], s84 offen
        buffer_load_dword v227, v34, s[80:83], s49 offen
        s_barrier
        s_setprio {opt.tailprio}
        """)
    else:
        a(f"s_waitcnt vmcnt(7)\ns_barrier\ns_setprio {opt.tailprio}")
    stamp(a, 14, opt); cstamp(a, 31, opt)

def producer_gate(a, opt):
    nw = 2 if opt.wovec else 0
    a(f"v_mov_b32 v2, 0\nv_mov_b32 v3, 0\ns_waitcnt vmcnt({nw})")
    for i in range(8):
        a(f"v_dot2c_f32_bf16 v2, v{208+i}, v{200+i}")
        a(f"v_dot2c_f32_bf16 v3, v{216+i}, v{200+i}")
    a("s_nop 2")
    a("""
    v_permlane32_swap_b32 v2, v3
    s_nop 1
    v_add_f32 v2, v2, v3
    v_mov_b32 v3, v2
    s_nop 1
    v_permlane16_swap_b32 v2, v3
    s_nop 1
    v_add_f32 v2, v2, v3
    """)
    for sh in (8, 4, 2, 1):
        a("s_nop 1")
        a(f"v_add_f32_dpp v2, v2, v2 row_ror:{sh} row_mask:0xf bank_mask:0xf")
    a(f"""
    v_mul_f32 v2, {hex(f2u(-LOG2E))}, v2
    v_exp_f32 v2, v2
    v_lshrrev_b32 v3, 5, v{V_LANE}
    v_add_f32 v2, 1.0, v2
    v_rcp_f32 v2, v2
    v_lshlrev_b32 v3, 2, v3
    s_lshl_b32 s47, s47, 7
    s_add_u32 s47, s47, {WS_G}
    s_mov_b32 s48, 1
    s_mov_b32 exec_lo, s48
    s_mov_b32 exec_hi, s48
    buffer_store_dword v2, v3, {SRD_WS}, s47 offen sc1
    s_mov_b64 exec, -1
    s_mov_b32 s48, {SPIN_MAX}
    """)
    a.label(f"L_initpoll")
    a(f"""
    v_cmp_ne_u32 vcc, 8, v224
    s_cbranch_vccz L_initdone
    s_sub_u32 s48, s48, 1
    s_cmp_eq_u32 s48, 0
    s_cbranch_scc1 L_initdone
    buffer_load_dword v224, v225, {SRD_DBG}, 0 offen sc1
    s_waitcnt vmcnt(0)
    s_branch L_initpoll
    """)
    a.label(f"L_initdone")

T_S, T_P, T_K, T_V = 0, 32, 40, 48
class U:
    def __init__(s, sr_, q, o, l, sq): s.s, s.q, s.o, s.l, s.sq = sr_, q, o, l, sq
UA = U(0, 56, 64, 80, 70); UB = U(16, 84, 92, 108, 71)
T_MD, T_ME, T_SEL, T_PAT, T_ADR, T_T0, T_Z = 112, 128, 144, 148, 149, 150, 156
T_C = 160
T_PUB = 160
S_HB = 72
LQ = 131072
def swap34(i): return (i & 7) | ((i >> 4 & 1) << 3) | ((i >> 3 & 1) << 4)

def b_consts(a):
    a(f"v_mov_b32 v{T_T0}, {hex(f2u(-1e30))}")
    for n in range(16):
        g, r = n >> 2, n & 3
        m = 0
        for l in range(64):
            j, h = l & 31, l >> 5
            if swap34(8 * g + 4 * h + r) <= swap34(j): m |= 1 << l
        s = 64 + 2 * (n & 1)
        a(f"s_mov_b32 s{s}, {hex(m & 0xffffffff)}")
        a(f"s_mov_b32 s{s+1}, {hex(m >> 32)}")
        a(f"v_cndmask_b32_e64 v{T_MD+n}, v{T_T0}, 0, s[{s}:{s+1}]")
        a(f"v_cndmask_b32_e64 v{T_ME+n}, 0, v{T_T0}, s[{s}:{s+1}]")
    L = V_LANE
    a(f"""
    v_lshrrev_b32 v{T_T0}, 2, v{L}
    v_xor_b32 v{T_T0}, v{T_T0}, v{L}
    v_bfe_u32 v{T_T0}, v{T_T0}, 2, 1
    v_add_u32 v{T_T0}, -1, v{T_T0}
    v_and_b32 v{T_SEL}, 0x3f803f80, v{T_T0}
    v_mov_b32 v{T_Z}, 0
    v_mov_b32 v{T_Z+1}, 0
    v_mov_b32 v{T_Z+2}, 0
    v_mov_b32 v{T_Z+3}, 0
    v_mov_b32 v{T_SEL+1}, v{T_SEL}
    v_mov_b32 v{T_SEL+2}, v{T_SEL}
    v_mov_b32 v{T_SEL+3}, v{T_SEL}
    v_and_b32 v{T_PAT}, 7, v{L}
    v_lshlrev_b32 v{T_PAT}, 4, v{T_PAT}
    v_lshrrev_b32 v{T_T0}, 4, v{L}
    v_lshl_add_u32 v{T_PAT}, v{T_T0}, 7, v{T_PAT}
    v_bfe_u32 v{T_T0}, v{L}, 3, 1
    v_lshl_add_u32 v{T_PAT}, v{T_T0}, 10, v{T_PAT}
    s_and_b32 s46, s{S_WAVE}, 1
    s_lshl_b32 s{S_HB}, s46, 15
    s_and_b32 s46, s{S_WAVE}, 2
    s_sub_u32 s{UA.sq}, 6, s46
    s_cmp_ge_u32 s{S_WAVE}, 4
    s_cselect_b32 s{UA.sq}, s46, s{UA.sq}
    s_add_u32 s{UB.sq}, s{UA.sq}, 1
    """)
    for u in (UA, UB):
        a(f"v_mfma_f32_32x32x16_bf16 {vr(u.o,16)}, {vr(T_Z,4)}, {vr(T_Z,4)}, 0")
        a(f"v_mfma_f32_16x16x32_bf16 {vr(u.l,4)}, {vr(T_Z,4)}, {vr(T_Z,4)}, 0")

def b_epilogue(a, opt):
    L = V_LANE
    c = LOG2E / 32 ** 0.5
    a(f"""
    s_lshr_b32 s46, s{S_WAVE}, 1
    s_and_b32 s47, s{S_WAVE}, 1
    s_lshl_b32 s48, s47, 15
    s_lshl_b32 s49, s46, 13
    s_add_u32 s48, s48, s49
    s_add_u32 s48, s48, 65536
    v_lshlrev_b32 v253, 4, v{L}
    v_add_u32 v248, s48, v253
    s_lshl_b32 s48, s47, 14
    s_add_u32 s48, s48, s49
    s_add_u32 s48, s48, {LQ}
    v_add_u32 v249, s48, v253
    s_lshl_b32 s48, s{S_PAIR}, 3
    s_add_u32 s48, s48, s{S_RB}
    s_lshl_b32 s48, s48, 16
    s_lshl_b32 s47, s47, 15
    s_add_u32 s48, s48, s47
    s_add_u32 s48, s48, s49
    s_add_u32 s48, s48, {WS_KV if not (opt.exp & 1) else 0x10000000}
    s_add_u32 s49, s48, 4096
    s_add_u32 s50, s48, 16384
    s_add_u32 s51, s48, {16384+4096}
    s_mov_b32 s64, {hex(f2u(c))}
    """)
    def pack(dst, x, y):
        a(f"v_cvt_pk_bf16_f32 v{dst}, v{x}, v{x+1}")
        a(f"v_cvt_pk_bf16_f32 v{dst+1}, v{x+2}, v{x+3}")
        a(f"v_cvt_pk_bf16_f32 v{dst+2}, v{y}, v{y+1}")
        a(f"v_cvt_pk_bf16_f32 v{dst+3}, v{y+2}, v{y+3}")
    def qpack(sb):
        d = acc(sb, 0)
        for r in range(0, 8, 2):
            a(f"v_pk_mul_f32 {vr(d+r,2)}, {vr(d+r,2)}, s[64:65] op_sel_hi:[1,0]")
        pack(d, acc(sb, 0), acc(sb, 1))
    for sb in range(8):
        d = acc(sb, 2)
        pack(d, acc(sb, 2), acc(sb, 3))
        a(f"buffer_store_dwordx4 {vr(d,4)}, v253, {SRD_WS}, s{48 + (sb >> 2)} offen offset:{(sb & 3)*1024} sc1")
        a(f"ds_write_b128 v248, {vr(d,4)} offset:{sb*1024}")
        if sb & 1:
            qpack(sb >> 1)
            a(f"ds_write_b128 v249, {vr(acc(sb >> 1,0),4)} offset:{(sb >> 1)*1024}")
    for m in range(4):
        for nb in range(2):
            d = acc(2 * m, 4 + nb); i = 2 * m + nb
            pack(d, acc(2 * m, 4 + nb), acc(2 * m + 1, 4 + nb))
            a(f"buffer_store_dwordx4 {vr(d,4)}, v253, {SRD_WS}, s{50 + (i >> 2)} offen offset:{(i & 3)*1024} sc1")
            a(f"ds_write_b128 v248, {vr(d,4)} offset:{16384 + i*1024}")
        qpack(4 + m)
        a(f"ds_write_b128 v249, {vr(acc(4+m,0),4)} offset:{(4+m)*1024}")
    a("s_setprio 2\ns_waitcnt lgkmcnt(0)\ns_barrier")

def b_phase(a, X, Y, kind, step, mask=None):
    S, P = X.s, T_P
    M32 = "v_mfma_f32_32x32x16_bf16"; M16 = "v_mfma_f32_16x16x32_bf16"
    e = lambda n: a(f"v_exp_f32 v{S+n}, v{S+n}")
    c = lambda k: a(f"v_cvt_pk_bf16_f32 v{P+k}, v{S+2*k}, v{S+2*k+1}")
    if kind == 'B': a("s_waitcnt lgkmcnt(1)")
    a(f"{M32} {vr(Y.s,16)}, {vr(T_K,4)}, {vr(Y.q,4)}, {vr(mask,16) if mask is not None else 0}")
    if kind == 'A': a(f"v_add_u32 v{T_ADR}, {step & 0xffffffff}, v{T_ADR}")
    e(0); e(1); e(2); c(0)
    a(f"{M32} {vr(Y.s,16)}, {vr(T_K+4,4)}, {vr(Y.q+4,4)}, {vr(Y.s,16)}")
    if kind == 'A':
        a(f"ds_read_b128 {vr(T_K,4)}, v{T_ADR}")
        a(f"ds_read_b128 {vr(T_K+4,4)}, v{T_ADR} offset:512")
    e(3); e(4); c(1); e(5)
    if kind != 'F':
        if kind == 'B': a("s_waitcnt lgkmcnt(0)")
        a(f"{M32} {vr(Y.o,16)}, {vr(T_V+4,4)}, {vr(P+4,4)}, {vr(Y.o,16)}")
        if kind == 'A': a(f"ds_read_b128 {vr(T_V+4,4)}, v{T_ADR} offset:{16384 + 512 - step}")
    e(6); c(2); e(7); e(8)
    if kind != 'F':
        a(f"{M16} {vr(Y.l,4)}, {vr(T_SEL,4)}, {vr(P+4,4)}, {vr(Y.l,4)}")
    c(3); e(9); e(10); c(4)
    if kind == 'A': a("s_waitcnt lgkmcnt(3)")
    a(f"{M32} {vr(X.o,16)}, {vr(T_V,4)}, {vr(P,4)}, {vr(X.o,16)}")
    if kind != 'A': a(f"ds_read_b128 {vr(T_V,4)}, v{T_ADR} offset:16384")
    e(11); e(12); c(5); e(13)
    a(f"{M16} {vr(X.l,4)}, {vr(T_SEL,4)}, {vr(P,4)}, {vr(X.l,4)}")
    e(14); e(15); c(6)
    if kind == 'B': a("s_sub_u32 s50, s50, 1\ns_cmp_lg_u32 s50, 0")
    c(7)

def b_section(a, own):
    X, Y = (UB, UA) if own else (UA, UB)
    step = -2048 if own else 2048
    mask = T_MD if own else T_ME
    tag = "own" if own else "halo"
    M32 = "v_mfma_f32_32x32x16_bf16"; M16 = "v_mfma_f32_16x16x32_bf16"
    if own: a(f"s_add_u32 s46, s{UA.sq}, 32\ns_add_u32 s50, s{UA.sq}, 1")
    else: a(f"s_add_u32 s46, s{UA.sq}, 1\ns_sub_u32 s50, 7, s{UA.sq}")
    a(f"""
    s_lshl_b32 s46, s46, 11
    s_add_u32 s46, s46, s{S_HB}
    v_add_u32 v{T_ADR}, s46, v{T_PAT}
    v_add_u32 v{T_T0}, {-step & 0xffffffff}, v{T_ADR}
    ds_read_b128 {vr(T_P,4)}, v{T_T0}
    ds_read_b128 {vr(T_P+4,4)}, v{T_T0} offset:512
    ds_read_b128 {vr(T_K,4)}, v{T_ADR}
    ds_read_b128 {vr(T_K+4,4)}, v{T_ADR} offset:512
    ds_read_b128 {vr(T_V,4)}, v{T_T0} offset:16384
    ds_read_b128 {vr(T_V+4,4)}, v{T_T0} offset:{16384+512}
    s_waitcnt lgkmcnt(5)
    {M32} {vr(X.s,16)}, {vr(T_P,4)}, {vr(X.q,4)}, {vr(mask,16)}
    s_waitcnt lgkmcnt(4)
    {M32} {vr(X.s,16)}, {vr(T_P+4,4)}, {vr(X.q+4,4)}, {vr(X.s,16)}
    s_waitcnt lgkmcnt(0)
    s_nop 7
    s_nop 1
    """)
    b_phase(a, X, Y, 'F', step, mask)
    a.label(f"L_pair_{tag}")
    b_phase(a, Y, X, 'A', step)
    b_phase(a, X, Y, 'B', step)
    a(f"""
    s_cbranch_scc1 L_pair_{tag}
    s_nop 0
    {M32} {vr(X.o,16)}, {vr(T_V+4,4)}, {vr(T_P+4,4)}, {vr(X.o,16)}
    {M16} {vr(X.l,4)}, {vr(T_SEL,4)}, {vr(T_P+4,4)}, {vr(X.l,4)}
    """)

def b_final(a, u, tag, opt):
    lo, hi = (2.0 ** -40, 2.0 ** 40) if not opt.force_slow else (2.0 ** 3, 2.0 ** 9)
    a(f"""
    s_lshl_b32 s46, s{S_RB}, 6
    s_lshl_b32 s47, s{S_PAIR}, 1
    s_add_u32 s46, s46, s47
    s_and_b32 s47, s{S_WAVE}, 1
    s_add_u32 s46, s46, s47
    s_add_u32 s46, s46, 32
    s_lshl_b32 s46, s46, 3
    s_add_u32 s46, s46, s{u.sq}
    s_lshl_b32 s73, s46, 11
    v_cmp_le_f32 vcc, {hex(f2u(lo))}, v{u.l}
    s_mov_b64 s[46:47], vcc
    v_cmp_ge_f32 vcc, {hex(f2u(hi))}, v{u.l}
    s_and_b64 s[46:47], s[46:47], vcc
    s_cmp_eq_u64 s[46:47], -1
    {"s_nop 0" if opt.exp else f"s_cbranch_scc0 L_slow_{tag}"}
    """)
    a.label(f"L_back_{tag}")
    a(f"v_rcp_f32 v{T_T0}, v{u.l}")
    a("s_nop 0")
    for r in range(0, 16, 2):
        a(f"v_pk_mul_f32 {vr(u.o+r,2)}, {vr(u.o+r,2)}, {vr(T_T0,2)} op_sel_hi:[1,0]")
    for k in range(8):
        a(f"v_cvt_pk_bf16_f32 v{u.o+k}, v{u.o+2*k}, v{u.o+2*k+1}")
    a(f"buffer_store_dwordx4 {vr(u.o,4)}, v{T_PAT}, {SRD_WS}, s73 offen sc1")
    a(f"buffer_store_dwordx4 {vr(u.o+4,4)}, v{T_PAT}, {SRD_WS}, s73 offen offset:512 sc1")

def b_slow(a, u, tag):
    S, P, M = T_S, T_P, T_T0 + 2
    a.label(f"L_slow_{tag}")
    a(f"""
    s_nop 7
    s_nop 7
    v_mfma_f32_32x32x16_bf16 {vr(u.o,16)}, {vr(T_Z,4)}, {vr(T_Z,4)}, 0
    v_mfma_f32_16x16x32_bf16 {vr(u.l,4)}, {vr(T_Z,4)}, {vr(T_Z,4)}, 0
    v_mov_b32 v{M}, {hex(f2u(-3e38))}
    s_add_u32 s52, s{u.sq}, 8
    """)
    for ps in range(2):
        a(f"""
        s_cmp_eq_u32 s{S_RB}, 0
        s_cselect_b32 s51, 8, s{u.sq}
        """)
        a.label(f"L_slowl_{tag}{ps}")
        a(f"""
        s_lshl_b32 s46, s{S_PAIR}, 3
        s_add_u32 s46, s46, s{S_RB}
        s_lshr_b32 s47, s51, 3
        s_add_u32 s46, s46, s47
        s_lshl_b32 s46, s46, 16
        s_and_b32 s47, s51, 7
        s_lshl_b32 s47, s47, 11
        s_add_u32 s46, s46, s47
        s_add_u32 s46, s46, s{S_HB}
        s_add_u32 s46, s46, {WS_KV - 65536}
        s_add_u32 s47, s46, 16384
        buffer_load_dwordx4 {vr(T_K,4)}, v{T_PAT}, {SRD_WS}, s46 offen sc1
        buffer_load_dwordx4 {vr(T_K+4,4)}, v{T_PAT}, {SRD_WS}, s46 offen offset:512 sc1
        buffer_load_dwordx4 {vr(T_V,4)}, v{T_PAT}, {SRD_WS}, s47 offen sc1
        buffer_load_dwordx4 {vr(T_V+4,4)}, v{T_PAT}, {SRD_WS}, s47 offen offset:512 sc1
        s_cmp_eq_u32 s51, s52
        s_cselect_b32 s47, 1.0, 0
        s_cmp_eq_u32 s51, s{u.sq}
        s_cselect_b32 s48, 1.0, 0
        """)
        for n in range(16):
            a(f"v_mul_f32 v{T_C+n}, s47, v{T_MD+n}")
            a(f"v_fmac_f32 v{T_C+n}, s48, v{T_ME+n}")
        a(f"""
        s_waitcnt vmcnt(0)
        s_nop 1
        v_mfma_f32_32x32x16_bf16 {vr(S,16)}, {vr(T_K,4)}, {vr(u.q,4)}, {vr(T_C,16)}
        v_mfma_f32_32x32x16_bf16 {vr(S,16)}, {vr(T_K+4,4)}, {vr(u.q+4,4)}, {vr(S,16)}
        s_nop 7
        s_nop 7
        """)
        if ps == 0:
            for n in range(0, 16, 2):
                a(f"v_max3_f32 v{M}, v{S+n}, v{S+n+1}, v{M}")
        else:
            for n in range(16): a(f"v_sub_f32 v{S+n}, v{S+n}, v{M}")
            for n in range(16): a(f"v_exp_f32 v{S+n}, v{S+n}")
            a("s_nop 0")
            for k in range(8): a(f"v_cvt_pk_bf16_f32 v{P+k}, v{S+2*k}, v{S+2*k+1}")
            a(f"""
            s_nop 1
            v_mfma_f32_32x32x16_bf16 {vr(u.o,16)}, {vr(T_V,4)}, {vr(P,4)}, {vr(u.o,16)}
            v_mfma_f32_32x32x16_bf16 {vr(u.o,16)}, {vr(T_V+4,4)}, {vr(P+4,4)}, {vr(u.o,16)}
            v_mfma_f32_16x16x32_bf16 {vr(u.l,4)}, {vr(T_SEL,4)}, {vr(P,4)}, {vr(u.l,4)}
            v_mfma_f32_16x16x32_bf16 {vr(u.l,4)}, {vr(T_SEL,4)}, {vr(P+4,4)}, {vr(u.l,4)}
            """)
        a(f"""
        s_add_u32 s51, s51, 1
        s_cmp_le_u32 s51, s52
        s_cbranch_scc1 L_slowl_{tag}{ps}
        """)
        if ps == 0:
            a(f"""
            v_mov_b32 v{M+1}, v{M}
            s_nop 1
            v_permlane32_swap_b32 v{M}, v{M+1}
            s_nop 1
            v_max_f32 v{M}, v{M}, v{M+1}
            """)
    a(f"s_nop 7\ns_nop 7\ns_branch L_back_{tag}")

def b_attention(a, opt):
    a(f"""
    s_lshl_b32 s46, s{S_WAVE}, 2
    s_add_u32 s46, s46, s{S_FLAG}
    v_mov_b32 v{T_T0}, 1
    s_mov_b64 exec, 1
    s_waitcnt vmcnt(0)
    buffer_store_dword v{T_T0}, off, {SRD_WS}, s46 sc1
    s_mov_b64 exec, -1
    s_setprio 0
    """)
    a.label("L_battn1")
    stamp(a, 24, opt); cstamp(a, 34, opt)
    a(f"""
    s_lshr_b32 s46, s{S_HB}, 1
    s_add_u32 s46, s46, {LQ}
    s_lshl_b32 s47, s{UA.sq}, 11
    s_add_u32 s47, s47, s46
    v_add_u32 v{T_ADR}, s47, v{T_PAT}
    ds_read_b128 {vr(UB.q,4)}, v{T_ADR} offset:2048
    ds_read_b128 {vr(UB.q+4,4)}, v{T_ADR} offset:{2048+512}
    ds_read_b128 {vr(UA.q,4)}, v{T_ADR}
    ds_read_b128 {vr(UA.q+4,4)}, v{T_ADR} offset:512
    """)
    b_section(a, True)
    stamp(a, 25, opt)
    a(f"""
    s_cmp_lt_u32 s{S_WAVE}, 4
    s_cbranch_scc1 L_bown
    s_cmp_eq_u32 s{S_RB}, 0
    s_cbranch_scc1 L_bown
    s_sub_u32 s46, s{S_FLAG}, 128
    s_mov_b32 s48, {SPIN_MAX}
    s_branch L_bpoll_e
    """)
    a.label("L_bpoll_l")
    if opt.backoff: a(f"s_sleep {opt.backoff}")
    a.label("L_bpoll_e")
    a(f"""
    buffer_load_dwordx4 {vr(T_C,4)}, off, {SRD_WS}, s46 sc1
    s_sub_u32 s48, s48, 1
    s_cmp_eq_u32 s48, 0
    s_cbranch_scc1 L_bpoll_d
    s_waitcnt vmcnt(0)
    v_and_b32 v{T_C}, v{T_C}, v{T_C+1}
    v_and_b32 v{T_C+2}, v{T_C+2}, v{T_C+3}
    v_and_b32 v{T_C}, v{T_C}, v{T_C+2}
    v_cmp_ne_u32 vcc, 1, v{T_C}
    s_cbranch_vccnz L_bpoll_l
    """)
    a.label("L_bpoll_d")
    stamp(a, 26, opt)
    a(f"""
    s_sub_u32 s46, s{S_WAVE}, 4
    s_lshl_b32 s47, s{S_PAIR}, 3
    s_add_u32 s47, s47, s{S_RB}
    s_lshl_b32 s47, s47, 2
    s_add_u32 s47, s47, s46
    s_lshl_b32 s47, s47, 14
    s_add_u32 s47, s47, {WS_KV - 65536}
    s_lshl_b32 s46, s46, 14
    v_lshlrev_b32 v{T_T0}, 4, v{V_LANE}
    """)
    for i in range(4):
        a(f"s_add_u32 m0, s46, {i*4096}")
        if i: a("s_add_u32 s47, s47, 4096")
        else: a("s_nop 0")
        for k in range(4):
            if not (opt.exp & 2): a(f"buffer_load_dwordx4 v{T_T0}, {SRD_WS}, s47 offen offset:{k*1024} sc1 lds")
    if opt.prof: a("s_waitcnt vmcnt(0)")
    a.label("L_bown")
    stamp(a, 27, opt)
    f_gate_setup(a)
    a(f"""
    s_waitcnt vmcnt(0) lgkmcnt(0)
    s_barrier
    s_cmp_lt_u32 s{S_WAVE}, 4
    s_cbranch_scc1 L_nofill
    """)
    f_prefill(a, opt, "B")
    a.label("L_nofill")
    stamp(a, 28, opt)
    a(f"""
    s_cmp_eq_u32 s{S_RB}, 0
    s_cbranch_scc1 L_bfin
    """)
    b_section(a, False)
    a.label("L_bfin")
    a(f"buffer_load_dwordx4 {vr(F_FL,4)}, v{F_FA}, {SRD_WS}, s{S_GA} offen sc1")
    a("s_waitcnt lgkmcnt(0)")
    b_final(a, UB, "b", opt)
    b_final(a, UA, "a", opt)
    stamp(a, 29, opt); cstamp(a, 35, opt)
    a(f"""
    s_cmp_ge_u32 s{S_WAVE}, 4
    s_cbranch_scc1 L_fprodB
    s_waitcnt vmcnt(4)
    """)
    f_consumer(a, opt, "B")
    a("s_endpgm")
    f_producer(a, opt, "B")
    b_slow(a, UA, "a")
    b_slow(a, UB, "b")

def phi_pack(a, dst, x, y, t):
    for i, b in enumerate((x, x + 2, y, y + 2)):
        a(f"v_pk_fma_f32 {vr(t+2*i,2)}, {vr(b,2)}, s[64:65], s[64:65] op_sel_hi:[1,0,0] neg_lo:[0,0,1] neg_hi:[0,0,1]")
    for i in range(8): a(f"v_exp_f32_e64 v{t+i}, v{t+i} clamp")
    for i in range(8): a(f"v_max_f32 v{t+i}, v{t+i}, v{(x if i < 4 else y) + (i & 3)}")
    for i in range(4): a(f"v_pk_add_f32 {vr(t+2*i,2)}, {vr(t+2*i,2)}, s[66:67] op_sel_hi:[1,0]")
    for i in range(4): a(f"v_cvt_pk_bf16_f32 v{dst+i}, v{t+2*i}, v{t+2*i+1}")

A_KV = 192
A_T = 216; A_ONE = 224; A_OP = 228
LA_FIN = 32768
def a_consumer(a, opt):
    L = V_LANE
    a(f"""
    s_mov_b32 s64, {hex(f2u(LOG2E))}
    s_mov_b32 s66, {hex(f2u(1e-6))}
    s_mul_i32 s46, s{S_WAVE}, 6144
    v_lshlrev_b32 v253, 4, v{L}
    v_add_u32 v248, s46, v253
    s_and_b32 s47, s{S_WAVE}, 1
    s_mul_i32 s46, s47, 3072
    s_add_u32 s46, s46, {LA_FIN}
    v_add_u32 v249, s46, v253
    s_waitcnt lgkmcnt(0)
    """)
    for i in range(4): a(f"v_mov_b32 v{A_ONE+i}, 0x3f803f80")
    kvb = lambda db, eb: A_KV + eb * 12 + db * 4
    zb = lambda db: A_KV + db * 12 + 8
    for m in range(4):
        for nb in range(2):
            phi_pack(a, acc(2*m, 2+nb), acc(2*m, 2+nb), acc(2*m+1, 2+nb), A_T)
        for nb in range(2):
            d, x, y = acc(2*m, 4+nb), acc(2*m, 4+nb), acc(2*m+1, 4+nb)
            a(f"v_cvt_pk_bf16_f32 v{d}, v{x}, v{x+1}\nv_cvt_pk_bf16_f32 v{d+1}, v{x+2}, v{x+3}\nv_cvt_pk_bf16_f32 v{d+2}, v{y}, v{y+1}\nv_cvt_pk_bf16_f32 v{d+3}, v{y+2}, v{y+3}")
        for db in range(2):
            c = vr(zb(db), 4)
            a(f"v_mfma_f32_16x16x32_bf16 {c}, {vr(acc(2*m,2+db),4)}, {vr(A_ONE,4)}, {c if m else 0}")
        for eb in range(2):
            for db in range(2):
                c = vr(kvb(db, eb), 4)
                a(f"v_mfma_f32_16x16x32_bf16 {c}, {vr(acc(2*m,2+db),4)}, {vr(acc(2*m,4+eb),4)}, {c if m else 0}")
    a("s_nop 7")
    for i in (2, 5, 0, 1, 3, 4):
        a(f"ds_write_b128 v248, {vr(A_KV+4*i,4)} offset:{i*1024}")
    a("s_waitcnt lgkmcnt(0)\ns_barrier")
    stamp(a, 24, opt)
    for sb in range(8):
        phi_pack(a, acc(sb, 0), acc(sb, 0), acc(sb, 1), A_T)
    a(f"""
    s_lshl_b32 s46, s{S_RB}, 6
    s_lshl_b32 s48, s{S_PAIR}, 1
    s_add_u32 s46, s46, s48
    s_add_u32 s46, s46, s47
    s_lshl_b32 s46, s46, 1
    s_lshr_b32 s48, s{S_WAVE}, 1
    s_add_u32 s46, s46, s48
    s_lshl_b32 s48, s46, 13
    s_add_u32 s49, s48, 4096
    """)
    stamp(a, 25, opt)
    a("s_barrier")
    stamp(a, 28, opt)
    for i in range(3): a(f"ds_read_b128 {vr(A_OP+4*i,4)}, v249 offset:{i*1024}")
    a("s_waitcnt lgkmcnt(0)")
    for sb in range(8):
        for i in range(3):
            a(f"v_mfma_f32_16x16x32_bf16 {vr(acc(sb,2+i),4)}, {vr(A_OP+4*i,4)}, {vr(acc(sb,0),4)}, 0")
    for sb in range(8):
        n0, dn = acc(sb, 2), acc(sb, 4)
        a(f"v_add_f32 v{dn}, s66, v{dn}")
        a(f"v_rcp_f32 v{dn}, v{dn}")
        a("s_nop 0")
        for r in range(0, 8, 2):
            a(f"v_pk_mul_f32 {vr(n0+r,2)}, {vr(n0+r,2)}, {vr(dn,2)} op_sel_hi:[1,0]")
        for k in range(4):
            a(f"v_cvt_pk_bf16_f32 v{n0+k}, v{n0+2*k}, v{n0+2*k+1}")
        a(f"buffer_store_dwordx4 {vr(n0,4)}, v253, {SRD_WS}, s{48 + (sb>>2)} offen offset:{(sb&3)*1024} sc1")
    stamp(a, 29, opt)
    f_gate_setup(a)
    f_flag(a)
    a(f"""
    buffer_load_dwordx4 {vr(F_FL,4)}, v{F_FA}, {SRD_WS}, s{S_GA} offen sc1
    s_waitcnt vmcnt(0)
    """)

def a_producer(a, opt):
    L = V_LANE
    a(f"""
    s_sub_u32 s46, s{S_WAVE}, 4
    s_and_b32 s47, s46, 1
    s_lshr_b32 s48, s46, 1
    s_mul_i32 s49, s47, 6144
    s_mul_i32 s50, s48, 3072
    s_add_u32 s49, s49, s50
    v_lshlrev_b32 v1, 4, v{L}
    v_add_u32 v2, s49, v1
    s_mul_i32 s49, s47, 3072
    s_add_u32 s49, s49, {LA_FIN}
    s_lshl_b32 s50, s48, 10
    s_add_u32 s50, s50, s49
    v_add_u32 v3, s50, v1
    s_lshl_b32 s50, s48, 3
    s_add_u32 s50, s50, s49
    v_add_u32 v4, s50, v1
    v_lshrrev_b32 v5, 4, v{L}
    v_lshlrev_b32 v5, 4, v5
    s_lshl_b32 s51, s{S_PAIR}, 5
    s_add_u32 s51, s51, s46
    s_lshl_b32 s51, s51, 12
    s_add_u32 s51, s51, {WS_PART}
    s_lshl_b32 s52, s{S_RB}, 14
    s_add_u32 s52, s52, s51
    s_mov_b32 s55, 0
    s_setprio 2
    s_barrier
    """)
    stamp(a, 24, opt)
    for i in range(3):
        a(f"ds_read_b128 {vr(8+4*i,4)}, v2 offset:{i*1024}")
        a(f"ds_read_b128 {vr(20+4*i,4)}, v2 offset:{12288 + i*1024}")
    a("s_waitcnt lgkmcnt(0)")
    for r in range(0, 12, 2): a(f"v_pk_add_f32 {vr(8+r,2)}, {vr(8+r,2)}, {vr(20+r,2)}")
    a(f"""
    buffer_store_dwordx4 v[8:11], v1, {SRD_WS}, s52 offen sc1
    buffer_store_dwordx4 v[12:15], v1, {SRD_WS}, s52 offen offset:1024 sc1
    buffer_store_dwordx4 v[16:19], v5, {SRD_WS}, s52 offen offset:2048 sc1
    s_mov_b32 s48, {SPIN_MAX // 8}
    v_and_b32 v6, 7, v{L}
    v_lshlrev_b32 v6, 14, v6
    """)
    if opt.await0: a("s_waitcnt vmcnt(0)")
    stamp(a, 25, opt)
    a.label("L_agather")
    a(f"s_mov_b32 s54, s{S_RB if opt.arot else 55}")
    for src in range(8):
        b = 32 + 12 * src
        a(f"""
        s_lshl_b32 s53, s54, 14
        s_add_u32 s53, s53, s51
        buffer_load_dwordx4 {vr(b,4)}, v1, {SRD_WS}, s53 offen sc1
        buffer_load_dwordx4 {vr(b+4,4)}, v1, {SRD_WS}, s53 offen offset:1024 sc1
        {"s_mov_b64 exec, 1" if opt.exp & 4 else ""}
        buffer_load_dwordx4 {vr(b+8,4)}, v5, {SRD_WS}, s53 offen offset:2048 sc1
        {"s_mov_b64 exec, -1" if opt.exp & 4 else ""}
        s_add_u32 s54, s54, 1
        s_and_b32 s54, s54, 7
        """)
    for src in range(1, 8):
        a(f"s_waitcnt vmcnt({3*(7-src)})")
        for r in range(0, 12, 2): a(f"v_pk_add_f32 {vr(32+r,2)}, {vr(32+r,2)}, {vr(32+12*src+r,2)}")
    a("""
    v_pk_add_f32 v[44:45], v[32:33], v[34:35]
    v_pk_add_f32 v[46:47], v[36:37], v[38:39]
    v_pk_add_f32 v[48:49], v[40:41], v[42:43]
    v_pk_add_f32 v[44:45], v[44:45], v[46:47]
    """ + ("" if opt.exp & 4 else "v_pk_add_f32 v[44:45], v[44:45], v[48:49]") + """
    v_cmp_u_f32 vcc, v44, v45
    s_cbranch_vccz L_apoll_d
    """)
    a.label("L_apoll")
    a(f"""
    s_sub_u32 s48, s48, 1
    s_cmp_eq_u32 s48, 0
    s_cbranch_scc1 L_apoll_d
    buffer_load_dword v7, v6, {SRD_WS}, s51 offen offset:2048 sc1
    s_waitcnt vmcnt(0)
    v_cmp_eq_u32 vcc, -1, v7
    s_cbranch_vccnz L_apoll
    s_branch L_agather
    """)
    a.label("L_apoll_d")
    stamp(a, 26, opt)
    if opt.prof: a(f"s_sub_u32 s94, {SPIN_MAX//8+1}, s48\nv_writelane_b32 v255, s94, 38")
    for k in range(6): a(f"v_cvt_pk_bf16_f32 v{32+k}, v{32+2*k}, v{33+2*k}")
    a("""
    ds_write_b128 v3, v[32:35]
    ds_write_b64 v4, v[36:37] offset:2048
    s_waitcnt lgkmcnt(0)
    """)
    stamp(a, 27, opt)
    a("s_barrier")

F_FL, F_FA, F_FB = 224, 228, 229
def f_gate_setup(a):
    a(f"""
    v_and_b32 v{F_FA}, 15, v{V_LANE}
    v_lshlrev_b32 v{F_FA}, 10, v{F_FA}
    v_and_b32 v{F_FB}, 16, v{V_LANE}
    v_add_u32 v{F_FB}, v{F_FB}, v{F_FA}
    s_lshl_b32 s{S_GA}, s{S_RT}, 7
    s_add_u32 s{S_GA}, s{S_GA}, {WS_FLAG + 32}
    s_add_u32 s{S_GB}, s{S_GA}, 16384
    s_cmp_eq_u32 s{S_WAVE}, 0
    s_cselect_b32 s{S_GA}, s{S_GA}, 0x10000000
    """)
def f_flag(a, wait="s_waitcnt vmcnt(0)"):
    a(f"""
    s_lshl_b32 s46, s{S_WAVE}, 2
    s_add_u32 s46, s46, s{S_FLAG}
    v_mov_b32 v{F_FL+6}, 1
    s_mov_b64 exec, 1
    {wait}
    buffer_store_dword v{F_FL+6}, off, {SRD_WS}, s46 offset:32 sc1
    s_mov_b64 exec, -1
    """)
def f_gate_check(a, tag, vaddr, sbase, opt):
    a(f"s_mov_b32 s48, {SPIN_MAX}")
    a.label(f"L_gate{tag}")
    a(f"""
    v_and_b32 v{F_FL}, v{F_FL}, v{F_FL+1}
    v_and_b32 v{F_FL+2}, v{F_FL+2}, v{F_FL+3}
    v_and_b32 v{F_FL}, v{F_FL}, v{F_FL+2}
    v_cmp_ne_u32 vcc, 1, v{F_FL}
    s_cbranch_vccz L_gated{tag}
    s_sub_u32 s48, s48, 1
    s_cmp_eq_u32 s48, 0
    s_cbranch_scc1 L_gated{tag}
    s_sleep {opt.backoff}
    buffer_load_dwordx4 {vr(F_FL,4)}, v{vaddr}, {SRD_WS}, s{sbase} offen sc1
    s_waitcnt vmcnt(0)
    s_branch L_gate{tag}
    """)
    a.label(f"L_gated{tag}")
DW = 8; LW = 163840 - DW * 8192
FV_W0, FV_W1 = 240, 241
S_FW, S_FWL = 90, 91
SRD_WO = "s[80:83]"
def f_geom(opt, ty):
    n = opt.na if ty == "A" else 16 - opt.na
    sb0 = 0 if ty == "A" else opt.na
    fs = 2 * n * 1024
    d = min(LW // fs, opt.fdepth, DW)
    return n, sb0, fs, d

def f_issue_w(a):
    a(f"""
    s_and_b32 s57, s{S_FW}, 15
    s_lshl_b32 s57, s57, 17
    s_and_b32 s56, s{S_FW}, {DW-1}
    s_lshl_b32 s56, s56, 13
    s_add_u32 m0, s56, s{S_FWL}
    s_add_u32 s{S_FW}, s{S_FW}, 1
    buffer_load_dwordx4 v{FV_W0}, {SRD_WO}, s57 offen lds
    buffer_load_dwordx4 v{FV_W1}, {SRD_WO}, s57 offen offset:1024 lds
    """)

def f_rot(a, opt, dst):
    a(f"s_lshl_b32 s{dst}, s{S_CT}, 1\ns_and_b32 s{dst}, s{dst}, {opt.fstag}")

def f_prefill(a, opt, ty):
    L = V_LANE
    a(f"""
    s_sub_u32 s46, s{S_WAVE}, 4
    v_lshrrev_b32 v{FV_W1}, 3, v{L}
    v_xor_b32 v{FV_W0}, v{FV_W1}, v{L}
    v_and_b32 v{FV_W0}, 6, v{FV_W0}
    v_and_or_b32 v{FV_W0}, v{L}, 1, v{FV_W0}
    v_lshlrev_b32 v{FV_W0}, 4, v{FV_W0}
    v_lshl_add_u32 v{FV_W0}, v{FV_W1}, 11, v{FV_W0}
    s_lshl_b32 s47, s{S_CT}, 7
    s_lshl_b32 s48, s46, 15
    s_add_u32 s47, s47, s48
    v_add_u32 v{FV_W0}, s47, v{FV_W0}
    v_add_u32 v{FV_W1}, {16384 - 1024}, v{FV_W0}
    s_lshl_b32 s{S_FWL}, s46, 11
    s_add_u32 s{S_FWL}, s{S_FWL}, {LW}
    s_mov_b32 s80, s8
    s_and_b32 s81, s9, 0xffff
    s_mov_b32 s82, 0x200000
    s_mov_b32 s83, 0x20000
    s_mov_b32 s49, {DW}
    """)
    f_rot(a, opt, S_FW)
    a.label(f"L_fill{ty}")
    f_issue_w(a)
    a(f"s_sub_u32 s49, s49, 1\ns_cmp_lg_u32 s49, 0\ns_cbranch_scc1 L_fill{ty}")

def f_producer(a, opt, ty):
    L = V_LANE
    n, sb0, FS, D = f_geom(opt, ty)
    h = n // 2
    a.label(f"L_fprod{ty}")
    a(f"""
    s_setprio 3
    s_sub_u32 s46, s{S_WAVE}, 4
    v_lshlrev_b32 v10, 4, v{L}
    s_lshl_b32 s59, s{S_RT}, 20
    s_lshr_b32 s47, s46, 1
    s_lshl_b32 s47, s47, 14
    s_add_u32 s59, s59, s47
    s_and_b32 s47, s46, 1
    s_mul_i32 s47, s47, {h*1024}
    s_add_u32 s59, s59, s47
    s_add_u32 s59, s59, {sb0*1024}
    v_add_u32 v13, 4096, v10
    s_mul_i32 s54, s46, {h*1024}
    s_mov_b32 s58, 0
    """)
    f_rot(a, opt, 60)
    if opt.prof: a("s_mov_b32 s92, 0")
    a("s_barrier")
    stamp(a, 40, opt)
    def issue_o():
        a(f"""
        s_lshl_b32 s56, s60, 15
        s_add_u32 m0, s58, s54
        s_add_u32 s56, s56, s59
        """)
        for i in range(min(h, 4)):
            a(f"buffer_load_dwordx4 v10, {SRD_WS}, s56 offen offset:{i*1024} sc1 lds")
        if h > 4:
            a("s_add_u32 m0, m0, 4096\ns_nop 0")
            for i in range(h - 4):
                a(f"buffer_load_dwordx4 v13, {SRD_WS}, s56 offen offset:{i*1024} sc1 lds")
        a(f"""
        s_add_u32 s60, s60, 1
        s_and_b32 s60, s60, 15
        s_add_u32 s58, s58, {FS}
        s_cmp_eq_u32 s58, {FS*D}
        s_cselect_b32 s58, 0, s58
        """)
    q = []
    def need(stage):
        last = max(i for i, e in enumerate(q) if e == ('o', stage) or e == ('w', stage)) if any(e in (('o', stage), ('w', stage)) for e in q) else -1
        return len(q) - 1 - last
    pre = min(opt.fpre, D)
    for st in range(pre):
        issue_o(); q += [('o', st)] * h
        if st == 1 and ty == "B":
            f_flag(a, f"s_waitcnt vmcnt({len(q)})"); q.append(('f',))
    a(f"s_waitcnt vmcnt({need(0)})\ns_barrier")
    stamp(a, 41, opt); cstamp(a, 36, opt)
    its = []
    no, nw = pre, DW
    for b in range(-1, 31):
        ko = 0
        swo = False
        while no < 32 and no <= b + D and ko < 2 and not (no == 16 and ko):
            if no == 16: swo = True
            q += [('o', no)] * h; no += 1; ko += 1
        kw = 0; sww = False
        if nw < 32 and nw <= b + DW:
            if nw == 16: sww = True
            q += [('w', nw)] * 2; nw += 1; kw = 1
        N = need(b + 2) if b + 2 < 32 else None
        assert N is None or N <= 63
        its.append((ko, kw, N, swo, sww))
    gate_b = [b for b, it in zip(range(-1, 31), its) if it[3]][0]
    assert gate_b == 16 - D
    i = 0; nl = 0
    while i < len(its):
        ko, kw, N, swo, sww = its[i]
        j = i + 1
        while j < len(its) and its[j] == (ko, kw, N, False, False): j += 1
        if swo: a(f"s_add_u32 s59, s59, {32*16384}")
        if sww: a("s_mov_b32 s80, s14\ns_and_b32 s81, s15, 0xffff")
        if j - i > 1:
            nl += 1
            a(f"s_mov_b32 s50, {j - i}"); a.label(f"L2_prod{ty}{nl}")
        for _ in range(ko): issue_o()
        if kw: f_issue_w(a)
        if N is not None: a(f"s_waitcnt vmcnt({N})")
        a("s_barrier")
        if opt.prof:
            a("s_lshr_b32 m0, s92, 1\ns_add_u32 m0, m0, 44\ns_add_u32 s92, s92, 1"); stamp(a, "m0", opt)
        if j - i > 1:
            a(f"s_sub_u32 s50, s50, 1\ns_cmp_lg_u32 s50, 0\ns_cbranch_scc1 L2_prod{ty}{nl}")
        i = j
    stamp(a, 42, opt); cstamp(a, 37, opt)
    prof_dump(a, opt, WS_PROF)
    a("s_endpgm")

def f_consumer(a, opt, ty):
    L = V_LANE
    n, sb0, FS, D = f_geom(opt, ty)
    h = n // 2
    AC0, AC1 = 0, 8 * h
    FR = (16 * h + 15) // 16 * 16; FN = 8 * h + 16
    VO, VW0, VW1, VGA, VG, T, VWB = 232, 233, 234, 235, 236, 242, 231
    assert FR + 2 * FN <= F_FL
    a(f"s_cmp_lg_u32 s{S_WAVE}, 0\ns_cbranch_scc1 L_gatedA{ty}")
    f_gate_check(a, "A" + ty, F_FA, S_GA, opt)
    a("s_barrier")
    stamp(a, 40, opt)
    if ty == "B": f_flag(a)
    elif opt.otouch:
        a(f"""
        s_lshl_b32 s48, s{S_RT}, 6
        s_and_b32 s49, s{S_CT}, 7
        s_lshl_b32 s49, s49, 2
        s_add_u32 s48, s48, s49
        s_add_u32 s48, s48, s{S_WAVE}
        s_lshl_b32 s48, s48, 14
        s_add_u32 s48, s48, {n*1024}
        v_min_u32 v2, {(16-n)*8 - 1}, v{L}
        v_lshlrev_b32 v2, 7, v2
        buffer_load_dword v{VG}, v2, {SRD_WS}, s48 offen sc1
        """)
    gi = 16 - D
    a(f"""
    s_lshr_b32 s46, s{S_WAVE}, 1
    s_and_b32 s47, s{S_WAVE}, 1
    v_lshlrev_b32 v1, 4, v{L}
    s_mul_i32 s48, s46, {h*1024}
    v_add_u32 v{VO}, s48, v1
    v_lshrrev_b32 v1, 2, v{L}
    v_lshlrev_b32 v2, 7, v1
    v_bfe_u32 v3, v{L}, 3, 2
    s_lshl_b32 s48, s47, 1
    v_xor_b32 v3, s48, v3
    v_lshl_add_u32 v2, v3, 5, v2
    v_and_b32 v3, 3, v{L}
    v_lshl_add_u32 v2, v3, 3, v2
    v_add_u32 v{VWB}, {LW}, v2
    v_bfe_u32 v1, v{L}, 1, 3
    v_lshlrev_b32 v1, 7, v1
    v_and_b32 v2, 1, v{L}
    v_lshl_add_u32 v{VGA}, v2, 2, v1
    s_lshl_b32 s61, s{S_RT}, 4
    s_mul_i32 s48, s46, {h}
    s_add_u32 s61, s61, s48
    s_add_u32 s61, s61, {sb0}
    s_lshl_b32 s62, s61, 10
    s_add_u32 s62, s62, {WS_G}
    s_mov_b32 s28, s18
    s_and_b32 s29, s19, 0xffff
    s_mov_b32 s30, 0x400000
    s_cmp_eq_u32 s{S_WAVE}, 0
    s_cselect_b32 s74, {8 - gi // 2 + 1}, 63
    s_cselect_b32 s75, {8 - gi // 2}, 63
    v_mov_b32 v{FR}, 0
    v_mov_b32 v{FR+1}, 0
    v_mov_b32 v{FR+2}, 0
    v_mov_b32 v{FR+3}, 0
    s_mov_b32 s51, 0
    s_mov_b32 s53, {FS}
    """)
    for r in range(0, FR, 16): a(f"v_mfma_f32_32x32x16_bf16 {vr(r,16)}, {vr(FR,4)}, {vr(FR,4)}, 0")
    def reads(st):
        b = FR + FN * st
        out = []
        for kk in range(2):
            for nb in range(2):
                for t in range(2):
                    out.append(f"ds_read_b64_tr_b16 {vr(b + 8*h + (kk*2+nb)*4 + 2*t, 2)}, v{VW0+nb} offset:{kk*4096 + t*2048}")
            for i in range(h):
                out.append(f"ds_read_b128 {vr(b + (kk*h+i)*4, 4)}, v{VO} offset:{kk*n*1024 + i*1024}")
        return out
    def adv():
        return [f"s_add_u32 s51, s51, 1", f"s_cmp_eq_u32 s51, {D}", f"s_cselect_b32 s52, {(-(D-1)*FS) & 0xffffffff}, s53", "s_cselect_b32 s51, 0, s51",
                f"v_add_u32 v{VO}, s52, v{VO}"] + advw()
    def advw():
        return [f"s_and_b32 s55, s54, {DW-1}", "s_lshl_b32 s55, s55, 13", "s_add_u32 s54, s54, 1", f"v_add_u32 v{VW0}, s55, v{VWB}", f"v_xor_b32 v{VW1}, 32, v{VW0}"]
    f_rot(a, opt, 54)
    for l in advw(): a(l)
    a("s_barrier")
    for l in reads(0) + adv(): a(l)
    for half in range(2):
        ac = AC0 if half == 0 else AC1
        a("s_mov_b32 s50, 8")
        a.label(f"L2_loop{half}{ty}")
        if half == 1:
            a(f"s_cmp_eq_u32 s50, {opt.gload}\ns_cbranch_scc0 L_nog{ty}")
            for i in range(h):
                a(f"buffer_load_dword v{VG+i}, v{VGA}, {SRD_WS}, s62 offen sc1")
                a("s_add_u32 s62, s62, 1024")
            a.label(f"L_nog{ty}")
        for st in range(2):
            if half == 0 and st == (gi & 1):
                a(f"""
                s_cmp_eq_u32 s50, s74
                s_cbranch_scc0 L_noprobe{ty}
                buffer_load_dwordx4 {vr(F_FL,4)}, v{F_FB}, {SRD_WS}, s{S_GB} offen sc1
                """)
                a.label(f"L_noprobe{ty}")
                a(f"s_cmp_eq_u32 s50, s75\ns_cbranch_scc0 L_gatedB{ty}")
                stamp(a, 41, opt)
                a("s_waitcnt vmcnt(0)")
                f_gate_check(a, "B" + ty, F_FB, S_GB, opt)
            a("s_waitcnt lgkmcnt(0)\ns_barrier")
            rd = reads(1 - st)
            b = FR + FN * st
            mf = []
            for kk in range(2):
                for nb in range(2):
                    for i in (range(h) if nb == 0 else reversed(range(h))):
                        c = vr(ac + (i * 2 + nb) * 4, 4)
                        mf.append(f"v_mfma_f32_16x16x32_bf16 {c}, {vr(b + 8*h + (kk*2+nb)*4, 4)}, {vr(b + (kk*h+i)*4, 4)}, {c}")
            extra = max(0, len(rd) - len(mf))
            for l in rd[:extra]: a(l)
            rd = rd[extra:]
            for m, l in enumerate(mf):
                if m < len(rd): a(rd[m])
                a(l)
            for l in adv(): a(l)
        a(f"s_sub_u32 s50, s50, 1\ns_cmp_lg_u32 s50, 0\ns_cbranch_scc1 L2_loop{half}{ty}")
    a(f"""
    v_and_b32 v{T}, 15, v{L}
    v_lshlrev_b32 v{T}, 11, v{T}
    v_bfe_u32 v{T+1}, v{L}, 4, 1
    v_lshl_add_u32 v{T}, v{T+1}, 5, v{T}
    v_lshrrev_b32 v{T+1}, 5, v{L}
    v_lshl_add_u32 v{T}, v{T+1}, 4, v{T}
    s_lshl_b32 s48, s61, 15
    s_lshl_b32 s49, s{S_CT}, 7
    s_add_u32 s48, s48, s49
    s_lshl_b32 s49, s47, 6
    s_add_u32 s48, s48, s49
    s_waitcnt vmcnt(0)
    """)
    for i in range(h):
        g = T + 2; b0 = AC0 + i * 8; b1 = AC1 + i * 8
        a(f"v_mov_b32 v{g}, v{VG+i}")
        a(f"v_sub_f32 v{g+2}, 1.0, v{VG+i}")
        for r in range(0, 8, 2):
            a(f"v_pk_mul_f32 {vr(b1+r,2)}, {vr(b1+r,2)}, {vr(g+2,2)} op_sel_hi:[1,0]")
        for r in range(0, 8, 2):
            a(f"v_pk_fma_f32 {vr(b0+r,2)}, {vr(b0+r,2)}, {vr(g,2)}, {vr(b1+r,2)} op_sel_hi:[1,0,1]")
        for k in range(4): a(f"v_cvt_pk_bf16_f32 v{b0+k}, v{b0+2*k}, v{b0+2*k+1}")
        a("s_nop 1")
        a(f"v_permlane16_swap_b32 v{b0}, v{b0+2}")
        a(f"v_permlane16_swap_b32 v{b0+1}, v{b0+3}")
        a(f"buffer_store_dwordx4 {vr(b0,4)}, v{T}, s[28:31], s48 offen")
        a(f"s_add_u32 s48, s48, {16*2048}")
    stamp(a, 43, opt)
    prof_dump(a, opt, WS_PROF)

def gen_k1(opt):
    a = Asm()
    k1_prologue(a, opt)
    dma_addrs(a)
    k1_srds(a)
    a(f"s_cmp_ge_u32 s{S_WAVE}, 4")
    a("s_cbranch_scc1 L_producer")
    consumer_setup(a, opt)
    a(f"s_cmp_eq_u32 s{S_BR}, 0")
    a("s_cbranch_scc1 L_consA")
    consumer_gemm(a, True, "B")
    b_epilogue(a, opt)
    b_consts(a)
    b_attention(a, opt)
    a.label("L_consA")
    consumer_gemm(a, False, "A")
    a_consumer(a, opt)
    f_consumer(a, opt, "A")
    a.label("L1_end")
    a("s_endpgm")
    a.label("L_producer")
    producer_gemm(a, opt)
    producer_gate(a, opt)
    b_consts(a)
    a("s_setprio 0")
    a("s_barrier")
    stamp(a, 15, opt)
    a(f"s_cmp_eq_u32 s{S_BR}, 0")
    a("s_cbranch_scc1 L_prodA")
    a(f"s_setprio {opt.bprio}\ns_barrier\ns_branch L_battn1")
    a.label("L_prodA")
    if opt.afill == 0: f_prefill(a, opt, "A")
    a_producer(a, opt)
    if opt.afill == 1: f_prefill(a, opt, "A")
    f_producer(a, opt, "A")
    a.label("L_code_end")
    return a.text()

def kd(name, nv):
    return f""".amdhsa_kernel {name}
  .amdhsa_next_free_vgpr {nv}
  .amdhsa_next_free_sgpr 102
  .amdhsa_accum_offset {nv}
  .amdhsa_group_segment_fixed_size 0
  .amdhsa_kernarg_size 80
  .amdhsa_user_sgpr_count 2
  .amdhsa_user_sgpr_kernarg_segment_ptr 1
  .amdhsa_system_sgpr_workgroup_id_x 1
.end_amdhsa_kernel
"""

def gen_all(opt):
    k1 = NAME + "_kernel"
    launch = f"; @launch kernel={k1} grid=(256,1,1) block=(512,1,1) lds=163840" if opt.aslist else "; @launch grid=(256,1,1) block=(512,1,1) lds=163840"
    s = f"""; Generated by my own generator script (dev/gen.py).
; Kernarg: 0 A_x, 8 A_wqkv, 16 A_wo, 24 B_x, 32 B_wqkv, 40 B_wo, 48 gate_w, 56 out, 64 debug, 72 ws
{launch}
.amdgcn_target "amdgcn-amd-amdhsa--gfx950"
.text
.globl {k1}
.p2align 8
.type {k1},@function
{k1}:
{gen_k1(opt)}
.section .rodata,"a"
.p2align 6
{kd(k1, 256)}"""
    return s

if __name__ == "__main__":
    opt = Opt()
    out = f"cdna_kernels/{NAME}.s"
    for arg in sys.argv[1:]:
        k, v = arg.split("=")
        if k == "out": out = v
        else: setattr(opt, k, eval(v))
    open(out, "w").write(gen_all(opt))
    print("wrote", out)
```

```python
import sys, struct
from asm import *

NAME = "gated_mix__linear_attn_block__sliding_block__prompt"
WS_O = 0
WS_KV = 8 << 20
WS_PART = 16 << 20
WS_FLAG = 18 << 20
WS_G = 19 << 20
WS_PROF = 20 << 20
XSLOT = 32768; NXS = 3
WBASE = XSLOT * NXS; WSLOT = 24576
ACC = 0; XA = 192; XB = 208; WF = 224
V_XA0, V_XA1, V_WA0, V_WA1, V_LANE = 248, 249, 250, 251, 252
S_WAVE, S_RB, S_PAIR, S_BR, S_XCD, S_J = 40, 41, 42, 43, 44, 45
SRD_X, SRD_W, SRD_WS, SRD_DBG = "s[24:27]", "s[28:31]", "s[32:35]", "s[36:39]"
S_GA, S_RH, S_RT, S_CT = 76, 77, 78, 79
S_FLAG = 63
SPIN_MAX = 20000
def f2u(x): return struct.unpack("<I", struct.pack("<f", x))[0]
LOG2E = 1.4426950408889634

def acc(sb, j): return ACC + (sb * 6 + j) * 4

class Opt:
    pf = 4
    prof = False
    force_slow = False
    fstag = 0
    fpre = 4
    gload = 2
    await0 = True
    a3 = True
    outaux = ''
    wfirst = False
    w64 = False
    fprio = 3
    flagat = 4
    tmode = 2
    tpos = 0
    exp = 0
    afill = 1
    wovec = 0
    n13 = 4
    n14 = 6
    fmap = 1
    bwait = False
    oprio = 0
    stlate = 0
    kvst = 'sc1'
    kvld = 'sc1'
    prew = 0
    prew_at = 4
    tlb = 0
    xl2 = False
    na = 8
    fdepth = 8
    otouch = False
    wo_from = 2
    early = 2
    backoff = 4
    codepf = 3
    bprio = 1
    tailprio = 0
    aslist = False

def stamp(a, idx, opt):
    if not opt.prof: return
    a("s_memrealtime s[94:95]")
    a("s_waitcnt lgkmcnt(0)")
    a(f"v_writelane_b32 v255, s94, {idx}")

def cstamp(a, idx, opt):
    if not opt.prof: return
    a("s_memtime s[94:95]")
    a("s_waitcnt lgkmcnt(0)")
    a(f"v_writelane_b32 v255, s94, {idx}")

def prof_dump(a, opt, base):
    if not opt.prof: return
    a(f"""
    s_lshl_b32 s94, s2, 3
    s_add_u32 s94, s94, s{S_WAVE}
    s_lshl_b32 s94, s94, 8
    s_add_u32 s94, s94, {base}
    v_mbcnt_lo_u32_b32 v254, -1, 0
    v_mbcnt_hi_u32_b32 v254, -1, v254
    v_lshlrev_b32 v254, 2, v254
    buffer_store_dword v255, v254, {SRD_WS}, s94 offen
    """)

def k1_prologue(a, opt):
    a(f"""
    s_cmp_ge_u32 s2, 256
    s_cbranch_scc1 L1_end
    s_load_dwordx16 s[4:19], s[0:1], 0
    s_load_dwordx4 s[20:23], s[0:1], 64
    v_lshrrev_b32 v1, 6, v0
    s_and_b32 s{S_XCD}, s2, 7
    s_lshr_b32 s{S_J}, s2, 3
    v_readfirstlane_b32 s{S_WAVE}, v1
    s_lshr_b32 s{S_RB}, s{S_J}, 2
    s_and_b32 s{S_BR}, s{S_J}, 1
    s_bfe_u32 s{S_PAIR}, s{S_J}, 0x10001
    s_lshl_b32 s46, s{S_XCD}, 1
    s_add_u32 s{S_PAIR}, s{S_PAIR}, s46
    v_and_b32 v0, 63, v0
    s_lshl_b32 s46, s{S_BR}, 4
    s_add_u32 s46, s46, s{S_PAIR}
    s_lshl_b32 s46, s46, 3
    s_add_u32 s46, s46, s{S_RB}
    s_lshl_b32 s46, s46, 11
    s_add_u32 s{S_FLAG}, s46, {WS_FLAG}
    {f"s_and_b32 s{S_CT}, s{S_J}, 7" if opt.fmap else f"s_bfe_u32 s{S_CT}, s{S_J}, 0x30001"}
    s_xor_b32 s{S_CT}, s{S_CT}, {1 if opt.fmap == 1 else 0}
    {f"s_bfe_u32 s{S_RH}, s{S_J}, 0x10003" if opt.fmap else f"s_mov_b32 s{S_RH}, s{S_BR}"}
    s_and_b32 s46, s{S_XCD}, 1
    s_lshl_b32 s46, s46, 3
    s_add_u32 s{S_CT}, s{S_CT}, s46
    s_lshr_b32 s{S_RT}, s{S_J}, 4
    s_and_b32 s46, s{S_XCD}, 6
    s_add_u32 s{S_RT}, s{S_RT}, s46
    s_mov_b32 s26, 0x400000
    s_mov_b32 s27, 0x20000
    s_mov_b32 s30, 0x600000
    s_mov_b32 s31, 0x20000
    s_mov_b32 s34, 0x10000000
    s_mov_b32 s35, 0x20000
    s_mov_b32 s38, 256
    s_mov_b32 s39, 0x20000
    """)

def k1_srds(a):
    a(f"""
    s_waitcnt lgkmcnt(0)
    s_mov_b32 s24, s4
    s_and_b32 s25, s5, 0xffff
    s_cmp_eq_u32 s{S_BR}, 0
    s_cselect_b32 s28, s6, s12
    s_cselect_b32 s29, s7, s13
    s_and_b32 s29, s29, 0xffff
    s_mov_b32 s32, s22
    s_and_b32 s33, s23, 0xffff
    s_mov_b32 s36, s20
    s_and_b32 s37, s21, 0xffff
    """)

def consumer_substep(kk, wslot, btype, nxt_kk, nxt_wslot, barrier, extra=None):
    items = []
    def xread(grp, i, kk_):
        reg = (XA if grp == 0 else XB) + 4 * i
        sb = grp * 4 + i
        return dict(txt=f"ds_read_b128 {vr(reg,4)}, v{V_XA0 + kk_} offset:{sb*2048}", loads=('x', grp, i))
    def wread(j, t, kk_, ws):
        reg = WF + 4 * j + 2 * t
        off = ws * WSLOT + (j >> 1) * 8192 + kk_ * 4096 + t * 512
        return dict(txt=f"ds_read_b64_tr_b16 {vr(reg,2)}, v{V_WA0 + (j & 1)} offset:{off}", loads=('w', j, t))
    after = {m: [] for m in range(48)}
    after[0] += [wread(5, 0, kk, wslot)]
    after[1] += [wread(5, 1, kk, wslot)]
    for i in range(4): after[2 + 2 * i] += [xread(1, i, kk)]
    m0 = 24
    if barrier:
        after[24] += [dict(txt="s_barrier", drain=True)]
        m0 = 25
    xpos = [m0, m0 + 1, 29, 30]
    for i in range(4): after[xpos[i]] += [xread(0, i, nxt_kk)]
    for j in range(5):
        after[27 + 4 * j] += [wread(j, 0, nxt_kk, nxt_wslot)]
        after[28 + 4 * j] += [wread(j, 1, nxt_kk, nxt_wslot)]
    for m, txt in (extra or []):
        after[m].append(dict(txt=txt))
    m = 0
    for grp in range(2):
        for j in range(6):
            order = range(4) if j % 2 == 0 else [3, 2, 1, 0]
            for i in order:
                sb = grp * 4 + i
                xr = vr((XA if grp == 0 else XB) + 4 * i, 4); wr = vr(WF + 4 * j, 4)
                seg = j >> 1
                transposed = (seg == 0) or (seg == 1 and btype)
                A, B = (wr, xr) if transposed else (xr, wr)
                c = vr(acc(sb, j), 4)
                items.append(dict(txt=f"v_mfma_f32_16x16x32_bf16 {c}, {A}, {B}, {c}", reads={('x', grp, i), ('w', j, 0), ('w', j, 1)}))
                items += after[m]
                m += 1
    return items

def consumer_gemm(a, btype, tag):
    pre = [dict(txt=f"ds_read_b128 {vr(XA+4*i,4)}, v{V_XA0} offset:{i*2048}", loads=('x', 0, i)) for i in range(4)]
    def wr(j, t): return dict(txt=f"ds_read_b64_tr_b16 {vr(WF+4*j+2*t,2)}, v{V_WA0 + (j&1)} offset:{(j>>1)*8192 + t*512}", loads=('w', j, t))
    pre = [pre[0], pre[1], wr(0, 0), wr(0, 1), pre[2], pre[3]] + [wr(j, t) for j in range(1, 5) for t in range(2)]
    lines, q0 = schedule_waits(pre)
    a("s_mov_b32 s50, 8")
    a("s_mov_b32 s51, 0")
    for l in lines: a(l)
    a.label(f"L_gemm_{tag}")
    body = []
    for st in range(2):
        ex0 = [(10, "s_add_u32 s51, s51, 1"), (11, "s_cmp_eq_u32 s51, 3"), (12, f"s_cselect_b32 s52, {-2*XSLOT & 0xffffffff}, s53"), (13, "s_cselect_b32 s51, 0, s51"),
               (16, f"v_add_u32 v{V_XA0}, s52, v{V_XA0}")]
        ex1 = [(16, f"v_add_u32 v{V_XA1}, s52, v{V_XA1}")]
        if st == 1: ex1 += [(40, "s_sub_u32 s50, s50, 1"), (46, "s_cmp_lg_u32 s50, 0")]
        body += consumer_substep(0, st, btype, 1, st, False, ex0)
        body += consumer_substep(1, st, btype, 0, 1 - st, True, ex1)
    lines, q1 = schedule_waits(body, q0)
    assert q1 == q0, (q0, q1)
    for l in lines: a(l)
    a(f"s_cbranch_scc1 L_gemm_{tag}")

def consumer_setup(a, opt):
    if opt.prof: a("v_mov_b32 v255, 0")
    stamp(a, 22, opt)
    issue_w(a, "0", "s55"); issue_x(a, "0", "s54")
    a(f"""
    s_barrier
    v_and_b32 v1, 15, v0
    v_lshrrev_b32 v2, 4, v0
    v_bfe_u32 v3, v0, 1, 3
    v_xor_b32 v3, v2, v3
    v_lshlrev_b32 v3, 4, v3
    v_lshl_add_u32 v3, v1, 7, v3
    s_lshr_b32 s46, s{S_WAVE}, 1
    s_lshl_b32 s46, s46, 14
    v_add_u32 v{V_XA0}, s46, v3
    v_xor_b32 v{V_XA1}, 64, v{V_XA0}
    v_bfe_u32 v3, v0, 2, 2
    v_lshl_add_u32 v4, v2, 3, v3
    v_lshlrev_b32 v4, 7, v4
    v_bfe_u32 v5, v0, 3, 2
    s_and_b32 s46, s{S_WAVE}, 1
    s_lshl_b32 s46, s46, 1
    v_xor_b32 v5, s46, v5
    v_lshl_add_u32 v4, v5, 5, v4
    v_and_b32 v5, 3, v0
    v_lshl_add_u32 v4, v5, 3, v4
    v_add_u32 v{V_WA0}, {WBASE}, v4
    v_xor_b32 v{V_WA1}, 32, v{V_WA0}
    s_mov_b32 s53, {XSLOT}
    s_mov_b32 s80, s8
    s_and_b32 s81, s9, 0xffff
    s_mov_b32 s82, 0x200000
    s_mov_b32 s83, 0x20000
    s_mov_b32 s84, s14
    s_and_b32 s85, s15, 0xffff
    s_mov_b32 s86, 0x200000
    s_mov_b32 s87, 0x20000
    """)
    a(f"s_cmp_eq_u32 s{S_BR}, 0")
    a("s_cselect_b32 s46, 1.0, 0")
    a("s_nop 0")
    for sb in range(8):
        for j in range(6):
            for r in range(4):
                a(f"v_mov_b32 v{acc(sb,j)+r}, {'s46' if j < 4 else '0'}")

    a(f"""
    v_mov_b32 v{XA}, {LCNT}
    v_mov_b32 v{XA+1}, 1
    s_mov_b64 exec, 1
    s_waitcnt vmcnt(0)
    ds_add_u32 v{XA}, v{XA+1}
    s_mov_b64 exec, -1
    """)
    a.label("L_st0")
    a(f"""
    ds_read_b32 v{XA+2}, v{XA}
    s_waitcnt lgkmcnt(0)
    v_readfirstlane_b32 s46, v{XA+2}
    s_cmp_lt_u32 s46, 4
    s_cbranch_scc1 L_st0
    """)
    stamp(a, 20, opt)

LCNT = 147456
def dma_addrs(a):
    a(f"""
    s_and_b32 s46, s{S_WAVE}, 3
    v_lshrrev_b32 v1, 3, v0
    v_and_b32 v2, 7, v0
    v_and_b32 v3, 2, v1
    v_xor_b32 v3, v2, v3
    v_lshlrev_b32 v3, 4, v3
    v_mul_u32_u24 v4, 6144, v1
    s_lshl_b32 s47, s{S_PAIR}, 7
    s_mul_i32 s48, s46, {2*8*6144}
    s_add_u32 s47, s47, s48
    v_add3_u32 v20, v4, v3, s47
    v_xor_b32 v21, 64, v20
    v_add_u32 v21, {8*6144 - 1024}, v21
    v_lshrrev_b32 v3, 1, v1
    v_xor_b32 v3, v2, v3
    v_lshlrev_b32 v3, 4, v3
    s_lshl_b32 s47, s{S_RB}, 8
    s_lshl_b32 s48, s46, 6
    s_add_u32 s47, s47, s48
    v_add_u32 v4, s47, v1
    v_lshl_add_u32 v10, v4, 11, v3
    v_xor_b32 v11, 64, v10
    """)
    for i in (3, 2, 1):
        a(f"v_add_u32 v{10+i}, {i*16384 - i*1024}, v{10 + (i & 1)}")
    a(f"""
    s_lshl_b32 s54, s46, 13
    s_lshl_b32 s55, s46, 11
    s_add_u32 s55, s55, {WBASE}
    v_mov_b32 v{V_LANE}, v0
    """)
def issue_w(a, step_s, slot_off):
    for seg in range(3):
        a(f"s_add_u32 m0, {slot_off}, {seg*8192}")
        a(f"s_add_u32 s48, {step_s}, {seg*2048}")
        a(f"buffer_load_dwordx4 v20, {SRD_W}, s48 offen lds")
        a(f"buffer_load_dwordx4 v21, {SRD_W}, s48 offen offset:1024 lds")
def issue_x(a, step_s, slot_off, groups=(0, 1)):
    for g in groups:
        a(f"s_add_u32 m0, {slot_off}, {g*4096}")
        a(f"s_add_u32 s48, {step_s}, {g*65536}")
        for i in range(4):
            a(f"buffer_load_dwordx4 v{10+i}, {SRD_X}, s48 offen offset:{i*1024} lds")

def producer_gemm(a, opt):
    pf = opt.pf
    a(f"""
    v_mov_b32 v1, 0
    v_mov_b32 v2, {LCNT}
    ds_write_b32 v2, v1
    v_mul_u32_u24 v5, 0x5556, v0
    v_lshrrev_b32 v5, 16, v5
    v_mul_u32_u24 v6, 3, v5
    v_sub_u32 v6, v0, v6
    s_lshl_b32 s47, s{S_RB}, 3
    v_add_u32 v5, s47, v5
    v_mul_u32_u24 v5, 6144, v5
    v_lshl_add_u32 v5, v6, 11, v5
    s_lshl_b32 s47, s{S_PAIR}, 7
    v_add_u32 v30, s47, v5
    v_mov_b32 v7, 0x7f000000
    v_cmp_gt_u32 vcc, 24, v0
    s_lshl_b32 s47, {f"s{S_J}, 6" if opt.xl2 else "s2, 3"}
    v_add_u32 v5, s47, v0
    v_cndmask_b32 v30, v7, v30, vcc
    v_lshlrev_b32 v31, 11, v5
    v_cmp_gt_u32 vcc, {64 if opt.xl2 else 8}, v0
    s_add_u32 s62, s46, 1
    v_lshlrev_b32 v44, 4, v0
    v_cndmask_b32 v31, v7, v31, vcc
    v_mov_b32 v48, 0
    v_mov_b32 v49, 0
    v_mov_b32 v50, 0
    v_mov_b32 v51, 0
    s_lshl_b32 s85, s{S_PAIR}, 1
    s_add_u32 s85, s85, s{S_BR}
    s_lshl_b32 s85, s85, 3
    s_lshl_b32 s47, s46, 10
    s_add_u32 s47, s47, s{S_FLAG}
    s_cmp_lt_u32 s46, 2
    s_cselect_b32 s47, s47, 0x10000000
    v_mov_b32 v36, 1
    s_mov_b32 s57, {64*6144}
    s_add_u32 s58, s55, {WSLOT}
    """)
    if opt.tmode >= 1:
        a(f"""
        v_and_b32 v4, 31, v0
        v_mul_u32_u24 v5, 0x5556, v4
        v_lshrrev_b32 v5, 16, v5
        v_mul_u32_u24 v6, 3, v5
        v_sub_u32 v6, v4, v6
        s_lshl_b32 s48, s{S_RB}, 3
        v_add_u32 v5, s48, v5
        v_mul_u32_u24 v5, 6144, v5
        v_lshl_add_u32 v5, v6, 11, v5
        v_lshrrev_b32 v6, 5, v0
        s_and_b32 s48, s{S_PAIR}, 14
        v_add_u32 v6, s48, v6
        v_lshl_add_u32 v5, v6, 7, v5
        s_add_u32 s48, s46, s{S_PAIR}
        s_bitcmp0_b32 {"s48" if opt.tmode == 2 else f"s{S_PAIR}"}, 0
        s_cselect_b32 s93, -1, 0
        s_and_b32 vcc_lo, s93, 0xffffff
        s_mov_b32 vcc_hi, vcc_lo
        v_cndmask_b32 v30, v7, v5, vcc
        v_and_b32 v4, 7, v0
        v_bfe_u32 v5, v0, 3, 1
        v_lshl_add_u32 v4, v5, 7, v4
        s_and_b32 s48, s2, 0xef
        s_lshl_b32 s48, s48, 3
        v_add_u32 v4, s48, v4
        v_lshlrev_b32 v4, 11, v4
        s_and_b32 vcc_lo, vcc_lo, 0xffff
        s_mov_b32 vcc_hi, 0
        v_cndmask_b32 v31, v7, v4, vcc
        """)
    def touch():
        a(f"""
        s_mul_i32 s60, s62, {64*6144}
        s_lshl_b32 s61, s62, 7
        buffer_load_dword v32, v30, {SRD_W}, s60 offen
        buffer_load_dword v33, v31, {SRD_X}, s61 offen
        s_add_u32 s62, s62, 4
        """)
    a(f"""
    s_getpc_b64 s[86:87]
    L_pc:
    s_sub_u32 s86, s86, L_pc-{NAME}_kernel
    s_subb_u32 s87, s87, 0
    v_and_b32 v37, 7, v0
    s_lshl_b32 s48, s{S_J}, 3
    v_add_u32 v37, s48, v37
    v_lshlrev_b32 v37, 7, v37
    v_min_u32 v37, L_code_end-{NAME}_kernel-4, v37
    """)
    if opt.codepf & 1:
        a(f"s_cmp_eq_u32 s46, 3\ns_cbranch_scc0 L_nocode\nglobal_load_dword v38, v37, s[86:87]")
        a.label("L_nocode")
    a(f"s_cmp_lt_u32 s46, {opt.early}\ns_cbranch_scc0 L_noearly")
    touch()
    a.label("L_noearly")
    a(f"""
    s_waitcnt lgkmcnt(0)
    s_barrier
    s_setprio 3
    """)
    if opt.prof: a("v_mov_b32 v255, 0")
    stamp(a, 21, opt)
    a(f"buffer_store_dwordx4 v[48:51], v44, {SRD_WS}, s47 offen sc1")
    a(f"""
    s_cmp_eq_u32 s{S_BR}, 0
    s_cbranch_scc0 L_nosent
    s_lshl_b32 s47, s{S_PAIR}, 3
    s_add_u32 s47, s47, s{S_RB}
    s_lshl_b32 s47, s47, 2
    s_add_u32 s47, s47, s46
    s_lshl_b32 s47, s47, 12
    s_add_u32 s47, s47, {WS_PART}
    v_mov_b32 v40, -1
    v_mov_b32 v41, -1
    v_mov_b32 v42, -1
    v_mov_b32 v43, -1
    buffer_store_dwordx4 v[40:43], v44, {SRD_WS}, s47 offen sc1
    s_mov_b64 exec, 0xff
    buffer_store_dwordx4 v[40:43], v44, {SRD_WS}, s47 offen offset:1024 sc1
    s_mov_b64 exec, -1
    """)
    a.label("L_nosent")
    issue_w(a, "s57", "s58")
    a("s_mov_b32 s57, 128"); a(f"s_add_u32 s58, s54, {XSLOT}")
    issue_x(a, "s57", "s58")
    a("s_mov_b32 s57, 256"); a(f"s_add_u32 s58, s54, {2*XSLOT}")
    issue_x(a, "s57", "s58")
    a(f"s_cmp_lt_u32 s46, {opt.early}\ns_cbranch_scc1 L_nolate")
    touch()
    a("s_waitcnt vmcnt(10)\ns_branch L_late")
    a.label("L_nolate")
    a("s_waitcnt vmcnt(8)")
    a.label("L_late")
    a("s_barrier")
    stamp(a, 0, opt); cstamp(a, 30, opt)
    if opt.prof:
        a("s_getreg_b32 s94, hwreg(HW_REG_XCC_ID)\nv_writelane_b32 v255, s94, 33")
    a(f"""
    s_cmp_lt_u32 s46, 2
    s_cselect_b32 s80, s8, s14
    s_cselect_b32 s81, s9, s15
    s_and_b32 s81, s81, 0xffff
    s_mov_b32 s82, 0x200000
    s_mov_b32 s83, 0x20000
    s_and_b32 s84, s2, {0xef if opt.tmode else 0xff}
    s_lshl_b32 s84, s84, 1
    s_and_b32 s48, s46, 1
    s_add_u32 s84, s84, s48
    s_lshl_b32 s84, s84, 12
    v_lshlrev_b32 v34, 7, v0
    v_cmp_gt_u32 vcc, 16, v0
    s_nop 1
    v_cndmask_b32 v34, v7, v34, vcc
    """)
    if opt.tmode >= 1:
        a(f"""
        v_and_b32 v4, 15, v0
        v_lshlrev_b32 v4, 7, v4
        v_lshrrev_b32 v5, 4, v0
        v_lshl_add_u32 v4, v5, 17, v4
        s_mov_b32 vcc_lo, s93
        s_mov_b32 vcc_hi, 0
        v_cndmask_b32 v34, v7, v4, vcc
        """)
    a(f"""
    s_mov_b32 s50, 0
    s_mov_b32 s56, {2*64*6144}
    s_mov_b32 s57, {3*128}
    s_mov_b32 s58, s55
    s_mov_b32 s59, s54
    s_mov_b32 s51, 0
    """)
    if opt.wovec:
        a(f"""
        s_mov_b32 s68, s14
        s_and_b32 s69, s15, 0xffff
        s_mov_b32 s70, 0x200000
        s_mov_b32 s71, 0x20000
        s_sub_u32 s88, 3, s46
        s_lshl_b32 s88, s88, 5
        s_add_u32 s88, s88, s{S_J}
        s_lshl_b32 s88, s88, 14
        s_and_b32 s48, s{S_XCD}, 1
        s_lshl_b32 s48, s48, 10
        s_add_u32 s88, s88, s48
        v_lshrrev_b32 v39, 3, v0
        v_lshlrev_b32 v39, 4, v39
        v_and_or_b32 v39, v0, 7, v39
        v_lshlrev_b32 v39, 7, v39
        s_lshr_b32 s89, s46, 1
        s_add_u32 s89, s89, 9
        """)
    if opt.prew:
        a(f"""
        s_lshl_b32 s73, s{S_RB}, 1
        s_add_u32 s73, s73, s{S_BR}
        s_lshl_b32 s73, s73, 4
        s_add_u32 s73, s73, s{S_PAIR}
        s_lshl_b32 s73, s73, 2
        s_add_u32 s73, s73, s46
        s_lshl_b32 s73, s73, 13
        s_lshl_b32 s74, s{S_PAIR}, 3
        s_add_u32 s74, s74, s{S_RB}
        s_lshl_b32 s74, s74, 2
        s_add_u32 s74, s74, s46
        s_lshl_b32 s74, s74, 14
        s_add_u32 s74, s74, {WS_KV}
        s_cmp_eq_u32 s{S_BR}, 0
        s_cselect_b32 s74, 0x10000000, s74
        v_lshlrev_b32 v8, {7 if opt.prew == 1 else 4}, v0
        """)
    a.label("L_prod")
    issue_w(a, "s56", "s58")
    ga, gb = {0: ((), (0, 1)), 1: ((0,), (1,)), 2: ((0, 1), ())}[opt.tpos]
    issue_x(a, "s57", "s59", ga)
    a(f"""
    s_and_b32 s47, s50, 3
    s_cmp_eq_u32 s47, s46
    s_cbranch_scc0 L_notouch
    s_cmp_lt_u32 s62, 16
    s_cbranch_scc0 L_lateturn
    """)
    touch()
    a(f"""
    s_cmp_eq_u32 s50, 1
    s_cbranch_scc0 L_noatom
    s_mov_b64 exec, 1
    buffer_atomic_add v36, off, {SRD_DBG}, s85 sc1
    s_mov_b64 exec, -1
    s_branch L_three
    """)
    a.label("L_noatom")
    a(f"""
    s_sub_u32 s47, s50, {opt.wo_from}
    s_cmp_lt_u32 s47, 8
    s_cselect_b32 s47, s84, 0x200000
    s_cselect_b32 s49, 2048, 0
    buffer_load_dword v35, v34, s[80:83], s47 offen
    s_add_u32 s84, s84, s49
    """)
    a.label("L_three")
    issue_x(a, "s57", "s59", gb)
    a("s_waitcnt vmcnt(11)\ns_branch L_touched")
    a.label("L_lateturn")
    if opt.codepf & 2:
        a("s_cmp_eq_u32 s50, 11\ns_cbranch_scc0 L_late12\nglobal_load_dword v38, v37, s[86:87]")
        issue_x(a, "s57", "s59", gb)
        a("s_waitcnt vmcnt(9)\ns_branch L_touched")
        a.label("L_late12")
        if opt.tlb:
            a(f"""
            v_min_u32 v38, {(20 << 20 >> opt.tlb) - 1}, v0
            v_lshlrev_b32 v38, {opt.tlb}, v38
            buffer_load_dword v35, v38, {SRD_WS}, 0 offen
            v_and_b32 v38, 0x3fffff, v38
            global_load_dword v35, v38, s[18:19]
            """)
            issue_x(a, "s57", "s59", gb)
            a("s_waitcnt vmcnt(10)\ns_branch L_touched")
    a.label("L_notouch")
    issue_x(a, "s57", "s59", gb)
    a("s_waitcnt vmcnt(8)")
    a.label("L_touched")
    if opt.prew == 1:
        a(f"""
        s_sub_u32 s47, s50, {opt.prew_at}
        s_cmp_lt_u32 s47, 3
        s_cbranch_scc0 L_noprew
        s_cmp_eq_u32 s47, 2
        s_cselect_b32 s47, s73, s74
        buffer_store_dword v0, v8, {SRD_WS}, s47 offen sc1
        s_add_u32 s74, s74, 8192
        L_noprew:
        """)
    if opt.prew == 2:
        a(f"""
        s_sub_u32 s47, s50, {opt.prew_at}
        s_cmp_lt_u32 s47, 8
        s_cbranch_scc0 L_noprew
        buffer_store_dwordx4 v[0:3], v8, {SRD_WS}, s74 offen sc1
        buffer_store_dwordx4 v[0:3], v8, {SRD_WS}, s74 offen offset:1024 sc1
        buffer_store_dwordx4 v[0:3], v8, {SRD_WS}, s73 offen sc1
        s_add_u32 s74, s74, 2048
        s_add_u32 s73, s73, 1024
        L_noprew:
        """)
    if opt.wovec:
        a(f"""
        s_cmp_eq_u32 s50, s89
        s_cbranch_scc0 L_nowo2
        buffer_load_dword v35, v39, s[68:71], s88 offen
        s_add_u32 s89, s89, 2
        s_mov_b32 s68, s8
        s_and_b32 s69, s9, 0xffff
        s_xor_b32 s88, s88, {3 << 19}
        L_nowo2:
        """)
    a(f"""
    s_add_u32 s56, s56, {64*6144}
    s_add_u32 s57, s57, 128
    s_cmp_eq_u32 s58, s55
    s_cselect_b32 s58, {WSLOT}, 0
    s_add_u32 s58, s58, s55
    s_add_u32 s51, s51, 1
    s_cmp_eq_u32 s51, 3
    s_cselect_b32 s51, 0, s51
    s_lshl_b32 s59, s51, 15
    s_add_u32 s59, s59, s54
    s_add_u32 s50, s50, 1
    s_barrier
    """)
    if opt.prof:
        a("s_mov_b32 m0, s50"); stamp(a, "m0", opt)
    a("""
    s_cmp_lt_u32 s50, 13
    s_cbranch_scc1 L_prod
    """)
    issue_w(a, "s56", "s58")
    a(f"""
    s_lshl_b32 s47, s{S_RB}, 1
    s_add_u32 s47, s47, s{S_BR}
    s_lshl_b32 s47, s47, 4
    s_add_u32 s47, s47, s{S_PAIR}
    s_lshl_b32 s47, s47, 2
    s_add_u32 s47, s47, s46
    s_lshl_b32 s48, s47, 12
    v_lshlrev_b32 v1, 5, v0
    s_mov_b32 s64, s16
    s_and_b32 s65, s17, 0xffff
    s_mov_b32 s66, 2048
    s_mov_b32 s67, 0x20000
    v_and_b32 v65, 31, v0
    v_lshlrev_b32 v65, 3, v65
    buffer_load_dwordx4 v[40:43], v1, s[64:67], 0 offen
    buffer_load_dwordx4 v[44:47], v1, s[64:67], 0 offen offset:16
    buffer_load_dwordx4 v[48:51], v1, {SRD_X}, s48 offen
    buffer_load_dwordx4 v[52:55], v1, {SRD_X}, s48 offen offset:16
    buffer_load_dwordx4 v[56:59], v1, {SRD_X}, s48 offen offset:2048
    buffer_load_dwordx4 v[60:63], v1, {SRD_X}, s48 offen offset:2064
    buffer_load_dword v64, v65, {SRD_DBG}, 0 offen sc1
    """)
    a("s_mov_b32 s93, s47")
    f_setup(a, opt)
    f_regload(a, 32 - opt.n13, 32)
    a(f"s_waitcnt vmcnt({7 + 2*opt.n13})\ns_barrier")
    f_regload(a, 32 - opt.n13 - opt.n14, 32 - opt.n13)
    a(f"s_mov_b32 s47, s93\ns_setprio {opt.tailprio}")
    stamp(a, 14, opt); cstamp(a, 31, opt)

def producer_gate(a, opt):
    nw = 2 * (opt.n13 + opt.n14)
    a(f"v_mov_b32 v2, 0\nv_mov_b32 v3, 0\ns_waitcnt vmcnt({nw})")
    for i in range(8):
        a(f"v_dot2c_f32_bf16 v2, v{48+i}, v{40+i}")
        a(f"v_dot2c_f32_bf16 v3, v{56+i}, v{40+i}")
    a("s_nop 2")
    a("""
    v_permlane32_swap_b32 v2, v3
    s_nop 1
    v_add_f32 v2, v2, v3
    v_mov_b32 v3, v2
    s_nop 1
    v_permlane16_swap_b32 v2, v3
    s_nop 1
    v_add_f32 v2, v2, v3
    """)
    for sh in (8, 4, 2, 1):
        a("s_nop 1")
        a(f"v_add_f32_dpp v2, v2, v2 row_ror:{sh} row_mask:0xf bank_mask:0xf")
    a(f"""
    v_mul_f32 v2, {hex(f2u(-LOG2E))}, v2
    v_exp_f32 v2, v2
    v_lshlrev_b32 v3, 2, v{V_LANE}
    v_add_f32 v2, 1.0, v2
    v_rcp_f32 v2, v2
    s_lshl_b32 s47, s47, 8
    s_add_u32 s47, s47, {WS_G}
    buffer_store_dword v2, v3, {SRD_WS}, s47 offen sc1
    s_mov_b32 s48, {SPIN_MAX}
    """)
    a.label(f"L_initpoll")
    a(f"""
    v_cmp_gt_u32 vcc, 8, v64
    s_cbranch_vccz L_initdone
    s_sub_u32 s48, s48, 1
    s_cmp_eq_u32 s48, 0
    s_cbranch_scc1 L_initdone
    buffer_load_dword v64, v65, {SRD_DBG}, 0 offen sc1
    s_waitcnt vmcnt(0)
    s_branch L_initpoll
    """)
    a.label(f"L_initdone")

T_S, T_P, T_K, T_V = 0, 32, 40, 48
class U:
    def __init__(s, sr_, q, o, l, sq): s.s, s.q, s.o, s.l, s.sq = sr_, q, o, l, sq
UA = U(0, 56, 64, 80, 70); UB = U(16, 84, 92, 108, 71)
T_MD, T_ME, T_SEL, T_PAT, T_ADR, T_T0, T_Z = 112, 128, 144, 148, 149, 150, 156
T_C = 16
T_PUB = 160
S_HB = 72
LQ = 131072
def swap34(i): return (i & 7) | ((i >> 4 & 1) << 3) | ((i >> 3 & 1) << 4)

def b_consts(a):
    a(f"v_mov_b32 v{T_T0}, {hex(f2u(-1e30))}")
    for n in range(16):
        g, r = n >> 2, n & 3
        m = 0
        for l in range(64):
            j, h = l & 31, l >> 5
            if swap34(8 * g + 4 * h + r) <= swap34(j): m |= 1 << l
        s = 64 + 2 * (n & 1)
        a(f"s_mov_b32 s{s}, {hex(m & 0xffffffff)}")
        a(f"s_mov_b32 s{s+1}, {hex(m >> 32)}")
        a(f"v_cndmask_b32_e64 v{T_MD+n}, v{T_T0}, 0, s[{s}:{s+1}]")
        a(f"v_cndmask_b32_e64 v{T_ME+n}, 0, v{T_T0}, s[{s}:{s+1}]")
    L = V_LANE
    a(f"""
    v_lshrrev_b32 v{T_T0}, 2, v{L}
    v_xor_b32 v{T_T0}, v{T_T0}, v{L}
    v_bfe_u32 v{T_T0}, v{T_T0}, 2, 1
    v_add_u32 v{T_T0}, -1, v{T_T0}
    v_and_b32 v{T_SEL}, 0x3f803f80, v{T_T0}
    v_mov_b32 v{T_Z}, 0
    v_mov_b32 v{T_Z+1}, 0
    v_mov_b32 v{T_Z+2}, 0
    v_mov_b32 v{T_Z+3}, 0
    v_mov_b32 v{T_SEL+1}, v{T_SEL}
    v_mov_b32 v{T_SEL+2}, v{T_SEL}
    v_mov_b32 v{T_SEL+3}, v{T_SEL}
    v_and_b32 v{T_PAT}, 7, v{L}
    v_lshlrev_b32 v{T_PAT}, 4, v{T_PAT}
    v_lshrrev_b32 v{T_T0}, 4, v{L}
    v_lshl_add_u32 v{T_PAT}, v{T_T0}, 7, v{T_PAT}
    v_bfe_u32 v{T_T0}, v{L}, 3, 1
    v_lshl_add_u32 v{T_PAT}, v{T_T0}, 10, v{T_PAT}
    s_and_b32 s46, s{S_WAVE}, 1
    s_lshl_b32 s{S_HB}, s46, 15
    s_and_b32 s46, s{S_WAVE}, 2
    s_sub_u32 s{UA.sq}, 6, s46
    s_cmp_lt_u32 s{S_WAVE}, 4
    s_cselect_b32 s{UA.sq}, s46, s{UA.sq}
    s_add_u32 s{UB.sq}, s{UA.sq}, 1
    """)
    for u in (UA, UB):
        a(f"v_mfma_f32_32x32x16_bf16 {vr(u.o,16)}, {vr(T_Z,4)}, {vr(T_Z,4)}, 0")
        a(f"v_mfma_f32_16x16x32_bf16 {vr(u.l,4)}, {vr(T_Z,4)}, {vr(T_Z,4)}, 0")

def b_epilogue(a, opt):
    L = V_LANE
    c = LOG2E / 32 ** 0.5
    a(f"""
    s_lshr_b32 s46, s{S_WAVE}, 1
    s_and_b32 s47, s{S_WAVE}, 1
    s_lshl_b32 s48, s47, 15
    s_lshl_b32 s49, s46, 13
    s_add_u32 s48, s48, s49
    s_add_u32 s48, s48, 65536
    v_lshlrev_b32 v253, 4, v{L}
    v_add_u32 v248, s48, v253
    s_lshl_b32 s48, s47, 14
    s_add_u32 s48, s48, s49
    s_add_u32 s48, s48, {LQ}
    v_add_u32 v249, s48, v253
    s_lshl_b32 s48, s{S_PAIR}, 3
    s_add_u32 s48, s48, s{S_RB}
    s_lshl_b32 s48, s48, 16
    s_lshl_b32 s47, s47, 15
    s_add_u32 s48, s48, s47
    s_add_u32 s48, s48, s49
    s_add_u32 s48, s48, {WS_KV if not (opt.exp & 1) else 0x10000000}
    s_cmp_eq_u32 s{S_RB}, {7 if opt.exp & 32 else 99}
    s_cselect_b32 s48, 0x10000000, s48
    s_add_u32 s49, s48, 4096
    s_add_u32 s50, s48, 16384
    s_add_u32 s51, s48, {16384+4096}
    s_mov_b32 s64, {hex(f2u(c))}
    """)
    def pack(dst, x, y):
        a(f"v_cvt_pk_bf16_f32 v{dst}, v{x}, v{x+1}")
        a(f"v_cvt_pk_bf16_f32 v{dst+1}, v{x+2}, v{x+3}")
        a(f"v_cvt_pk_bf16_f32 v{dst+2}, v{y}, v{y+1}")
        a(f"v_cvt_pk_bf16_f32 v{dst+3}, v{y+2}, v{y+3}")
    def qpack(sb):
        d = acc(sb, 0)
        for r in range(0, 8, 2):
            a(f"v_pk_mul_f32 {vr(d+r,2)}, {vr(d+r,2)}, s[64:65] op_sel_hi:[1,0]")
        pack(d, acc(sb, 0), acc(sb, 1))
    late = []
    def store(n, txt):
        if n >= 16 - opt.stlate: late.append(txt)
        else: a(txt)
    n = 0
    for m in range(4):
        for sb in (2 * m, 2 * m + 1):
            d = acc(sb, 2)
            pack(d, acc(sb, 2), acc(sb, 3))
            store(n, f"buffer_store_dwordx4 {vr(d,4)}, v253, {SRD_WS}, s{48 + (sb >> 2)} offen offset:{(sb & 3)*1024} {opt.kvst}"); n += 1
            a(f"ds_write_b128 v248, {vr(d,4)} offset:{sb*1024}")
            qpack(sb)
            a(f"ds_write_b128 v249, {vr(acc(sb,0),4)} offset:{sb*1024}")
        for nb in range(2):
            d = acc(2 * m, 4 + nb); i = 2 * m + nb
            pack(d, acc(2 * m, 4 + nb), acc(2 * m + 1, 4 + nb))
            store(n, f"buffer_store_dwordx4 {vr(d,4)}, v253, {SRD_WS}, s{50 + (i >> 2)} offen offset:{(i & 3)*1024} {opt.kvst}"); n += 1
            a(f"ds_write_b128 v248, {vr(d,4)} offset:{16384 + i*1024}")
    a("s_setprio 2\ns_waitcnt lgkmcnt(0)\ns_barrier")
    for t in late: a(t)
    if late: a("s_nop 1")

def b_phase(a, X, Y, kind, step, mask=None):
    S, P = X.s, T_P
    M32 = "v_mfma_f32_32x32x16_bf16"; M16 = "v_mfma_f32_16x16x32_bf16"
    e = lambda n: a(f"v_exp_f32 v{S+n}, v{S+n}")
    c = lambda k: a(f"v_cvt_pk_bf16_f32 v{P+k}, v{S+2*k}, v{S+2*k+1}")
    if kind == 'B': a("s_waitcnt lgkmcnt(1)")
    a(f"{M32} {vr(Y.s,16)}, {vr(T_K,4)}, {vr(Y.q,4)}, {vr(mask,16) if mask is not None else 0}")
    if kind == 'A': a(f"v_add_u32 v{T_ADR}, {step & 0xffffffff}, v{T_ADR}")
    e(0); e(1); e(2); c(0)
    a(f"{M32} {vr(Y.s,16)}, {vr(T_K+4,4)}, {vr(Y.q+4,4)}, {vr(Y.s,16)}")
    if kind == 'A':
        a(f"ds_read_b128 {vr(T_K,4)}, v{T_ADR}")
        a(f"ds_read_b128 {vr(T_K+4,4)}, v{T_ADR} offset:512")
    e(3); e(4); c(1); e(5)
    if kind != 'F':
        if kind == 'B': a("s_waitcnt lgkmcnt(0)")
        a(f"{M32} {vr(Y.o,16)}, {vr(T_V+4,4)}, {vr(P+4,4)}, {vr(Y.o,16)}")
        if kind == 'A': a(f"ds_read_b128 {vr(T_V+4,4)}, v{T_ADR} offset:{16384 + 512 - step}")
    e(6); c(2); e(7); e(8)
    if kind != 'F':
        a(f"{M16} {vr(Y.l,4)}, {vr(T_SEL,4)}, {vr(P+4,4)}, {vr(Y.l,4)}")
    c(3); e(9); e(10); c(4)
    if kind == 'A': a("s_waitcnt lgkmcnt(3)")
    a(f"{M32} {vr(X.o,16)}, {vr(T_V,4)}, {vr(P,4)}, {vr(X.o,16)}")
    if kind != 'A': a(f"ds_read_b128 {vr(T_V,4)}, v{T_ADR} offset:16384")
    e(11); e(12); c(5); e(13)
    a(f"{M16} {vr(X.l,4)}, {vr(T_SEL,4)}, {vr(P,4)}, {vr(X.l,4)}")
    e(14); e(15); c(6)
    if kind == 'B': a("s_sub_u32 s50, s50, 1\ns_cmp_lg_u32 s50, 0")
    c(7)

def b_section(a, own):
    X, Y = (UB, UA) if own else (UA, UB)
    step = -2048 if own else 2048
    mask = T_MD if own else T_ME
    tag = "own" if own else "halo"
    M32 = "v_mfma_f32_32x32x16_bf16"; M16 = "v_mfma_f32_16x16x32_bf16"
    if own: a(f"s_add_u32 s46, s{UA.sq}, 32\ns_add_u32 s50, s{UA.sq}, 1")
    else: a(f"s_add_u32 s46, s{UA.sq}, 1\ns_sub_u32 s50, 7, s{UA.sq}")
    a(f"""
    s_lshl_b32 s46, s46, 11
    s_add_u32 s46, s46, s{S_HB}
    v_add_u32 v{T_ADR}, s46, v{T_PAT}
    v_add_u32 v{T_T0}, {-step & 0xffffffff}, v{T_ADR}
    ds_read_b128 {vr(T_P,4)}, v{T_T0}
    ds_read_b128 {vr(T_P+4,4)}, v{T_T0} offset:512
    ds_read_b128 {vr(T_K,4)}, v{T_ADR}
    ds_read_b128 {vr(T_K+4,4)}, v{T_ADR} offset:512
    ds_read_b128 {vr(T_V,4)}, v{T_T0} offset:16384
    ds_read_b128 {vr(T_V+4,4)}, v{T_T0} offset:{16384+512}
    s_waitcnt lgkmcnt(5)
    {M32} {vr(X.s,16)}, {vr(T_P,4)}, {vr(X.q,4)}, {vr(mask,16)}
    s_waitcnt lgkmcnt(4)
    {M32} {vr(X.s,16)}, {vr(T_P+4,4)}, {vr(X.q+4,4)}, {vr(X.s,16)}
    s_waitcnt lgkmcnt(0)
    s_nop 7
    s_nop 1
    """)
    b_phase(a, X, Y, 'F', step, mask)
    a.label(f"L_pair_{tag}")
    b_phase(a, Y, X, 'A', step)
    b_phase(a, X, Y, 'B', step)
    a(f"""
    s_cbranch_scc1 L_pair_{tag}
    s_nop 0
    {M32} {vr(X.o,16)}, {vr(T_V+4,4)}, {vr(T_P+4,4)}, {vr(X.o,16)}
    {M16} {vr(X.l,4)}, {vr(T_SEL,4)}, {vr(T_P+4,4)}, {vr(X.l,4)}
    """)

def b_final(a, u, tag, opt):
    lo, hi = (2.0 ** -40, 2.0 ** 40) if not opt.force_slow else (2.0 ** 3, 2.0 ** 9)
    a(f"""
    s_lshl_b32 s46, s{S_RB}, 6
    s_lshl_b32 s47, s{S_PAIR}, 1
    s_add_u32 s46, s46, s47
    s_and_b32 s47, s{S_WAVE}, 1
    s_add_u32 s46, s46, s47
    s_add_u32 s46, s46, 32
    s_lshl_b32 s46, s46, 3
    s_add_u32 s46, s46, s{u.sq}
    s_lshl_b32 s73, s46, 11
    v_cmp_le_f32 vcc, {hex(f2u(lo))}, v{u.l}
    s_mov_b64 s[46:47], vcc
    v_cmp_ge_f32 vcc, {hex(f2u(hi))}, v{u.l}
    s_and_b64 s[46:47], s[46:47], vcc
    s_cmp_eq_u64 s[46:47], -1
    {"s_nop 0" if opt.exp else f"s_cbranch_scc0 L_slow_{tag}"}
    """)
    a.label(f"L_back_{tag}")
    a(f"v_rcp_f32 v{T_T0}, v{u.l}")
    a("s_nop 0")
    for r in range(0, 16, 2):
        a(f"v_pk_mul_f32 {vr(u.o+r,2)}, {vr(u.o+r,2)}, {vr(T_T0,2)} op_sel_hi:[1,0]")
    for k in range(8):
        a(f"v_cvt_pk_bf16_f32 v{u.o+k}, v{u.o+2*k}, v{u.o+2*k+1}")
    a(f"buffer_store_dwordx4 {vr(u.o,4)}, v{T_PAT}, {SRD_WS}, s73 offen sc1")
    a(f"buffer_store_dwordx4 {vr(u.o+4,4)}, v{T_PAT}, {SRD_WS}, s73 offen offset:512 sc1")

def b_slow(a, u, tag):
    S, P, M = T_S, T_P, T_T0 + 2
    a.label(f"L_slow_{tag}")
    a(f"""
    s_nop 7
    s_nop 7
    v_mfma_f32_32x32x16_bf16 {vr(u.o,16)}, {vr(T_Z,4)}, {vr(T_Z,4)}, 0
    v_mfma_f32_16x16x32_bf16 {vr(u.l,4)}, {vr(T_Z,4)}, {vr(T_Z,4)}, 0
    v_mov_b32 v{M}, {hex(f2u(-3e38))}
    s_add_u32 s52, s{u.sq}, 8
    """)
    for ps in range(2):
        a(f"""
        s_cmp_eq_u32 s{S_RB}, 0
        s_cselect_b32 s51, 8, s{u.sq}
        """)
        a.label(f"L_slowl_{tag}{ps}")
        a(f"""
        s_lshl_b32 s46, s{S_PAIR}, 3
        s_add_u32 s46, s46, s{S_RB}
        s_lshr_b32 s47, s51, 3
        s_add_u32 s46, s46, s47
        s_lshl_b32 s46, s46, 16
        s_and_b32 s47, s51, 7
        s_lshl_b32 s47, s47, 11
        s_add_u32 s46, s46, s47
        s_add_u32 s46, s46, s{S_HB}
        s_add_u32 s46, s46, {WS_KV - 65536}
        s_add_u32 s47, s46, 16384
        buffer_load_dwordx4 {vr(T_K,4)}, v{T_PAT}, {SRD_WS}, s46 offen sc1
        buffer_load_dwordx4 {vr(T_K+4,4)}, v{T_PAT}, {SRD_WS}, s46 offen offset:512 sc1
        buffer_load_dwordx4 {vr(T_V,4)}, v{T_PAT}, {SRD_WS}, s47 offen sc1
        buffer_load_dwordx4 {vr(T_V+4,4)}, v{T_PAT}, {SRD_WS}, s47 offen offset:512 sc1
        s_cmp_eq_u32 s51, s52
        s_cselect_b32 s47, 1.0, 0
        s_cmp_eq_u32 s51, s{u.sq}
        s_cselect_b32 s48, 1.0, 0
        """)
        for n in range(16):
            a(f"v_mul_f32 v{T_C+n}, s47, v{T_MD+n}")
            a(f"v_fmac_f32 v{T_C+n}, s48, v{T_ME+n}")
        a(f"""
        s_waitcnt vmcnt(0)
        s_nop 1
        v_mfma_f32_32x32x16_bf16 {vr(S,16)}, {vr(T_K,4)}, {vr(u.q,4)}, {vr(T_C,16)}
        v_mfma_f32_32x32x16_bf16 {vr(S,16)}, {vr(T_K+4,4)}, {vr(u.q+4,4)}, {vr(S,16)}
        s_nop 7
        s_nop 7
        """)
        if ps == 0:
            for n in range(0, 16, 2):
                a(f"v_max3_f32 v{M}, v{S+n}, v{S+n+1}, v{M}")
        else:
            for n in range(16): a(f"v_sub_f32 v{S+n}, v{S+n}, v{M}")
            for n in range(16): a(f"v_exp_f32 v{S+n}, v{S+n}")
            a("s_nop 0")
            for k in range(8): a(f"v_cvt_pk_bf16_f32 v{P+k}, v{S+2*k}, v{S+2*k+1}")
            a(f"""
            s_nop 1
            v_mfma_f32_32x32x16_bf16 {vr(u.o,16)}, {vr(T_V,4)}, {vr(P,4)}, {vr(u.o,16)}
            v_mfma_f32_32x32x16_bf16 {vr(u.o,16)}, {vr(T_V+4,4)}, {vr(P+4,4)}, {vr(u.o,16)}
            v_mfma_f32_16x16x32_bf16 {vr(u.l,4)}, {vr(T_SEL,4)}, {vr(P,4)}, {vr(u.l,4)}
            v_mfma_f32_16x16x32_bf16 {vr(u.l,4)}, {vr(T_SEL,4)}, {vr(P+4,4)}, {vr(u.l,4)}
            """)
        a(f"""
        s_add_u32 s51, s51, 1
        s_cmp_le_u32 s51, s52
        s_cbranch_scc1 L_slowl_{tag}{ps}
        """)
        if ps == 0:
            a(f"""
            v_mov_b32 v{M+1}, v{M}
            s_nop 1
            v_permlane32_swap_b32 v{M}, v{M+1}
            s_nop 1
            v_max_f32 v{M}, v{M}, v{M+1}
            """)
    a(f"s_nop 7\ns_nop 7\ns_branch L_back_{tag}")

def b_attention(a, opt):
    a(f"""
    s_lshl_b32 s46, s{S_WAVE}, 7
    s_add_u32 s46, s46, s{S_FLAG}
    v_mov_b32 v{T_T0}, 1
    v_lshlrev_b32 v{T_T0+1}, 2, v{V_LANE}
    s_mov_b32 exec_hi, 0
    s_waitcnt vmcnt(0)
    buffer_store_dword v{T_T0}, v{T_T0+1}, {SRD_WS}, s46 offen sc1
    s_mov_b32 exec_hi, -1
    """)
    stamp(a, 25, opt)
    a(f"""
    s_cmp_ge_u32 s{S_WAVE}, 2
    s_cbranch_scc1 L_bnopoll
    s_cmp_eq_u32 s{S_RB}, 0
    s_cbranch_scc1 L_bnopoll
    s_sub_u32 s46, s46, 2048
    s_mov_b32 s48, {SPIN_MAX}
    v_and_b32 v{T_C+1}, 1, v{V_LANE}
    v_lshlrev_b32 v{T_C+1}, 8, v{T_C+1}
    s_lshl_b32 s47, s{S_PAIR}, 3
    s_add_u32 s47, s47, s{S_RB}
    s_lshl_b32 s47, s47, 16
    s_add_u32 s47, s47, s{S_HB}
    s_add_u32 s47, s47, {WS_KV - 65536}
    v_lshlrev_b32 v{T_T0}, 4, v{V_LANE}
    """)
    if opt.bwait: a("s_waitcnt vmcnt(0)")
    a.label("L_bpoll_l")
    a(f"""
    buffer_load_dword v{T_C}, v{T_C+1}, {SRD_WS}, s46 offen sc1
    s_sub_u32 s48, s48, 1
    s_cmp_eq_u32 s48, 0
    s_cbranch_scc1 L_bpoll_d
    s_waitcnt vmcnt(0)
    v_cmp_ne_u32 vcc, 1, v{T_C}
    s_cbranch_vccnz L_bpoll_l
    """)
    a.label("L_bpoll_d")
    stamp(a, 26, opt)
    a(f"s_mov_b32 m0, s{S_HB}\ns_mov_b32 s48, 8")
    a.label("L_bdma")
    for k in range(4):
        if not (opt.exp & 2): a(f"buffer_load_dwordx4 v{T_T0}, {SRD_WS}, s47 offen offset:{k*1024} {opt.kvld} lds")
    a("""
    s_add_u32 m0, m0, 4096
    s_add_u32 s47, s47, 4096
    s_sub_u32 s48, s48, 1
    s_cmp_lg_u32 s48, 0
    s_cbranch_scc1 L_bdma
    """)
    a.label("L_bnopoll")
    a(f"s_setprio {opt.oprio}")
    a.label("L_battn1")
    stamp(a, 24, opt); cstamp(a, 34, opt)
    a(f"""
    s_lshr_b32 s46, s{S_HB}, 1
    s_add_u32 s46, s46, {LQ}
    s_lshl_b32 s47, s{UA.sq}, 11
    s_add_u32 s47, s47, s46
    v_add_u32 v{T_ADR}, s47, v{T_PAT}
    ds_read_b128 {vr(UB.q,4)}, v{T_ADR} offset:2048
    ds_read_b128 {vr(UB.q+4,4)}, v{T_ADR} offset:{2048+512}
    ds_read_b128 {vr(UA.q,4)}, v{T_ADR}
    ds_read_b128 {vr(UA.q+4,4)}, v{T_ADR} offset:512
    """)
    b_section(a, True)
    stamp(a, 27, opt)
    a(f"""
    s_setprio 0
    s_waitcnt vmcnt(0) lgkmcnt(0)
    s_barrier
    s_cmp_lt_u32 s{S_WAVE}, 4
    s_cbranch_scc1 L_nofill
    s_setprio {opt.bprio}
    """)
    f_prefill(a, opt, "B")
    a.label("L_nofill")
    stamp(a, 28, opt)
    a(f"""
    s_cmp_eq_u32 s{S_RB}, 0
    s_cbranch_scc1 L_bfin
    """)
    b_section(a, False)
    a.label("L_bfin")
    a("s_waitcnt lgkmcnt(0)\ns_nop 1")
    b_final(a, UB, "b", opt)
    b_final(a, UA, "a", opt)
    stamp(a, 29, opt); cstamp(a, 35, opt)
    a(f"""
    s_cmp_ge_u32 s{S_WAVE}, 4
    s_cbranch_scc1 L_fprod
    s_branch L_fcons
    """)
    b_slow(a, UA, "a")
    b_slow(a, UB, "b")

def phi_pack(a, dst, x, y, t):
    for i, b in enumerate((x, x + 2, y, y + 2)):
        a(f"v_pk_fma_f32 {vr(t+2*i,2)}, {vr(b,2)}, s[64:65], s[64:65] op_sel_hi:[1,0,0] neg_lo:[0,0,1] neg_hi:[0,0,1]")
    for i in range(8): a(f"v_exp_f32_e64 v{t+i}, v{t+i} clamp")
    for i in range(8): a(f"v_max_f32 v{t+i}, v{t+i}, v{(x if i < 4 else y) + (i & 3)}")
    for i in range(4): a(f"v_pk_add_f32 {vr(t+2*i,2)}, {vr(t+2*i,2)}, s[66:67] op_sel_hi:[1,0]")
    for i in range(4): a(f"v_cvt_pk_bf16_f32 v{dst+i}, v{t+2*i}, v{t+2*i+1}")

A_KV = 192
A_T = 216; A_ONE = 224; A_OP = 228
LA_FIN = 32768
def a_consumer(a, opt):
    L = V_LANE
    a(f"""
    s_mov_b32 s64, {hex(f2u(LOG2E))}
    s_mov_b32 s66, {hex(f2u(1e-6))}
    s_mul_i32 s46, s{S_WAVE}, 6144
    v_lshlrev_b32 v253, 4, v{L}
    v_add_u32 v248, s46, v253
    s_and_b32 s47, s{S_WAVE}, 1
    s_mul_i32 s46, s47, 3072
    s_add_u32 s46, s46, {LA_FIN}
    v_add_u32 v249, s46, v253
    s_waitcnt lgkmcnt(0)
    """)
    for i in range(4): a(f"v_mov_b32 v{A_ONE+i}, 0x3f803f80")
    kvb = lambda db, eb: A_KV + eb * 12 + db * 4
    zb = lambda db: A_KV + db * 12 + 8
    for m in range(4):
        for nb in range(2):
            phi_pack(a, acc(2*m, 2+nb), acc(2*m, 2+nb), acc(2*m+1, 2+nb), A_T)
        for nb in range(2):
            d, x, y = acc(2*m, 4+nb), acc(2*m, 4+nb), acc(2*m+1, 4+nb)
            a(f"v_cvt_pk_bf16_f32 v{d}, v{x}, v{x+1}\nv_cvt_pk_bf16_f32 v{d+1}, v{x+2}, v{x+3}\nv_cvt_pk_bf16_f32 v{d+2}, v{y}, v{y+1}\nv_cvt_pk_bf16_f32 v{d+3}, v{y+2}, v{y+3}")
        for db in range(2):
            c = vr(zb(db), 4)
            a(f"v_mfma_f32_16x16x32_bf16 {c}, {vr(acc(2*m,2+db),4)}, {vr(A_ONE,4)}, {c if m else 0}")
        for eb in range(2):
            for db in range(2):
                c = vr(kvb(db, eb), 4)
                a(f"v_mfma_f32_16x16x32_bf16 {c}, {vr(acc(2*m,2+db),4)}, {vr(acc(2*m,4+eb),4)}, {c if m else 0}")
    a("s_nop 7")
    for i in (2, 5, 0, 1, 3, 4):
        a(f"ds_write_b128 v248, {vr(A_KV+4*i,4)} offset:{i*1024}")
    a("s_waitcnt lgkmcnt(0)\ns_barrier")
    stamp(a, 24, opt)
    for sb in range(8):
        phi_pack(a, acc(sb, 0), acc(sb, 0), acc(sb, 1), A_T)
    a(f"""
    s_lshl_b32 s46, s{S_RB}, 6
    s_lshl_b32 s48, s{S_PAIR}, 1
    s_add_u32 s46, s46, s48
    s_add_u32 s46, s46, s47
    s_lshl_b32 s46, s46, 1
    s_lshr_b32 s48, s{S_WAVE}, 1
    s_add_u32 s46, s46, s48
    s_lshl_b32 s48, s46, 13
    s_add_u32 s49, s48, 4096
    """)
    stamp(a, 25, opt)
    a("s_setprio 3\ns_barrier")
    stamp(a, 28, opt)
    for i in range(3): a(f"ds_read_b128 {vr(A_OP+4*i,4)}, v249 offset:{i*1024}")
    a("s_waitcnt lgkmcnt(0)")
    for sb in range(8):
        for i in range(3):
            a(f"v_mfma_f32_16x16x32_bf16 {vr(acc(sb,2+i),4)}, {vr(A_OP+4*i,4)}, {vr(acc(sb,0),4)}, 0")
    for sb in range(8):
        n0, dn = acc(sb, 2), acc(sb, 4)
        a(f"v_add_f32 v{dn}, s66, v{dn}")
        a(f"v_rcp_f32 v{dn}, v{dn}")
        a("s_nop 0")
        for r in range(0, 8, 2):
            a(f"v_pk_mul_f32 {vr(n0+r,2)}, {vr(n0+r,2)}, {vr(dn,2)} op_sel_hi:[1,0]")
        for k in range(4):
            a(f"v_cvt_pk_bf16_f32 v{n0+k}, v{n0+2*k}, v{n0+2*k+1}")
        a(f"buffer_store_dwordx4 {vr(n0,4)}, v253, {SRD_WS}, s{48 + (sb>>2)} offen offset:{(sb&3)*1024} sc1")
    stamp(a, 29, opt)
    if opt.a3: a("s_barrier")
    f_flag(a)
    a("s_setprio 0")

def a_producer(a, opt):
    L = V_LANE
    V16, VR, VKV, VZ, VQ, VZA, Z = 242, 243, 244, 245, 246, 247, 248
    a(f"""
    s_sub_u32 s46, s{S_WAVE}, 4
    s_and_b32 s47, s46, 1
    s_lshr_b32 s48, s46, 1
    s_mul_i32 s49, s47, 6144
    s_mul_i32 s50, s48, 3072
    s_add_u32 s49, s49, s50
    v_lshlrev_b32 v{V16}, 4, v{L}
    v_add_u32 v{VR}, s49, v{V16}
    s_mul_i32 s49, s47, 3072
    s_add_u32 s49, s49, {LA_FIN}
    s_lshl_b32 s50, s48, 10
    s_add_u32 s50, s50, s49
    v_add_u32 v{VKV}, s50, v{V16}
    s_lshl_b32 s50, s48, 3
    s_add_u32 s50, s50, s49
    v_add_u32 v{VZ}, s50, v{V16}
    v_and_b32 v{VQ}, 48, v{L}
    v_and_b32 v{VZA}, 7, v{L}
    v_lshl_add_u32 v{VZA}, v{VZA}, 14, v{VQ}
    v_and_b32 v6, 3, v{L}
    v_sub_u32 v{VQ}, v{VR}, v{V16}
    v_lshl_add_u32 v{VQ}, v6, 8, v{VQ}
    s_lshl_b32 s51, s{S_PAIR}, 5
    s_add_u32 s51, s51, s46
    s_lshl_b32 s51, s51, 12
    s_add_u32 s51, s51, {WS_PART}
    s_lshl_b32 s52, s{S_RB}, 14
    s_add_u32 s52, s52, s51
    v_mov_b32 v0, 0
    v_mov_b32 v1, 0
    v_mov_b32 v4, 0
    v_mov_b32 v5, 0
    v_and_b32 v6, 1, v{L}
    v_lshlrev_b32 v6, 4, v6
    v_mov_b32 v7, 0x3f80
    v_lshlrev_b32 v6, v6, v7
    s_mov_b32 vcc_lo, 0x00300003
    s_mov_b32 vcc_hi, 0x30000300
    v_cndmask_b32 v2, 0, v6, vcc
    s_mov_b32 vcc_lo, 0x00c0000c
    s_mov_b32 vcc_hi, 0xc0000c00
    v_cndmask_b32 v3, 0, v6, vcc
    s_setprio 2
    s_barrier
    """)
    stamp(a, 24, opt)
    for i in range(3):
        a(f"ds_read_b128 {vr(16+4*i,4)}, v{VR if i < 2 else VQ} offset:{i*1024}")
        a(f"ds_read_b128 {vr(28+4*i,4)}, v{VR if i < 2 else VQ} offset:{12288 + i*1024}")
    a("s_waitcnt lgkmcnt(2)")
    for r in range(0, 8, 2): a(f"v_pk_add_f32 {vr(16+r,2)}, {vr(16+r,2)}, {vr(28+r,2)}")
    for k in range(4): a(f"v_cvt_pk_bf16_f32 v{8+k}, v{16+2*k}, v{17+2*k}")
    a(f"""
    buffer_store_dwordx4 v[8:11], v{V16}, {SRD_WS}, s52 offen sc1
    s_waitcnt lgkmcnt(0)
    v_pk_add_f32 v[12:13], v[24:25], v[36:37]
    v_pk_add_f32 v[14:15], v[26:27], v[38:39]
    s_mov_b32 s48, {SPIN_MAX // 8}
    s_mov_b64 exec, 0xff
    buffer_store_dwordx4 v[12:15], v{V16}, {SRD_WS}, s52 offen offset:1024 sc1
    s_mov_b64 exec, -1
    """)
    if opt.await0: a("s_waitcnt vmcnt(0)")
    stamp(a, 25, opt)
    a.label("L_agather")
    a(f"buffer_load_dwordx4 {vr(Z,4)}, v{VZA}, {SRD_WS}, s51 offen offset:1024 sc1")
    a("s_mov_b32 s53, s51")
    for src in range(8):
        a(f"buffer_load_dwordx4 {vr(16+4*src,4)}, v{V16}, {SRD_WS}, s53 offen sc1")
        if src < 7: a("s_add_u32 s53, s53, 16384")
    a("s_waitcnt vmcnt(8)")
    for sh in (4, 2, 1):
        for r in range(4): a(f"v_add_f32_dpp v{Z+r}, v{Z+r}, v{Z+r} row_ror:{sh} row_mask:0xf bank_mask:0xf")
    for src in range(8):
        a(f"s_waitcnt vmcnt({7-src})")
        a(f"v_mfma_f32_16x16x32_bf16 v[8:11], v[2:5], {vr(16+4*src,4)}, {'v[8:11]' if src else 0}")
        a(f"v_mfma_f32_16x16x32_bf16 v[12:15], v[0:3], {vr(16+4*src,4)}, {'v[12:15]' if src else 0}")
    a(f"""
    v_pk_add_f32 v[6:7], {vr(Z,2)}, {vr(Z+2,2)}
    v_add_f32 v6, v6, v7
    v_cvt_pk_bf16_f32 v{Z}, v{Z}, v{Z+1}
    v_cvt_pk_bf16_f32 v{Z+1}, v{Z+2}, v{Z+3}
    s_nop 3
    v_cmp_u_f32 vcc, v6, v12
    s_cbranch_vccz L_apoll_d
    """)
    a.label("L_apoll")
    a(f"""
    s_sub_u32 s48, s48, 1
    s_cmp_eq_u32 s48, 0
    s_cbranch_scc1 L_apoll_d
    buffer_load_dword v7, v{VZA}, {SRD_WS}, s51 offen offset:1024 sc1
    s_waitcnt vmcnt(0)
    v_cmp_eq_u32 vcc, -1, v7
    s_cbranch_vccnz L_apoll
    s_branch L_agather
    """)
    a.label("L_apoll_d")
    stamp(a, 26, opt)
    if opt.prof: a(f"s_sub_u32 s94, {SPIN_MAX//8+1}, s48\nv_writelane_b32 v255, s94, 38")
    for k in range(4): a(f"v_cvt_pk_bf16_f32 v{8+k}, v{8+2*k}, v{9+2*k}")
    a(f"""
    ds_write_b64 v{VZ}, {vr(Z,2)} offset:2048
    ds_write_b128 v{VKV}, v[8:11]
    s_waitcnt lgkmcnt(0)
    """)
    stamp(a, 27, opt)
    a("s_barrier")
    a("s_setprio 0")
    if opt.a3: a("s_barrier")

F_FL, F_FA = 244, 248
def f_flag(a, wait="s_waitcnt vmcnt(0)"):
    a(f"""
    s_lshl_b32 s46, s{S_WAVE}, 7
    s_add_u32 s46, s46, s{S_FLAG}
    v_mov_b32 v{F_FL+6}, 1
    v_lshlrev_b32 v{F_FL+7}, 2, v{V_LANE}
    s_mov_b32 exec_hi, 0
    {wait}
    buffer_store_dword v{F_FL+6}, v{F_FL+7}, {SRD_WS}, s46 offen offset:1024 sc1
    s_mov_b32 exec_hi, -1
    """)
def f_gate(a, which, opt):
    a(f"""
    s_cmp_lg_u32 s{S_WAVE}, 4
    s_cbranch_scc1 L_gated{which}
    v_and_b32 v{F_FA}, 15, v{V_LANE}
    v_lshlrev_b32 v{F_FA}, 14, v{F_FA}
    v_lshrrev_b32 v{F_FL}, 4, v{V_LANE}
    v_lshl_add_u32 v{F_FA}, v{F_FL}, 7, v{F_FA}
    s_lshl_b32 s{S_GA}, s{S_RT}, 11
    s_add_u32 s{S_GA}, s{S_GA}, {WS_FLAG + (262144 if which == "B" else 0)}
    s_mov_b32 s48, {SPIN_MAX}
    s_branch L_gate_e{which}
    """)
    a.label(f"L_gate{which}")
    a(f"s_sleep {opt.backoff}")
    a.label(f"L_gate_e{which}")
    a(f"buffer_load_dword v{F_FL}, v{F_FA}, {SRD_WS}, s{S_GA} offen offset:1024 sc1")
    if which == "B": a(f"buffer_load_dword v{F_FL+1}, v{F_FA}, {SRD_WS}, s{S_GA} offen offset:1536 sc1")
    a(f"""
    s_sub_u32 s48, s48, 1
    s_cmp_eq_u32 s48, 0
    s_cbranch_scc1 L_gated{which}
    s_waitcnt vmcnt(0)
    """)
    if which == "B": a(f"v_and_b32 v{F_FL}, v{F_FL}, v{F_FL+1}")
    a(f"""
    v_cmp_ne_u32 vcc, 1, v{F_FL}
    s_cbranch_vccnz L_gate{which}
    """)
    a.label(f"L_gated{which}")
FV_W0, FV_W1 = 240, 241
S_FW, S_FWL = 90, 91
SRD_WO = "s[80:83]"
NPRE = 12
def grp_addr(g): return ((g + 2) % 5) * 32768
LG = grp_addr(3)

def f_rot(a, opt, dst):
    a(f"s_lshl_b32 s{dst}, s{S_CT}, 1\ns_and_b32 s{dst}, s{dst}, {opt.fstag}")

WR = 80
def f_regload(a, lo, hi, opt=None):
    for st in range(lo, hi):
        r = WR + 8 * (st - NPRE)
        srd = SRD_WO if st < 16 else "s[84:87]"
        a(f"""
        s_mov_b32 s57, {(st & 15) << 17}
        buffer_load_dwordx4 {vr(r,4)}, v{FV_W0}, {srd}, s57 offen
        buffer_load_dwordx4 {vr(r+4,4)}, v{FV_W1}, {srd}, s57 offen offset:1024
        """)
        if opt and st == lo + opt.flagat - 1: f_flag(a, f"s_waitcnt vmcnt({2*opt.flagat})")

def f_setup(a, opt):
    L = V_LANE
    a(f"""
    s_sub_u32 s46, s{S_WAVE}, 4
    v_lshrrev_b32 v{FV_W1}, 3, v{L}
    v_xor_b32 v{FV_W0}, v{FV_W1}, v{L}
    v_and_b32 v{FV_W0}, 6, v{FV_W0}
    v_and_or_b32 v{FV_W0}, v{L}, 1, v{FV_W0}
    v_lshlrev_b32 v{FV_W0}, 4, v{FV_W0}
    v_lshl_add_u32 v{FV_W0}, v{FV_W1}, 11, v{FV_W0}
    s_lshl_b32 s47, s{S_CT}, 7
    s_lshl_b32 s48, s46, 15
    s_add_u32 s47, s47, s48
    v_add_u32 v{FV_W0}, s47, v{FV_W0}
    v_add_u32 v{FV_W1}, {16384 - 1024}, v{FV_W0}
    s_lshl_b32 s{S_FWL}, s46, 11
    s_add_u32 s{S_FWL}, s{S_FWL}, 65536
    s_mov_b32 s80, s8
    s_and_b32 s81, s9, 0xffff
    s_mov_b32 s82, 0x200000
    s_mov_b32 s83, 0x20000
    s_mov_b32 s84, s14
    s_and_b32 s85, s15, 0xffff
    s_mov_b32 s86, 0x200000
    s_mov_b32 s87, 0x20000
    """)

def f_prefill(a, opt, ty):
    if opt.exp & 16: return
    a(f"s_mov_b32 s49, {NPRE}\ns_mov_b32 s{S_FW}, 0")
    a.label(f"L_fill{ty}")
    a(f"""
    s_and_b32 s57, s{S_FW}, 15
    s_lshl_b32 s57, s57, 17
    s_mov_b32 m0, s{S_FWL}
    s_add_u32 s{S_FWL}, s{S_FWL}, 8192
    s_add_u32 s{S_FW}, s{S_FW}, 1
    buffer_load_dwordx4 v{FV_W0}, {SRD_WO}, s57 offen lds
    buffer_load_dwordx4 v{FV_W1}, {SRD_WO}, s57 offen offset:1024 lds
    s_sub_u32 s49, s49, 1
    s_cmp_lg_u32 s49, 0
    s_cbranch_scc1 L_fill{ty}
    """)

def f_producer(a, opt):
    L = V_LANE
    a.label("L_fprod")
    a(f"""
    s_setprio 0
    s_sub_u32 s47, s{S_WAVE}, 4
    s_lshl_b32 s47, s47, 11
    v_lshlrev_b32 v10, 4, v{L}
    v_add_u32 v10, s47, v10
    v_add_u32 v11, 65536, v10
    v_add_u32 v12, 131072, v10
    """)
    if opt.exp & 16: f_flag(a)
    else: f_regload(a, NPRE, 32 - opt.n13 - opt.n14, opt)
    stamp(a, 39, opt)
    def gate(which): f_gate(a, which, opt)
    def put(g):
        ad = grp_addr(g)
        for k in range(8):
            off = (ad & 65535) + (k >> 1) * 8192 + (k & 1) * 1024
            a(f"ds_write_b128 v{10 + (ad >> 16)}, {vr(WR + (g-3)*32 + 4*k, 4)} offset:{off}")
    gate("A")
    a("s_barrier")
    stamp(a, 40, opt); cstamp(a, 36, opt)
    a("s_waitcnt vmcnt(0)")
    for k in range(8):
        if k == 0: put(3); put(4)
        elif k <= 3: put(4 + k)
        if k == 2:
            a("s_setprio 3"); gate("B"); a("s_setprio 0")
            stamp(a, 41, opt)
        if k == 3:
            a(f"""
            s_lshl_b32 s47, s{S_RT}, 1
            s_add_u32 s47, s47, s{S_RH}
            s_lshl_b32 s47, s47, 2
            s_add_u32 s47, s47, s{S_WAVE}
            s_lshl_b32 s47, s47, 12
            s_add_u32 s47, s47, {WS_G - 4*4096}
            v_and_b32 v2, 31, v{L}
            v_lshlrev_b32 v1, 7, v2
            buffer_load_dword v3, v1, {SRD_WS}, s47 offen sc1
            v_lshlrev_b32 v2, 2, v2
            s_lshl_b32 s47, s{S_WAVE}, 7
            v_add_u32 v2, s47, v2
            """)
        if k == 5:
            a(f"s_waitcnt vmcnt(0)\nds_write_b32 v2, v3 offset:{LG}")
        a("s_waitcnt lgkmcnt(0)\ns_barrier")
        stamp(a, 44 + k, opt)
    stamp(a, 42, opt); cstamp(a, 37, opt)
    prof_dump(a, opt, WS_PROF)
    a("s_endpgm")

def f_consumer(a, opt):
    L = V_LANE
    AC, ST, WB, OB = 0, 32, 64, 96
    VO, VW, T = 160, 164, 168
    a.label("L_fcons")
    a(f"""
    v_lshlrev_b32 v{VO}, 4, v{L}
    s_lshl_b32 s59, s{S_RT}, 20
    s_lshl_b32 s47, s{S_RH}, 13
    s_add_u32 s59, s59, s47
    s_lshl_b32 s47, s{S_WAVE}, 11
    s_add_u32 s59, s59, s47
    v_lshrrev_b32 v{T}, 2, v{L}
    v_lshlrev_b32 v{T}, 7, v{T}
    v_bfe_u32 v{T+1}, v{L}, 3, 2
    v_lshl_add_u32 v{T}, v{T+1}, 5, v{T}
    v_and_b32 v{T+1}, 3, v{L}
    v_lshl_add_u32 v{T}, v{T+1}, 3, v{T}
    v_add_u32 v{VW}, {grp_addr(0)}, v{T}
    v_xor_b32 v{VW+1}, 32, v{VW}
    v_xor_b32 v{VW+2}, 64, v{VW}
    v_xor_b32 v{VW+3}, 96, v{VW}
    v_mov_b32 v{T}, 0
    v_mov_b32 v{T+1}, 0
    v_mov_b32 v{T+2}, 0
    v_mov_b32 v{T+3}, 0
    s_mov_b32 s28, s18
    s_and_b32 s29, s19, 0xffff
    s_mov_b32 s30, 0x400000
    s_mov_b32 s53, 32768
    s_mov_b32 s50, 0
    s_mov_b32 s24, s32
    s_mov_b32 s25, s33
    s_add_u32 s26, s{S_RT}, 1
    s_lshl_b32 s26, s26, 20
    s_movk_i32 s61, 0x108
    """)
    assert opt.fstag == 0
    for r in (0, 16): a(f"v_mfma_f32_32x32x16_bf16 {vr(AC+r,16)}, {vr(T,4)}, {vr(T,4)}, 0")
    def onext(): return ["s_add_u32 s59, s59, 16384"]
    def oload(t, i): return f"buffer_load_dwordx4 {vr(OB + (t % 8)*8 + 4*i, 4)}, v{VO}, s[24:27], s59 offen offset:{i*1024} sc1"
    def wread(t, nb, u): return dict(txt=f"ds_read_b64_tr_b16 {vr(WB + (t & 1)*16 + nb*4 + 2*u, 2)}, v{VW+nb} offset:{(t % 8)*4096 + u*2048}", loads=('w', t & 1, nb, u))
    a("s_barrier")
    stamp(a, 40, opt)
    for t in range(7):
        a(oload(t, 0)); a(oload(t, 1))
        if t == 1:
            a(f"s_cmp_eq_u32 s{S_BR}, 0\ns_cbranch_scc1 L_fnoflag")
            f_flag(a, "s_waitcnt vmcnt(4)")
            a.label("L_fnoflag")
        for l in onext(): a(l)
    pre = [wread(0, nb, u) for nb in range(4) for u in range(2)]
    lines, q0 = schedule_waits(pre)
    for l in lines: a(l)
    a.label("L2_loop")
    body = []
    for t in range(8):
        body.append(dict(txt="s_waitcnt vmcnt(12)"))
        m = 0
        ex = onext()
        for nb in range(4):
            for i in ((0, 1) if nb % 2 == 0 else (1, 0)):
                c = vr(AC + (i * 4 + nb) * 4, 4)
                body.append(dict(txt=f"v_mfma_f32_16x16x32_bf16 {c}, {vr(WB + (t&1)*16 + nb*4, 4)}, {vr(OB + t*8 + 4*i, 4)}, {c}", reads={('w', t & 1, nb | 1, 1)}))
                if t == 7 and m == 0: body.append(dict(txt="s_barrier", drain=True))
                if m < 4: body += [wread(t + 1, m, 0), wread(t + 1, m, 1)]
                if m in (4, 5): body.append(dict(txt=oload(t + 7, m - 4)))
                if m == 5: body += [dict(txt=x) for x in ex]
                if t == 4 and m == 6: body += [dict(txt="s_add_u32 s50, s50, 1")]
                if t == 5 and m == 6: body += [dict(txt="s_bitcmp1_b32 s61, s50"), dict(txt=f"s_cselect_b32 s52, {-4*32768 & 0xffffffff}, s53")]
                if t == 6 and m >= 6: body += [dict(txt=f"v_add_u32 v{VW+nb_}, s52, v{VW+nb_}") for nb_ in (2*(m-6), 2*(m-6)+1)]
                if t == 7 and m == 6: body += [dict(txt="s_and_b32 s47, s50, 3")]
                m += 1
    lines, q1 = schedule_waits(body, q0)
    assert q1 == q0, (q0, q1)
    k = 0
    while k < len(lines):
        if k + 1 < len(lines) and lines[k].startswith("s_waitcnt vmcnt") and lines[k+1].startswith("s_waitcnt lgkmcnt"):
            a(lines[k] + " " + lines[k+1].split()[1]); k += 2
        else:
            a(lines[k]); k += 1
    a("""
    s_cbranch_scc1 L2_loop
    s_cmp_eq_u32 s50, 8
    s_cbranch_scc1 L2_done
    s_nop 4
    """)
    for r in range(0, 32, 2): a(f"v_pk_mul_f32 {vr(ST+r,2)}, {vr(AC+r,2)}, 1.0 op_sel_hi:[1,0]")
    a("s_branch L2_loop")
    a.label("L2_done")
    a(f"""
    v_and_b32 v{T}, 15, v{L}
    v_lshlrev_b32 v{T+1}, 2, v{T}
    s_lshl_b32 s47, s{S_WAVE}, 7
    v_add_u32 v{T+1}, s47, v{T+1}
    ds_read_b32 v{T+2}, v{T+1} offset:{LG + 512}
    ds_read_b32 v{T+6}, v{T+1} offset:{LG + 512 + 64}
    v_lshlrev_b32 v{T}, 11, v{T}
    v_bfe_u32 v{T+1}, v{L}, 4, 1
    v_lshl_add_u32 v{T}, v{T+1}, 5, v{T}
    v_lshrrev_b32 v{T+1}, 5, v{L}
    v_lshl_add_u32 v{T}, v{T+1}, 4, v{T}
    s_lshl_b32 s48, s{S_RT}, 1
    s_add_u32 s48, s48, s{S_RH}
    s_lshl_b32 s48, s48, 2
    s_add_u32 s48, s48, s{S_WAVE}
    s_lshl_b32 s48, s48, 16
    s_lshl_b32 s49, s{S_CT}, 7
    s_add_u32 s48, s48, s49
    s_waitcnt lgkmcnt(0)
    """)
    for i in range(2):
        g = T + 2 + 4 * i
        a(f"v_sub_f32 v{g+2}, 1.0, v{g}")
        a(f"v_sub_f32 v{g}, v{g}, v{g+2}")
        for hf in range(2):
            b0 = AC + i * 16 + hf * 8; b1 = ST + i * 16 + hf * 8
            for r in range(0, 8, 2):
                a(f"v_pk_mul_f32 {vr(b1+r,2)}, {vr(b1+r,2)}, {vr(g,2)} op_sel_hi:[1,0]")
            for r in range(0, 8, 2):
                a(f"v_pk_fma_f32 {vr(b0+r,2)}, {vr(b0+r,2)}, {vr(g+2,2)}, {vr(b1+r,2)} op_sel_hi:[1,0,1]")
            for k in range(4): a(f"v_cvt_pk_bf16_f32 v{b0+k}, v{b0+2*k}, v{b0+2*k+1}")
            a("s_nop 1")
            a(f"v_permlane16_swap_b32 v{b0}, v{b0+2}")
            a(f"v_permlane16_swap_b32 v{b0+1}, v{b0+3}")
            a(f"buffer_store_dwordx4 {vr(b0,4)}, v{T}, s[28:31], s48 offen offset:{hf*64} {opt.outaux}")
        if i == 0: a(f"s_add_u32 s48, s48, {16*2048}")
    stamp(a, 43, opt)
    prof_dump(a, opt, WS_PROF)

def gen_k1(opt):
    a = Asm()
    k1_prologue(a, opt)
    dma_addrs(a)
    k1_srds(a)
    a(f"s_cmp_ge_u32 s{S_WAVE}, 4")
    a("s_cbranch_scc1 L_producer")
    consumer_setup(a, opt)
    a(f"s_cmp_eq_u32 s{S_BR}, 0")
    a("s_cbranch_scc1 L_consA")
    consumer_gemm(a, True, "B")
    b_epilogue(a, opt)
    b_consts(a)
    b_attention(a, opt)
    a.label("L_consA")
    consumer_gemm(a, False, "A")
    a_consumer(a, opt)
    f_consumer(a, opt)
    a.label("L1_end")
    a("s_endpgm")
    a.label("L_producer")
    producer_gemm(a, opt)
    producer_gate(a, opt)
    b_consts(a)
    a("s_setprio 0")
    a("s_barrier")
    stamp(a, 15, opt)
    a(f"s_cmp_eq_u32 s{S_BR}, 0")
    a("s_cbranch_scc1 L_prodA")
    a(f"s_barrier\ns_branch L_battn1")
    a.label("L_prodA")
    if opt.afill == 0: f_prefill(a, opt, "A")
    a_producer(a, opt)
    if opt.afill == 1: f_prefill(a, opt, "A")
    f_producer(a, opt)
    a.label("L_code_end")
    return a.text()

def kd(name, nv):
    return f""".amdhsa_kernel {name}
  .amdhsa_next_free_vgpr {nv}
  .amdhsa_next_free_sgpr 102
  .amdhsa_accum_offset {nv}
  .amdhsa_group_segment_fixed_size 0
  .amdhsa_kernarg_size 80
  .amdhsa_user_sgpr_count 2
  .amdhsa_user_sgpr_kernarg_segment_ptr 1
  .amdhsa_system_sgpr_workgroup_id_x 1
.end_amdhsa_kernel
"""

def gen_all(opt):
    k1 = NAME + "_kernel"
    launch = f"; @launch kernel={k1} grid=(256,1,1) block=(512,1,1) lds=163840" if opt.aslist else "; @launch grid=(256,1,1) block=(512,1,1) lds=163840"
    s = f"""; Generated by my own generator script (dev/gen.py).
; Kernarg: 0 A_x, 8 A_wqkv, 16 A_wo, 24 B_x, 32 B_wqkv, 40 B_wo, 48 gate_w, 56 out, 64 debug, 72 ws
{launch}
.amdgcn_target "amdgcn-amd-amdhsa--gfx950"
.text
.globl {k1}
.p2align 8
.type {k1},@function
{k1}:
{gen_k1(opt)}
.section .rodata,"a"
.p2align 6
{kd(k1, 256)}"""
    return s

if __name__ == "__main__":
    opt = Opt()
    out = f"cdna_kernels/{NAME}.s"
    for arg in sys.argv[1:]:
        k, v = arg.split("=")
        if k == "out": out = v
        else: setattr(opt, k, eval(v))
    open(out, "w").write(gen_all(opt))
    print("wrote", out)
```

```python
import sys, struct
from asm import *

NAME = "gated_mix__linear_attn_block__sliding_block__prompt"
WS_O = 0
WS_KV = 8 << 20
WS_PART = 16 << 20
WS_FLAG = 18 << 20
WS_G = 19 << 20
WS_PROF = 20 << 20
XSLOT = 32768; NXS = 3
WBASE = XSLOT * NXS; WSLOT = 24576
ACC = 0; XA = 192; XB = 208; WF = 224
V_XA0, V_XA1, V_WA0, V_WA1, V_LANE = 248, 249, 250, 251, 252
S_WAVE, S_RB, S_PAIR, S_BR, S_XCD, S_J = 40, 41, 42, 43, 44, 45
SRD_X, SRD_W, SRD_WS, SRD_DBG = "s[24:27]", "s[28:31]", "s[32:35]", "s[36:39]"
S_GA, S_RH, S_RT, S_CT = 76, 77, 78, 79
S_ROT = 75
S_FLAG = 63
SPIN_MAX = 20000
def f2u(x): return struct.unpack("<I", struct.pack("<f", x))[0]
LOG2E = 1.4426950408889634

def acc(sb, j): return ACC + (sb * 6 + j) * 4

class Opt:
    pf = 4
    prof = False
    force_slow = False
    fstag = 0
    fpre = 4
    gload = 2
    await0 = True
    a3 = True
    outaux = ''
    wfirst = False
    w64 = False
    fprio = 3
    flagat = 4
    tmode = 2
    tpos = 0
    exp = 0
    afill = 1
    wovec = 0
    n13 = 4
    n14 = 6
    fmap = 1
    f32 = False
    bflag1 = True
    frot = 0
    t0touch = 0
    na15 = 6
    gatelate = True
    constearly = True
    gaux = ''
    diag = ''
    bwait = False
    oprio = 0
    stlate = 0
    kvst = 'sc1'
    kvld = 'sc1'
    prew = 0
    prew_at = 4
    tlb = 0
    xl2 = False
    na = 8
    fdepth = 8
    otouch = False
    wo_from = 2
    early = 2
    backoff = 4
    codepf = 3
    bprio = 1
    tailprio = 0
    aslist = False

def stamp(a, idx, opt):
    if not opt.prof: return
    a("s_memrealtime s[94:95]")
    a("s_waitcnt lgkmcnt(0)")
    a(f"v_writelane_b32 v255, s94, {idx}")

def cstamp(a, idx, opt):
    if not opt.prof: return
    a("s_memtime s[94:95]")
    a("s_waitcnt lgkmcnt(0)")
    a(f"v_writelane_b32 v255, s94, {idx}")

def diag(a, opt, name):
    if opt.diag == name: a("s_memrealtime s[98:99]\ns_waitcnt lgkmcnt(0)")
def diag_end(a, opt):
    if not opt.diag: return
    a("""
    s_waitcnt vmcnt(0)
    s_memrealtime s[100:101]
    s_waitcnt lgkmcnt(0)
    """)
    if opt.diag == "end": a("s_mov_b32 s98, s100")
    if opt.diag == "zero": a("s_mov_b32 s98, s96")
    a("""
    s_sub_u32 s98, s98, s96
    s_min_u32 s98, s98, 20000
    L_diag:
    s_memrealtime s[96:97]
    s_waitcnt lgkmcnt(0)
    s_sub_u32 s96, s96, s100
    s_cmp_lt_u32 s96, s98
    s_cbranch_scc1 L_diag
    """)

def prof_dump(a, opt, base):
    if not opt.prof: return
    a(f"""
    s_lshl_b32 s94, s2, 3
    s_add_u32 s94, s94, s{S_WAVE}
    s_lshl_b32 s94, s94, 8
    s_add_u32 s94, s94, {base}
    v_mbcnt_lo_u32_b32 v254, -1, 0
    v_mbcnt_hi_u32_b32 v254, -1, v254
    v_lshlrev_b32 v254, 2, v254
    buffer_store_dword v255, v254, {SRD_WS}, s94 offen
    """)

def k1_prologue(a, opt):
    a(f"""
    s_cmp_ge_u32 s2, 256
    s_cbranch_scc1 L1_end
    {"s_memrealtime s[96:97]" if opt.diag else ""}
    s_load_dwordx16 s[4:19], s[0:1], 0
    s_load_dwordx4 s[20:23], s[0:1], 64
    v_lshrrev_b32 v1, 6, v0
    s_and_b32 s{S_XCD}, s2, 7
    s_lshr_b32 s{S_J}, s2, 3
    v_readfirstlane_b32 s{S_WAVE}, v1
    s_lshr_b32 s{S_RB}, s{S_J}, 2
    s_and_b32 s{S_BR}, s{S_J}, 1
    s_bfe_u32 s{S_PAIR}, s{S_J}, 0x10001
    s_lshl_b32 s46, s{S_XCD}, 1
    s_add_u32 s{S_PAIR}, s{S_PAIR}, s46
    v_and_b32 v0, 63, v0
    s_lshl_b32 s46, s{S_BR}, 4
    s_add_u32 s46, s46, s{S_PAIR}
    s_lshl_b32 s46, s46, 3
    s_add_u32 s46, s46, s{S_RB}
    s_lshl_b32 s46, s46, 11
    s_add_u32 s{S_FLAG}, s46, {WS_FLAG}
    {f"s_and_b32 s{S_CT}, s{S_J}, 7" if opt.fmap else f"s_bfe_u32 s{S_CT}, s{S_J}, 0x30001"}
    s_xor_b32 s{S_CT}, s{S_CT}, {1 if opt.fmap == 1 else 0}
    {f"s_bfe_u32 s{S_RH}, s{S_J}, 0x10003" if opt.fmap else f"s_mov_b32 s{S_RH}, s{S_BR}"}
    s_and_b32 s46, s{S_XCD}, 1
    s_lshl_b32 s46, s46, 3
    s_add_u32 s{S_CT}, s{S_CT}, s46
    s_lshr_b32 s{S_ROT}, s{S_J}, 1
    s_and_b32 s{S_ROT}, s{S_ROT}, {opt.frot}
    s_lshl_b32 s{S_ROT}, s{S_ROT}, 19
    s_lshr_b32 s{S_RT}, s{S_J}, 4
    s_and_b32 s46, s{S_XCD}, 6
    s_add_u32 s{S_RT}, s{S_RT}, s46
    s_mov_b32 s26, 0x400000
    s_mov_b32 s27, 0x20000
    s_mov_b32 s30, 0x600000
    s_mov_b32 s31, 0x20000
    s_mov_b32 s34, 0x10000000
    s_mov_b32 s35, 0x20000
    s_mov_b32 s38, 256
    s_mov_b32 s39, 0x20000
    """)

def k1_srds(a):
    a(f"""
    s_waitcnt lgkmcnt(0)
    s_mov_b32 s24, s4
    s_and_b32 s25, s5, 0xffff
    s_cmp_eq_u32 s{S_BR}, 0
    s_cselect_b32 s28, s6, s12
    s_cselect_b32 s29, s7, s13
    s_and_b32 s29, s29, 0xffff
    s_mov_b32 s32, s22
    s_and_b32 s33, s23, 0xffff
    s_mov_b32 s36, s20
    s_and_b32 s37, s21, 0xffff
    """)

def consumer_substep(kk, wslot, btype, nxt_kk, nxt_wslot, barrier, extra=None):
    items = []
    def xread(grp, i, kk_):
        reg = (XA if grp == 0 else XB) + 4 * i
        sb = grp * 4 + i
        return dict(txt=f"ds_read_b128 {vr(reg,4)}, v{V_XA0 + kk_} offset:{sb*2048}", loads=('x', grp, i))
    def wread(j, t, kk_, ws):
        reg = WF + 4 * j + 2 * t
        off = ws * WSLOT + (j >> 1) * 8192 + kk_ * 4096 + t * 512
        return dict(txt=f"ds_read_b64_tr_b16 {vr(reg,2)}, v{V_WA0 + (j & 1)} offset:{off}", loads=('w', j, t))
    after = {m: [] for m in range(48)}
    after[0] += [wread(5, 0, kk, wslot)]
    after[1] += [wread(5, 1, kk, wslot)]
    for i in range(4): after[2 + 2 * i] += [xread(1, i, kk)]
    m0 = 24
    if barrier:
        after[24] += [dict(txt="s_barrier", drain=True)]
        m0 = 25
    xpos = [m0, m0 + 1, 29, 30]
    for i in range(4): after[xpos[i]] += [xread(0, i, nxt_kk)]
    for j in range(5):
        after[27 + 4 * j] += [wread(j, 0, nxt_kk, nxt_wslot)]
        after[28 + 4 * j] += [wread(j, 1, nxt_kk, nxt_wslot)]
    for m, txt in (extra or []):
        after[m].append(dict(txt=txt))
    m = 0
    for grp in range(2):
        for j in range(6):
            order = range(4) if j % 2 == 0 else [3, 2, 1, 0]
            for i in order:
                sb = grp * 4 + i
                xr = vr((XA if grp == 0 else XB) + 4 * i, 4); wr = vr(WF + 4 * j, 4)
                seg = j >> 1
                transposed = (seg == 0) or (seg == 1 and btype)
                A, B = (wr, xr) if transposed else (xr, wr)
                c = vr(acc(sb, j), 4)
                items.append(dict(txt=f"v_mfma_f32_16x16x32_bf16 {c}, {A}, {B}, {c}", reads={('x', grp, i), ('w', j, 0), ('w', j, 1)}))
                items += after[m]
                m += 1
    return items

def consumer_gemm(a, btype, tag, filler, opt):
    pre = [dict(txt=f"ds_read_b128 {vr(XA+4*i,4)}, v{V_XA0} offset:{i*2048}", loads=('x', 0, i)) for i in range(4)]
    def wr(j, t): return dict(txt=f"ds_read_b64_tr_b16 {vr(WF+4*j+2*t,2)}, v{V_WA0 + (j&1)} offset:{(j>>1)*8192 + t*512}", loads=('w', j, t))
    pre = [pre[0], pre[1], wr(0, 0), wr(0, 1), pre[2], pre[3]] + [wr(j, t) for j in range(1, 5) for t in range(2)]
    lines, q0 = schedule_waits(pre)
    a("s_mov_b32 s50, 8")
    a("s_mov_b32 s51, 0")
    for l in lines: a(l)
    body = []
    for st in range(2):
        ex0 = [(10, "s_add_u32 s51, s51, 1"), (11, "s_cmp_eq_u32 s51, 3"), (12, f"s_cselect_b32 s52, {-2*XSLOT & 0xffffffff}, s53"), (13, "s_cselect_b32 s51, 0, s51"),
               (16, f"v_add_u32 v{V_XA0}, s52, v{V_XA0}")]
        ex1 = [(16, f"v_add_u32 v{V_XA1}, s52, v{V_XA1}")]
        if st == 1: ex1 += [(18, "s_sub_u32 s50, s50, 1"), (21, "s_cmp_lg_u32 s50, 0")]
        body += consumer_substep(0, st, btype, 1, st, False, ex0)
        body += consumer_substep(1, st, btype, 0, 1 - st, True, ex1)
    lines, q1 = schedule_waits(body, q0)
    assert q1 == q0, (q0, q1)
    cut = max(i for i, l in enumerate(lines) if l == "s_barrier") + 2
    assert lines[cut - 1].startswith("v_mfma")
    if opt.exp & 128: lines = [l if not l.startswith("ds_read_b128") else "s_nop 0" for l in lines]
    if opt.exp & 256: lines = [l if not l.startswith("ds_read_b64") else "s_nop 0" for l in lines]
    a(f"s_branch L_gemm_e{tag}")
    a.label(f"L_gemm_{tag}")
    for l in lines[cut:]: a(l)
    a.label(f"L_gemm_e{tag}")
    for l in lines[:cut]: a(l)
    a(f"s_cbranch_scc1 L_gemm_{tag}")
    tail = [l for l in lines[cut:] if l.startswith("v_mfma")]
    tail = tail[6:] + tail[:6]
    per = -(-len(filler) // len(tail))
    for m, l in enumerate(tail):
        a(l)
        for x in filler[m * per:(m + 1) * per]: a(x)

def lines_of(f, *args):
    t = Asm(); f(t, *args)
    return [l.strip() for l in t.L if l.strip()]

def consumer_setup(a, opt):
    if opt.prof: a("v_mov_b32 v255, 0")
    stamp(a, 22, opt); diag(a, opt, "issue")
    if opt.t0touch:
        a(f"""
        s_cmp_lt_u32 s{S_WAVE}, 2
        s_cbranch_scc0 L_t0w
        s_lshl_b32 s47, s{S_J}, 17
        s_lshl_b32 s48, s{S_WAVE}, 7
        s_add_u32 s47, s47, s48
        v_lshlrev_b32 v5, 11, v0
        {"s_cmp_eq_u32 s40, 0" if opt.t0touch == 2 else ""}
        {"s_cbranch_scc1 L_t0d" if opt.t0touch == 2 else ""}
        buffer_load_dword v{XB}, v5, {SRD_X}, s47 offen
        s_branch L_t0d
        L_t0w:
        s_and_b32 s48, s{S_WAVE}, 1
        {"s_cbranch_scc0 L_t0d" if opt.t0touch == 2 else ""}
        s_lshl_b32 s48, s48, 3
        s_add_u32 s48, s48, s{S_RB}
        s_mul_i32 s48, s48, {8*6144}
        s_lshl_b32 s47, s{S_PAIR}, 7
        s_add_u32 s47, s47, s48
        v_min_u32 v5, 23, v0
        v_lshlrev_b32 v5, 11, v5
        buffer_load_dword v{XB}, v5, {SRD_W}, s47 offen
        L_t0d:
        """)
    issue_w(a, "0", "s55"); issue_x(a, "0", "s54")
    a(f"""
    s_barrier
    v_and_b32 v1, 15, v0
    v_lshrrev_b32 v2, 4, v0
    v_bfe_u32 v3, v0, 1, 3
    v_xor_b32 v3, v2, v3
    v_lshlrev_b32 v3, 4, v3
    v_lshl_add_u32 v3, v1, 7, v3
    s_lshr_b32 s46, s{S_WAVE}, 1
    s_lshl_b32 s46, s46, 14
    v_add_u32 v{V_XA0}, s46, v3
    v_xor_b32 v{V_XA1}, 64, v{V_XA0}
    v_bfe_u32 v3, v0, 2, 2
    v_lshl_add_u32 v4, v2, 3, v3
    v_lshlrev_b32 v4, 7, v4
    v_bfe_u32 v5, v0, 3, 2
    s_and_b32 s46, s{S_WAVE}, 1
    s_lshl_b32 s46, s46, 1
    v_xor_b32 v5, s46, v5
    v_lshl_add_u32 v4, v5, 5, v4
    v_and_b32 v5, 3, v0
    v_lshl_add_u32 v4, v5, 3, v4
    v_add_u32 v{V_WA0}, {WBASE}, v4
    v_xor_b32 v{V_WA1}, 32, v{V_WA0}
    s_mov_b32 s53, {XSLOT}
    s_mov_b32 s80, s8
    s_and_b32 s81, s9, 0xffff
    s_mov_b32 s82, 0x200000
    s_mov_b32 s83, 0x20000
    s_mov_b32 s84, s14
    s_and_b32 s85, s15, 0xffff
    s_mov_b32 s86, 0x200000
    s_mov_b32 s87, 0x20000
    """)
    a(f"s_cmp_eq_u32 s{S_BR}, 0")
    a("s_cselect_b32 s46, 1.0, 0")
    a("s_nop 0")
    for sb in range(8):
        for j in range(6):
            for r in range(4):
                a(f"v_mov_b32 v{acc(sb,j)+r}, {'s46' if j < 4 else '0'}")

    a(f"""
    v_mov_b32 v{XA}, {LCNT}
    v_mov_b32 v{XA+1}, 1
    s_mov_b64 exec, 1
    s_waitcnt vmcnt(0)
    ds_add_u32 v{XA}, v{XA+1}
    s_mov_b64 exec, -1
    """)
    a.label("L_st0")
    a(f"""
    ds_read_b32 v{XA+2}, v{XA}
    s_waitcnt lgkmcnt(0)
    v_readfirstlane_b32 s46, v{XA+2}
    s_cmp_lt_u32 s46, 4
    s_cbranch_scc1 L_st0
    """)
    stamp(a, 20, opt); diag(a, opt, "st0")

LCNT = 147456
def dma_addrs(a):
    a(f"""
    s_and_b32 s46, s{S_WAVE}, 3
    v_lshrrev_b32 v1, 3, v0
    v_and_b32 v2, 7, v0
    v_and_b32 v3, 2, v1
    v_xor_b32 v3, v2, v3
    v_lshlrev_b32 v3, 4, v3
    v_mul_u32_u24 v4, 6144, v1
    s_lshl_b32 s47, s{S_PAIR}, 7
    s_mul_i32 s48, s46, {2*8*6144}
    s_add_u32 s47, s47, s48
    v_add3_u32 v20, v4, v3, s47
    v_xor_b32 v21, 64, v20
    v_add_u32 v21, {8*6144 - 1024}, v21
    v_lshrrev_b32 v3, 1, v1
    v_xor_b32 v3, v2, v3
    v_lshlrev_b32 v3, 4, v3
    s_lshl_b32 s47, s{S_RB}, 8
    s_lshl_b32 s48, s46, 6
    s_add_u32 s47, s47, s48
    v_add_u32 v4, s47, v1
    v_lshl_add_u32 v10, v4, 11, v3
    v_xor_b32 v11, 64, v10
    """)
    for i in (3, 2, 1):
        a(f"v_add_u32 v{10+i}, {i*16384 - i*1024}, v{10 + (i & 1)}")
    a(f"""
    s_lshl_b32 s54, s46, 13
    s_lshl_b32 s55, s46, 11
    s_add_u32 s55, s55, {WBASE}
    v_mov_b32 v{V_LANE}, v0
    """)
def issue_w(a, step_s, slot_off):
    for seg in range(3):
        a(f"s_add_u32 m0, {slot_off}, {seg*8192}")
        a(f"s_add_u32 s48, {step_s}, {seg*2048}")
        a(f"buffer_load_dwordx4 v20, {SRD_W}, s48 offen {GAUX} lds")
        a(f"buffer_load_dwordx4 v21, {SRD_W}, s48 offen offset:1024 {GAUX} lds")
def issue_x(a, step_s, slot_off, groups=(0, 1)):
    for g in groups:
        a(f"s_add_u32 m0, {slot_off}, {g*4096}")
        a(f"s_add_u32 s48, {step_s}, {g*65536}")
        for i in range(4):
            a(f"buffer_load_dwordx4 v{10+i}, {SRD_X}, s48 offen offset:{i*1024} {GAUX} lds")

def producer_gemm(a, opt):
    pf = opt.pf
    a(f"""
    v_mov_b32 v1, 0
    v_mov_b32 v2, {LCNT}
    ds_write_b32 v2, v1
    v_mul_u32_u24 v5, 0x5556, v0
    v_lshrrev_b32 v5, 16, v5
    v_mul_u32_u24 v6, 3, v5
    v_sub_u32 v6, v0, v6
    s_lshl_b32 s47, s{S_RB}, 3
    v_add_u32 v5, s47, v5
    v_mul_u32_u24 v5, 6144, v5
    v_lshl_add_u32 v5, v6, 11, v5
    s_lshl_b32 s47, s{S_PAIR}, 7
    v_add_u32 v30, s47, v5
    v_mov_b32 v7, 0x7f000000
    v_cmp_gt_u32 vcc, 24, v0
    s_lshl_b32 s47, {f"s{S_J}, 6" if opt.xl2 else "s2, 3"}
    v_add_u32 v5, s47, v0
    v_cndmask_b32 v30, v7, v30, vcc
    v_lshlrev_b32 v31, 11, v5
    v_cmp_gt_u32 vcc, {64 if opt.xl2 else 8}, v0
    s_add_u32 s62, s46, {2 if opt.t0touch else 1}
    v_lshlrev_b32 v44, 4, v0
    v_cndmask_b32 v31, v7, v31, vcc
    v_mov_b32 v48, 0
    v_mov_b32 v49, 0
    v_mov_b32 v50, 0
    v_mov_b32 v51, 0
    s_lshl_b32 s85, s{S_PAIR}, 1
    s_add_u32 s85, s85, s{S_BR}
    s_lshl_b32 s85, s85, 3
    s_lshl_b32 s47, s46, 10
    s_add_u32 s47, s47, s{S_FLAG}
    s_cmp_lt_u32 s46, 2
    s_cselect_b32 s47, s47, 0x10000000
    v_mov_b32 v36, 1
    s_mov_b32 s57, {64*6144}
    s_add_u32 s58, s55, {WSLOT}
    """)
    if opt.tmode >= 1:
        a(f"""
        v_and_b32 v4, 31, v0
        v_mul_u32_u24 v5, 0x5556, v4
        v_lshrrev_b32 v5, 16, v5
        v_mul_u32_u24 v6, 3, v5
        v_sub_u32 v6, v4, v6
        s_lshl_b32 s48, s{S_RB}, 3
        v_add_u32 v5, s48, v5
        v_mul_u32_u24 v5, 6144, v5
        v_lshl_add_u32 v5, v6, 11, v5
        v_lshrrev_b32 v6, 5, v0
        s_and_b32 s48, s{S_PAIR}, 14
        v_add_u32 v6, s48, v6
        v_lshl_add_u32 v5, v6, 7, v5
        s_add_u32 s48, s46, s{S_PAIR}
        {f"s_or_b32 s48, s48, s{S_BR}" if opt.tmode == 3 else ""}
        s_bitcmp0_b32 {"s48" if opt.tmode >= 2 else f"s{S_PAIR}"}, 0
        {f"s_and_b32 s48, s{S_J}, 3" if opt.tmode == 4 else ""}
        {f"s_cmp_eq_u32 s48, s46" if opt.tmode == 4 else ""}
        s_cselect_b32 s93, -1, 0
        s_and_b32 vcc_lo, s93, 0xffffff
        s_mov_b32 vcc_hi, vcc_lo
        v_cndmask_b32 v30, v7, v5, vcc
        v_and_b32 v4, 7, v0
        v_bfe_u32 v5, v0, 3, {2 if opt.tmode >= 3 else 1}
        v_lshl_add_u32 v4, v5, {6 if opt.tmode >= 3 else 7}, v4
        s_and_b32 s48, s2, {0xe7 if opt.tmode >= 3 else 0xef}
        s_lshl_b32 s48, s48, 3
        v_add_u32 v4, s48, v4
        v_lshlrev_b32 v4, 11, v4
        s_and_b32 vcc_lo, s93, {-1 if opt.tmode >= 3 else 0xffff}
        s_mov_b32 vcc_hi, 0
        v_cndmask_b32 v31, v7, v4, vcc
        """)
    NT = 2
    if opt.tmode >= 3:
        assert not opt.wovec
        NT = 3
        a(f"""
        s_cmp_eq_u32 s{S_BR}, 0
        s_cselect_b32 s88, s12, s6
        s_cselect_b32 s89, s13, s7
        s_and_b32 s89, s89, 0xffff
        s_mov_b32 s90, 0x600000
        s_mov_b32 s91, 0x20000
        """)
    def touch():
        a(f"""
        s_mul_i32 s60, s62, {64*6144}
        s_lshl_b32 s61, s62, 7
        buffer_load_dword v32, v30, {SRD_W}, s60 offen
        buffer_load_dword v33, v31, {SRD_X}, s61 offen
        {"buffer_load_dword v32, v30, s[88:91], s60 offen" if NT == 3 else ""}
        s_add_u32 s62, s62, 4
        """)
    a(f"""
    s_getpc_b64 s[86:87]
    L_pc:
    s_sub_u32 s86, s86, L_pc-{NAME}_kernel
    s_subb_u32 s87, s87, 0
    v_and_b32 v37, 7, v0
    s_lshl_b32 s48, s{S_J}, 3
    v_add_u32 v37, s48, v37
    v_lshlrev_b32 v37, 7, v37
    v_min_u32 v37, L_code_end-{NAME}_kernel-4, v37
    """)
    if opt.codepf & 1:
        a(f"s_cmp_eq_u32 s46, 3\ns_cbranch_scc0 L_nocode\nglobal_load_dword v38, v37, s[86:87]")
        a.label("L_nocode")
    a(f"s_cmp_lt_u32 s46, {opt.early}\ns_cbranch_scc0 L_noearly")
    touch()
    a.label("L_noearly")
    a(f"""
    s_waitcnt lgkmcnt(0)
    s_barrier
    s_setprio 3
    """)
    if opt.prof: a("v_mov_b32 v255, 0")
    stamp(a, 21, opt)
    a(f"buffer_store_dwordx4 v[48:51], v44, {SRD_WS}, s47 offen sc1")
    a(f"""
    s_cmp_eq_u32 s{S_BR}, 0
    s_cbranch_scc0 L_nosent
    s_lshl_b32 s47, s{S_PAIR}, 3
    s_add_u32 s47, s47, s{S_RB}
    s_lshl_b32 s47, s47, 2
    s_add_u32 s47, s47, s46
    s_lshl_b32 s47, s47, 12
    s_add_u32 s47, s47, {WS_PART}
    v_mov_b32 v40, -1
    v_mov_b32 v41, -1
    v_mov_b32 v42, -1
    v_mov_b32 v43, -1
    buffer_store_dwordx4 v[40:43], v44, {SRD_WS}, s47 offen sc1
    s_mov_b64 exec, 0xff
    buffer_store_dwordx4 v[40:43], v44, {SRD_WS}, s47 offen offset:1024 sc1
    s_mov_b64 exec, -1
    """)
    a.label("L_nosent")
    issue_w(a, "s57", "s58")
    a("s_mov_b32 s57, 128"); a(f"s_add_u32 s58, s54, {XSLOT}")
    issue_x(a, "s57", "s58")
    a("s_mov_b32 s57, 256"); a(f"s_add_u32 s58, s54, {2*XSLOT}")
    issue_x(a, "s57", "s58")
    if opt.constearly:
        assert not opt.wovec
        b_consts(a); a(f"s_and_b32 s46, s{S_WAVE}, 3")
    a(f"s_cmp_lt_u32 s46, {opt.early}\ns_cbranch_scc1 L_nolate")
    touch()
    a(f"s_waitcnt vmcnt({8 + NT})\ns_branch L_late")
    a.label("L_nolate")
    a("s_waitcnt vmcnt(8)")
    a.label("L_late")
    a("s_barrier")
    stamp(a, 0, opt); cstamp(a, 30, opt)
    if opt.prof:
        a("s_getreg_b32 s94, hwreg(HW_REG_XCC_ID)\nv_writelane_b32 v255, s94, 33")
    a(f"""
    s_cmp_lt_u32 s46, 2
    s_cselect_b32 s80, s8, s14
    s_cselect_b32 s81, s9, s15
    s_and_b32 s81, s81, 0xffff
    s_mov_b32 s82, 0x200000
    s_mov_b32 s83, 0x20000
    s_and_b32 s84, s2, {0xe7 if opt.tmode >= 3 else 0xef if opt.tmode else 0xff}
    s_lshl_b32 s84, s84, 1
    s_and_b32 s48, s46, 1
    s_add_u32 s84, s84, s48
    s_lshl_b32 s84, s84, 12
    v_lshlrev_b32 v34, 7, v0
    v_cmp_gt_u32 vcc, 16, v0
    s_nop 1
    v_cndmask_b32 v34, v7, v34, vcc
    """)
    if opt.tmode >= 1:
        a(f"""
        v_and_b32 v4, 15, v0
        v_lshlrev_b32 v4, 7, v4
        v_lshrrev_b32 v5, 4, v0
        v_lshl_add_u32 v4, v5, {16 if opt.tmode >= 3 else 17}, v4
        s_mov_b32 vcc_lo, s93
        s_mov_b32 vcc_hi, {"s93" if opt.tmode >= 3 else 0}
        v_cndmask_b32 v34, v7, v4, vcc
        """)
    a(f"""
    s_mov_b32 s50, 0
    s_mov_b32 s56, {2*64*6144}
    s_mov_b32 s57, {3*128}
    s_mov_b32 s58, s55
    s_mov_b32 s59, s54
    s_mov_b32 s51, 0
    """)
    if opt.wovec:
        a(f"""
        s_mov_b32 s68, s14
        s_and_b32 s69, s15, 0xffff
        s_mov_b32 s70, 0x200000
        s_mov_b32 s71, 0x20000
        s_sub_u32 s88, 3, s46
        s_lshl_b32 s88, s88, 5
        s_add_u32 s88, s88, s{S_J}
        s_lshl_b32 s88, s88, 14
        s_and_b32 s48, s{S_XCD}, 1
        s_lshl_b32 s48, s48, 10
        s_add_u32 s88, s88, s48
        v_lshrrev_b32 v39, 3, v0
        v_lshlrev_b32 v39, 4, v39
        v_and_or_b32 v39, v0, 7, v39
        v_lshlrev_b32 v39, 7, v39
        s_lshr_b32 s89, s46, 1
        s_add_u32 s89, s89, 9
        """)
    if opt.prew:
        a(f"""
        s_lshl_b32 s73, s{S_RB}, 1
        s_add_u32 s73, s73, s{S_BR}
        s_lshl_b32 s73, s73, 4
        s_add_u32 s73, s73, s{S_PAIR}
        s_lshl_b32 s73, s73, 2
        s_add_u32 s73, s73, s46
        s_lshl_b32 s73, s73, 13
        s_lshl_b32 s74, s{S_PAIR}, 3
        s_add_u32 s74, s74, s{S_RB}
        s_lshl_b32 s74, s74, 2
        s_add_u32 s74, s74, s46
        s_lshl_b32 s74, s74, 14
        s_add_u32 s74, s74, {WS_KV}
        s_cmp_eq_u32 s{S_BR}, 0
        s_cselect_b32 s74, 0x10000000, s74
        v_lshlrev_b32 v8, {7 if opt.prew == 1 else 4}, v0
        """)
    if opt.exp & 64: a("s_mov_b64 exec, 1")
    a.label("L_prod")
    issue_w(a, "s56", "s58")
    ga, gb = {0: ((), (0, 1)), 1: ((0,), (1,)), 2: ((0, 1), ())}[opt.tpos]
    issue_x(a, "s57", "s59", ga)
    a(f"""
    s_and_b32 s47, s50, 3
    s_cmp_eq_u32 s47, s46
    s_cbranch_scc0 L_notouch
    s_cmp_lt_u32 s62, 16
    s_cbranch_scc0 L_lateturn
    """)
    touch()
    a(f"""
    s_cmp_eq_u32 s50, 1
    s_cbranch_scc0 L_noatom
    s_mov_b64 exec, 1
    buffer_atomic_add v36, off, {SRD_DBG}, s85 sc1
    s_mov_b64 exec, {1 if opt.exp & 64 else -1}
    s_branch L_three
    """)
    a.label("L_noatom")
    a(f"""
    s_sub_u32 s47, s50, {opt.wo_from}
    s_cmp_lt_u32 s47, 8
    s_cselect_b32 s47, s84, 0x200000
    s_cselect_b32 s49, 2048, 0
    buffer_load_dword v35, v34, s[80:83], s47 offen
    s_add_u32 s84, s84, s49
    """)
    a.label("L_three")
    issue_x(a, "s57", "s59", gb)
    a(f"s_waitcnt vmcnt({9 + NT})\ns_branch L_touched")
    a.label("L_lateturn")
    if opt.codepf & 2:
        a("s_cmp_eq_u32 s50, 11\ns_cbranch_scc0 L_late12\nglobal_load_dword v38, v37, s[86:87]")
        issue_x(a, "s57", "s59", gb)
        a("s_waitcnt vmcnt(9)\ns_branch L_touched")
        a.label("L_late12")
        if opt.tlb:
            a(f"""
            v_min_u32 v38, {(20 << 20 >> opt.tlb) - 1}, v0
            v_lshlrev_b32 v38, {opt.tlb}, v38
            buffer_load_dword v35, v38, {SRD_WS}, 0 offen
            v_and_b32 v38, 0x3fffff, v38
            global_load_dword v35, v38, s[18:19]
            """)
            issue_x(a, "s57", "s59", gb)
            a("s_waitcnt vmcnt(10)\ns_branch L_touched")
    a.label("L_notouch")
    issue_x(a, "s57", "s59", gb)
    a("s_waitcnt vmcnt(8)")
    a.label("L_touched")
    if opt.prew == 1:
        a(f"""
        s_sub_u32 s47, s50, {opt.prew_at}
        s_cmp_lt_u32 s47, 3
        s_cbranch_scc0 L_noprew
        s_cmp_eq_u32 s47, 2
        s_cselect_b32 s47, s73, s74
        buffer_store_dword v0, v8, {SRD_WS}, s47 offen sc1
        s_add_u32 s74, s74, 8192
        L_noprew:
        """)
    if opt.prew == 2:
        a(f"""
        s_sub_u32 s47, s50, {opt.prew_at}
        s_cmp_lt_u32 s47, 8
        s_cbranch_scc0 L_noprew
        buffer_store_dwordx4 v[0:3], v8, {SRD_WS}, s74 offen sc1
        buffer_store_dwordx4 v[0:3], v8, {SRD_WS}, s74 offen offset:1024 sc1
        buffer_store_dwordx4 v[0:3], v8, {SRD_WS}, s73 offen sc1
        s_add_u32 s74, s74, 2048
        s_add_u32 s73, s73, 1024
        L_noprew:
        """)
    if opt.wovec:
        a(f"""
        s_cmp_eq_u32 s50, s89
        s_cbranch_scc0 L_nowo2
        buffer_load_dword v35, v39, s[68:71], s88 offen
        s_add_u32 s89, s89, 2
        s_mov_b32 s68, s8
        s_and_b32 s69, s9, 0xffff
        s_xor_b32 s88, s88, {3 << 19}
        L_nowo2:
        """)
    a(f"""
    s_add_u32 s56, s56, {64*6144}
    s_add_u32 s57, s57, 128
    s_cmp_eq_u32 s58, s55
    s_cselect_b32 s58, {WSLOT}, 0
    s_add_u32 s58, s58, s55
    s_add_u32 s51, s51, 1
    s_cmp_eq_u32 s51, 3
    s_cselect_b32 s51, 0, s51
    s_lshl_b32 s59, s51, 15
    s_add_u32 s59, s59, s54
    s_add_u32 s50, s50, 1
    s_barrier
    """)
    if opt.prof:
        a("s_mov_b32 m0, s50"); stamp(a, "m0", opt)
    a("""
    s_cmp_lt_u32 s50, 13
    s_cbranch_scc1 L_prod
    s_mov_b64 exec, -1
    """)
    issue_w(a, "s56", "s58")
    a(f"""
    s_lshl_b32 s47, s{S_RB}, 1
    s_add_u32 s47, s47, s{S_BR}
    s_lshl_b32 s47, s47, 4
    s_add_u32 s47, s47, s{S_PAIR}
    s_lshl_b32 s47, s47, 2
    s_add_u32 s47, s47, s46
    s_lshl_b32 s48, s47, 12
    v_lshlrev_b32 v1, 5, v0
    s_mov_b32 s64, s16
    s_and_b32 s65, s17, 0xffff
    s_mov_b32 s66, 2048
    s_mov_b32 s67, 0x20000
    v_and_b32 v27, 31, v0
    v_lshlrev_b32 v27, 3, v27
    buffer_load_dwordx4 v[40:43], v1, s[64:67], 0 offen
    buffer_load_dwordx4 v[44:47], v1, s[64:67], 0 offen offset:16
    buffer_load_dwordx4 v[48:51], v1, {SRD_X}, s48 offen
    buffer_load_dwordx4 v[52:55], v1, {SRD_X}, s48 offen offset:16
    buffer_load_dwordx4 v[56:59], v1, {SRD_X}, s48 offen offset:2048
    buffer_load_dwordx4 v[60:63], v1, {SRD_X}, s48 offen offset:2064
    buffer_load_dword v26, v27, {SRD_DBG}, 0 offen sc1
    """)
    a("s_mov_b32 s93, s47")
    f_setup(a, opt)
    f_regload(a, 32 - opt.n13, 32)
    a(f"s_waitcnt vmcnt({7 + 2*opt.n13})\ns_barrier")
    f_regload(a, 32 - opt.n13 - opt.n14, 32 - opt.n13)
    a(f"s_mov_b32 s47, s93\ns_setprio {opt.tailprio}")
    stamp(a, 14, opt); cstamp(a, 31, opt)

def producer_gate(a, opt):
    nw = 2 * (opt.n13 + opt.n14)
    a(f"v_mov_b32 v2, 0\nv_mov_b32 v3, 0")
    for i in range(8):
        a(f"v_dot2c_f32_bf16 v2, v{48+i}, v{40+i}")
        a(f"v_dot2c_f32_bf16 v3, v{56+i}, v{40+i}")
    a("s_nop 2")
    a("""
    v_permlane32_swap_b32 v2, v3
    s_nop 1
    v_add_f32 v2, v2, v3
    v_mov_b32 v3, v2
    s_nop 1
    v_permlane16_swap_b32 v2, v3
    s_nop 1
    v_add_f32 v2, v2, v3
    """)
    for sh in (8, 4, 2, 1):
        a("s_nop 1")
        a(f"v_add_f32_dpp v2, v2, v2 row_ror:{sh} row_mask:0xf bank_mask:0xf")
    a(f"""
    v_mul_f32 v2, {hex(f2u(-LOG2E))}, v2
    v_exp_f32 v2, v2
    v_lshlrev_b32 v3, 2, v{V_LANE}
    v_add_f32 v2, 1.0, v2
    v_rcp_f32 v2, v2
    s_lshl_b32 s47, s47, 8
    s_add_u32 s47, s47, {WS_G}
    buffer_store_dword v2, v3, {SRD_WS}, s47 offen sc1
    s_mov_b32 s48, {SPIN_MAX}
    """)
    a.label(f"L_initpoll")
    a(f"""
    v_cmp_gt_u32 vcc, 8, v26
    s_cbranch_vccz L_initdone
    s_sub_u32 s48, s48, 1
    s_cmp_eq_u32 s48, 0
    s_cbranch_scc1 L_initdone
    buffer_load_dword v26, v27, {SRD_DBG}, 0 offen sc1
    s_waitcnt vmcnt(0)
    s_branch L_initpoll
    """)
    a.label(f"L_initdone")

T_S, T_P, T_K, T_V = 0, 32, 40, 48
class U:
    def __init__(s, sr_, q, o, l, sq): s.s, s.q, s.o, s.l, s.sq = sr_, q, o, l, sq
UA = U(0, 56, 64, 80, 70); UB = U(16, 84, 92, 108, 71)
T_MD, T_ME, T_SEL, T_PAT, T_ADR, T_T0, T_Z = 112, 128, 144, 148, 149, 150, 156
T_C = 16
T_PUB = 160
S_HB = 72
LQ = 131072
def swap34(i): return (i & 7) | ((i >> 4 & 1) << 3) | ((i >> 3 & 1) << 4)

def b_consts(a):
    a(f"v_mov_b32 v{T_T0}, {hex(f2u(-1e30))}")
    for n in range(16):
        g, r = n >> 2, n & 3
        m = 0
        for l in range(64):
            j, h = l & 31, l >> 5
            if swap34(8 * g + 4 * h + r) <= swap34(j): m |= 1 << l
        s = 64 + 2 * (n & 1)
        a(f"s_mov_b32 s{s}, {hex(m & 0xffffffff)}")
        a(f"s_mov_b32 s{s+1}, {hex(m >> 32)}")
        a(f"v_cndmask_b32_e64 v{T_MD+n}, v{T_T0}, 0, s[{s}:{s+1}]")
        a(f"v_cndmask_b32_e64 v{T_ME+n}, 0, v{T_T0}, s[{s}:{s+1}]")
    L = V_LANE
    a(f"""
    v_lshrrev_b32 v{T_T0}, 2, v{L}
    v_xor_b32 v{T_T0}, v{T_T0}, v{L}
    v_bfe_u32 v{T_T0}, v{T_T0}, 2, 1
    v_add_u32 v{T_T0}, -1, v{T_T0}
    v_and_b32 v{T_SEL}, 0x3f803f80, v{T_T0}
    v_mov_b32 v{T_Z}, 0
    v_mov_b32 v{T_Z+1}, 0
    v_mov_b32 v{T_Z+2}, 0
    v_mov_b32 v{T_Z+3}, 0
    v_mov_b32 v{T_SEL+1}, v{T_SEL}
    v_mov_b32 v{T_SEL+2}, v{T_SEL}
    v_mov_b32 v{T_SEL+3}, v{T_SEL}
    v_and_b32 v{T_PAT}, 7, v{L}
    v_lshlrev_b32 v{T_PAT}, 4, v{T_PAT}
    v_lshrrev_b32 v{T_T0}, 4, v{L}
    v_lshl_add_u32 v{T_PAT}, v{T_T0}, 7, v{T_PAT}
    v_bfe_u32 v{T_T0}, v{L}, 3, 1
    v_lshl_add_u32 v{T_PAT}, v{T_T0}, 10, v{T_PAT}
    s_and_b32 s46, s{S_WAVE}, 1
    s_lshl_b32 s{S_HB}, s46, 15
    s_and_b32 s46, s{S_WAVE}, 2
    s_sub_u32 s{UA.sq}, 6, s46
    s_cmp_lt_u32 s{S_WAVE}, 4
    s_cselect_b32 s{UA.sq}, s46, s{UA.sq}
    s_add_u32 s{UB.sq}, s{UA.sq}, 1
    """)
    for u in (UA, UB):
        a(f"v_mfma_f32_32x32x16_bf16 {vr(u.o,16)}, {vr(T_Z,4)}, {vr(T_Z,4)}, 0")
        a(f"v_mfma_f32_16x16x32_bf16 {vr(u.l,4)}, {vr(T_Z,4)}, {vr(T_Z,4)}, 0")

def b_epilogue(a, opt, part):
    L = V_LANE
    c = LOG2E / 32 ** 0.5
    if part == 0: a(f"""
    s_lshr_b32 s46, s{S_WAVE}, 1
    s_and_b32 s47, s{S_WAVE}, 1
    s_lshl_b32 s48, s47, 15
    s_lshl_b32 s49, s46, 13
    s_add_u32 s48, s48, s49
    s_add_u32 s48, s48, 65536
    v_lshlrev_b32 v253, 4, v{L}
    v_add_u32 v248, s48, v253
    s_lshl_b32 s48, s47, 14
    s_add_u32 s48, s48, s49
    s_add_u32 s48, s48, {LQ}
    v_add_u32 v249, s48, v253
    s_lshl_b32 s48, s{S_PAIR}, 3
    s_add_u32 s48, s48, s{S_RB}
    s_lshl_b32 s48, s48, 16
    s_lshl_b32 s47, s47, 15
    s_add_u32 s48, s48, s47
    s_add_u32 s48, s48, s49
    s_add_u32 s48, s48, {WS_KV if not (opt.exp & 1) else 0x10000000}
    s_cmp_eq_u32 s{S_RB}, {7 if opt.exp & 32 else 99}
    s_cselect_b32 s48, 0x10000000, s48
    s_add_u32 s49, s48, 4096
    s_add_u32 s50, s48, 16384
    s_add_u32 s51, s48, {16384+4096}
    s_mov_b32 s64, {hex(f2u(c))}
    """)
    def pack(dst, x, y):
        a(f"v_cvt_pk_bf16_f32 v{dst}, v{x}, v{x+1}")
        a(f"v_cvt_pk_bf16_f32 v{dst+1}, v{x+2}, v{x+3}")
        a(f"v_cvt_pk_bf16_f32 v{dst+2}, v{y}, v{y+1}")
        a(f"v_cvt_pk_bf16_f32 v{dst+3}, v{y+2}, v{y+3}")
    def qpack(sb):
        d = acc(sb, 0)
        for r in range(0, 8, 2):
            a(f"v_pk_mul_f32 {vr(d+r,2)}, {vr(d+r,2)}, s[64:65] op_sel_hi:[1,0]")
        pack(d, acc(sb, 0), acc(sb, 1))
    late = []
    def store(n, txt):
        if n >= 16 - opt.stlate: late.append(txt)
        else: a(txt)
    n = 8 * part
    for m in (2 * part, 2 * part + 1):
        for sb in (2 * m, 2 * m + 1):
            d = acc(sb, 2)
            pack(d, acc(sb, 2), acc(sb, 3))
            store(n, f"buffer_store_dwordx4 {vr(d,4)}, v253, {SRD_WS}, s{48 + (sb >> 2)} offen offset:{(sb & 3)*1024} {opt.kvst}"); n += 1
            a(f"ds_write_b128 v248, {vr(d,4)} offset:{sb*1024}")
            if part: qpack(sb - 4)
        for nb in range(2):
            d = acc(2 * m, 4 + nb); i = 2 * m + nb
            pack(d, acc(2 * m, 4 + nb), acc(2 * m + 1, 4 + nb))
            store(n, f"buffer_store_dwordx4 {vr(d,4)}, v253, {SRD_WS}, s{50 + (i >> 2)} offen offset:{(i & 3)*1024} {opt.kvst}"); n += 1
            a(f"ds_write_b128 v248, {vr(d,4)} offset:{16384 + i*1024}")
    if part == 0: return
    for sb in range(4):
        a(f"ds_write_b128 v249, {vr(acc(sb,0),4)} offset:{sb*1024}")
        qpack(sb + 4)
    for sb in range(4, 8):
        a(f"ds_write_b128 v249, {vr(acc(sb,0),4)} offset:{sb*1024}")
    a("s_setprio 2\ns_waitcnt lgkmcnt(0)\ns_barrier")
    for t in late: a(t)
    if late: a("s_nop 1")

def b_phase(a, X, Y, kind, step, mask=None):
    S, P = X.s, T_P
    M32 = "v_mfma_f32_32x32x16_bf16"; M16 = "v_mfma_f32_16x16x32_bf16"
    e = lambda n: a(f"v_exp_f32 v{S+n}, v{S+n}")
    c = lambda k: a(f"v_cvt_pk_bf16_f32 v{P+k}, v{S+2*k}, v{S+2*k+1}")
    if kind == 'B': a("s_waitcnt lgkmcnt(1)")
    a(f"{M32} {vr(Y.s,16)}, {vr(T_K,4)}, {vr(Y.q,4)}, {vr(mask,16) if mask is not None else 0}")
    if kind == 'A': a(f"v_add_u32 v{T_ADR}, {step & 0xffffffff}, v{T_ADR}")
    e(0); e(1); e(2); c(0)
    a(f"{M32} {vr(Y.s,16)}, {vr(T_K+4,4)}, {vr(Y.q+4,4)}, {vr(Y.s,16)}")
    if kind == 'A':
        a(f"ds_read_b128 {vr(T_K,4)}, v{T_ADR}")
        a(f"ds_read_b128 {vr(T_K+4,4)}, v{T_ADR} offset:512")
    e(3); e(4); c(1); e(5)
    if kind != 'F':
        if kind == 'B': a("s_waitcnt lgkmcnt(0)")
        a(f"{M32} {vr(Y.o,16)}, {vr(T_V+4,4)}, {vr(P+4,4)}, {vr(Y.o,16)}")
        if kind == 'A': a(f"ds_read_b128 {vr(T_V+4,4)}, v{T_ADR} offset:{16384 + 512 - step}")
    e(6); c(2); e(7); e(8)
    if kind != 'F':
        a(f"{M16} {vr(Y.l,4)}, {vr(T_SEL,4)}, {vr(P+4,4)}, {vr(Y.l,4)}")
    c(3); e(9); e(10); c(4)
    if kind == 'A': a("s_waitcnt lgkmcnt(3)")
    a(f"{M32} {vr(X.o,16)}, {vr(T_V,4)}, {vr(P,4)}, {vr(X.o,16)}")
    if kind != 'A': a(f"ds_read_b128 {vr(T_V,4)}, v{T_ADR} offset:16384")
    e(11); e(12); c(5); e(13)
    a(f"{M16} {vr(X.l,4)}, {vr(T_SEL,4)}, {vr(P,4)}, {vr(X.l,4)}")
    e(14); e(15); c(6)
    if kind == 'B': a("s_sub_u32 s50, s50, 1\ns_cmp_lg_u32 s50, 0")
    c(7)

def b_section(a, own):
    X, Y = (UB, UA) if own else (UA, UB)
    step = -2048 if own else 2048
    mask = T_MD if own else T_ME
    tag = "own" if own else "halo"
    M32 = "v_mfma_f32_32x32x16_bf16"; M16 = "v_mfma_f32_16x16x32_bf16"
    if own: a(f"s_add_u32 s46, s{UA.sq}, 32\ns_add_u32 s50, s{UA.sq}, 1")
    else: a(f"s_add_u32 s46, s{UA.sq}, 1\ns_sub_u32 s50, 7, s{UA.sq}")
    a(f"""
    s_lshl_b32 s46, s46, 11
    s_add_u32 s46, s46, s{S_HB}
    v_add_u32 v{T_ADR}, s46, v{T_PAT}
    v_add_u32 v{T_T0}, {-step & 0xffffffff}, v{T_ADR}
    ds_read_b128 {vr(T_P,4)}, v{T_T0}
    ds_read_b128 {vr(T_P+4,4)}, v{T_T0} offset:512
    ds_read_b128 {vr(T_K,4)}, v{T_ADR}
    ds_read_b128 {vr(T_K+4,4)}, v{T_ADR} offset:512
    ds_read_b128 {vr(T_V,4)}, v{T_T0} offset:16384
    ds_read_b128 {vr(T_V+4,4)}, v{T_T0} offset:{16384+512}
    s_waitcnt lgkmcnt(5)
    {M32} {vr(X.s,16)}, {vr(T_P,4)}, {vr(X.q,4)}, {vr(mask,16)}
    s_waitcnt lgkmcnt(4)
    {M32} {vr(X.s,16)}, {vr(T_P+4,4)}, {vr(X.q+4,4)}, {vr(X.s,16)}
    s_waitcnt lgkmcnt(0)
    s_nop 7
    s_nop 1
    """)
    b_phase(a, X, Y, 'F', step, mask)
    a.label(f"L_pair_{tag}")
    b_phase(a, Y, X, 'A', step)
    b_phase(a, X, Y, 'B', step)
    a(f"""
    s_cbranch_scc1 L_pair_{tag}
    s_nop 0
    {M32} {vr(X.o,16)}, {vr(T_V+4,4)}, {vr(T_P+4,4)}, {vr(X.o,16)}
    {M16} {vr(X.l,4)}, {vr(T_SEL,4)}, {vr(T_P+4,4)}, {vr(X.l,4)}
    """)

def b_final(a, u, tag, opt):
    lo, hi = (2.0 ** -40, 2.0 ** 40) if not opt.force_slow else (2.0 ** 3, 2.0 ** 9)
    a(f"""
    s_lshl_b32 s46, s{S_RB}, 6
    s_lshl_b32 s47, s{S_PAIR}, 1
    s_add_u32 s46, s46, s47
    s_and_b32 s47, s{S_WAVE}, 1
    s_add_u32 s46, s46, s47
    s_add_u32 s46, s46, 32
    s_lshl_b32 s46, s46, 3
    s_add_u32 s46, s46, s{u.sq}
    s_lshl_b32 s73, s46, 11
    v_cmp_le_f32 vcc, {hex(f2u(lo))}, v{u.l}
    s_mov_b64 s[46:47], vcc
    v_cmp_ge_f32 vcc, {hex(f2u(hi))}, v{u.l}
    s_and_b64 s[46:47], s[46:47], vcc
    s_cmp_eq_u64 s[46:47], -1
    {"s_nop 0" if opt.exp else f"s_cbranch_scc0 L_slow_{tag}"}
    """)
    a.label(f"L_back_{tag}")
    a(f"v_rcp_f32 v{T_T0}, v{u.l}")
    a("s_nop 0")
    for r in range(0, 16, 2):
        a(f"v_pk_mul_f32 {vr(u.o+r,2)}, {vr(u.o+r,2)}, {vr(T_T0,2)} op_sel_hi:[1,0]")
    for k in range(8):
        a(f"v_cvt_pk_bf16_f32 v{u.o+k}, v{u.o+2*k}, v{u.o+2*k+1}")
    a(f"buffer_store_dwordx4 {vr(u.o,4)}, v{T_PAT}, {SRD_WS}, s73 offen sc1")
    a(f"buffer_store_dwordx4 {vr(u.o+4,4)}, v{T_PAT}, {SRD_WS}, s73 offen offset:512 sc1")

def b_slow(a, u, tag):
    S, P, M = T_S, T_P, T_T0 + 2
    a.label(f"L_slow_{tag}")
    a(f"""
    s_nop 7
    s_nop 7
    v_mfma_f32_32x32x16_bf16 {vr(u.o,16)}, {vr(T_Z,4)}, {vr(T_Z,4)}, 0
    v_mfma_f32_16x16x32_bf16 {vr(u.l,4)}, {vr(T_Z,4)}, {vr(T_Z,4)}, 0
    v_mov_b32 v{M}, {hex(f2u(-3e38))}
    s_add_u32 s52, s{u.sq}, 8
    """)
    for ps in range(2):
        a(f"""
        s_cmp_eq_u32 s{S_RB}, 0
        s_cselect_b32 s51, 8, s{u.sq}
        """)
        a.label(f"L_slowl_{tag}{ps}")
        a(f"""
        s_lshl_b32 s46, s{S_PAIR}, 3
        s_add_u32 s46, s46, s{S_RB}
        s_lshr_b32 s47, s51, 3
        s_add_u32 s46, s46, s47
        s_lshl_b32 s46, s46, 16
        s_and_b32 s47, s51, 7
        s_lshl_b32 s47, s47, 11
        s_add_u32 s46, s46, s47
        s_add_u32 s46, s46, s{S_HB}
        s_add_u32 s46, s46, {WS_KV - 65536}
        s_add_u32 s47, s46, 16384
        buffer_load_dwordx4 {vr(T_K,4)}, v{T_PAT}, {SRD_WS}, s46 offen sc1
        buffer_load_dwordx4 {vr(T_K+4,4)}, v{T_PAT}, {SRD_WS}, s46 offen offset:512 sc1
        buffer_load_dwordx4 {vr(T_V,4)}, v{T_PAT}, {SRD_WS}, s47 offen sc1
        buffer_load_dwordx4 {vr(T_V+4,4)}, v{T_PAT}, {SRD_WS}, s47 offen offset:512 sc1
        s_cmp_eq_u32 s51, s52
        s_cselect_b32 s47, 1.0, 0
        s_cmp_eq_u32 s51, s{u.sq}
        s_cselect_b32 s48, 1.0, 0
        """)
        for n in range(16):
            a(f"v_mul_f32 v{T_C+n}, s47, v{T_MD+n}")
            a(f"v_fmac_f32 v{T_C+n}, s48, v{T_ME+n}")
        a(f"""
        s_waitcnt vmcnt(0)
        s_nop 1
        v_mfma_f32_32x32x16_bf16 {vr(S,16)}, {vr(T_K,4)}, {vr(u.q,4)}, {vr(T_C,16)}
        v_mfma_f32_32x32x16_bf16 {vr(S,16)}, {vr(T_K+4,4)}, {vr(u.q+4,4)}, {vr(S,16)}
        s_nop 7
        s_nop 7
        """)
        if ps == 0:
            for n in range(0, 16, 2):
                a(f"v_max3_f32 v{M}, v{S+n}, v{S+n+1}, v{M}")
        else:
            for n in range(16): a(f"v_sub_f32 v{S+n}, v{S+n}, v{M}")
            for n in range(16): a(f"v_exp_f32 v{S+n}, v{S+n}")
            a("s_nop 0")
            for k in range(8): a(f"v_cvt_pk_bf16_f32 v{P+k}, v{S+2*k}, v{S+2*k+1}")
            a(f"""
            s_nop 1
            v_mfma_f32_32x32x16_bf16 {vr(u.o,16)}, {vr(T_V,4)}, {vr(P,4)}, {vr(u.o,16)}
            v_mfma_f32_32x32x16_bf16 {vr(u.o,16)}, {vr(T_V+4,4)}, {vr(P+4,4)}, {vr(u.o,16)}
            v_mfma_f32_16x16x32_bf16 {vr(u.l,4)}, {vr(T_SEL,4)}, {vr(P,4)}, {vr(u.l,4)}
            v_mfma_f32_16x16x32_bf16 {vr(u.l,4)}, {vr(T_SEL,4)}, {vr(P+4,4)}, {vr(u.l,4)}
            """)
        a(f"""
        s_add_u32 s51, s51, 1
        s_cmp_le_u32 s51, s52
        s_cbranch_scc1 L_slowl_{tag}{ps}
        """)
        if ps == 0:
            a(f"""
            v_mov_b32 v{M+1}, v{M}
            s_nop 1
            v_permlane32_swap_b32 v{M}, v{M+1}
            s_nop 1
            v_max_f32 v{M}, v{M}, v{M+1}
            """)
    a(f"s_nop 7\ns_nop 7\ns_branch L_back_{tag}")

def b_attention(a, opt):
    a(f"""
    s_lshl_b32 s46, s{S_WAVE}, 7
    s_add_u32 s46, s46, s{S_FLAG}
    v_mov_b32 v{T_T0}, 1
    v_lshlrev_b32 v{T_T0+1}, 2, v{V_LANE}
    s_mov_b32 exec_hi, 0
    s_waitcnt vmcnt(0)
    buffer_store_dword v{T_T0}, v{T_T0+1}, {SRD_WS}, s46 offen sc1
    s_mov_b32 exec_hi, -1
    """)
    stamp(a, 25, opt)
    a(f"""
    s_cmp_ge_u32 s{S_WAVE}, 2
    s_cbranch_scc1 L_bnopoll
    s_cmp_eq_u32 s{S_RB}, 0
    s_cbranch_scc1 L_bnopoll
    s_sub_u32 s46, s46, 2048
    s_mov_b32 s48, {SPIN_MAX}
    v_and_b32 v{T_C+1}, 1, v{V_LANE}
    v_lshlrev_b32 v{T_C+1}, 8, v{T_C+1}
    s_lshl_b32 s47, s{S_PAIR}, 3
    s_add_u32 s47, s47, s{S_RB}
    s_lshl_b32 s47, s47, 16
    s_add_u32 s47, s47, s{S_HB}
    s_add_u32 s47, s47, {WS_KV - 65536}
    v_lshlrev_b32 v{T_T0}, 4, v{V_LANE}
    """)
    if opt.bwait: a("s_waitcnt vmcnt(0)")
    a.label("L_bpoll_l")
    a(f"""
    buffer_load_dword v{T_C}, v{T_C+1}, {SRD_WS}, s46 offen sc1
    s_sub_u32 s48, s48, 1
    s_cmp_eq_u32 s48, 0
    s_cbranch_scc1 L_bpoll_d
    s_waitcnt vmcnt(0)
    v_cmp_ne_u32 vcc, 1, v{T_C}
    s_cbranch_vccnz L_bpoll_l
    """)
    a.label("L_bpoll_d")
    stamp(a, 26, opt)
    a(f"s_mov_b32 m0, s{S_HB}\ns_mov_b32 s48, 8")
    a.label("L_bdma")
    for k in range(4):
        if not (opt.exp & 2): a(f"buffer_load_dwordx4 v{T_T0}, {SRD_WS}, s47 offen offset:{k*1024} {opt.kvld} lds")
    a("""
    s_add_u32 m0, m0, 4096
    s_add_u32 s47, s47, 4096
    s_sub_u32 s48, s48, 1
    s_cmp_lg_u32 s48, 0
    s_cbranch_scc1 L_bdma
    """)
    a.label("L_bnopoll")
    a(f"s_setprio {opt.oprio}")
    a.label("L_battn1")
    stamp(a, 24, opt); cstamp(a, 34, opt)
    a(f"""
    s_lshr_b32 s46, s{S_HB}, 1
    s_add_u32 s46, s46, {LQ}
    s_lshl_b32 s47, s{UA.sq}, 11
    s_add_u32 s47, s47, s46
    v_add_u32 v{T_ADR}, s47, v{T_PAT}
    ds_read_b128 {vr(UB.q,4)}, v{T_ADR} offset:2048
    ds_read_b128 {vr(UB.q+4,4)}, v{T_ADR} offset:{2048+512}
    ds_read_b128 {vr(UA.q,4)}, v{T_ADR}
    ds_read_b128 {vr(UA.q+4,4)}, v{T_ADR} offset:512
    """)
    b_section(a, True)
    stamp(a, 27, opt)
    a(f"""
    s_setprio 0
    s_waitcnt vmcnt(0) lgkmcnt(0)
    s_barrier
    s_cmp_lt_u32 s{S_WAVE}, 4
    s_cbranch_scc1 L_nofill
    s_setprio {opt.bprio}
    """)
    f_prefill(a, opt, "B")
    a.label("L_nofill")
    stamp(a, 28, opt)
    a(f"""
    s_cmp_eq_u32 s{S_RB}, 0
    s_cbranch_scc1 L_bfin
    """)
    b_section(a, False)
    a.label("L_bfin")
    a("s_waitcnt lgkmcnt(0)\ns_nop 1")
    b_final(a, UB, "b", opt)
    b_final(a, UA, "a", opt)
    stamp(a, 29, opt); cstamp(a, 35, opt)
    a(f"""
    s_cmp_ge_u32 s{S_WAVE}, 4
    s_cbranch_scc1 L_fprod
    s_branch L_fcons
    """)
    b_slow(a, UA, "a")
    b_slow(a, UB, "b")

def phi_pack(a, dst, x, y, t):
    for i, b in enumerate((x, x + 2, y, y + 2)):
        a(f"v_pk_fma_f32 {vr(t+2*i,2)}, {vr(b,2)}, s[64:65], s[64:65] op_sel_hi:[1,0,0] neg_lo:[0,0,1] neg_hi:[0,0,1]")
    for i in range(8): a(f"v_exp_f32_e64 v{t+i}, v{t+i} clamp")
    for i in range(8): a(f"v_max_f32 v{t+i}, v{t+i}, v{(x if i < 4 else y) + (i & 3)}")
    for i in range(4): a(f"v_pk_add_f32 {vr(t+2*i,2)}, {vr(t+2*i,2)}, s[66:67] op_sel_hi:[1,0]")
    for i in range(4): a(f"v_cvt_pk_bf16_f32 v{dst+i}, v{t+2*i}, v{t+2*i+1}")

A_KV = 192
A_T = 216; A_ONE = 224; A_OP = 228
LA_FIN = 32768
def a_valu(a, m, t):
    for nb in range(2):
        phi_pack(a, acc(2*m, 2+nb), acc(2*m, 2+nb), acc(2*m+1, 2+nb), t)
    for nb in range(2):
        d, x, y = acc(2*m, 4+nb), acc(2*m, 4+nb), acc(2*m+1, 4+nb)
        a(f"v_cvt_pk_bf16_f32 v{d}, v{x}, v{x+1}\nv_cvt_pk_bf16_f32 v{d+1}, v{x+2}, v{x+3}\nv_cvt_pk_bf16_f32 v{d+2}, v{y}, v{y+1}\nv_cvt_pk_bf16_f32 v{d+3}, v{y+2}, v{y+3}")
def a_pre(a, opt):
    L = V_LANE
    a(f"""
    s_mov_b32 s64, {hex(f2u(LOG2E))}
    s_mov_b32 s66, {hex(f2u(1e-6))}
    s_mul_i32 s46, s{S_WAVE}, 6144
    v_lshlrev_b32 v253, 4, v{L}
    v_add_u32 v248, s46, v253
    s_and_b32 s47, s{S_WAVE}, 1
    s_mul_i32 s46, s47, 3072
    s_add_u32 s46, s46, {LA_FIN}
    v_add_u32 v249, s46, v253
    """)
    a_valu(a, 0, XA)

def a_consumer(a, opt):
    L = V_LANE
    for i in range(4): a(f"v_mov_b32 v{A_ONE+i}, 0x3f803f80")
    kvb = lambda db, eb: A_KV + eb * 12 + db * 4
    zb = lambda db: A_KV + db * 12 + 8
    def kvm(m):
        out = []
        for db in range(2):
            c = vr(zb(db), 4)
            out.append(f"v_mfma_f32_16x16x32_bf16 {c}, {vr(acc(2*m,2+db),4)}, {vr(A_ONE,4)}, {c if m else 0}")
        for eb in range(2):
            for db in range(2):
                c = vr(kvb(db, eb), 4)
                out.append(f"v_mfma_f32_16x16x32_bf16 {c}, {vr(acc(2*m,2+db),4)}, {vr(acc(2*m,4+eb),4)}, {c if m else 0}")
        return out
    for m in range(1, 4):
        v = lines_of(a_valu, m, A_T); mf = kvm(m - 1)
        for k, l in enumerate(v):
            a(l)
            if k >= 2 and k % 3 == 2 and mf: a(mf.pop(0))
    for l in kvm(3): a(l)
    a("s_nop 7")
    for i in (2, 5, 0, 1, 3, 4):
        a(f"ds_write_b128 v248, {vr(A_KV+4*i,4)} offset:{i*1024}")
    a("s_waitcnt lgkmcnt(0)\ns_barrier")
    stamp(a, 24, opt)
    for sb in range(8):
        phi_pack(a, acc(sb, 0), acc(sb, 0), acc(sb, 1), A_T)
    a(f"""
    s_lshl_b32 s46, s{S_RB}, 6
    s_lshl_b32 s48, s{S_PAIR}, 1
    s_add_u32 s46, s46, s48
    s_add_u32 s46, s46, s47
    s_lshl_b32 s46, s46, 1
    s_lshr_b32 s48, s{S_WAVE}, 1
    s_add_u32 s46, s46, s48
    s_lshl_b32 s48, s46, 13
    s_add_u32 s49, s48, 4096
    """)
    stamp(a, 25, opt)
    a("s_setprio 3\ns_barrier")
    stamp(a, 28, opt)
    for i in range(3): a(f"ds_read_b128 {vr(A_OP+4*i,4)}, v249 offset:{i*1024}")
    a("s_waitcnt lgkmcnt(0)")
    for sb in range(8):
        for i in range(3):
            a(f"v_mfma_f32_16x16x32_bf16 {vr(acc(sb,2+i),4)}, {vr(A_OP+4*i,4)}, {vr(acc(sb,0),4)}, 0")
    for sb in range(8):
        n0, dn = acc(sb, 2), acc(sb, 4)
        a(f"v_add_f32 v{dn}, s66, v{dn}")
        a(f"v_rcp_f32 v{dn}, v{dn}")
        a("s_nop 0")
        for r in range(0, 8, 2):
            a(f"v_pk_mul_f32 {vr(n0+r,2)}, {vr(n0+r,2)}, {vr(dn,2)} op_sel_hi:[1,0]")
        for k in range(4):
            a(f"v_cvt_pk_bf16_f32 v{n0+k}, v{n0+2*k}, v{n0+2*k+1}")
        a(f"buffer_store_dwordx4 {vr(n0,4)}, v253, {SRD_WS}, s{48 + (sb>>2)} offen offset:{(sb&3)*1024} sc1")
    stamp(a, 29, opt)
    if opt.a3: a("s_barrier")
    f_flag(a)
    a("s_setprio 0")

def a_producer(a, opt):
    L = V_LANE
    V16, VR, VKV, VZ, VQ, VZA, Z = 242, 243, 244, 245, 246, 247, 248
    a(f"""
    s_sub_u32 s46, s{S_WAVE}, 4
    s_and_b32 s47, s46, 1
    s_lshr_b32 s48, s46, 1
    s_mul_i32 s49, s47, 6144
    s_mul_i32 s50, s48, 3072
    s_add_u32 s49, s49, s50
    v_lshlrev_b32 v{V16}, 4, v{L}
    v_add_u32 v{VR}, s49, v{V16}
    s_mul_i32 s49, s47, 3072
    s_add_u32 s49, s49, {LA_FIN}
    s_lshl_b32 s50, s48, 10
    s_add_u32 s50, s50, s49
    v_add_u32 v{VKV}, s50, v{V16}
    s_lshl_b32 s50, s48, 3
    s_add_u32 s50, s50, s49
    v_add_u32 v{VZ}, s50, v{V16}
    v_and_b32 v{VQ}, 48, v{L}
    v_and_b32 v{VZA}, 7, v{L}
    v_lshl_add_u32 v{VZA}, v{VZA}, 14, v{VQ}
    v_and_b32 v6, 3, v{L}
    v_sub_u32 v{VQ}, v{VR}, v{V16}
    v_lshl_add_u32 v{VQ}, v6, 8, v{VQ}
    s_lshl_b32 s51, s{S_PAIR}, 5
    s_add_u32 s51, s51, s46
    s_lshl_b32 s51, s51, 12
    s_add_u32 s51, s51, {WS_PART}
    s_lshl_b32 s52, s{S_RB}, 14
    s_add_u32 s52, s52, s51
    v_mov_b32 v0, 0
    v_mov_b32 v1, 0
    v_mov_b32 v4, 0
    v_mov_b32 v5, 0
    v_and_b32 v6, 1, v{L}
    v_lshlrev_b32 v6, 4, v6
    v_mov_b32 v7, 0x3f80
    v_lshlrev_b32 v6, v6, v7
    s_mov_b32 vcc_lo, 0x00300003
    s_mov_b32 vcc_hi, 0x30000300
    v_cndmask_b32 v2, 0, v6, vcc
    s_mov_b32 vcc_lo, 0x00c0000c
    s_mov_b32 vcc_hi, 0xc0000c00
    v_cndmask_b32 v3, 0, v6, vcc
    s_setprio 2
    s_barrier
    """)
    stamp(a, 24, opt)
    for i in range(3):
        a(f"ds_read_b128 {vr(16+4*i,4)}, v{VR if i < 2 else VQ} offset:{i*1024}")
        a(f"ds_read_b128 {vr(28+4*i,4)}, v{VR if i < 2 else VQ} offset:{12288 + i*1024}")
    a("s_waitcnt lgkmcnt(2)")
    for r in range(0, 8, 2): a(f"v_pk_add_f32 {vr(16+r,2)}, {vr(16+r,2)}, {vr(28+r,2)}")
    for k in range(4): a(f"v_cvt_pk_bf16_f32 v{8+k}, v{16+2*k}, v{17+2*k}")
    a(f"""
    buffer_store_dwordx4 v[8:11], v{V16}, {SRD_WS}, s52 offen sc1
    s_waitcnt lgkmcnt(0)
    v_pk_add_f32 v[12:13], v[24:25], v[36:37]
    v_pk_add_f32 v[14:15], v[26:27], v[38:39]
    s_mov_b32 s48, {SPIN_MAX // 8}
    s_mov_b64 exec, 0xff
    buffer_store_dwordx4 v[12:15], v{V16}, {SRD_WS}, s52 offen offset:1024 sc1
    s_mov_b64 exec, -1
    """)
    if opt.await0: a("s_waitcnt vmcnt(0)")
    stamp(a, 25, opt)
    a.label("L_agather")
    a(f"buffer_load_dwordx4 {vr(Z,4)}, v{VZA}, {SRD_WS}, s51 offen offset:1024 sc1")
    a("s_mov_b32 s53, s51")
    for src in range(8):
        a(f"buffer_load_dwordx4 {vr(16+4*src,4)}, v{V16}, {SRD_WS}, s53 offen sc1")
        if src < 7: a("s_add_u32 s53, s53, 16384")
    a("s_waitcnt vmcnt(8)")
    for sh in (4, 2, 1):
        for r in range(4): a(f"v_add_f32_dpp v{Z+r}, v{Z+r}, v{Z+r} row_ror:{sh} row_mask:0xf bank_mask:0xf")
    for src in range(8):
        a(f"s_waitcnt vmcnt({7-src})")
        a(f"v_mfma_f32_16x16x32_bf16 v[8:11], v[2:5], {vr(16+4*src,4)}, {'v[8:11]' if src else 0}")
        a(f"v_mfma_f32_16x16x32_bf16 v[12:15], v[0:3], {vr(16+4*src,4)}, {'v[12:15]' if src else 0}")
    a(f"""
    v_pk_add_f32 v[6:7], {vr(Z,2)}, {vr(Z+2,2)}
    v_add_f32 v6, v6, v7
    v_cvt_pk_bf16_f32 v{Z}, v{Z}, v{Z+1}
    v_cvt_pk_bf16_f32 v{Z+1}, v{Z+2}, v{Z+3}
    s_nop 3
    v_cmp_u_f32 vcc, v6, v12
    s_cbranch_vccz L_apoll_d
    """)
    a.label("L_apoll")
    a(f"""
    s_sub_u32 s48, s48, 1
    s_cmp_eq_u32 s48, 0
    s_cbranch_scc1 L_apoll_d
    buffer_load_dword v7, v{VZA}, {SRD_WS}, s51 offen offset:1024 sc1
    s_waitcnt vmcnt(0)
    v_cmp_eq_u32 vcc, -1, v7
    s_cbranch_vccnz L_apoll
    s_branch L_agather
    """)
    a.label("L_apoll_d")
    stamp(a, 26, opt)
    if opt.prof: a(f"s_sub_u32 s94, {SPIN_MAX//8+1}, s48\nv_writelane_b32 v255, s94, 38")
    for k in range(4): a(f"v_cvt_pk_bf16_f32 v{8+k}, v{8+2*k}, v{9+2*k}")
    a(f"""
    ds_write_b64 v{VZ}, {vr(Z,2)} offset:2048
    ds_write_b128 v{VKV}, v[8:11]
    s_waitcnt lgkmcnt(0)
    """)
    stamp(a, 27, opt)
    a("s_barrier")
    a("s_setprio 0")
    if opt.a3: a("s_barrier")

F_FL, F_FA = 244, 248
def f_flag(a, wait="s_waitcnt vmcnt(0)"):
    a(f"""
    s_lshl_b32 s46, s{S_WAVE}, 7
    s_add_u32 s46, s46, s{S_FLAG}
    v_mov_b32 v{F_FL+6}, 1
    v_lshlrev_b32 v{F_FL+7}, 2, v{V_LANE}
    s_mov_b32 exec_hi, 0
    {wait}
    buffer_store_dword v{F_FL+6}, v{F_FL+7}, {SRD_WS}, s46 offen offset:1024 sc1
    s_mov_b32 exec_hi, -1
    """)
def f_gate(a, which, opt):
    a(f"""
    s_cmp_lg_u32 s{S_WAVE}, 4
    s_cbranch_scc1 L_gated{which}
    v_and_b32 v{F_FA}, 15, v{V_LANE}
    v_lshlrev_b32 v{F_FA}, 14, v{F_FA}
    {f"v_mov_b32 v{F_FL}, 4" if which == "B" and opt.bflag1 else f"v_lshrrev_b32 v{F_FL}, 4, v{V_LANE}"}
    v_lshl_add_u32 v{F_FA}, v{F_FL}, 7, v{F_FA}
    s_lshl_b32 s{S_GA}, s{S_RT}, 11
    s_add_u32 s{S_GA}, s{S_GA}, {WS_FLAG + (262144 if which == "B" else 0)}
    s_mov_b32 s48, {SPIN_MAX}
    s_branch L_gate_e{which}
    """)
    a.label(f"L_gate{which}")
    a(f"s_sleep {opt.backoff}")
    a.label(f"L_gate_e{which}")
    a(f"buffer_load_dword v{F_FL}, v{F_FA}, {SRD_WS}, s{S_GA} offen offset:1024 sc1")
    if which == "B" and not opt.bflag1: a(f"buffer_load_dword v{F_FL+1}, v{F_FA}, {SRD_WS}, s{S_GA} offen offset:1536 sc1")
    a(f"""
    s_sub_u32 s48, s48, 1
    s_cmp_eq_u32 s48, 0
    s_cbranch_scc1 L_gated{which}
    s_waitcnt vmcnt(0)
    """)
    if which == "B" and not opt.bflag1: a(f"v_and_b32 v{F_FL}, v{F_FL}, v{F_FL+1}")
    a(f"""
    v_cmp_ne_u32 vcc, 1, v{F_FL}
    s_cbranch_vccnz L_gate{which}
    """)
    a.label(f"L_gated{which}")
FV_W0, FV_W1 = 240, 241
S_FW, S_FWL = 90, 91
SRD_WO = "s[80:83]"
NPRE = 12
def grp_addr(g): return ((g + 2) % 5) * 32768
LG = grp_addr(3)

def f_rot(a, opt, dst):
    a(f"s_lshl_b32 s{dst}, s{S_CT}, 1\ns_and_b32 s{dst}, s{dst}, {opt.fstag}")

WR = 80
def f_regload(a, lo, hi, opt=None):
    for st in range(lo, hi):
        r = WR + 8 * (st - NPRE)
        srd = SRD_WO if st < 16 else "s[84:87]"
        a(f"""
        s_xor_b32 s57, s{S_ROT}, {(st & 15) << 17}
        buffer_load_dwordx4 {vr(r,4)}, v{FV_W0}, {srd}, s57 offen
        buffer_load_dwordx4 {vr(r+4,4)}, v{FV_W1}, {srd}, s57 offen offset:1024
        """)
        if opt and st == lo + opt.flagat - 1 and not opt.bflag1: f_flag(a, f"s_waitcnt vmcnt({2*opt.flagat})")

def f_setup(a, opt):
    L = V_LANE
    a(f"""
    s_sub_u32 s46, s{S_WAVE}, 4
    v_lshrrev_b32 v{FV_W1}, {2 if opt.f32 else 3}, v{L}
    v_xor_b32 v{FV_W0}, v{FV_W1}, v{L}
    v_and_b32 v{FV_W0}, {4 if opt.f32 else 6}, v{FV_W0}
    v_and_or_b32 v{FV_W0}, v{L}, {3 if opt.f32 else 1}, v{FV_W0}
    v_lshrrev_b32 v{FV_W1}, 3, v{L}
    v_lshlrev_b32 v{FV_W0}, 4, v{FV_W0}
    v_lshl_add_u32 v{FV_W0}, v{FV_W1}, 11, v{FV_W0}
    s_lshl_b32 s47, s{S_CT}, 7
    s_lshl_b32 s48, s46, 15
    s_add_u32 s47, s47, s48
    v_add_u32 v{FV_W0}, s47, v{FV_W0}
    v_add_u32 v{FV_W1}, {16384 - 1024}, v{FV_W0}
    s_lshl_b32 s{S_FWL}, s46, 11
    s_add_u32 s{S_FWL}, s{S_FWL}, 65536
    s_mov_b32 s80, s8
    s_and_b32 s81, s9, 0xffff
    s_mov_b32 s82, 0x200000
    s_mov_b32 s83, 0x20000
    s_mov_b32 s84, s14
    s_and_b32 s85, s15, 0xffff
    s_mov_b32 s86, 0x200000
    s_mov_b32 s87, 0x20000
    """)

def f_prefill(a, opt, ty):
    if opt.exp & 16: return
    a(f"s_mov_b32 s49, {NPRE}\ns_mov_b32 s{S_FW}, 0")
    a.label(f"L_fill{ty}")
    a(f"""
    s_lshl_b32 s57, s{S_FW}, 17
    s_xor_b32 s57, s57, s{S_ROT}
    s_mov_b32 m0, s{S_FWL}
    s_add_u32 s{S_FWL}, s{S_FWL}, 8192
    s_add_u32 s{S_FW}, s{S_FW}, 1
    buffer_load_dwordx4 v{FV_W0}, {SRD_WO}, s57 offen lds
    buffer_load_dwordx4 v{FV_W1}, {SRD_WO}, s57 offen offset:1024 lds
    s_sub_u32 s49, s49, 1
    s_cmp_lg_u32 s49, 0
    s_cbranch_scc1 L_fill{ty}
    """)

def f_producer(a, opt):
    L = V_LANE
    hi = 32 - opt.n13 - opt.n14
    if opt.na15:
        assert opt.na15 >= opt.flagat or opt.bflag1
        a("s_branch L_fprodA")
    a.label("L_fprod")
    a("s_setprio 0")
    if opt.exp & 16: f_flag(a)
    elif opt.na15:
        f_regload(a, NPRE, NPRE + opt.na15, opt)
        a.label("L_fprodA")
        f_regload(a, NPRE + opt.na15, hi)
        a(f"s_waitcnt vmcnt({2 * (hi - NPRE - opt.na15)})")
    else:
        f_regload(a, NPRE, hi, opt)
        a(f"s_waitcnt vmcnt({2 * (hi - NPRE)})")
    a(f"""
    s_sub_u32 s47, s{S_WAVE}, 4
    s_lshl_b32 s47, s47, 11
    v_lshlrev_b32 v10, 4, v{L}
    v_add_u32 v10, s47, v10
    v_add_u32 v11, 65536, v10
    v_add_u32 v12, 131072, v10
    """)
    stamp(a, 39, opt)
    def gate(which): f_gate(a, which, opt)
    def put(g):
        ad = grp_addr(g)
        for k in range(8):
            off = (ad & 65535) + (k >> 1) * 8192 + (k & 1) * 1024
            a(f"ds_write_b128 v{10 + (ad >> 16)}, {vr(WR + (g-3)*32 + 4*k, 4)} offset:{off}")
    gate("A")
    a("s_barrier")
    stamp(a, 40, opt); cstamp(a, 36, opt)
    a("s_waitcnt vmcnt(0)")
    for k in range(8):
        if k == 1 and opt.bflag1:
            a(f"s_cmp_lg_u32 s{S_WAVE}, 4\ns_cbranch_scc1 L_noflag1\ns_setprio 3")
            f_flag(a, "")
            a("s_setprio 0")
            a.label("L_noflag1")
        if k == 0: put(3); put(4)
        elif k <= 3: put(4 + k)
        if k == 2:
            a("s_setprio 3"); gate("B"); a("s_setprio 0")
            stamp(a, 41, opt)
        if k == 3:
            a(f"""
            s_lshl_b32 s47, s{S_RT}, 1
            s_add_u32 s47, s47, s{S_RH}
            s_lshl_b32 s47, s47, 2
            s_add_u32 s47, s47, s{S_WAVE}
            s_lshl_b32 s47, s47, 12
            s_add_u32 s47, s47, {WS_G - 4*4096}
            v_and_b32 v2, 31, v{L}
            v_lshlrev_b32 v1, 7, v2
            buffer_load_dword v3, v1, {SRD_WS}, s47 offen sc1
            v_lshlrev_b32 v2, 2, v2
            s_lshl_b32 s47, s{S_WAVE}, 7
            v_add_u32 v2, s47, v2
            """)
        if k == 5:
            a(f"s_waitcnt vmcnt(0)\nds_write_b32 v2, v3 offset:{LG}")
        a("s_waitcnt lgkmcnt(0)\ns_barrier")
        stamp(a, 44 + k, opt)
    stamp(a, 42, opt); cstamp(a, 37, opt)
    prof_dump(a, opt, WS_PROF)
    a("s_endpgm")

def f_consumer(a, opt):
    L = V_LANE
    AC, ST, WB, OB = 0, 32, 64, 96
    VO, VW, T = 160, 164, 168
    F32 = opt.f32
    a.label("L_fcons")
    if F32:
        a(f"""
        v_and_b32 v{VO}, 15, v{L}
        v_lshlrev_b32 v{VO}, 4, v{VO}
        v_bfe_u32 v{T}, v{L}, 4, 1
        v_lshl_add_u32 v{VO}, v{T}, 10, v{VO}
        v_lshrrev_b32 v{T+1}, 5, v{L}
        v_lshl_add_u32 v{VO}, v{T+1}, 8, v{VO}
        v_lshlrev_b32 v{T}, 5, v{T}
        v_lshl_add_u32 v{T}, v{T+1}, 9, v{T}
        v_bfe_u32 v{T+1}, v{L}, 2, 2
        v_lshl_add_u32 v{T}, v{T+1}, 7, v{T}
        v_bfe_u32 v{T+1}, v{L}, 3, 1
        v_lshl_add_u32 v{T}, v{T+1}, 6, v{T}
        v_and_b32 v{T+1}, 3, v{L}
        v_lshl_add_u32 v{T}, v{T+1}, 3, v{T}
        v_add_u32 v{VW}, {grp_addr(0)}, v{T}
        v_xor_b32 v{VW+1}, 64, v{VW}
        """)
    else:
        a(f"""
        v_lshlrev_b32 v{VO}, 4, v{L}
        v_lshrrev_b32 v{T}, 2, v{L}
        v_lshlrev_b32 v{T}, 7, v{T}
        v_bfe_u32 v{T+1}, v{L}, 3, 2
        v_lshl_add_u32 v{T}, v{T+1}, 5, v{T}
        v_and_b32 v{T+1}, 3, v{L}
        v_lshl_add_u32 v{T}, v{T+1}, 3, v{T}
        v_add_u32 v{VW}, {grp_addr(0)}, v{T}
        v_xor_b32 v{VW+1}, 32, v{VW}
        v_xor_b32 v{VW+2}, 64, v{VW}
        v_xor_b32 v{VW+3}, 96, v{VW}
        """)
    a(f"""
    s_lshl_b32 s58, s{S_RT}, 20
    s_lshl_b32 s47, s{S_RH}, 13
    s_add_u32 s58, s58, s47
    s_lshl_b32 s47, s{S_WAVE}, 11
    s_add_u32 s58, s58, s47
    s_lshr_b32 s60, s{S_ROT}, 2
    s_add_u32 s59, s58, s60
    s_xor_b32 s62, s60, {1 << 17}
    s_add_u32 s62, s62, s58
    v_mov_b32 v{T}, 0
    v_mov_b32 v{T+1}, 0
    v_mov_b32 v{T+2}, 0
    v_mov_b32 v{T+3}, 0
    s_mov_b32 s28, s18
    s_and_b32 s29, s19, 0xffff
    s_mov_b32 s30, 0x400000
    s_mov_b32 s53, 32768
    s_mov_b32 s50, 0
    s_mov_b32 s24, s32
    s_mov_b32 s25, s33
    s_add_u32 s26, s{S_RT}, 1
    s_lshl_b32 s26, s26, 20
    s_movk_i32 s61, 0x108
    """)
    for r in (0, 16): a(f"v_mfma_f32_32x32x16_bf16 {vr(AC+r,16)}, {vr(T,4)}, {vr(T,4)}, 0")
    def oload(t, i): return f"buffer_load_dwordx4 {vr(OB + (t % 8)*8 + 4*i, 4)}, v{VO}, s[24:27], s59 offen offset:{i*(512 if F32 else 1024)} sc1"
    def wread(t, f, u):
        if F32: ad, off = VW + (f & 1), (f >> 1) * 1024
        else: ad, off = VW + f, 0
        return dict(txt=f"ds_read_b64_tr_b16 {vr(WB + (t & 1)*16 + f*4 + 2*u, 2)}, v{ad} offset:{(t % 8)*4096 + u*2048 + off}", loads=('w', t & 1, f, u))
    a("s_barrier")
    stamp(a, 40, opt); diag(a, opt, "F0")
    for t in range(7):
        a(oload(t, 0)); a(oload(t, 1))
        if t == 1 and not opt.bflag1:
            a(f"s_cmp_eq_u32 s{S_BR}, 0\ns_cbranch_scc1 L_fnoflag")
            f_flag(a, "s_waitcnt vmcnt(4)")
            a.label("L_fnoflag")
        a("s_add_u32 s59, s59, 16384")
    pre = [wread(0, f, u) for f in range(4) for u in range(2)]
    lines, q0 = schedule_waits(pre)
    for l in lines: a(l)
    a.label("L2_loop")
    body = []
    X = lambda *l: [dict(txt=x) for x in l]
    nva = 2 if F32 else 4
    for t in range(8):
        body.append(dict(txt="s_waitcnt vmcnt(12)"))
        nxt = "s_mov_b32 s59, s62" if t == 0 else "s_add_u32 s59, s59, 16384"
        misc = {2: X("s_add_u32 s50, s50, 1", "s_add_u32 s62, s50, 1"), 3: X("s_lshl_b32 s62, s62, 17", "s_xor_b32 s62, s62, s60"), 4: X("s_add_u32 s62, s62, s58"),
                5: X("s_bitcmp1_b32 s61, s50", f"s_cselect_b32 s52, {-4*32768 & 0xffffffff}, s53"),
                6: X(*[f"v_add_u32 v{VW+k}, s52, v{VW+k}" for k in range(nva)]), 7: X("s_and_b32 s47, s50, 3")}.get(t, [])
        if F32:
            for m in range(4):
                u, cb = m >> 1, m & 1
                c = vr(AC + cb * 16, 16)
                body.append(dict(txt=f"v_mfma_f32_32x32x16_bf16 {c}, {vr(WB + (t&1)*16 + m*4, 4)}, {vr(OB + t*8 + 4*u, 4)}, {c}", reads={('w', t & 1, m | 1, 1)}))
                if t == 7 and m == 0: body.append(dict(txt="s_barrier", drain=True))
                if m < 2: body += [wread(t + 1, 2 * m + k, u_) for k in range(2) for u_ in range(2)]
                if m >= 2: body.append(dict(txt=oload(t + 7, m - 2)))
                if m == 3: body += X(nxt) + misc
        else:
            m = 0
            for nb in range(4):
                for i in ((0, 1) if nb % 2 == 0 else (1, 0)):
                    c = vr(AC + (i * 4 + nb) * 4, 4)
                    body.append(dict(txt=f"v_mfma_f32_16x16x32_bf16 {c}, {vr(WB + (t&1)*16 + nb*4, 4)}, {vr(OB + t*8 + 4*i, 4)}, {c}", reads={('w', t & 1, nb | 1, 1)}))
                    if t == 7 and m == 0: body.append(dict(txt="s_barrier", drain=True))
                    if m < 4: body += [wread(t + 1, m, 0), wread(t + 1, m, 1)]
                    if m in (4, 5): body.append(dict(txt=oload(t + 7, m - 4)))
                    if m == 5: body += X(nxt)
                    if m == 6: body += misc[:2]
                    if m == 7: body += misc[2:]
                    m += 1
    lines, q1 = schedule_waits(body, q0)
    assert q1 == q0, (q0, q1)
    k = 0
    while k < len(lines):
        if k + 1 < len(lines) and lines[k].startswith("s_waitcnt vmcnt") and lines[k+1].startswith("s_waitcnt lgkmcnt"):
            a(lines[k] + " " + lines[k+1].split()[1]); k += 2
        else:
            a(lines[k]); k += 1
    a(f"""
    s_cbranch_scc1 L2_loop
    s_cmp_eq_u32 s50, 8
    s_cbranch_scc1 L2_done
    s_nop 4
    """)
    for r in range(0, 32, 2): a(f"v_pk_mul_f32 {vr(ST+r,2)}, {vr(AC+r,2)}, 1.0 op_sel_hi:[1,0]")
    a("s_branch L2_loop")
    a.label("L2_done")
    a(f"""
    v_and_b32 v{T}, {31 if F32 else 15}, v{L}
    v_lshlrev_b32 v{T+1}, 2, v{T}
    s_lshl_b32 s47, s{S_WAVE}, 7
    v_add_u32 v{T+1}, s47, v{T+1}
    ds_read_b32 v{T+2}, v{T+1} offset:{LG + 512}
    ds_read_b32 v{T+6}, v{T+1} offset:{LG + 512 + (0 if F32 else 64)}
    v_lshlrev_b32 v{T}, 11, v{T}
    """)
    if not F32: a(f"v_bfe_u32 v{T+1}, v{L}, 4, 1\nv_lshl_add_u32 v{T}, v{T+1}, 5, v{T}")
    a(f"""
    v_lshrrev_b32 v{T+1}, 5, v{L}
    v_lshl_add_u32 v{T}, v{T+1}, 4, v{T}
    s_lshl_b32 s48, s{S_RT}, 1
    s_add_u32 s48, s48, s{S_RH}
    s_lshl_b32 s48, s48, 2
    s_add_u32 s48, s48, s{S_WAVE}
    s_lshl_b32 s48, s48, 16
    s_lshl_b32 s49, s{S_CT}, 7
    s_add_u32 s48, s48, s49
    s_waitcnt lgkmcnt(0)
    """)
    for i in range(2):
        g = T + 2 + 4 * i
        a(f"v_sub_f32 v{g+2}, 1.0, v{g}")
        a(f"v_sub_f32 v{g}, v{g}, v{g+2}")
        for hf in range(2):
            b0 = AC + i * 16 + hf * 8; b1 = ST + i * 16 + hf * 8
            for r in range(0, 8, 2):
                a(f"v_pk_mul_f32 {vr(b1+r,2)}, {vr(b1+r,2)}, {vr(g,2)} op_sel_hi:[1,0]")
            for r in range(0, 8, 2):
                a(f"v_pk_fma_f32 {vr(b0+r,2)}, {vr(b0+r,2)}, {vr(g+2,2)}, {vr(b1+r,2)} op_sel_hi:[1,0,1]")
            for k in range(4): a(f"v_cvt_pk_bf16_f32 v{b0+k}, v{b0+2*k}, v{b0+2*k+1}")
            a("s_nop 1")
            sw = "v_permlane32_swap_b32" if F32 else "v_permlane16_swap_b32"
            a(f"{sw} v{b0}, v{b0+2}")
            a(f"{sw} v{b0+1}, v{b0+3}")
            a(f"buffer_store_dwordx4 {vr(b0,4)}, v{T}, s[28:31], s48 offen offset:{i*64 + hf*32 if F32 else hf*64} {opt.outaux}")
        if i == 0 and not F32: a(f"s_add_u32 s48, s48, {16*2048}")
    stamp(a, 43, opt)
    diag_end(a, opt)
    prof_dump(a, opt, WS_PROF)

def gen_k1(opt):
    global GAUX
    GAUX = opt.gaux
    a = Asm()
    k1_prologue(a, opt)
    dma_addrs(a)
    k1_srds(a)
    a(f"s_cmp_ge_u32 s{S_WAVE}, 4")
    a("s_cbranch_scc1 L_producer")
    consumer_setup(a, opt)
    a(f"s_cmp_eq_u32 s{S_BR}, 0")
    a("s_cbranch_scc1 L_consA")
    consumer_gemm(a, True, "B", lines_of(b_epilogue, opt, 0), opt)
    diag(a, opt, "G")
    b_epilogue(a, opt, 1)
    b_consts(a)
    b_attention(a, opt)
    a.label("L_consA")
    consumer_gemm(a, False, "A", lines_of(a_pre, opt), opt)
    diag(a, opt, "G")
    a_consumer(a, opt)
    f_consumer(a, opt)
    a.label("L1_end")
    a("s_endpgm")
    a.label("L_producer")
    producer_gemm(a, opt)
    a(f"s_waitcnt vmcnt({2 * (opt.n13 + opt.n14)})")
    if not opt.gatelate: producer_gate(a, opt)
    if not opt.constearly: b_consts(a)
    a("s_setprio 0")
    a("s_barrier")
    stamp(a, 15, opt)
    a(f"s_cmp_eq_u32 s{S_BR}, 0\ns_cbranch_scc0 L_no15")
    f_regload(a, NPRE, NPRE + opt.na15)
    a.label("L_no15")
    if opt.gatelate: producer_gate(a, opt)
    a(f"s_cmp_eq_u32 s{S_BR}, 0")
    a("s_cbranch_scc1 L_prodA")
    a(f"s_barrier\ns_branch L_battn1")
    a.label("L_prodA")
    if opt.afill == 0: f_prefill(a, opt, "A")
    a_producer(a, opt)
    if opt.afill == 1: f_prefill(a, opt, "A")
    f_producer(a, opt)
    a.label("L_code_end")
    return a.text()

def kd(name, nv):
    return f""".amdhsa_kernel {name}
  .amdhsa_next_free_vgpr {nv}
  .amdhsa_next_free_sgpr 102
  .amdhsa_accum_offset {nv}
  .amdhsa_group_segment_fixed_size 0
  .amdhsa_kernarg_size 80
  .amdhsa_user_sgpr_count 2
  .amdhsa_user_sgpr_kernarg_segment_ptr 1
  .amdhsa_system_sgpr_workgroup_id_x 1
.end_amdhsa_kernel
"""

def gen_all(opt):
    k1 = NAME + "_kernel"
    launch = f"; @launch kernel={k1} grid=(256,1,1) block=(512,1,1) lds=163840" if opt.aslist else "; @launch grid=(256,1,1) block=(512,1,1) lds=163840"
    s = f"""; Generated by my own generator script (dev/gen.py).
; Kernarg: 0 A_x, 8 A_wqkv, 16 A_wo, 24 B_x, 32 B_wqkv, 40 B_wo, 48 gate_w, 56 out, 64 debug, 72 ws
{launch}
.amdgcn_target "amdgcn-amd-amdhsa--gfx950"
.text
.globl {k1}
.p2align 8
.type {k1},@function
{k1}:
{gen_k1(opt)}
.section .rodata,"a"
.p2align 6
{kd(k1, 256)}"""
    return s

if __name__ == "__main__":
    opt = Opt()
    out = f"cdna_kernels/{NAME}.s"
    for arg in sys.argv[1:]:
        k, v = arg.split("=")
        if k == "out": out = v
        else: setattr(opt, k, eval(v))
    open(out, "w").write(gen_all(opt))
    print("wrote", out)
```

```python
import sys, struct
from asm import *

NAME = "gated_mix__linear_attn_block__sliding_block__prompt"
WS_O = 0
WS_KV = 8 << 20
WS_PART = 16 << 20
WS_FLAG = 18 << 20
WS_G = 19 << 20
WS_PROF = 20 << 20
XSLOT = 32768; NXS = 3
WBASE = XSLOT * NXS; WSLOT = 24576
ACC = 0; XA = 192; XB = 208; WF = 224
V_XA0, V_XA1, V_WA0, V_WA1, V_LANE = 248, 249, 250, 251, 252
S_WAVE, S_RB, S_PAIR, S_BR, S_XCD, S_J = 40, 41, 42, 43, 44, 45
SRD_X, SRD_W, SRD_WS, SRD_DBG = "s[24:27]", "s[28:31]", "s[32:35]", "s[36:39]"
S_GA, S_RH, S_RT, S_CT = 76, 77, 78, 79
S_ROT = 75
S_FLAG = 63
SPIN_MAX = 20000
def f2u(x): return struct.unpack("<I", struct.pack("<f", x))[0]
LOG2E = 1.4426950408889634

def acc(sb, j): return ACC + (sb * 6 + j) * 4

class Opt:
    pf = 4
    prof = False
    force_slow = False
    fstag = 0
    fpre = 4
    gload = 2
    await0 = True
    a3 = True
    outaux = 'sc1'
    outt = True
    wfirst = False
    w64 = False
    fprio = 3
    flagat = 4
    tmode = 2
    tpos = 0
    exp = 0
    afill = 1
    wovec = 0
    n13 = 4
    n14 = 6
    fmap = 1
    f32 = False
    bflag1 = True
    frot = 0
    t0touch = 0
    na15 = 6
    gatelate = True
    constearly = True
    gaux = ''
    diag = ''
    bwait = False
    oprio = 0
    stlate = 0
    kvst = 'sc1'
    kvld = 'sc1'
    prew = 0
    prew_at = 4
    tlb = 0
    xl2 = False
    na = 8
    fdepth = 8
    otouch = False
    wo_from = 2
    early = 2
    backoff = 4
    codepf = 3
    bprio = 1
    tailprio = 0
    aslist = False

def stamp(a, idx, opt):
    if not opt.prof: return
    a("s_memrealtime s[94:95]")
    a("s_waitcnt lgkmcnt(0)")
    a(f"v_writelane_b32 v255, s94, {idx}")

def cstamp(a, idx, opt):
    if not opt.prof: return
    a("s_memtime s[94:95]")
    a("s_waitcnt lgkmcnt(0)")
    a(f"v_writelane_b32 v255, s94, {idx}")

def diag(a, opt, name):
    if opt.diag == name: a("s_memrealtime s[98:99]\ns_waitcnt lgkmcnt(0)")
def diag_end(a, opt):
    if not opt.diag: return
    a("""
    s_waitcnt vmcnt(0)
    s_memrealtime s[100:101]
    s_waitcnt lgkmcnt(0)
    """)
    if opt.diag == "end": a("s_mov_b32 s98, s100")
    if opt.diag == "zero": a("s_mov_b32 s98, s96")
    a("""
    s_sub_u32 s98, s98, s96
    s_min_u32 s98, s98, 20000
    L_diag:
    s_memrealtime s[96:97]
    s_waitcnt lgkmcnt(0)
    s_sub_u32 s96, s96, s100
    s_cmp_lt_u32 s96, s98
    s_cbranch_scc1 L_diag
    """)

def prof_dump(a, opt, base):
    if not opt.prof: return
    a(f"""
    s_lshl_b32 s94, s2, 3
    s_add_u32 s94, s94, s{S_WAVE}
    s_lshl_b32 s94, s94, 8
    s_add_u32 s94, s94, {base}
    v_mbcnt_lo_u32_b32 v254, -1, 0
    v_mbcnt_hi_u32_b32 v254, -1, v254
    v_lshlrev_b32 v254, 2, v254
    buffer_store_dword v255, v254, {SRD_WS}, s94 offen
    """)

def k1_prologue(a, opt):
    a(f"""
    s_cmp_ge_u32 s2, 256
    s_cbranch_scc1 L1_end
    {"s_memrealtime s[96:97]" if opt.diag else ""}
    s_load_dwordx16 s[4:19], s[0:1], 0
    s_load_dwordx4 s[20:23], s[0:1], 64
    v_lshrrev_b32 v1, 6, v0
    s_and_b32 s{S_XCD}, s2, 7
    s_lshr_b32 s{S_J}, s2, 3
    v_readfirstlane_b32 s{S_WAVE}, v1
    s_lshr_b32 s{S_RB}, s{S_J}, 2
    s_and_b32 s{S_BR}, s{S_J}, 1
    s_bfe_u32 s{S_PAIR}, s{S_J}, 0x10001
    s_lshl_b32 s46, s{S_XCD}, 1
    s_add_u32 s{S_PAIR}, s{S_PAIR}, s46
    v_and_b32 v0, 63, v0
    s_lshl_b32 s46, s{S_BR}, 4
    s_add_u32 s46, s46, s{S_PAIR}
    s_lshl_b32 s46, s46, 3
    s_add_u32 s46, s46, s{S_RB}
    s_lshl_b32 s46, s46, 11
    s_add_u32 s{S_FLAG}, s46, {WS_FLAG}
    {f"s_and_b32 s{S_CT}, s{S_J}, 7" if opt.fmap else f"s_bfe_u32 s{S_CT}, s{S_J}, 0x30001"}
    s_xor_b32 s{S_CT}, s{S_CT}, {1 if opt.fmap == 1 else 0}
    {f"s_bfe_u32 s{S_RH}, s{S_J}, 0x10003" if opt.fmap else f"s_mov_b32 s{S_RH}, s{S_BR}"}
    s_and_b32 s46, s{S_XCD}, 1
    s_lshl_b32 s46, s46, 3
    s_add_u32 s{S_CT}, s{S_CT}, s46
    s_lshr_b32 s{S_ROT}, s{S_J}, 1
    s_and_b32 s{S_ROT}, s{S_ROT}, {opt.frot}
    s_lshl_b32 s{S_ROT}, s{S_ROT}, 19
    s_lshr_b32 s{S_RT}, s{S_J}, 4
    s_and_b32 s46, s{S_XCD}, 6
    s_add_u32 s{S_RT}, s{S_RT}, s46
    s_mov_b32 s26, 0x400000
    s_mov_b32 s27, 0x20000
    s_mov_b32 s30, 0x600000
    s_mov_b32 s31, 0x20000
    s_mov_b32 s34, 0x10000000
    s_mov_b32 s35, 0x20000
    s_mov_b32 s38, 256
    s_mov_b32 s39, 0x20000
    """)

def k1_srds(a):
    a(f"""
    s_waitcnt lgkmcnt(0)
    s_mov_b32 s24, s4
    s_and_b32 s25, s5, 0xffff
    s_cmp_eq_u32 s{S_BR}, 0
    s_cselect_b32 s28, s6, s12
    s_cselect_b32 s29, s7, s13
    s_and_b32 s29, s29, 0xffff
    s_mov_b32 s32, s22
    s_and_b32 s33, s23, 0xffff
    s_mov_b32 s36, s20
    s_and_b32 s37, s21, 0xffff
    """)

def consumer_substep(kk, wslot, btype, nxt_kk, nxt_wslot, barrier, extra=None):
    items = []
    def xread(grp, i, kk_):
        reg = (XA if grp == 0 else XB) + 4 * i
        sb = grp * 4 + i
        return dict(txt=f"ds_read_b128 {vr(reg,4)}, v{V_XA0 + kk_} offset:{sb*2048}", loads=('x', grp, i))
    def wread(j, t, kk_, ws):
        reg = WF + 4 * j + 2 * t
        off = ws * WSLOT + (j >> 1) * 8192 + kk_ * 4096 + t * 512
        return dict(txt=f"ds_read_b64_tr_b16 {vr(reg,2)}, v{V_WA0 + (j & 1)} offset:{off}", loads=('w', j, t))
    after = {m: [] for m in range(48)}
    after[0] += [wread(5, 0, kk, wslot)]
    after[1] += [wread(5, 1, kk, wslot)]
    for i in range(4): after[2 + 2 * i] += [xread(1, i, kk)]
    m0 = 24
    if barrier:
        after[24] += [dict(txt="s_barrier", drain=True)]
        m0 = 25
    xpos = [m0, m0 + 1, 29, 30]
    for i in range(4): after[xpos[i]] += [xread(0, i, nxt_kk)]
    for j in range(5):
        after[27 + 4 * j] += [wread(j, 0, nxt_kk, nxt_wslot)]
        after[28 + 4 * j] += [wread(j, 1, nxt_kk, nxt_wslot)]
    for m, txt in (extra or []):
        after[m].append(dict(txt=txt))
    m = 0
    for grp in range(2):
        for j in range(6):
            order = range(4) if j % 2 == 0 else [3, 2, 1, 0]
            for i in order:
                sb = grp * 4 + i
                xr = vr((XA if grp == 0 else XB) + 4 * i, 4); wr = vr(WF + 4 * j, 4)
                seg = j >> 1
                transposed = (seg == 0) or (seg == 1 and btype)
                A, B = (wr, xr) if transposed else (xr, wr)
                c = vr(acc(sb, j), 4)
                items.append(dict(txt=f"v_mfma_f32_16x16x32_bf16 {c}, {A}, {B}, {c}", reads={('x', grp, i), ('w', j, 0), ('w', j, 1)}))
                items += after[m]
                m += 1
    return items

def consumer_gemm(a, btype, tag, filler, opt):
    pre = [dict(txt=f"ds_read_b128 {vr(XA+4*i,4)}, v{V_XA0} offset:{i*2048}", loads=('x', 0, i)) for i in range(4)]
    def wr(j, t): return dict(txt=f"ds_read_b64_tr_b16 {vr(WF+4*j+2*t,2)}, v{V_WA0 + (j&1)} offset:{(j>>1)*8192 + t*512}", loads=('w', j, t))
    pre = [pre[0], pre[1], wr(0, 0), wr(0, 1), pre[2], pre[3]] + [wr(j, t) for j in range(1, 5) for t in range(2)]
    lines, q0 = schedule_waits(pre)
    a("s_mov_b32 s50, 8")
    a("s_mov_b32 s51, 0")
    for l in lines: a(l)
    body = []
    for st in range(2):
        ex0 = [(10, "s_add_u32 s51, s51, 1"), (11, "s_cmp_eq_u32 s51, 3"), (12, f"s_cselect_b32 s52, {-2*XSLOT & 0xffffffff}, s53"), (13, "s_cselect_b32 s51, 0, s51"),
               (16, f"v_add_u32 v{V_XA0}, s52, v{V_XA0}")]
        ex1 = [(16, f"v_add_u32 v{V_XA1}, s52, v{V_XA1}")]
        if st == 1: ex1 += [(18, "s_sub_u32 s50, s50, 1"), (21, "s_cmp_lg_u32 s50, 0")]
        body += consumer_substep(0, st, btype, 1, st, False, ex0)
        body += consumer_substep(1, st, btype, 0, 1 - st, True, ex1)
    lines, q1 = schedule_waits(body, q0)
    assert q1 == q0, (q0, q1)
    cut = max(i for i, l in enumerate(lines) if l == "s_barrier") + 2
    assert lines[cut - 1].startswith("v_mfma")
    if opt.exp & 128: lines = [l if not l.startswith("ds_read_b128") else "s_nop 0" for l in lines]
    if opt.exp & 256: lines = [l if not l.startswith("ds_read_b64") else "s_nop 0" for l in lines]
    a(f"s_branch L_gemm_e{tag}")
    a.label(f"L_gemm_{tag}")
    for l in lines[cut:]: a(l)
    a.label(f"L_gemm_e{tag}")
    for l in lines[:cut]: a(l)
    a(f"s_cbranch_scc1 L_gemm_{tag}")
    tail = [l for l in lines[cut:] if l.startswith("v_mfma")]
    tail = tail[6:] + tail[:6]
    per = -(-len(filler) // len(tail))
    for m, l in enumerate(tail):
        a(l)
        for x in filler[m * per:(m + 1) * per]: a(x)

def lines_of(f, *args):
    t = Asm(); f(t, *args)
    return [l.strip() for l in t.L if l.strip()]

def consumer_setup(a, opt):
    if opt.prof: a("v_mov_b32 v255, 0")
    stamp(a, 22, opt); diag(a, opt, "issue")
    if opt.t0touch:
        a(f"""
        s_cmp_lt_u32 s{S_WAVE}, 2
        s_cbranch_scc0 L_t0w
        s_lshl_b32 s47, s{S_J}, 17
        s_lshl_b32 s48, s{S_WAVE}, 7
        s_add_u32 s47, s47, s48
        v_lshlrev_b32 v5, 11, v0
        {"s_cmp_eq_u32 s40, 0" if opt.t0touch == 2 else ""}
        {"s_cbranch_scc1 L_t0d" if opt.t0touch == 2 else ""}
        buffer_load_dword v{XB}, v5, {SRD_X}, s47 offen
        s_branch L_t0d
        L_t0w:
        s_and_b32 s48, s{S_WAVE}, 1
        {"s_cbranch_scc0 L_t0d" if opt.t0touch == 2 else ""}
        s_lshl_b32 s48, s48, 3
        s_add_u32 s48, s48, s{S_RB}
        s_mul_i32 s48, s48, {8*6144}
        s_lshl_b32 s47, s{S_PAIR}, 7
        s_add_u32 s47, s47, s48
        v_min_u32 v5, 23, v0
        v_lshlrev_b32 v5, 11, v5
        buffer_load_dword v{XB}, v5, {SRD_W}, s47 offen
        L_t0d:
        """)
    issue_w(a, "0", "s55"); issue_x(a, "0", "s54")
    a(f"""
    s_barrier
    v_and_b32 v1, 15, v0
    v_lshrrev_b32 v2, 4, v0
    v_bfe_u32 v3, v0, 1, 3
    v_xor_b32 v3, v2, v3
    v_lshlrev_b32 v3, 4, v3
    v_lshl_add_u32 v3, v1, 7, v3
    s_lshr_b32 s46, s{S_WAVE}, 1
    s_lshl_b32 s46, s46, 14
    v_add_u32 v{V_XA0}, s46, v3
    v_xor_b32 v{V_XA1}, 64, v{V_XA0}
    v_bfe_u32 v3, v0, 2, 2
    v_lshl_add_u32 v4, v2, 3, v3
    v_lshlrev_b32 v4, 7, v4
    v_bfe_u32 v5, v0, 3, 2
    s_and_b32 s46, s{S_WAVE}, 1
    s_lshl_b32 s46, s46, 1
    v_xor_b32 v5, s46, v5
    v_lshl_add_u32 v4, v5, 5, v4
    v_and_b32 v5, 3, v0
    v_lshl_add_u32 v4, v5, 3, v4
    v_add_u32 v{V_WA0}, {WBASE}, v4
    v_xor_b32 v{V_WA1}, 32, v{V_WA0}
    s_mov_b32 s53, {XSLOT}
    s_mov_b32 s80, s8
    s_and_b32 s81, s9, 0xffff
    s_mov_b32 s82, 0x200000
    s_mov_b32 s83, 0x20000
    s_mov_b32 s84, s14
    s_and_b32 s85, s15, 0xffff
    s_mov_b32 s86, 0x200000
    s_mov_b32 s87, 0x20000
    """)
    a(f"s_cmp_eq_u32 s{S_BR}, 0")
    a("s_cselect_b32 s46, 1.0, 0")
    a("s_nop 0")
    for sb in range(8):
        for j in range(6):
            for r in range(4):
                a(f"v_mov_b32 v{acc(sb,j)+r}, {'s46' if j < 4 else '0'}")

    a(f"""
    v_mov_b32 v{XA}, {LCNT}
    v_mov_b32 v{XA+1}, 1
    s_mov_b64 exec, 1
    s_waitcnt vmcnt(0)
    ds_add_u32 v{XA}, v{XA+1}
    s_mov_b64 exec, -1
    """)
    a.label("L_st0")
    a(f"""
    ds_read_b32 v{XA+2}, v{XA}
    s_waitcnt lgkmcnt(0)
    v_readfirstlane_b32 s46, v{XA+2}
    s_cmp_lt_u32 s46, 4
    s_cbranch_scc1 L_st0
    """)
    stamp(a, 20, opt); diag(a, opt, "st0")

LCNT = 147456
def dma_addrs(a):
    a(f"""
    s_and_b32 s46, s{S_WAVE}, 3
    v_lshrrev_b32 v1, 3, v0
    v_and_b32 v2, 7, v0
    v_and_b32 v3, 2, v1
    v_xor_b32 v3, v2, v3
    v_lshlrev_b32 v3, 4, v3
    v_mul_u32_u24 v4, 6144, v1
    s_lshl_b32 s47, s{S_PAIR}, 7
    s_mul_i32 s48, s46, {2*8*6144}
    s_add_u32 s47, s47, s48
    v_add3_u32 v20, v4, v3, s47
    v_xor_b32 v21, 64, v20
    v_add_u32 v21, {8*6144 - 1024}, v21
    v_lshrrev_b32 v3, 1, v1
    v_xor_b32 v3, v2, v3
    v_lshlrev_b32 v3, 4, v3
    s_lshl_b32 s47, s{S_RB}, 8
    s_lshl_b32 s48, s46, 6
    s_add_u32 s47, s47, s48
    v_add_u32 v4, s47, v1
    v_lshl_add_u32 v10, v4, 11, v3
    v_xor_b32 v11, 64, v10
    """)
    for i in (3, 2, 1):
        a(f"v_add_u32 v{10+i}, {i*16384 - i*1024}, v{10 + (i & 1)}")
    a(f"""
    s_lshl_b32 s54, s46, 13
    s_lshl_b32 s55, s46, 11
    s_add_u32 s55, s55, {WBASE}
    v_mov_b32 v{V_LANE}, v0
    """)
def issue_w(a, step_s, slot_off):
    for seg in range(3):
        a(f"s_add_u32 m0, {slot_off}, {seg*8192}")
        a(f"s_add_u32 s48, {step_s}, {seg*2048}")
        a(f"buffer_load_dwordx4 v20, {SRD_W}, s48 offen {GAUX} lds")
        a(f"buffer_load_dwordx4 v21, {SRD_W}, s48 offen offset:1024 {GAUX} lds")
def issue_x(a, step_s, slot_off, groups=(0, 1)):
    for g in groups:
        a(f"s_add_u32 m0, {slot_off}, {g*4096}")
        a(f"s_add_u32 s48, {step_s}, {g*65536}")
        for i in range(4):
            a(f"buffer_load_dwordx4 v{10+i}, {SRD_X}, s48 offen offset:{i*1024} {GAUX} lds")

def producer_gemm(a, opt):
    pf = opt.pf
    a(f"""
    v_mov_b32 v1, 0
    v_mov_b32 v2, {LCNT}
    ds_write_b32 v2, v1
    v_mul_u32_u24 v5, 0x5556, v0
    v_lshrrev_b32 v5, 16, v5
    v_mul_u32_u24 v6, 3, v5
    v_sub_u32 v6, v0, v6
    s_lshl_b32 s47, s{S_RB}, 3
    v_add_u32 v5, s47, v5
    v_mul_u32_u24 v5, 6144, v5
    v_lshl_add_u32 v5, v6, 11, v5
    s_lshl_b32 s47, s{S_PAIR}, 7
    v_add_u32 v30, s47, v5
    v_mov_b32 v7, 0x7f000000
    v_cmp_gt_u32 vcc, 24, v0
    s_lshl_b32 s47, {f"s{S_J}, 6" if opt.xl2 else "s2, 3"}
    v_add_u32 v5, s47, v0
    v_cndmask_b32 v30, v7, v30, vcc
    v_lshlrev_b32 v31, 11, v5
    v_cmp_gt_u32 vcc, {64 if opt.xl2 else 8}, v0
    s_add_u32 s62, s46, {2 if opt.t0touch else 1}
    v_lshlrev_b32 v44, 4, v0
    v_cndmask_b32 v31, v7, v31, vcc
    v_mov_b32 v48, 0
    v_mov_b32 v49, 0
    v_mov_b32 v50, 0
    v_mov_b32 v51, 0
    s_lshl_b32 s85, s{S_PAIR}, 1
    s_add_u32 s85, s85, s{S_BR}
    s_lshl_b32 s85, s85, 3
    s_lshl_b32 s47, s46, 10
    s_add_u32 s47, s47, s{S_FLAG}
    s_cmp_lt_u32 s46, 2
    s_cselect_b32 s47, s47, 0x10000000
    v_mov_b32 v36, 1
    s_mov_b32 s57, {64*6144}
    s_add_u32 s58, s55, {WSLOT}
    """)
    if opt.tmode >= 1:
        a(f"""
        v_and_b32 v4, 31, v0
        v_mul_u32_u24 v5, 0x5556, v4
        v_lshrrev_b32 v5, 16, v5
        v_mul_u32_u24 v6, 3, v5
        v_sub_u32 v6, v4, v6
        s_lshl_b32 s48, s{S_RB}, 3
        v_add_u32 v5, s48, v5
        v_mul_u32_u24 v5, 6144, v5
        v_lshl_add_u32 v5, v6, 11, v5
        v_lshrrev_b32 v6, 5, v0
        s_and_b32 s48, s{S_PAIR}, 14
        v_add_u32 v6, s48, v6
        v_lshl_add_u32 v5, v6, 7, v5
        s_add_u32 s48, s46, s{S_PAIR}
        {f"s_or_b32 s48, s48, s{S_BR}" if opt.tmode == 3 else ""}
        s_bitcmp0_b32 {"s48" if opt.tmode >= 2 else f"s{S_PAIR}"}, 0
        {f"s_and_b32 s48, s{S_J}, 3" if opt.tmode == 4 else ""}
        {f"s_cmp_eq_u32 s48, s46" if opt.tmode == 4 else ""}
        s_cselect_b32 s93, -1, 0
        s_and_b32 vcc_lo, s93, 0xffffff
        s_mov_b32 vcc_hi, vcc_lo
        v_cndmask_b32 v30, v7, v5, vcc
        v_and_b32 v4, 7, v0
        v_bfe_u32 v5, v0, 3, {2 if opt.tmode >= 3 else 1}
        v_lshl_add_u32 v4, v5, {6 if opt.tmode >= 3 else 7}, v4
        s_and_b32 s48, s2, {0xe7 if opt.tmode >= 3 else 0xef}
        s_lshl_b32 s48, s48, 3
        v_add_u32 v4, s48, v4
        v_lshlrev_b32 v4, 11, v4
        s_and_b32 vcc_lo, s93, {-1 if opt.tmode >= 3 else 0xffff}
        s_mov_b32 vcc_hi, 0
        v_cndmask_b32 v31, v7, v4, vcc
        """)
    NT = 2
    if opt.tmode >= 3:
        assert not opt.wovec
        NT = 3
        a(f"""
        s_cmp_eq_u32 s{S_BR}, 0
        s_cselect_b32 s88, s12, s6
        s_cselect_b32 s89, s13, s7
        s_and_b32 s89, s89, 0xffff
        s_mov_b32 s90, 0x600000
        s_mov_b32 s91, 0x20000
        """)
    def touch():
        a(f"""
        s_mul_i32 s60, s62, {64*6144}
        s_lshl_b32 s61, s62, 7
        buffer_load_dword v32, v30, {SRD_W}, s60 offen
        buffer_load_dword v33, v31, {SRD_X}, s61 offen
        {"buffer_load_dword v32, v30, s[88:91], s60 offen" if NT == 3 else ""}
        s_add_u32 s62, s62, 4
        """)
    a(f"""
    s_getpc_b64 s[86:87]
    L_pc:
    s_sub_u32 s86, s86, L_pc-{NAME}_kernel
    s_subb_u32 s87, s87, 0
    v_and_b32 v37, 7, v0
    s_lshl_b32 s48, s{S_J}, 3
    v_add_u32 v37, s48, v37
    v_lshlrev_b32 v37, 7, v37
    v_min_u32 v37, L_code_end-{NAME}_kernel-4, v37
    """)
    if opt.codepf & 1:
        a(f"s_cmp_eq_u32 s46, 3\ns_cbranch_scc0 L_nocode\nglobal_load_dword v38, v37, s[86:87]")
        a.label("L_nocode")
    a(f"s_cmp_lt_u32 s46, {opt.early}\ns_cbranch_scc0 L_noearly")
    touch()
    a.label("L_noearly")
    a(f"""
    s_waitcnt lgkmcnt(0)
    s_barrier
    s_setprio 3
    """)
    if opt.prof: a("v_mov_b32 v255, 0")
    stamp(a, 21, opt)
    a(f"buffer_store_dwordx4 v[48:51], v44, {SRD_WS}, s47 offen sc1")
    a(f"""
    s_cmp_eq_u32 s{S_BR}, 0
    s_cbranch_scc0 L_nosent
    s_lshl_b32 s47, s{S_PAIR}, 3
    s_add_u32 s47, s47, s{S_RB}
    s_lshl_b32 s47, s47, 2
    s_add_u32 s47, s47, s46
    s_lshl_b32 s47, s47, 12
    s_add_u32 s47, s47, {WS_PART}
    v_mov_b32 v40, -1
    v_mov_b32 v41, -1
    v_mov_b32 v42, -1
    v_mov_b32 v43, -1
    buffer_store_dwordx4 v[40:43], v44, {SRD_WS}, s47 offen sc1
    s_mov_b64 exec, 0xff
    buffer_store_dwordx4 v[40:43], v44, {SRD_WS}, s47 offen offset:1024 sc1
    s_mov_b64 exec, -1
    """)
    a.label("L_nosent")
    issue_w(a, "s57", "s58")
    a("s_mov_b32 s57, 128"); a(f"s_add_u32 s58, s54, {XSLOT}")
    issue_x(a, "s57", "s58")
    a("s_mov_b32 s57, 256"); a(f"s_add_u32 s58, s54, {2*XSLOT}")
    issue_x(a, "s57", "s58")
    if opt.constearly:
        assert not opt.wovec
        b_consts(a); a(f"s_and_b32 s46, s{S_WAVE}, 3")
    a(f"s_cmp_lt_u32 s46, {opt.early}\ns_cbranch_scc1 L_nolate")
    touch()
    a(f"s_waitcnt vmcnt({8 + NT})\ns_branch L_late")
    a.label("L_nolate")
    a("s_waitcnt vmcnt(8)")
    a.label("L_late")
    a("s_barrier")
    stamp(a, 0, opt); cstamp(a, 30, opt)
    if opt.prof:
        a("s_getreg_b32 s94, hwreg(HW_REG_XCC_ID)\nv_writelane_b32 v255, s94, 33")
    a(f"""
    s_cmp_lt_u32 s46, 2
    s_cselect_b32 s80, s8, s14
    s_cselect_b32 s81, s9, s15
    s_and_b32 s81, s81, 0xffff
    s_mov_b32 s82, 0x200000
    s_mov_b32 s83, 0x20000
    s_and_b32 s84, s2, {0xe7 if opt.tmode >= 3 else 0xef if opt.tmode else 0xff}
    s_lshl_b32 s84, s84, 1
    s_and_b32 s48, s46, 1
    s_add_u32 s84, s84, s48
    s_lshl_b32 s84, s84, 12
    v_lshlrev_b32 v34, 7, v0
    v_cmp_gt_u32 vcc, 16, v0
    s_nop 1
    v_cndmask_b32 v34, v7, v34, vcc
    """)
    if opt.tmode >= 1:
        a(f"""
        v_and_b32 v4, 15, v0
        v_lshlrev_b32 v4, 7, v4
        v_lshrrev_b32 v5, 4, v0
        v_lshl_add_u32 v4, v5, {16 if opt.tmode >= 3 else 17}, v4
        s_mov_b32 vcc_lo, s93
        s_mov_b32 vcc_hi, {"s93" if opt.tmode >= 3 else 0}
        v_cndmask_b32 v34, v7, v4, vcc
        """)
    a(f"""
    s_mov_b32 s50, 0
    s_mov_b32 s56, {2*64*6144}
    s_mov_b32 s57, {3*128}
    s_mov_b32 s58, s55
    s_mov_b32 s59, s54
    s_mov_b32 s51, 0
    """)
    if opt.wovec:
        a(f"""
        s_mov_b32 s68, s14
        s_and_b32 s69, s15, 0xffff
        s_mov_b32 s70, 0x200000
        s_mov_b32 s71, 0x20000
        s_sub_u32 s88, 3, s46
        s_lshl_b32 s88, s88, 5
        s_add_u32 s88, s88, s{S_J}
        s_lshl_b32 s88, s88, 14
        s_and_b32 s48, s{S_XCD}, 1
        s_lshl_b32 s48, s48, 10
        s_add_u32 s88, s88, s48
        v_lshrrev_b32 v39, 3, v0
        v_lshlrev_b32 v39, 4, v39
        v_and_or_b32 v39, v0, 7, v39
        v_lshlrev_b32 v39, 7, v39
        s_lshr_b32 s89, s46, 1
        s_add_u32 s89, s89, 9
        """)
    if opt.prew:
        a(f"""
        s_lshl_b32 s73, s{S_RB}, 1
        s_add_u32 s73, s73, s{S_BR}
        s_lshl_b32 s73, s73, 4
        s_add_u32 s73, s73, s{S_PAIR}
        s_lshl_b32 s73, s73, 2
        s_add_u32 s73, s73, s46
        s_lshl_b32 s73, s73, 13
        s_lshl_b32 s74, s{S_PAIR}, 3
        s_add_u32 s74, s74, s{S_RB}
        s_lshl_b32 s74, s74, 2
        s_add_u32 s74, s74, s46
        s_lshl_b32 s74, s74, 14
        s_add_u32 s74, s74, {WS_KV}
        s_cmp_eq_u32 s{S_BR}, 0
        s_cselect_b32 s74, 0x10000000, s74
        v_lshlrev_b32 v8, {7 if opt.prew == 1 else 4}, v0
        """)
    if opt.exp & 64: a("s_mov_b64 exec, 1")
    a.label("L_prod")
    issue_w(a, "s56", "s58")
    ga, gb = {0: ((), (0, 1)), 1: ((0,), (1,)), 2: ((0, 1), ())}[opt.tpos]
    issue_x(a, "s57", "s59", ga)
    a(f"""
    s_and_b32 s47, s50, 3
    s_cmp_eq_u32 s47, s46
    s_cbranch_scc0 L_notouch
    s_cmp_lt_u32 s62, 16
    s_cbranch_scc0 L_lateturn
    """)
    touch()
    a(f"""
    s_cmp_eq_u32 s50, 1
    s_cbranch_scc0 L_noatom
    s_mov_b64 exec, 1
    buffer_atomic_add v36, off, {SRD_DBG}, s85 sc1
    s_mov_b64 exec, {1 if opt.exp & 64 else -1}
    s_branch L_three
    """)
    a.label("L_noatom")
    a(f"""
    s_sub_u32 s47, s50, {opt.wo_from}
    s_cmp_lt_u32 s47, 8
    s_cselect_b32 s47, s84, 0x200000
    s_cselect_b32 s49, 2048, 0
    buffer_load_dword v35, v34, s[80:83], s47 offen
    s_add_u32 s84, s84, s49
    """)
    a.label("L_three")
    issue_x(a, "s57", "s59", gb)
    a(f"s_waitcnt vmcnt({9 + NT})\ns_branch L_touched")
    a.label("L_lateturn")
    if opt.codepf & 2:
        a("s_cmp_eq_u32 s50, 11\ns_cbranch_scc0 L_late12\nglobal_load_dword v38, v37, s[86:87]")
        issue_x(a, "s57", "s59", gb)
        a("s_waitcnt vmcnt(9)\ns_branch L_touched")
        a.label("L_late12")
        if opt.tlb:
            a(f"""
            v_min_u32 v38, {(20 << 20 >> opt.tlb) - 1}, v0
            v_lshlrev_b32 v38, {opt.tlb}, v38
            buffer_load_dword v35, v38, {SRD_WS}, 0 offen
            v_and_b32 v38, 0x3fffff, v38
            global_load_dword v35, v38, s[18:19]
            """)
            issue_x(a, "s57", "s59", gb)
            a("s_waitcnt vmcnt(10)\ns_branch L_touched")
    a.label("L_notouch")
    issue_x(a, "s57", "s59", gb)
    a("s_waitcnt vmcnt(8)")
    a.label("L_touched")
    if opt.prew == 1:
        a(f"""
        s_sub_u32 s47, s50, {opt.prew_at}
        s_cmp_lt_u32 s47, 3
        s_cbranch_scc0 L_noprew
        s_cmp_eq_u32 s47, 2
        s_cselect_b32 s47, s73, s74
        buffer_store_dword v0, v8, {SRD_WS}, s47 offen sc1
        s_add_u32 s74, s74, 8192
        L_noprew:
        """)
    if opt.prew == 2:
        a(f"""
        s_sub_u32 s47, s50, {opt.prew_at}
        s_cmp_lt_u32 s47, 8
        s_cbranch_scc0 L_noprew
        buffer_store_dwordx4 v[0:3], v8, {SRD_WS}, s74 offen sc1
        buffer_store_dwordx4 v[0:3], v8, {SRD_WS}, s74 offen offset:1024 sc1
        buffer_store_dwordx4 v[0:3], v8, {SRD_WS}, s73 offen sc1
        s_add_u32 s74, s74, 2048
        s_add_u32 s73, s73, 1024
        L_noprew:
        """)
    if opt.wovec:
        a(f"""
        s_cmp_eq_u32 s50, s89
        s_cbranch_scc0 L_nowo2
        buffer_load_dword v35, v39, s[68:71], s88 offen
        s_add_u32 s89, s89, 2
        s_mov_b32 s68, s8
        s_and_b32 s69, s9, 0xffff
        s_xor_b32 s88, s88, {3 << 19}
        L_nowo2:
        """)
    a(f"""
    s_add_u32 s56, s56, {64*6144}
    s_add_u32 s57, s57, 128
    s_cmp_eq_u32 s58, s55
    s_cselect_b32 s58, {WSLOT}, 0
    s_add_u32 s58, s58, s55
    s_add_u32 s51, s51, 1
    s_cmp_eq_u32 s51, 3
    s_cselect_b32 s51, 0, s51
    s_lshl_b32 s59, s51, 15
    s_add_u32 s59, s59, s54
    s_add_u32 s50, s50, 1
    s_barrier
    """)
    if opt.prof:
        a("s_mov_b32 m0, s50"); stamp(a, "m0", opt)
    a("""
    s_cmp_lt_u32 s50, 13
    s_cbranch_scc1 L_prod
    s_mov_b64 exec, -1
    """)
    issue_w(a, "s56", "s58")
    a(f"""
    s_lshl_b32 s47, s{S_RB}, 1
    s_add_u32 s47, s47, s{S_BR}
    s_lshl_b32 s47, s47, 4
    s_add_u32 s47, s47, s{S_PAIR}
    s_lshl_b32 s47, s47, 2
    s_add_u32 s47, s47, s46
    s_lshl_b32 s48, s47, 12
    v_lshlrev_b32 v1, 5, v0
    s_mov_b32 s64, s16
    s_and_b32 s65, s17, 0xffff
    s_mov_b32 s66, 2048
    s_mov_b32 s67, 0x20000
    v_and_b32 v27, 31, v0
    v_lshlrev_b32 v27, 3, v27
    buffer_load_dwordx4 v[40:43], v1, s[64:67], 0 offen
    buffer_load_dwordx4 v[44:47], v1, s[64:67], 0 offen offset:16
    buffer_load_dwordx4 v[48:51], v1, {SRD_X}, s48 offen
    buffer_load_dwordx4 v[52:55], v1, {SRD_X}, s48 offen offset:16
    buffer_load_dwordx4 v[56:59], v1, {SRD_X}, s48 offen offset:2048
    buffer_load_dwordx4 v[60:63], v1, {SRD_X}, s48 offen offset:2064
    buffer_load_dword v26, v27, {SRD_DBG}, 0 offen sc1
    """)
    a("s_mov_b32 s93, s47")
    f_setup(a, opt)
    f_regload(a, 32 - opt.n13, 32)
    a(f"s_waitcnt vmcnt({7 + 2*opt.n13})\ns_barrier")
    f_regload(a, 32 - opt.n13 - opt.n14, 32 - opt.n13)
    a(f"s_mov_b32 s47, s93\ns_setprio {opt.tailprio}")
    stamp(a, 14, opt); cstamp(a, 31, opt)

def producer_gate(a, opt):
    nw = 2 * (opt.n13 + opt.n14)
    a(f"v_mov_b32 v2, 0\nv_mov_b32 v3, 0")
    for i in range(8):
        a(f"v_dot2c_f32_bf16 v2, v{48+i}, v{40+i}")
        a(f"v_dot2c_f32_bf16 v3, v{56+i}, v{40+i}")
    a("s_nop 2")
    a("""
    v_permlane32_swap_b32 v2, v3
    s_nop 1
    v_add_f32 v2, v2, v3
    v_mov_b32 v3, v2
    s_nop 1
    v_permlane16_swap_b32 v2, v3
    s_nop 1
    v_add_f32 v2, v2, v3
    """)
    for sh in (8, 4, 2, 1):
        a("s_nop 1")
        a(f"v_add_f32_dpp v2, v2, v2 row_ror:{sh} row_mask:0xf bank_mask:0xf")
    a(f"""
    v_mul_f32 v2, {hex(f2u(-LOG2E))}, v2
    v_exp_f32 v2, v2
    v_lshlrev_b32 v3, 2, v{V_LANE}
    v_add_f32 v2, 1.0, v2
    v_rcp_f32 v2, v2
    s_lshl_b32 s47, s47, 8
    s_add_u32 s47, s47, {WS_G}
    buffer_store_dword v2, v3, {SRD_WS}, s47 offen sc1
    s_mov_b32 s48, {SPIN_MAX}
    """)
    a.label(f"L_initpoll")
    a(f"""
    v_cmp_gt_u32 vcc, 8, v26
    s_cbranch_vccz L_initdone
    s_sub_u32 s48, s48, 1
    s_cmp_eq_u32 s48, 0
    s_cbranch_scc1 L_initdone
    buffer_load_dword v26, v27, {SRD_DBG}, 0 offen sc1
    s_waitcnt vmcnt(0)
    s_branch L_initpoll
    """)
    a.label(f"L_initdone")

T_S, T_P, T_K, T_V = 0, 32, 40, 48
class U:
    def __init__(s, sr_, q, o, l, sq): s.s, s.q, s.o, s.l, s.sq = sr_, q, o, l, sq
UA = U(0, 56, 64, 80, 70); UB = U(16, 84, 92, 108, 71)
T_MD, T_ME, T_SEL, T_PAT, T_ADR, T_T0, T_Z = 112, 128, 144, 148, 149, 150, 156
T_C = 16
T_PUB = 160
S_HB = 72
LQ = 131072
def swap34(i): return (i & 7) | ((i >> 4 & 1) << 3) | ((i >> 3 & 1) << 4)

def b_consts(a):
    a(f"v_mov_b32 v{T_T0}, {hex(f2u(-1e30))}")
    for n in range(16):
        g, r = n >> 2, n & 3
        m = 0
        for l in range(64):
            j, h = l & 31, l >> 5
            if swap34(8 * g + 4 * h + r) <= swap34(j): m |= 1 << l
        s = 64 + 2 * (n & 1)
        a(f"s_mov_b32 s{s}, {hex(m & 0xffffffff)}")
        a(f"s_mov_b32 s{s+1}, {hex(m >> 32)}")
        a(f"v_cndmask_b32_e64 v{T_MD+n}, v{T_T0}, 0, s[{s}:{s+1}]")
        a(f"v_cndmask_b32_e64 v{T_ME+n}, 0, v{T_T0}, s[{s}:{s+1}]")
    L = V_LANE
    a(f"""
    v_lshrrev_b32 v{T_T0}, 2, v{L}
    v_xor_b32 v{T_T0}, v{T_T0}, v{L}
    v_bfe_u32 v{T_T0}, v{T_T0}, 2, 1
    v_add_u32 v{T_T0}, -1, v{T_T0}
    v_and_b32 v{T_SEL}, 0x3f803f80, v{T_T0}
    v_mov_b32 v{T_Z}, 0
    v_mov_b32 v{T_Z+1}, 0
    v_mov_b32 v{T_Z+2}, 0
    v_mov_b32 v{T_Z+3}, 0
    v_mov_b32 v{T_SEL+1}, v{T_SEL}
    v_mov_b32 v{T_SEL+2}, v{T_SEL}
    v_mov_b32 v{T_SEL+3}, v{T_SEL}
    v_and_b32 v{T_PAT}, 7, v{L}
    v_lshlrev_b32 v{T_PAT}, 4, v{T_PAT}
    v_lshrrev_b32 v{T_T0}, 4, v{L}
    v_lshl_add_u32 v{T_PAT}, v{T_T0}, 7, v{T_PAT}
    v_bfe_u32 v{T_T0}, v{L}, 3, 1
    v_lshl_add_u32 v{T_PAT}, v{T_T0}, 10, v{T_PAT}
    s_and_b32 s46, s{S_WAVE}, 1
    s_lshl_b32 s{S_HB}, s46, 15
    s_and_b32 s46, s{S_WAVE}, 2
    s_sub_u32 s{UA.sq}, 6, s46
    s_cmp_lt_u32 s{S_WAVE}, 4
    s_cselect_b32 s{UA.sq}, s46, s{UA.sq}
    s_add_u32 s{UB.sq}, s{UA.sq}, 1
    """)
    for u in (UA, UB):
        a(f"v_mfma_f32_32x32x16_bf16 {vr(u.o,16)}, {vr(T_Z,4)}, {vr(T_Z,4)}, 0")
        a(f"v_mfma_f32_16x16x32_bf16 {vr(u.l,4)}, {vr(T_Z,4)}, {vr(T_Z,4)}, 0")

def b_epilogue(a, opt, part):
    L = V_LANE
    c = LOG2E / 32 ** 0.5
    if part == 0: a(f"""
    s_lshr_b32 s46, s{S_WAVE}, 1
    s_and_b32 s47, s{S_WAVE}, 1
    s_lshl_b32 s48, s47, 15
    s_lshl_b32 s49, s46, 13
    s_add_u32 s48, s48, s49
    s_add_u32 s48, s48, 65536
    v_lshlrev_b32 v253, 4, v{L}
    v_add_u32 v248, s48, v253
    s_lshl_b32 s48, s47, 14
    s_add_u32 s48, s48, s49
    s_add_u32 s48, s48, {LQ}
    v_add_u32 v249, s48, v253
    s_lshl_b32 s48, s{S_PAIR}, 3
    s_add_u32 s48, s48, s{S_RB}
    s_lshl_b32 s48, s48, 16
    s_lshl_b32 s47, s47, 15
    s_add_u32 s48, s48, s47
    s_add_u32 s48, s48, s49
    s_add_u32 s48, s48, {WS_KV if not (opt.exp & 1) else 0x10000000}
    s_cmp_eq_u32 s{S_RB}, {7 if opt.exp & 32 else 99}
    s_cselect_b32 s48, 0x10000000, s48
    s_add_u32 s49, s48, 4096
    s_add_u32 s50, s48, 16384
    s_add_u32 s51, s48, {16384+4096}
    s_mov_b32 s64, {hex(f2u(c))}
    """)
    def pack(dst, x, y):
        a(f"v_cvt_pk_bf16_f32 v{dst}, v{x}, v{x+1}")
        a(f"v_cvt_pk_bf16_f32 v{dst+1}, v{x+2}, v{x+3}")
        a(f"v_cvt_pk_bf16_f32 v{dst+2}, v{y}, v{y+1}")
        a(f"v_cvt_pk_bf16_f32 v{dst+3}, v{y+2}, v{y+3}")
    def qpack(sb):
        d = acc(sb, 0)
        for r in range(0, 8, 2):
            a(f"v_pk_mul_f32 {vr(d+r,2)}, {vr(d+r,2)}, s[64:65] op_sel_hi:[1,0]")
        pack(d, acc(sb, 0), acc(sb, 1))
    late = []
    def store(n, txt):
        if n >= 16 - opt.stlate: late.append(txt)
        else: a(txt)
    n = 8 * part
    for m in (2 * part, 2 * part + 1):
        for sb in (2 * m, 2 * m + 1):
            d = acc(sb, 2)
            pack(d, acc(sb, 2), acc(sb, 3))
            store(n, f"buffer_store_dwordx4 {vr(d,4)}, v253, {SRD_WS}, s{48 + (sb >> 2)} offen offset:{(sb & 3)*1024} {opt.kvst}"); n += 1
            a(f"ds_write_b128 v248, {vr(d,4)} offset:{sb*1024}")
            if part: qpack(sb - 4)
        for nb in range(2):
            d = acc(2 * m, 4 + nb); i = 2 * m + nb
            pack(d, acc(2 * m, 4 + nb), acc(2 * m + 1, 4 + nb))
            store(n, f"buffer_store_dwordx4 {vr(d,4)}, v253, {SRD_WS}, s{50 + (i >> 2)} offen offset:{(i & 3)*1024} {opt.kvst}"); n += 1
            a(f"ds_write_b128 v248, {vr(d,4)} offset:{16384 + i*1024}")
    if part == 0: return
    for sb in range(4):
        a(f"ds_write_b128 v249, {vr(acc(sb,0),4)} offset:{sb*1024}")
        qpack(sb + 4)
    for sb in range(4, 8):
        a(f"ds_write_b128 v249, {vr(acc(sb,0),4)} offset:{sb*1024}")
    a("s_setprio 2\ns_waitcnt lgkmcnt(0)\ns_barrier")
    for t in late: a(t)
    if late: a("s_nop 1")

def b_phase(a, X, Y, kind, step, mask=None):
    S, P = X.s, T_P
    M32 = "v_mfma_f32_32x32x16_bf16"; M16 = "v_mfma_f32_16x16x32_bf16"
    e = lambda n: a(f"v_exp_f32 v{S+n}, v{S+n}")
    c = lambda k: a(f"v_cvt_pk_bf16_f32 v{P+k}, v{S+2*k}, v{S+2*k+1}")
    if kind == 'B': a("s_waitcnt lgkmcnt(1)")
    a(f"{M32} {vr(Y.s,16)}, {vr(T_K,4)}, {vr(Y.q,4)}, {vr(mask,16) if mask is not None else 0}")
    if kind == 'A': a(f"v_add_u32 v{T_ADR}, {step & 0xffffffff}, v{T_ADR}")
    e(0); e(1); e(2); c(0)
    a(f"{M32} {vr(Y.s,16)}, {vr(T_K+4,4)}, {vr(Y.q+4,4)}, {vr(Y.s,16)}")
    if kind == 'A':
        a(f"ds_read_b128 {vr(T_K,4)}, v{T_ADR}")
        a(f"ds_read_b128 {vr(T_K+4,4)}, v{T_ADR} offset:512")
    e(3); e(4); c(1); e(5)
    if kind != 'F':
        if kind == 'B': a("s_waitcnt lgkmcnt(0)")
        a(f"{M32} {vr(Y.o,16)}, {vr(T_V+4,4)}, {vr(P+4,4)}, {vr(Y.o,16)}")
        if kind == 'A': a(f"ds_read_b128 {vr(T_V+4,4)}, v{T_ADR} offset:{16384 + 512 - step}")
    e(6); c(2); e(7); e(8)
    if kind != 'F':
        a(f"{M16} {vr(Y.l,4)}, {vr(T_SEL,4)}, {vr(P+4,4)}, {vr(Y.l,4)}")
    c(3); e(9); e(10); c(4)
    if kind == 'A': a("s_waitcnt lgkmcnt(3)")
    a(f"{M32} {vr(X.o,16)}, {vr(T_V,4)}, {vr(P,4)}, {vr(X.o,16)}")
    if kind != 'A': a(f"ds_read_b128 {vr(T_V,4)}, v{T_ADR} offset:16384")
    e(11); e(12); c(5); e(13)
    a(f"{M16} {vr(X.l,4)}, {vr(T_SEL,4)}, {vr(P,4)}, {vr(X.l,4)}")
    e(14); e(15); c(6)
    if kind == 'B': a("s_sub_u32 s50, s50, 1\ns_cmp_lg_u32 s50, 0")
    c(7)

def b_section(a, own):
    X, Y = (UB, UA) if own else (UA, UB)
    step = -2048 if own else 2048
    mask = T_MD if own else T_ME
    tag = "own" if own else "halo"
    M32 = "v_mfma_f32_32x32x16_bf16"; M16 = "v_mfma_f32_16x16x32_bf16"
    if own: a(f"s_add_u32 s46, s{UA.sq}, 32\ns_add_u32 s50, s{UA.sq}, 1")
    else: a(f"s_add_u32 s46, s{UA.sq}, 1\ns_sub_u32 s50, 7, s{UA.sq}")
    a(f"""
    s_lshl_b32 s46, s46, 11
    s_add_u32 s46, s46, s{S_HB}
    v_add_u32 v{T_ADR}, s46, v{T_PAT}
    v_add_u32 v{T_T0}, {-step & 0xffffffff}, v{T_ADR}
    ds_read_b128 {vr(T_P,4)}, v{T_T0}
    ds_read_b128 {vr(T_P+4,4)}, v{T_T0} offset:512
    ds_read_b128 {vr(T_K,4)}, v{T_ADR}
    ds_read_b128 {vr(T_K+4,4)}, v{T_ADR} offset:512
    ds_read_b128 {vr(T_V,4)}, v{T_T0} offset:16384
    ds_read_b128 {vr(T_V+4,4)}, v{T_T0} offset:{16384+512}
    s_waitcnt lgkmcnt(5)
    {M32} {vr(X.s,16)}, {vr(T_P,4)}, {vr(X.q,4)}, {vr(mask,16)}
    s_waitcnt lgkmcnt(4)
    {M32} {vr(X.s,16)}, {vr(T_P+4,4)}, {vr(X.q+4,4)}, {vr(X.s,16)}
    s_waitcnt lgkmcnt(0)
    s_nop 7
    s_nop 1
    """)
    b_phase(a, X, Y, 'F', step, mask)
    a.label(f"L_pair_{tag}")
    b_phase(a, Y, X, 'A', step)
    b_phase(a, X, Y, 'B', step)
    a(f"""
    s_cbranch_scc1 L_pair_{tag}
    s_nop 0
    {M32} {vr(X.o,16)}, {vr(T_V+4,4)}, {vr(T_P+4,4)}, {vr(X.o,16)}
    {M16} {vr(X.l,4)}, {vr(T_SEL,4)}, {vr(T_P+4,4)}, {vr(X.l,4)}
    """)

def b_final(a, u, tag, opt):
    lo, hi = (2.0 ** -40, 2.0 ** 40) if not opt.force_slow else (2.0 ** 3, 2.0 ** 9)
    a(f"""
    s_lshl_b32 s46, s{S_RB}, 6
    s_lshl_b32 s47, s{S_PAIR}, 1
    s_add_u32 s46, s46, s47
    s_and_b32 s47, s{S_WAVE}, 1
    s_add_u32 s46, s46, s47
    s_add_u32 s46, s46, 32
    s_lshl_b32 s46, s46, 3
    s_add_u32 s46, s46, s{u.sq}
    s_lshl_b32 s73, s46, 11
    v_cmp_le_f32 vcc, {hex(f2u(lo))}, v{u.l}
    s_mov_b64 s[46:47], vcc
    v_cmp_ge_f32 vcc, {hex(f2u(hi))}, v{u.l}
    s_and_b64 s[46:47], s[46:47], vcc
    s_cmp_eq_u64 s[46:47], -1
    {"s_nop 0" if opt.exp else f"s_cbranch_scc0 L_slow_{tag}"}
    """)
    a.label(f"L_back_{tag}")
    a(f"v_rcp_f32 v{T_T0}, v{u.l}")
    a("s_nop 0")
    for r in range(0, 16, 2):
        a(f"v_pk_mul_f32 {vr(u.o+r,2)}, {vr(u.o+r,2)}, {vr(T_T0,2)} op_sel_hi:[1,0]")
    for k in range(8):
        a(f"v_cvt_pk_bf16_f32 v{u.o+k}, v{u.o+2*k}, v{u.o+2*k+1}")
    a(f"buffer_store_dwordx4 {vr(u.o,4)}, v{T_PAT}, {SRD_WS}, s73 offen sc1")
    a(f"buffer_store_dwordx4 {vr(u.o+4,4)}, v{T_PAT}, {SRD_WS}, s73 offen offset:512 sc1")

def b_slow(a, u, tag):
    S, P, M = T_S, T_P, T_T0 + 2
    a.label(f"L_slow_{tag}")
    a(f"""
    s_nop 7
    s_nop 7
    v_mfma_f32_32x32x16_bf16 {vr(u.o,16)}, {vr(T_Z,4)}, {vr(T_Z,4)}, 0
    v_mfma_f32_16x16x32_bf16 {vr(u.l,4)}, {vr(T_Z,4)}, {vr(T_Z,4)}, 0
    v_mov_b32 v{M}, {hex(f2u(-3e38))}
    s_add_u32 s52, s{u.sq}, 8
    """)
    for ps in range(2):
        a(f"""
        s_cmp_eq_u32 s{S_RB}, 0
        s_cselect_b32 s51, 8, s{u.sq}
        """)
        a.label(f"L_slowl_{tag}{ps}")
        a(f"""
        s_lshl_b32 s46, s{S_PAIR}, 3
        s_add_u32 s46, s46, s{S_RB}
        s_lshr_b32 s47, s51, 3
        s_add_u32 s46, s46, s47
        s_lshl_b32 s46, s46, 16
        s_and_b32 s47, s51, 7
        s_lshl_b32 s47, s47, 11
        s_add_u32 s46, s46, s47
        s_add_u32 s46, s46, s{S_HB}
        s_add_u32 s46, s46, {WS_KV - 65536}
        s_add_u32 s47, s46, 16384
        buffer_load_dwordx4 {vr(T_K,4)}, v{T_PAT}, {SRD_WS}, s46 offen sc1
        buffer_load_dwordx4 {vr(T_K+4,4)}, v{T_PAT}, {SRD_WS}, s46 offen offset:512 sc1
        buffer_load_dwordx4 {vr(T_V,4)}, v{T_PAT}, {SRD_WS}, s47 offen sc1
        buffer_load_dwordx4 {vr(T_V+4,4)}, v{T_PAT}, {SRD_WS}, s47 offen offset:512 sc1
        s_cmp_eq_u32 s51, s52
        s_cselect_b32 s47, 1.0, 0
        s_cmp_eq_u32 s51, s{u.sq}
        s_cselect_b32 s48, 1.0, 0
        """)
        for n in range(16):
            a(f"v_mul_f32 v{T_C+n}, s47, v{T_MD+n}")
            a(f"v_fmac_f32 v{T_C+n}, s48, v{T_ME+n}")
        a(f"""
        s_waitcnt vmcnt(0)
        s_nop 1
        v_mfma_f32_32x32x16_bf16 {vr(S,16)}, {vr(T_K,4)}, {vr(u.q,4)}, {vr(T_C,16)}
        v_mfma_f32_32x32x16_bf16 {vr(S,16)}, {vr(T_K+4,4)}, {vr(u.q+4,4)}, {vr(S,16)}
        s_nop 7
        s_nop 7
        """)
        if ps == 0:
            for n in range(0, 16, 2):
                a(f"v_max3_f32 v{M}, v{S+n}, v{S+n+1}, v{M}")
        else:
            for n in range(16): a(f"v_sub_f32 v{S+n}, v{S+n}, v{M}")
            for n in range(16): a(f"v_exp_f32 v{S+n}, v{S+n}")
            a("s_nop 0")
            for k in range(8): a(f"v_cvt_pk_bf16_f32 v{P+k}, v{S+2*k}, v{S+2*k+1}")
            a(f"""
            s_nop 1
            v_mfma_f32_32x32x16_bf16 {vr(u.o,16)}, {vr(T_V,4)}, {vr(P,4)}, {vr(u.o,16)}
            v_mfma_f32_32x32x16_bf16 {vr(u.o,16)}, {vr(T_V+4,4)}, {vr(P+4,4)}, {vr(u.o,16)}
            v_mfma_f32_16x16x32_bf16 {vr(u.l,4)}, {vr(T_SEL,4)}, {vr(P,4)}, {vr(u.l,4)}
            v_mfma_f32_16x16x32_bf16 {vr(u.l,4)}, {vr(T_SEL,4)}, {vr(P+4,4)}, {vr(u.l,4)}
            """)
        a(f"""
        s_add_u32 s51, s51, 1
        s_cmp_le_u32 s51, s52
        s_cbranch_scc1 L_slowl_{tag}{ps}
        """)
        if ps == 0:
            a(f"""
            v_mov_b32 v{M+1}, v{M}
            s_nop 1
            v_permlane32_swap_b32 v{M}, v{M+1}
            s_nop 1
            v_max_f32 v{M}, v{M}, v{M+1}
            """)
    a(f"s_nop 7\ns_nop 7\ns_branch L_back_{tag}")

def b_attention(a, opt):
    a(f"""
    s_lshl_b32 s46, s{S_WAVE}, 7
    s_add_u32 s46, s46, s{S_FLAG}
    v_mov_b32 v{T_T0}, 1
    v_lshlrev_b32 v{T_T0+1}, 2, v{V_LANE}
    s_mov_b32 exec_hi, 0
    s_waitcnt vmcnt(0)
    buffer_store_dword v{T_T0}, v{T_T0+1}, {SRD_WS}, s46 offen sc1
    s_mov_b32 exec_hi, -1
    """)
    stamp(a, 25, opt)
    a(f"""
    s_cmp_ge_u32 s{S_WAVE}, 2
    s_cbranch_scc1 L_bnopoll
    s_cmp_eq_u32 s{S_RB}, 0
    s_cbranch_scc1 L_bnopoll
    s_sub_u32 s46, s46, 2048
    s_mov_b32 s48, {SPIN_MAX}
    v_and_b32 v{T_C+1}, 1, v{V_LANE}
    v_lshlrev_b32 v{T_C+1}, 8, v{T_C+1}
    s_lshl_b32 s47, s{S_PAIR}, 3
    s_add_u32 s47, s47, s{S_RB}
    s_lshl_b32 s47, s47, 16
    s_add_u32 s47, s47, s{S_HB}
    s_add_u32 s47, s47, {WS_KV - 65536}
    v_lshlrev_b32 v{T_T0}, 4, v{V_LANE}
    """)
    if opt.bwait: a("s_waitcnt vmcnt(0)")
    a.label("L_bpoll_l")
    a(f"""
    buffer_load_dword v{T_C}, v{T_C+1}, {SRD_WS}, s46 offen sc1
    s_sub_u32 s48, s48, 1
    s_cmp_eq_u32 s48, 0
    s_cbranch_scc1 L_bpoll_d
    s_waitcnt vmcnt(0)
    v_cmp_ne_u32 vcc, 1, v{T_C}
    s_cbranch_vccnz L_bpoll_l
    """)
    a.label("L_bpoll_d")
    stamp(a, 26, opt)
    a(f"s_mov_b32 m0, s{S_HB}\ns_mov_b32 s48, 8")
    a.label("L_bdma")
    for k in range(4):
        if not (opt.exp & 2): a(f"buffer_load_dwordx4 v{T_T0}, {SRD_WS}, s47 offen offset:{k*1024} {opt.kvld} lds")
    a("""
    s_add_u32 m0, m0, 4096
    s_add_u32 s47, s47, 4096
    s_sub_u32 s48, s48, 1
    s_cmp_lg_u32 s48, 0
    s_cbranch_scc1 L_bdma
    """)
    a.label("L_bnopoll")
    a(f"s_setprio {opt.oprio}")
    a.label("L_battn1")
    stamp(a, 24, opt); cstamp(a, 34, opt)
    a(f"""
    s_lshr_b32 s46, s{S_HB}, 1
    s_add_u32 s46, s46, {LQ}
    s_lshl_b32 s47, s{UA.sq}, 11
    s_add_u32 s47, s47, s46
    v_add_u32 v{T_ADR}, s47, v{T_PAT}
    ds_read_b128 {vr(UB.q,4)}, v{T_ADR} offset:2048
    ds_read_b128 {vr(UB.q+4,4)}, v{T_ADR} offset:{2048+512}
    ds_read_b128 {vr(UA.q,4)}, v{T_ADR}
    ds_read_b128 {vr(UA.q+4,4)}, v{T_ADR} offset:512
    """)
    b_section(a, True)
    stamp(a, 27, opt)
    a(f"""
    s_setprio 0
    s_waitcnt vmcnt(0) lgkmcnt(0)
    s_barrier
    s_cmp_lt_u32 s{S_WAVE}, 4
    s_cbranch_scc1 L_nofill
    s_setprio {opt.bprio}
    """)
    f_prefill(a, opt, "B")
    a.label("L_nofill")
    stamp(a, 28, opt)
    a(f"""
    s_cmp_eq_u32 s{S_RB}, 0
    s_cbranch_scc1 L_bfin
    """)
    b_section(a, False)
    a.label("L_bfin")
    a("s_waitcnt lgkmcnt(0)\ns_nop 1")
    b_final(a, UB, "b", opt)
    b_final(a, UA, "a", opt)
    stamp(a, 29, opt); cstamp(a, 35, opt)
    a(f"""
    s_cmp_ge_u32 s{S_WAVE}, 4
    s_cbranch_scc1 L_fprod
    s_branch L_fcons
    """)
    b_slow(a, UA, "a")
    b_slow(a, UB, "b")

def phi_pack(a, dst, x, y, t):
    for i, b in enumerate((x, x + 2, y, y + 2)):
        a(f"v_pk_fma_f32 {vr(t+2*i,2)}, {vr(b,2)}, s[64:65], s[64:65] op_sel_hi:[1,0,0] neg_lo:[0,0,1] neg_hi:[0,0,1]")
    for i in range(8): a(f"v_exp_f32_e64 v{t+i}, v{t+i} clamp")
    for i in range(8): a(f"v_max_f32 v{t+i}, v{t+i}, v{(x if i < 4 else y) + (i & 3)}")
    for i in range(4): a(f"v_pk_add_f32 {vr(t+2*i,2)}, {vr(t+2*i,2)}, s[66:67] op_sel_hi:[1,0]")
    for i in range(4): a(f"v_cvt_pk_bf16_f32 v{dst+i}, v{t+2*i}, v{t+2*i+1}")

A_KV = 192
A_T = 216; A_ONE = 224; A_OP = 228
LA_FIN = 32768
def a_valu(a, m, t):
    for nb in range(2):
        phi_pack(a, acc(2*m, 2+nb), acc(2*m, 2+nb), acc(2*m+1, 2+nb), t)
    for nb in range(2):
        d, x, y = acc(2*m, 4+nb), acc(2*m, 4+nb), acc(2*m+1, 4+nb)
        a(f"v_cvt_pk_bf16_f32 v{d}, v{x}, v{x+1}\nv_cvt_pk_bf16_f32 v{d+1}, v{x+2}, v{x+3}\nv_cvt_pk_bf16_f32 v{d+2}, v{y}, v{y+1}\nv_cvt_pk_bf16_f32 v{d+3}, v{y+2}, v{y+3}")
def a_pre(a, opt):
    L = V_LANE
    a(f"""
    s_mov_b32 s64, {hex(f2u(LOG2E))}
    s_mov_b32 s66, {hex(f2u(1e-6))}
    s_mul_i32 s46, s{S_WAVE}, 6144
    v_lshlrev_b32 v253, 4, v{L}
    v_add_u32 v248, s46, v253
    s_and_b32 s47, s{S_WAVE}, 1
    s_mul_i32 s46, s47, 3072
    s_add_u32 s46, s46, {LA_FIN}
    v_add_u32 v249, s46, v253
    """)
    a_valu(a, 0, XA)

def a_consumer(a, opt):
    L = V_LANE
    for i in range(4): a(f"v_mov_b32 v{A_ONE+i}, 0x3f803f80")
    kvb = lambda db, eb: A_KV + eb * 12 + db * 4
    zb = lambda db: A_KV + db * 12 + 8
    def kvm(m):
        out = []
        for db in range(2):
            c = vr(zb(db), 4)
            out.append(f"v_mfma_f32_16x16x32_bf16 {c}, {vr(acc(2*m,2+db),4)}, {vr(A_ONE,4)}, {c if m else 0}")
        for eb in range(2):
            for db in range(2):
                c = vr(kvb(db, eb), 4)
                out.append(f"v_mfma_f32_16x16x32_bf16 {c}, {vr(acc(2*m,2+db),4)}, {vr(acc(2*m,4+eb),4)}, {c if m else 0}")
        return out
    for m in range(1, 4):
        v = lines_of(a_valu, m, A_T); mf = kvm(m - 1)
        for k, l in enumerate(v):
            a(l)
            if k >= 2 and k % 3 == 2 and mf: a(mf.pop(0))
    for l in kvm(3): a(l)
    a("s_nop 7")
    for i in (2, 5, 0, 1, 3, 4):
        a(f"ds_write_b128 v248, {vr(A_KV+4*i,4)} offset:{i*1024}")
    a("s_waitcnt lgkmcnt(0)\ns_barrier")
    stamp(a, 24, opt)
    for sb in range(8):
        phi_pack(a, acc(sb, 0), acc(sb, 0), acc(sb, 1), A_T)
    a(f"""
    s_lshl_b32 s46, s{S_RB}, 6
    s_lshl_b32 s48, s{S_PAIR}, 1
    s_add_u32 s46, s46, s48
    s_add_u32 s46, s46, s47
    s_lshl_b32 s46, s46, 1
    s_lshr_b32 s48, s{S_WAVE}, 1
    s_add_u32 s46, s46, s48
    s_lshl_b32 s48, s46, 13
    s_add_u32 s49, s48, 4096
    """)
    stamp(a, 25, opt)
    a("s_setprio 3\ns_barrier")
    stamp(a, 28, opt)
    for i in range(3): a(f"ds_read_b128 {vr(A_OP+4*i,4)}, v249 offset:{i*1024}")
    a("s_waitcnt lgkmcnt(0)")
    for sb in range(8):
        for i in range(3):
            a(f"v_mfma_f32_16x16x32_bf16 {vr(acc(sb,2+i),4)}, {vr(A_OP+4*i,4)}, {vr(acc(sb,0),4)}, 0")
    for sb in range(8):
        n0, dn = acc(sb, 2), acc(sb, 4)
        a(f"v_add_f32 v{dn}, s66, v{dn}")
        a(f"v_rcp_f32 v{dn}, v{dn}")
        a("s_nop 0")
        for r in range(0, 8, 2):
            a(f"v_pk_mul_f32 {vr(n0+r,2)}, {vr(n0+r,2)}, {vr(dn,2)} op_sel_hi:[1,0]")
        for k in range(4):
            a(f"v_cvt_pk_bf16_f32 v{n0+k}, v{n0+2*k}, v{n0+2*k+1}")
        a(f"buffer_store_dwordx4 {vr(n0,4)}, v253, {SRD_WS}, s{48 + (sb>>2)} offen offset:{(sb&3)*1024} sc1")
    stamp(a, 29, opt)
    if opt.a3: a("s_barrier")
    f_flag(a)
    a("s_setprio 0")

def a_producer(a, opt):
    L = V_LANE
    V16, VR, VKV, VZ, VQ, VZA, Z = 242, 243, 244, 245, 246, 247, 248
    a(f"""
    s_sub_u32 s46, s{S_WAVE}, 4
    s_and_b32 s47, s46, 1
    s_lshr_b32 s48, s46, 1
    s_mul_i32 s49, s47, 6144
    s_mul_i32 s50, s48, 3072
    s_add_u32 s49, s49, s50
    v_lshlrev_b32 v{V16}, 4, v{L}
    v_add_u32 v{VR}, s49, v{V16}
    s_mul_i32 s49, s47, 3072
    s_add_u32 s49, s49, {LA_FIN}
    s_lshl_b32 s50, s48, 10
    s_add_u32 s50, s50, s49
    v_add_u32 v{VKV}, s50, v{V16}
    s_lshl_b32 s50, s48, 3
    s_add_u32 s50, s50, s49
    v_add_u32 v{VZ}, s50, v{V16}
    v_and_b32 v{VQ}, 48, v{L}
    v_and_b32 v{VZA}, 7, v{L}
    v_lshl_add_u32 v{VZA}, v{VZA}, 14, v{VQ}
    v_and_b32 v6, 3, v{L}
    v_sub_u32 v{VQ}, v{VR}, v{V16}
    v_lshl_add_u32 v{VQ}, v6, 8, v{VQ}
    s_lshl_b32 s51, s{S_PAIR}, 5
    s_add_u32 s51, s51, s46
    s_lshl_b32 s51, s51, 12
    s_add_u32 s51, s51, {WS_PART}
    s_lshl_b32 s52, s{S_RB}, 14
    s_add_u32 s52, s52, s51
    v_mov_b32 v0, 0
    v_mov_b32 v1, 0
    v_mov_b32 v4, 0
    v_mov_b32 v5, 0
    v_and_b32 v6, 1, v{L}
    v_lshlrev_b32 v6, 4, v6
    v_mov_b32 v7, 0x3f80
    v_lshlrev_b32 v6, v6, v7
    s_mov_b32 vcc_lo, 0x00300003
    s_mov_b32 vcc_hi, 0x30000300
    v_cndmask_b32 v2, 0, v6, vcc
    s_mov_b32 vcc_lo, 0x00c0000c
    s_mov_b32 vcc_hi, 0xc0000c00
    v_cndmask_b32 v3, 0, v6, vcc
    s_setprio 2
    s_barrier
    """)
    stamp(a, 24, opt)
    for i in range(3):
        a(f"ds_read_b128 {vr(16+4*i,4)}, v{VR if i < 2 else VQ} offset:{i*1024}")
        a(f"ds_read_b128 {vr(28+4*i,4)}, v{VR if i < 2 else VQ} offset:{12288 + i*1024}")
    a("s_waitcnt lgkmcnt(2)")
    for r in range(0, 8, 2): a(f"v_pk_add_f32 {vr(16+r,2)}, {vr(16+r,2)}, {vr(28+r,2)}")
    for k in range(4): a(f"v_cvt_pk_bf16_f32 v{8+k}, v{16+2*k}, v{17+2*k}")
    a(f"""
    buffer_store_dwordx4 v[8:11], v{V16}, {SRD_WS}, s52 offen sc1
    s_waitcnt lgkmcnt(0)
    v_pk_add_f32 v[12:13], v[24:25], v[36:37]
    v_pk_add_f32 v[14:15], v[26:27], v[38:39]
    s_mov_b32 s48, {SPIN_MAX // 8}
    s_mov_b64 exec, 0xff
    buffer_store_dwordx4 v[12:15], v{V16}, {SRD_WS}, s52 offen offset:1024 sc1
    s_mov_b64 exec, -1
    """)
    if opt.await0: a("s_waitcnt vmcnt(0)")
    stamp(a, 25, opt)
    a.label("L_agather")
    a(f"buffer_load_dwordx4 {vr(Z,4)}, v{VZA}, {SRD_WS}, s51 offen offset:1024 sc1")
    a("s_mov_b32 s53, s51")
    for src in range(8):
        a(f"buffer_load_dwordx4 {vr(16+4*src,4)}, v{V16}, {SRD_WS}, s53 offen sc1")
        if src < 7: a("s_add_u32 s53, s53, 16384")
    a("s_waitcnt vmcnt(8)")
    for sh in (4, 2, 1):
        for r in range(4): a(f"v_add_f32_dpp v{Z+r}, v{Z+r}, v{Z+r} row_ror:{sh} row_mask:0xf bank_mask:0xf")
    for src in range(8):
        a(f"s_waitcnt vmcnt({7-src})")
        a(f"v_mfma_f32_16x16x32_bf16 v[8:11], v[2:5], {vr(16+4*src,4)}, {'v[8:11]' if src else 0}")
        a(f"v_mfma_f32_16x16x32_bf16 v[12:15], v[0:3], {vr(16+4*src,4)}, {'v[12:15]' if src else 0}")
    a(f"""
    v_pk_add_f32 v[6:7], {vr(Z,2)}, {vr(Z+2,2)}
    v_add_f32 v6, v6, v7
    v_cvt_pk_bf16_f32 v{Z}, v{Z}, v{Z+1}
    v_cvt_pk_bf16_f32 v{Z+1}, v{Z+2}, v{Z+3}
    s_nop 3
    v_cmp_u_f32 vcc, v6, v12
    s_cbranch_vccz L_apoll_d
    """)
    a.label("L_apoll")
    a(f"""
    s_sub_u32 s48, s48, 1
    s_cmp_eq_u32 s48, 0
    s_cbranch_scc1 L_apoll_d
    buffer_load_dword v7, v{VZA}, {SRD_WS}, s51 offen offset:1024 sc1
    s_waitcnt vmcnt(0)
    v_cmp_eq_u32 vcc, -1, v7
    s_cbranch_vccnz L_apoll
    s_branch L_agather
    """)
    a.label("L_apoll_d")
    stamp(a, 26, opt)
    if opt.prof: a(f"s_sub_u32 s94, {SPIN_MAX//8+1}, s48\nv_writelane_b32 v255, s94, 38")
    for k in range(4): a(f"v_cvt_pk_bf16_f32 v{8+k}, v{8+2*k}, v{9+2*k}")
    a(f"""
    ds_write_b64 v{VZ}, {vr(Z,2)} offset:2048
    ds_write_b128 v{VKV}, v[8:11]
    s_waitcnt lgkmcnt(0)
    """)
    stamp(a, 27, opt)
    a("s_barrier")
    a("s_setprio 0")
    if opt.a3: a("s_barrier")

F_FL, F_FA = 244, 248
def f_flag(a, wait="s_waitcnt vmcnt(0)"):
    a(f"""
    s_lshl_b32 s46, s{S_WAVE}, 7
    s_add_u32 s46, s46, s{S_FLAG}
    v_mov_b32 v{F_FL+6}, 1
    v_lshlrev_b32 v{F_FL+7}, 2, v{V_LANE}
    s_mov_b32 exec_hi, 0
    {wait}
    buffer_store_dword v{F_FL+6}, v{F_FL+7}, {SRD_WS}, s46 offen offset:1024 sc1
    s_mov_b32 exec_hi, -1
    """)
def f_gate(a, which, opt):
    a(f"""
    s_cmp_lg_u32 s{S_WAVE}, 4
    s_cbranch_scc1 L_gated{which}
    v_and_b32 v{F_FA}, 15, v{V_LANE}
    v_lshlrev_b32 v{F_FA}, 14, v{F_FA}
    {f"v_mov_b32 v{F_FL}, 4" if which == "B" and opt.bflag1 else f"v_lshrrev_b32 v{F_FL}, 4, v{V_LANE}"}
    v_lshl_add_u32 v{F_FA}, v{F_FL}, 7, v{F_FA}
    s_lshl_b32 s{S_GA}, s{S_RT}, 11
    s_add_u32 s{S_GA}, s{S_GA}, {WS_FLAG + (262144 if which == "B" else 0)}
    s_mov_b32 s48, {SPIN_MAX}
    s_branch L_gate_e{which}
    """)
    a.label(f"L_gate{which}")
    a(f"s_sleep {opt.backoff}")
    a.label(f"L_gate_e{which}")
    a(f"buffer_load_dword v{F_FL}, v{F_FA}, {SRD_WS}, s{S_GA} offen offset:1024 sc1")
    if which == "B" and not opt.bflag1: a(f"buffer_load_dword v{F_FL+1}, v{F_FA}, {SRD_WS}, s{S_GA} offen offset:1536 sc1")
    a(f"""
    s_sub_u32 s48, s48, 1
    s_cmp_eq_u32 s48, 0
    s_cbranch_scc1 L_gated{which}
    s_waitcnt vmcnt(0)
    """)
    if which == "B" and not opt.bflag1: a(f"v_and_b32 v{F_FL}, v{F_FL}, v{F_FL+1}")
    a(f"""
    v_cmp_ne_u32 vcc, 1, v{F_FL}
    s_cbranch_vccnz L_gate{which}
    """)
    a.label(f"L_gated{which}")
FV_W0, FV_W1 = 240, 241
S_FW, S_FWL = 90, 91
SRD_WO = "s[80:83]"
NPRE = 12
def grp_addr(g): return ((g + 2) % 5) * 32768
LG = grp_addr(3)

def f_rot(a, opt, dst):
    a(f"s_lshl_b32 s{dst}, s{S_CT}, 1\ns_and_b32 s{dst}, s{dst}, {opt.fstag}")

WR = 80
def f_regload(a, lo, hi, opt=None):
    for st in range(lo, hi):
        r = WR + 8 * (st - NPRE)
        srd = SRD_WO if st < 16 else "s[84:87]"
        a(f"""
        s_xor_b32 s57, s{S_ROT}, {(st & 15) << 17}
        buffer_load_dwordx4 {vr(r,4)}, v{FV_W0}, {srd}, s57 offen
        buffer_load_dwordx4 {vr(r+4,4)}, v{FV_W1}, {srd}, s57 offen offset:1024
        """)
        if opt and st == lo + opt.flagat - 1 and not opt.bflag1: f_flag(a, f"s_waitcnt vmcnt({2*opt.flagat})")

def f_setup(a, opt):
    L = V_LANE
    a(f"""
    s_sub_u32 s46, s{S_WAVE}, 4
    v_lshrrev_b32 v{FV_W1}, {2 if opt.f32 else 3}, v{L}
    v_xor_b32 v{FV_W0}, v{FV_W1}, v{L}
    v_and_b32 v{FV_W0}, {4 if opt.f32 else 6}, v{FV_W0}
    v_and_or_b32 v{FV_W0}, v{L}, {3 if opt.f32 else 1}, v{FV_W0}
    v_lshrrev_b32 v{FV_W1}, 3, v{L}
    v_lshlrev_b32 v{FV_W0}, 4, v{FV_W0}
    v_lshl_add_u32 v{FV_W0}, v{FV_W1}, 11, v{FV_W0}
    s_lshl_b32 s47, s{S_CT}, 7
    s_lshl_b32 s48, s46, 15
    s_add_u32 s47, s47, s48
    v_add_u32 v{FV_W0}, s47, v{FV_W0}
    v_add_u32 v{FV_W1}, {16384 - 1024}, v{FV_W0}
    s_lshl_b32 s{S_FWL}, s46, 11
    s_add_u32 s{S_FWL}, s{S_FWL}, 65536
    s_mov_b32 s80, s8
    s_and_b32 s81, s9, 0xffff
    s_mov_b32 s82, 0x200000
    s_mov_b32 s83, 0x20000
    s_mov_b32 s84, s14
    s_and_b32 s85, s15, 0xffff
    s_mov_b32 s86, 0x200000
    s_mov_b32 s87, 0x20000
    """)

def f_prefill(a, opt, ty):
    if opt.exp & 16: return
    a(f"s_mov_b32 s49, {NPRE}\ns_mov_b32 s{S_FW}, 0")
    a.label(f"L_fill{ty}")
    a(f"""
    s_lshl_b32 s57, s{S_FW}, 17
    s_xor_b32 s57, s57, s{S_ROT}
    s_mov_b32 m0, s{S_FWL}
    s_add_u32 s{S_FWL}, s{S_FWL}, 8192
    s_add_u32 s{S_FW}, s{S_FW}, 1
    buffer_load_dwordx4 v{FV_W0}, {SRD_WO}, s57 offen lds
    buffer_load_dwordx4 v{FV_W1}, {SRD_WO}, s57 offen offset:1024 lds
    s_sub_u32 s49, s49, 1
    s_cmp_lg_u32 s49, 0
    s_cbranch_scc1 L_fill{ty}
    """)

def f_producer(a, opt):
    L = V_LANE
    hi = 32 - opt.n13 - opt.n14
    if opt.na15:
        assert opt.na15 >= opt.flagat or opt.bflag1
        a("s_branch L_fprodA")
    a.label("L_fprod")
    a("s_setprio 0")
    if opt.exp & 16: f_flag(a)
    elif opt.na15:
        f_regload(a, NPRE, NPRE + opt.na15, opt)
        a.label("L_fprodA")
        f_regload(a, NPRE + opt.na15, hi)
        a(f"s_waitcnt vmcnt({2 * (hi - NPRE - opt.na15)})")
    else:
        f_regload(a, NPRE, hi, opt)
        a(f"s_waitcnt vmcnt({2 * (hi - NPRE)})")
    a(f"""
    s_sub_u32 s47, s{S_WAVE}, 4
    s_lshl_b32 s47, s47, 11
    v_lshlrev_b32 v10, 4, v{L}
    v_add_u32 v10, s47, v10
    v_add_u32 v11, 65536, v10
    v_add_u32 v12, 131072, v10
    """)
    stamp(a, 39, opt)
    def gate(which): f_gate(a, which, opt)
    def put(g):
        ad = grp_addr(g)
        for k in range(8):
            off = (ad & 65535) + (k >> 1) * 8192 + (k & 1) * 1024
            a(f"ds_write_b128 v{10 + (ad >> 16)}, {vr(WR + (g-3)*32 + 4*k, 4)} offset:{off}")
    gate("A")
    a("s_barrier")
    stamp(a, 40, opt); cstamp(a, 36, opt)
    a("s_waitcnt vmcnt(0)")
    for k in range(8):
        if k == 1 and opt.bflag1:
            a(f"s_cmp_lg_u32 s{S_WAVE}, 4\ns_cbranch_scc1 L_noflag1\ns_setprio 3")
            f_flag(a, "")
            a("s_setprio 0")
            a.label("L_noflag1")
        if k == 0: put(3); put(4)
        elif k <= 3: put(4 + k)
        if k == 2:
            a("s_setprio 3"); gate("B"); a("s_setprio 0")
            stamp(a, 41, opt)
        if k == 3:
            a(f"""
            s_lshl_b32 s47, s{S_RT}, 1
            s_add_u32 s47, s47, s{S_RH}
            s_lshl_b32 s47, s47, 2
            s_add_u32 s47, s47, s{S_WAVE}
            s_lshl_b32 s47, s47, 12
            s_add_u32 s47, s47, {WS_G - 4*4096}
            v_and_b32 v2, 31, v{L}
            v_lshlrev_b32 v1, 7, v2
            buffer_load_dword v3, v1, {SRD_WS}, s47 offen sc1
            v_lshlrev_b32 v2, 2, v2
            s_lshl_b32 s47, s{S_WAVE}, 7
            v_add_u32 v2, s47, v2
            """)
        if k == 5:
            a(f"s_waitcnt vmcnt(0)\nds_write_b32 v2, v3 offset:{LG}")
        a("s_waitcnt lgkmcnt(0)\ns_barrier")
        stamp(a, 44 + k, opt)
    stamp(a, 42, opt); cstamp(a, 37, opt)
    prof_dump(a, opt, WS_PROF)
    a("s_endpgm")

def f_consumer(a, opt):
    L = V_LANE
    AC, ST, WB, OB = 0, 32, 64, 96
    VO, VW, T = 160, 164, 168
    F32 = opt.f32
    a.label("L_fcons")
    if F32:
        a(f"""
        v_and_b32 v{VO}, 15, v{L}
        v_lshlrev_b32 v{VO}, 4, v{VO}
        v_bfe_u32 v{T}, v{L}, 4, 1
        v_lshl_add_u32 v{VO}, v{T}, 10, v{VO}
        v_lshrrev_b32 v{T+1}, 5, v{L}
        v_lshl_add_u32 v{VO}, v{T+1}, 8, v{VO}
        v_lshlrev_b32 v{T}, 5, v{T}
        v_lshl_add_u32 v{T}, v{T+1}, 9, v{T}
        v_bfe_u32 v{T+1}, v{L}, 2, 2
        v_lshl_add_u32 v{T}, v{T+1}, 7, v{T}
        v_bfe_u32 v{T+1}, v{L}, 3, 1
        v_lshl_add_u32 v{T}, v{T+1}, 6, v{T}
        v_and_b32 v{T+1}, 3, v{L}
        v_lshl_add_u32 v{T}, v{T+1}, 3, v{T}
        v_add_u32 v{VW}, {grp_addr(0)}, v{T}
        v_xor_b32 v{VW+1}, 64, v{VW}
        """)
    else:
        a(f"""
        v_lshlrev_b32 v{VO}, 4, v{L}
        v_lshrrev_b32 v{T}, 2, v{L}
        v_lshlrev_b32 v{T}, 7, v{T}
        v_bfe_u32 v{T+1}, v{L}, 3, 2
        v_lshl_add_u32 v{T}, v{T+1}, 5, v{T}
        v_and_b32 v{T+1}, 3, v{L}
        v_lshl_add_u32 v{T}, v{T+1}, 3, v{T}
        v_add_u32 v{VW}, {grp_addr(0)}, v{T}
        v_xor_b32 v{VW+1}, 32, v{VW}
        v_xor_b32 v{VW+2}, 64, v{VW}
        v_xor_b32 v{VW+3}, 96, v{VW}
        """)
    a(f"""
    s_lshl_b32 s58, s{S_RT}, 20
    s_lshl_b32 s47, s{S_RH}, 13
    s_add_u32 s58, s58, s47
    s_lshl_b32 s47, s{S_WAVE}, 11
    s_add_u32 s58, s58, s47
    s_lshr_b32 s60, s{S_ROT}, 2
    s_add_u32 s59, s58, s60
    s_xor_b32 s62, s60, {1 << 17}
    s_add_u32 s62, s62, s58
    v_mov_b32 v{T}, 0
    v_mov_b32 v{T+1}, 0
    v_mov_b32 v{T+2}, 0
    v_mov_b32 v{T+3}, 0
    s_mov_b32 s28, s18
    s_and_b32 s29, s19, 0xffff
    s_mov_b32 s30, 0x400000
    s_mov_b32 s53, 32768
    s_mov_b32 s50, 0
    s_mov_b32 s24, s32
    s_mov_b32 s25, s33
    s_add_u32 s26, s{S_RT}, 1
    s_lshl_b32 s26, s26, 20
    s_movk_i32 s61, 0x108
    """)
    for r in (0, 16): a(f"v_mfma_f32_32x32x16_bf16 {vr(AC+r,16)}, {vr(T,4)}, {vr(T,4)}, 0")
    def oload(t, i): return f"buffer_load_dwordx4 {vr(OB + (t % 8)*8 + 4*i, 4)}, v{VO}, s[24:27], s59 offen offset:{i*(512 if F32 else 1024)} sc1"
    def wread(t, f, u):
        if F32: ad, off = VW + (f & 1), (f >> 1) * 1024
        else: ad, off = VW + f, 0
        return dict(txt=f"ds_read_b64_tr_b16 {vr(WB + (t & 1)*16 + f*4 + 2*u, 2)}, v{ad} offset:{(t % 8)*4096 + u*2048 + off}", loads=('w', t & 1, f, u))
    a("s_barrier")
    stamp(a, 40, opt); diag(a, opt, "F0")
    for t in range(7):
        a(oload(t, 0)); a(oload(t, 1))
        if t == 1 and not opt.bflag1:
            a(f"s_cmp_eq_u32 s{S_BR}, 0\ns_cbranch_scc1 L_fnoflag")
            f_flag(a, "s_waitcnt vmcnt(4)")
            a.label("L_fnoflag")
        a("s_add_u32 s59, s59, 16384")
    pre = [wread(0, f, u) for f in range(4) for u in range(2)]
    lines, q0 = schedule_waits(pre)
    for l in lines: a(l)
    a.label("L2_loop")
    body = []
    X = lambda *l: [dict(txt=x) for x in l]
    nva = 2 if F32 else 4
    for t in range(8):
        body.append(dict(txt="s_waitcnt vmcnt(12)"))
        nxt = "s_mov_b32 s59, s62" if t == 0 else "s_add_u32 s59, s59, 16384"
        misc = {2: X("s_add_u32 s50, s50, 1", "s_add_u32 s62, s50, 1"), 3: X("s_lshl_b32 s62, s62, 17", "s_xor_b32 s62, s62, s60"), 4: X("s_add_u32 s62, s62, s58"),
                5: X("s_bitcmp1_b32 s61, s50", f"s_cselect_b32 s52, {-4*32768 & 0xffffffff}, s53"),
                6: X(*[f"v_add_u32 v{VW+k}, s52, v{VW+k}" for k in range(nva)]), 7: X("s_and_b32 s47, s50, 3")}.get(t, [])
        if F32:
            for m in range(4):
                u, cb = m >> 1, m & 1
                c = vr(AC + cb * 16, 16)
                body.append(dict(txt=f"v_mfma_f32_32x32x16_bf16 {c}, {vr(WB + (t&1)*16 + m*4, 4)}, {vr(OB + t*8 + 4*u, 4)}, {c}", reads={('w', t & 1, m | 1, 1)}))
                if t == 7 and m == 0: body.append(dict(txt="s_barrier", drain=True))
                if m < 2: body += [wread(t + 1, 2 * m + k, u_) for k in range(2) for u_ in range(2)]
                if m >= 2: body.append(dict(txt=oload(t + 7, m - 2)))
                if m == 3: body += X(nxt) + misc
        else:
            m = 0
            for nb in range(4):
                for i in ((0, 1) if nb % 2 == 0 else (1, 0)):
                    c = vr(AC + (i * 4 + nb) * 4, 4)
                    body.append(dict(txt=f"v_mfma_f32_16x16x32_bf16 {c}, {vr(WB + (t&1)*16 + nb*4, 4)}, {vr(OB + t*8 + 4*i, 4)}, {c}", reads={('w', t & 1, nb | 1, 1)}))
                    if t == 7 and m == 0: body.append(dict(txt="s_barrier", drain=True))
                    if m < 4: body += [wread(t + 1, m, 0), wread(t + 1, m, 1)]
                    if m in (4, 5): body.append(dict(txt=oload(t + 7, m - 4)))
                    if m == 5: body += X(nxt)
                    if m == 6: body += misc[:2]
                    if m == 7: body += misc[2:]
                    m += 1
    lines, q1 = schedule_waits(body, q0)
    assert q1 == q0, (q0, q1)
    k = 0
    while k < len(lines):
        if k + 1 < len(lines) and lines[k].startswith("s_waitcnt vmcnt") and lines[k+1].startswith("s_waitcnt lgkmcnt"):
            a(lines[k] + " " + lines[k+1].split()[1]); k += 2
        else:
            a(lines[k]); k += 1
    a(f"""
    s_cbranch_scc1 L2_loop
    s_cmp_eq_u32 s50, 8
    s_cbranch_scc1 L2_done
    s_nop 4
    """)
    for r in range(0, 32, 2): a(f"v_pk_mul_f32 {vr(ST+r,2)}, {vr(AC+r,2)}, 1.0 op_sel_hi:[1,0]")
    a("s_branch L2_loop")
    a.label("L2_done")
    a(f"""
    v_and_b32 v{T}, {31 if F32 else 15}, v{L}
    v_lshlrev_b32 v{T+1}, 2, v{T}
    s_lshl_b32 s47, s{S_WAVE}, 7
    v_add_u32 v{T+1}, s47, v{T+1}
    ds_read_b32 v{T+2}, v{T+1} offset:{LG + 512}
    ds_read_b32 v{T+6}, v{T+1} offset:{LG + 512 + (0 if F32 else 64)}
    v_lshlrev_b32 v{T}, 11, v{T}
    """)
    if not F32: a(f"v_bfe_u32 v{T+1}, v{L}, 4, 1\nv_lshl_add_u32 v{T}, v{T+1}, 5, v{T}")
    a(f"""
    v_lshrrev_b32 v{T+1}, 5, v{L}
    v_lshl_add_u32 v{T}, v{T+1}, 4, v{T}
    s_lshl_b32 s48, s{S_RT}, 1
    s_add_u32 s48, s48, s{S_RH}
    s_lshl_b32 s48, s48, 2
    s_add_u32 s48, s48, s{S_WAVE}
    s_lshl_b32 s48, s48, 16
    s_lshl_b32 s49, s{S_CT}, 7
    s_add_u32 s48, s48, s49
    """)
    TW, TR, TG = T + 10, T + 12, T + 13
    if opt.outt:
        assert not F32
        a(f"""
        v_and_b32 v{TR}, 7, v{L}
        v_bfe_u32 v{TW}, v{T}, 4, 2
        v_xor_b32 v{TW}, v{TW}, v{TR}
        v_lshlrev_b32 v{TW}, 4, v{TW}
        v_and_b32 v{TG}, 15, v{L}
        v_lshl_add_u32 v{TW}, v{TG}, 7, v{TW}
        s_lshl_b32 s47, s{S_WAVE}, 12
        s_add_u32 s47, s47, {grp_addr(4)}
        v_add_u32 v{TW}, s47, v{TW}
        v_xor_b32 v{TW+1}, 64, v{TW}
        v_lshrrev_b32 v{T+1}, 3, v{L}
        v_lshlrev_b32 v{TG}, 4, v{TR}
        v_lshl_add_u32 v{TG}, v{T+1}, 11, v{TG}
        v_xor_b32 v{TR}, v{TR}, v{T+1}
        v_lshlrev_b32 v{TR}, 4, v{TR}
        v_lshl_add_u32 v{TR}, v{T+1}, 7, v{TR}
        v_add_u32 v{TR}, s47, v{TR}
        """)
    a("s_waitcnt lgkmcnt(0)")
    for i in range(2):
        g = T + 2 + 4 * i
        a(f"v_sub_f32 v{g+2}, 1.0, v{g}")
        a(f"v_sub_f32 v{g}, v{g}, v{g+2}")
        for hf in range(2):
            b0 = AC + i * 16 + hf * 8; b1 = ST + i * 16 + hf * 8
            for r in range(0, 8, 2):
                a(f"v_pk_mul_f32 {vr(b1+r,2)}, {vr(b1+r,2)}, {vr(g,2)} op_sel_hi:[1,0]")
            for r in range(0, 8, 2):
                a(f"v_pk_fma_f32 {vr(b0+r,2)}, {vr(b0+r,2)}, {vr(g+2,2)}, {vr(b1+r,2)} op_sel_hi:[1,0,1]")
            for k in range(4): a(f"v_cvt_pk_bf16_f32 v{b0+k}, v{b0+2*k}, v{b0+2*k+1}")
            a("s_nop 1")
            sw = "v_permlane32_swap_b32" if F32 else "v_permlane16_swap_b32"
            a(f"{sw} v{b0}, v{b0+2}")
            a(f"{sw} v{b0+1}, v{b0+3}")
            if opt.outt: a(f"ds_write_b128 v{TW+hf}, {vr(b0,4)} offset:{i*2048}")
            else: a(f"buffer_store_dwordx4 {vr(b0,4)}, v{T}, s[28:31], s48 offen offset:{i*64 + hf*32 if F32 else hf*64} {opt.outaux}")
            if opt.outt and i == 1 and hf == 0:
                for k in range(2):
                    a(f"s_waitcnt lgkmcnt({2-k})\nbuffer_store_dwordx4 {vr(WB+4*k,4)}, v{TG}, s[28:31], s48 offen {opt.outaux}\ns_add_u32 s48, s48, {8*2048}")
        if opt.outt:
            for k in range(2): a(f"ds_read_b128 {vr(WB + 8*i + 4*k,4)}, v{TR} offset:{i*2048 + k*1024}")
        elif i == 0 and not F32: a(f"s_add_u32 s48, s48, {16*2048}")
    if opt.outt:
        for k in range(2):
            a(f"s_waitcnt lgkmcnt({1-k})\nbuffer_store_dwordx4 {vr(WB+8+4*k,4)}, v{TG}, s[28:31], s48 offen {opt.outaux}\ns_add_u32 s48, s48, {8*2048}")
    stamp(a, 43, opt)
    diag_end(a, opt)
    prof_dump(a, opt, WS_PROF)

def gen_k1(opt):
    global GAUX
    GAUX = opt.gaux
    a = Asm()
    k1_prologue(a, opt)
    dma_addrs(a)
    k1_srds(a)
    a(f"s_cmp_ge_u32 s{S_WAVE}, 4")
    a("s_cbranch_scc1 L_producer")
    consumer_setup(a, opt)
    a(f"s_cmp_eq_u32 s{S_BR}, 0")
    a("s_cbranch_scc1 L_consA")
    consumer_gemm(a, True, "B", lines_of(b_epilogue, opt, 0), opt)
    diag(a, opt, "G")
    b_epilogue(a, opt, 1)
    b_consts(a)
    b_attention(a, opt)
    a.label("L_consA")
    consumer_gemm(a, False, "A", lines_of(a_pre, opt), opt)
    diag(a, opt, "G")
    a_consumer(a, opt)
    f_consumer(a, opt)
    a.label("L1_end")
    a("s_endpgm")
    a.label("L_producer")
    producer_gemm(a, opt)
    a(f"s_waitcnt vmcnt({2 * (opt.n13 + opt.n14)})")
    if not opt.gatelate: producer_gate(a, opt)
    if not opt.constearly: b_consts(a)
    a("s_setprio 0")
    a("s_barrier")
    stamp(a, 15, opt)
    a(f"s_cmp_eq_u32 s{S_BR}, 0\ns_cbranch_scc0 L_no15")
    f_regload(a, NPRE, NPRE + opt.na15)
    a.label("L_no15")
    if opt.gatelate: producer_gate(a, opt)
    a(f"s_cmp_eq_u32 s{S_BR}, 0")
    a("s_cbranch_scc1 L_prodA")
    a(f"s_barrier\ns_branch L_battn1")
    a.label("L_prodA")
    if opt.afill == 0: f_prefill(a, opt, "A")
    a_producer(a, opt)
    if opt.afill == 1: f_prefill(a, opt, "A")
    f_producer(a, opt)
    a.label("L_code_end")
    return a.text()

def kd(name, nv):
    return f""".amdhsa_kernel {name}
  .amdhsa_next_free_vgpr {nv}
  .amdhsa_next_free_sgpr 102
  .amdhsa_accum_offset {nv}
  .amdhsa_group_segment_fixed_size 0
  .amdhsa_kernarg_size 80
  .amdhsa_user_sgpr_count 2
  .amdhsa_user_sgpr_kernarg_segment_ptr 1
  .amdhsa_system_sgpr_workgroup_id_x 1
.end_amdhsa_kernel
"""

def gen_all(opt):
    k1 = NAME + "_kernel"
    launch = f"; @launch kernel={k1} grid=(256,1,1) block=(512,1,1) lds=163840" if opt.aslist else "; @launch grid=(256,1,1) block=(512,1,1) lds=163840"
    s = f"""; Generated by my own generator script (dev/gen.py).
; Kernarg: 0 A_x, 8 A_wqkv, 16 A_wo, 24 B_x, 32 B_wqkv, 40 B_wo, 48 gate_w, 56 out, 64 debug, 72 ws
{launch}
.amdgcn_target "amdgcn-amd-amdhsa--gfx950"
.text
.globl {k1}
.p2align 8
.type {k1},@function
{k1}:
{gen_k1(opt)}
.section .rodata,"a"
.p2align 6
{kd(k1, 256)}"""
    return s

if __name__ == "__main__":
    opt = Opt()
    out = f"cdna_kernels/{NAME}.s"
    for arg in sys.argv[1:]:
        k, v = arg.split("=")
        if k == "out": out = v
        else: setattr(opt, k, eval(v))
    open(out, "w").write(gen_all(opt))
    print("wrote", out)
```

```python
import sys, struct
from asm import *

NAME = "gated_mix__linear_attn_block__sliding_block__prompt"
WS_O = 0
WS_KV = 10 << 20
WS_PART = 20 << 20
WS_FLAG = 22 << 20
WS_G = 23 << 20
WS_PROF = 24 << 20
XSLOT = 32768; NXS = 3
WBASE = XSLOT * NXS; WSLOT = 24576
ACC = 0; XA = 192; XB = 208; WF = 224
V_XA0, V_XA1, V_WA0, V_WA1, V_LANE = 248, 249, 250, 251, 252
S_WAVE, S_RB, S_PAIR, S_BR, S_XCD, S_J = 40, 41, 42, 43, 44, 45
SRD_X, SRD_W, SRD_WS, SRD_DBG = "s[24:27]", "s[28:31]", "s[32:35]", "s[36:39]"
S_GA, S_RH, S_RT, S_CT = 76, 77, 78, 79
S_ROT = 75
S_FLAG = 63
SPIN_MAX = 20000
def f2u(x): return struct.unpack("<I", struct.pack("<f", x))[0]
LOG2E = 1.4426950408889634

def acc(sb, j): return ACC + (sb * 6 + j) * 4
def blk(sb): return 8 + sb if sb < 4 else sb - 4

class Opt:
    pf = 4
    prof = False
    force_slow = False
    fstag = 0
    fpre = 4
    gload = 2
    await0 = True
    a3 = 2
    agate = False
    outaux = 'sc1'
    outt = True
    wfirst = False
    w64 = False
    fprio = 3
    flagat = 4
    tmode = 2
    tpos = 0
    exp = 0
    afill = 0
    wovec = 0
    n13 = 4
    n14 = 6
    fmap = 1
    putsh = None
    nearly = 7
    na11 = 3
    na12 = 3
    kvs = 65536 + 1280
    os = 16384
    ord0 = 0
    fill2 = True
    f0early = False
    gwave = 6
    aprobe = False
    f32 = False
    bflag1 = True
    frot = 0
    t0touch = 0
    na15 = 10
    gatelate = True
    constearly = True
    gaux = ''
    diag = ''
    bwait = False
    oprio = 0
    stlate = 4
    kvst = 'sc1'
    kvld = 'sc1'
    prew = 0
    prew_at = 4
    tlb = 0
    xl2 = False
    na = 8
    fdepth = 8
    otouch = False
    wo_from = 2
    early = 2
    backoff = 4
    codepf = 3
    bprio = 1
    tailprio = 0
    aslist = False

def stamp(a, idx, opt):
    if not opt.prof: return
    a("s_memrealtime s[94:95]")
    a("s_waitcnt lgkmcnt(0)")
    a(f"v_writelane_b32 v255, s94, {idx}")

def cstamp(a, idx, opt):
    if not opt.prof: return
    a("s_memtime s[94:95]")
    a("s_waitcnt lgkmcnt(0)")
    a(f"v_writelane_b32 v255, s94, {idx}")

def diag(a, opt, name):
    if opt.diag == name: a("s_memrealtime s[98:99]\ns_waitcnt lgkmcnt(0)")
def diag_end(a, opt):
    if not opt.diag: return
    a("""
    s_waitcnt vmcnt(0)
    s_memrealtime s[100:101]
    s_waitcnt lgkmcnt(0)
    """)
    if opt.diag == "end": a("s_mov_b32 s98, s100")
    if opt.diag == "zero": a("s_mov_b32 s98, s96")
    a("""
    s_sub_u32 s98, s98, s96
    s_min_u32 s98, s98, 20000
    L_diag:
    s_memrealtime s[96:97]
    s_waitcnt lgkmcnt(0)
    s_sub_u32 s96, s96, s100
    s_cmp_lt_u32 s96, s98
    s_cbranch_scc1 L_diag
    """)

def prof_dump(a, opt, base):
    if not opt.prof: return
    a(f"""
    s_lshl_b32 s94, s2, 3
    s_add_u32 s94, s94, s{S_WAVE}
    s_lshl_b32 s94, s94, 8
    s_add_u32 s94, s94, {base}
    v_mbcnt_lo_u32_b32 v254, -1, 0
    v_mbcnt_hi_u32_b32 v254, -1, v254
    v_lshlrev_b32 v254, 2, v254
    buffer_store_dword v255, v254, {SRD_WS}, s94 offen
    """)

def k1_prologue(a, opt):
    a(f"""
    s_cmp_ge_u32 s2, 256
    s_cbranch_scc1 L1_end
    {"s_memrealtime s[96:97]" if opt.diag else ""}
    s_load_dwordx16 s[4:19], s[0:1], 0
    s_load_dwordx4 s[20:23], s[0:1], 64
    v_lshrrev_b32 v1, 6, v0
    s_and_b32 s{S_XCD}, s2, 7
    s_lshr_b32 s{S_J}, s2, 3
    v_readfirstlane_b32 s{S_WAVE}, v1
    s_lshr_b32 s{S_RB}, s{S_J}, 2
    s_and_b32 s{S_BR}, s{S_J}, 1
    s_bfe_u32 s{S_PAIR}, s{S_J}, 0x10001
    s_lshl_b32 s46, s{S_XCD}, 1
    s_add_u32 s{S_PAIR}, s{S_PAIR}, s46
    v_and_b32 v0, 63, v0
    s_mov_b32 s26, 0x400000
    s_mov_b32 s27, 0x20000
    s_mov_b32 s30, 0x600000
    s_mov_b32 s31, s27
    """)

def k1_srds(a):
    a(f"""
    s_waitcnt lgkmcnt(0)
    s_mov_b32 s24, s4
    s_and_b32 s25, s5, 0xffff
    s_cmp_eq_u32 s{S_BR}, 0
    s_cselect_b32 s28, s6, s12
    s_cselect_b32 s29, s7, s13
    s_and_b32 s29, s29, 0xffff
    """)

def k1_ids(a, opt):
    a(f"""
    s_lshl_b32 s49, s{S_BR}, 4
    s_add_u32 s49, s49, s{S_PAIR}
    s_lshl_b32 s49, s49, 3
    s_add_u32 s49, s49, s{S_RB}
    s_lshl_b32 s49, s49, 11
    s_add_u32 s{S_FLAG}, s49, {WS_FLAG}
    {f"s_and_b32 s{S_CT}, s{S_J}, 7" if opt.fmap else f"s_bfe_u32 s{S_CT}, s{S_J}, 0x30001"}
    s_xor_b32 s{S_CT}, s{S_CT}, {1 if opt.fmap == 1 else 0}
    {f"s_bfe_u32 s{S_RH}, s{S_J}, 0x10003" if opt.fmap else f"s_mov_b32 s{S_RH}, s{S_BR}"}
    s_and_b32 s49, s{S_XCD}, 1
    s_lshl_b32 s49, s49, 3
    s_add_u32 s{S_CT}, s{S_CT}, s49
    s_lshr_b32 s{S_ROT}, s{S_J}, 1
    s_and_b32 s{S_ROT}, s{S_ROT}, {opt.frot}
    s_lshl_b32 s{S_ROT}, s{S_ROT}, 19
    s_lshr_b32 s{S_RT}, s{S_J}, 4
    s_and_b32 s49, s{S_XCD}, 6
    s_add_u32 s{S_RT}, s{S_RT}, s49
    s_mov_b32 s32, s22
    s_and_b32 s33, s23, 0xffff
    s_mov_b32 s34, 0x10000000
    s_mov_b32 s35, 0x20000
    s_mov_b32 s36, s20
    s_and_b32 s37, s21, 0xffff
    s_mov_b32 s38, 256
    s_mov_b32 s39, 0x20000
    """)

def consumer_substep(kk, wslot, btype, nxt_kk, nxt_wslot, barrier, extra=None):
    items = []
    def xread(grp, i, kk_):
        reg = (XA if grp == 0 else XB) + 4 * i
        sb = grp * 4 + i
        return dict(txt=f"ds_read_b128 {vr(reg,4)}, v{V_XA0 + kk_} offset:{blk(sb)*2048}", loads=('x', grp, i))
    def wread(j, t, kk_, ws):
        reg = WF + 4 * j + 2 * t
        off = ws * WSLOT + (j >> 1) * 8192 + kk_ * 4096 + t * 512
        return dict(txt=f"ds_read_b64_tr_b16 {vr(reg,2)}, v{V_WA0 + (j & 1)} offset:{off}", loads=('w', j, t))
    after = {m: [] for m in range(48)}
    after[0] += [wread(5, 0, kk, wslot)]
    after[1] += [wread(5, 1, kk, wslot)]
    for i in range(4): after[2 + 2 * i] += [xread(1, i, kk)]
    m0 = 24
    if barrier:
        after[24] += [dict(txt="s_barrier", drain=True)]
        m0 = 25
    xpos = [m0, m0 + 1, 29, 30]
    for i in range(4): after[xpos[i]] += [xread(0, i, nxt_kk)]
    for j in range(5):
        after[27 + 4 * j] += [wread(j, 0, nxt_kk, nxt_wslot)]
        after[28 + 4 * j] += [wread(j, 1, nxt_kk, nxt_wslot)]
    for m, txt in (extra or []):
        after[m].append(dict(txt=txt))
    m = 0
    for grp in range(2):
        for j in range(6):
            order = range(4) if j % 2 == 0 else [3, 2, 1, 0]
            for i in order:
                sb = grp * 4 + i
                xr = vr((XA if grp == 0 else XB) + 4 * i, 4); wr = vr(WF + 4 * j, 4)
                seg = j >> 1
                transposed = (seg == 0) or (seg == 1 and btype)
                A, B = (wr, xr) if transposed else (xr, wr)
                c = vr(acc(sb, j), 4)
                items.append(dict(txt=f"v_mfma_f32_16x16x32_bf16 {c}, {A}, {B}, {c}", reads={('x', grp, i), ('w', j, 0), ('w', j, 1)}))
                items += after[m]
                m += 1
    return items

def consumer_gemm(a, btype, tag, filler, opt):
    pre = [dict(txt=f"ds_read_b128 {vr(XA+4*i,4)}, v{V_XA0} offset:{blk(i)*2048}", loads=('x', 0, i)) for i in range(4)]
    def wr(j, t): return dict(txt=f"ds_read_b64_tr_b16 {vr(WF+4*j+2*t,2)}, v{V_WA0 + (j&1)} offset:{(j>>1)*8192 + t*512}", loads=('w', j, t))
    pre = [pre[0], pre[1], wr(0, 0), wr(0, 1), pre[2], pre[3]] + [wr(j, t) for j in range(1, 5) for t in range(2)]
    lines, q0 = schedule_waits(pre)
    a("s_mov_b32 s50, 8")
    a("s_mov_b32 s51, 0")
    for l in lines: a(l)
    body = []
    for st in range(2):
        ex0 = [(10, "s_add_u32 s51, s51, 1"), (11, "s_cmp_eq_u32 s51, 3"), (12, f"s_cselect_b32 s52, {-2*XSLOT & 0xffffffff}, s53"), (13, "s_cselect_b32 s51, 0, s51"),
               (16, f"v_add_u32 v{V_XA0}, s52, v{V_XA0}")]
        ex1 = [(16, f"v_add_u32 v{V_XA1}, s52, v{V_XA1}")]
        if st == 1: ex1 += [(18, "s_sub_u32 s50, s50, 1"), (21, "s_cmp_lg_u32 s50, 0")]
        body += consumer_substep(0, st, btype, 1, st, False, ex0)
        body += consumer_substep(1, st, btype, 0, 1 - st, True, ex1)
    lines, q1 = schedule_waits(body, q0)
    assert q1 == q0, (q0, q1)
    cut = max(i for i, l in enumerate(lines) if l == "s_barrier") + 2
    assert lines[cut - 1].startswith("v_mfma")
    if opt.exp & 128: lines = [l if not l.startswith("ds_read_b128") else "s_nop 0" for l in lines]
    if opt.exp & 256: lines = [l if not l.startswith("ds_read_b64") else "s_nop 0" for l in lines]
    a(f"s_branch L_gemm_e{tag}")
    a.label(f"L_gemm_{tag}")
    for l in lines[cut:]: a(l)
    a.label(f"L_gemm_e{tag}")
    for l in lines[:cut]: a(l)
    a(f"s_cbranch_scc1 L_gemm_{tag}")
    tail = [l for l in lines[cut:] if l.startswith("v_mfma")]
    tail = tail[6:] + tail[:6]
    per = -(-len(filler) // len(tail))
    for m, l in enumerate(tail):
        a(l)
        for x in filler[m * per:(m + 1) * per]: a(x)

def lines_of(f, *args):
    t = Asm(); f(t, *args)
    return [l.strip() for l in t.L if l.strip()]

def consumer_setup(a, opt):
    if opt.prof: a("v_mov_b32 v255, 0")
    stamp(a, 22, opt); diag(a, opt, "issue")
    if opt.t0touch:
        a(f"""
        s_cmp_lt_u32 s{S_WAVE}, 2
        s_cbranch_scc0 L_t0w
        s_lshl_b32 s47, s{S_J}, 17
        s_lshl_b32 s48, s{S_WAVE}, 7
        s_add_u32 s47, s47, s48
        v_lshlrev_b32 v5, 11, v0
        {"s_cmp_eq_u32 s40, 0" if opt.t0touch == 2 else ""}
        {"s_cbranch_scc1 L_t0d" if opt.t0touch == 2 else ""}
        buffer_load_dword v{XB}, v5, {SRD_X}, s47 offen
        s_branch L_t0d
        L_t0w:
        s_and_b32 s48, s{S_WAVE}, 1
        {"s_cbranch_scc0 L_t0d" if opt.t0touch == 2 else ""}
        s_lshl_b32 s48, s48, 3
        s_add_u32 s48, s48, s{S_RB}
        s_mul_i32 s48, s48, {8*6144}
        s_lshl_b32 s47, s{S_PAIR}, 7
        s_add_u32 s47, s47, s48
        v_min_u32 v5, 23, v0
        v_lshlrev_b32 v5, 11, v5
        buffer_load_dword v{XB}, v5, {SRD_W}, s47 offen
        L_t0d:
        """)
    if opt.ord0 == 0: issue_w(a, "0", "s55"); issue_x(a, "0", "s54")
    elif opt.ord0 == 1: issue_x(a, "0", "s54"); issue_w(a, "0", "s55")
    else:
        issue_w(a, "0", "s55", (0,)); issue_x(a, "0", "s54", (0,)); issue_w(a, "0", "s55", (1,)); issue_x(a, "0", "s54", (1,)); issue_w(a, "0", "s55", (2,))
    a(f"""
    s_barrier
    v_and_b32 v1, 15, v0
    v_lshrrev_b32 v2, 4, v0
    v_bfe_u32 v3, v0, 1, 3
    v_xor_b32 v3, v2, v3
    v_lshlrev_b32 v3, 4, v3
    v_lshl_add_u32 v3, v1, 7, v3
    s_lshr_b32 s46, s{S_WAVE}, 1
    s_lshl_b32 s46, s46, 13
    v_add_u32 v{V_XA0}, s46, v3
    v_xor_b32 v{V_XA1}, 64, v{V_XA0}
    v_bfe_u32 v3, v0, 2, 2
    v_lshl_add_u32 v4, v2, 3, v3
    v_lshlrev_b32 v4, 7, v4
    v_bfe_u32 v5, v0, 3, 2
    s_and_b32 s46, s{S_WAVE}, 1
    s_lshl_b32 s46, s46, 1
    v_xor_b32 v5, s46, v5
    v_lshl_add_u32 v4, v5, 5, v4
    v_and_b32 v5, 3, v0
    v_lshl_add_u32 v4, v5, 3, v4
    v_add_u32 v{V_WA0}, {WBASE}, v4
    v_xor_b32 v{V_WA1}, 32, v{V_WA0}
    s_mov_b32 s53, {XSLOT}
    s_mov_b32 s80, s8
    s_and_b32 s81, s9, 0xffff
    s_mov_b32 s82, 0x200000
    s_mov_b32 s83, 0x20000
    s_mov_b32 s84, s14
    s_and_b32 s85, s15, 0xffff
    s_mov_b32 s86, 0x200000
    s_mov_b32 s87, 0x20000
    """)
    k1_ids(a, opt)
    a(f"s_cmp_eq_u32 s{S_BR}, 0")
    a("s_cselect_b32 s46, 1.0, 0")
    a("s_nop 0")
    for sb in range(8):
        for j in range(6):
            for r in range(4):
                a(f"v_mov_b32 v{acc(sb,j)+r}, {'s46' if j < 4 else '0'}")

    a(f"""
    v_mov_b32 v{XA}, {LCNT}
    v_mov_b32 v{XA+1}, 1
    s_mov_b64 exec, 1
    s_waitcnt vmcnt(0)
    ds_add_u32 v{XA}, v{XA+1}
    s_mov_b64 exec, -1
    """)
    a.label("L_st0")
    a(f"""
    ds_read_b32 v{XA+2}, v{XA}
    s_waitcnt lgkmcnt(0)
    v_readfirstlane_b32 s46, v{XA+2}
    s_cmp_lt_u32 s46, 4
    s_cbranch_scc1 L_st0
    """)
    stamp(a, 20, opt); diag(a, opt, "st0")

LCNT = 147456
def dma_addrs(a):
    a(f"""
    s_and_b32 s46, s{S_WAVE}, 3
    v_lshrrev_b32 v1, 3, v0
    v_and_b32 v2, 7, v0
    v_and_b32 v3, 2, v1
    v_xor_b32 v3, v2, v3
    v_lshlrev_b32 v3, 4, v3
    v_mul_u32_u24 v4, 6144, v1
    s_lshl_b32 s47, s{S_PAIR}, 7
    s_mul_i32 s48, s46, {2*8*6144}
    s_add_u32 s47, s47, s48
    v_add3_u32 v20, v4, v3, s47
    v_xor_b32 v21, 64, v20
    v_add_u32 v21, {8*6144 - 1024}, v21
    v_lshrrev_b32 v3, 1, v1
    v_xor_b32 v3, v2, v3
    v_lshlrev_b32 v3, 4, v3
    s_lshl_b32 s47, s{S_RB}, 8
    s_lshl_b32 s48, s46, 6
    s_add_u32 s47, s47, s48
    v_add_u32 v4, s47, v1
    v_lshl_add_u32 v10, v4, 11, v3
    v_xor_b32 v11, 64, v10
    """)
    for i in (3, 2, 1):
        a(f"v_add_u32 v{10+i}, {i*16384 - i*1024}, v{10 + (i & 1)}")
    a(f"""
    s_lshl_b32 s54, s46, 13
    s_lshl_b32 s55, s46, 11
    s_add_u32 s55, s55, {WBASE}
    v_mov_b32 v{V_LANE}, v0
    """)
def issue_w(a, step_s, slot_off, segs=(0, 1, 2)):
    for seg in segs:
        a(f"s_add_u32 m0, {slot_off}, {seg*8192}")
        a(f"s_add_u32 s48, {step_s}, {seg*2048}")
        a(f"buffer_load_dwordx4 v20, {SRD_W}, s48 offen {GAUX} lds")
        a(f"buffer_load_dwordx4 v21, {SRD_W}, s48 offen offset:1024 {GAUX} lds")
def issue_x(a, step_s, slot_off, groups=(0, 1)):
    for g in groups:
        a(f"s_add_u32 m0, {slot_off}, {g*4096}")
        a(f"s_add_u32 s48, {step_s}, {g*65536}")
        for i in range(4):
            a(f"buffer_load_dwordx4 v{10+i}, {SRD_X}, s48 offen offset:{i*1024} {GAUX} lds")

def producer_gemm(a, opt):
    assert opt.tmode >= 1
    a(f"""
    v_mov_b32 v7, 0x7f000000
    s_add_u32 s62, s46, {2 if opt.t0touch else 1}
    """)
    if opt.tmode >= 1:
        a(f"""
        v_and_b32 v4, 31, v0
        s_mul_i32 s47, s{S_RB}, {8*6144}
        s_and_b32 s48, s{S_PAIR}, 14
        s_lshl_b32 s48, s48, 7
        s_add_u32 s47, s47, s48
        v_lshl_add_u32 v5, v4, 11, s47
        v_lshrrev_b32 v6, 5, v0
        v_lshl_add_u32 v5, v6, 7, v5
        s_add_u32 s48, s46, s{S_PAIR}
        {f"s_or_b32 s48, s48, s{S_BR}" if opt.tmode == 3 else ""}
        s_bitcmp0_b32 {"s48" if opt.tmode >= 2 else f"s{S_PAIR}"}, 0
        {f"s_and_b32 s48, s{S_J}, 3" if opt.tmode == 4 else ""}
        {f"s_cmp_eq_u32 s48, s46" if opt.tmode == 4 else ""}
        s_cselect_b32 s93, -1, 0
        s_and_b32 vcc_lo, s93, 0xffffff
        s_mov_b32 vcc_hi, vcc_lo
        v_cndmask_b32 v30, v7, v5, vcc
        v_and_b32 v4, 7, v0
        v_bfe_u32 v5, v0, 3, {2 if opt.tmode >= 3 else 1}
        v_lshl_add_u32 v4, v5, {6 if opt.tmode >= 3 else 7}, v4
        s_and_b32 s48, s2, {0xe7 if opt.tmode >= 3 else 0xef}
        s_lshl_b32 s48, s48, 3
        v_add_u32 v4, s48, v4
        v_lshlrev_b32 v4, 11, v4
        s_and_b32 vcc_lo, s93, {-1 if opt.tmode >= 3 else 0xffff}
        s_mov_b32 vcc_hi, 0
        v_cndmask_b32 v31, v7, v4, vcc
        """)
    NT = 2
    if opt.tmode >= 3:
        assert not opt.wovec
        NT = 3
        a(f"""
        s_cmp_eq_u32 s{S_BR}, 0
        s_cselect_b32 s88, s12, s6
        s_cselect_b32 s89, s13, s7
        s_and_b32 s89, s89, 0xffff
        s_mov_b32 s90, 0x600000
        s_mov_b32 s91, 0x20000
        """)
    def touch():
        a(f"""
        s_mul_i32 s60, s62, {64*6144}
        s_lshl_b32 s61, s62, 7
        buffer_load_dword v32, v30, {SRD_W}, s60 offen
        buffer_load_dword v33, v31, {SRD_X}, s61 offen
        {"buffer_load_dword v32, v30, s[88:91], s60 offen" if NT == 3 else ""}
        s_add_u32 s62, s62, 4
        """)
    a(f"s_cmp_lt_u32 s46, {opt.early}\ns_cbranch_scc0 L_noearly")
    touch()
    a.label("L_noearly")
    a(f"""
    s_getpc_b64 s[86:87]
    L_pc:
    s_sub_u32 s86, s86, L_pc-{NAME}_kernel
    s_subb_u32 s87, s87, 0
    v_and_b32 v37, 7, v0
    s_lshl_b32 s48, s{S_J}, 3
    v_add_u32 v37, s48, v37
    v_lshlrev_b32 v37, 7, v37
    v_min_u32 v37, L_code_end-{NAME}_kernel-4, v37
    """)
    if opt.codepf & 1:
        a(f"s_cmp_eq_u32 s46, 3\ns_cbranch_scc0 L_nocode\nglobal_load_dword v38, v37, s[86:87]")
        a.label("L_nocode")
    a(f"""
    v_mov_b32 v48, 0
    v_mov_b32 v2, {LCNT}
    ds_write_b32 v2, v48
    v_lshlrev_b32 v44, 4, v0
    v_mov_b32 v49, 0
    v_mov_b32 v50, 0
    v_mov_b32 v51, 0
    s_lshl_b32 s85, s{S_PAIR}, 1
    s_add_u32 s85, s85, s{S_BR}
    s_lshl_b32 s85, s85, 3
    v_mov_b32 v36, 1
    s_mov_b32 s57, {64*6144}
    s_add_u32 s58, s55, {WSLOT}
    """)
    k1_ids(a, opt)
    a(f"""
    s_lshl_b32 s47, s46, 10
    s_add_u32 s47, s47, s{S_FLAG}
    s_cmp_lt_u32 s46, 2
    s_cselect_b32 s47, s47, 0x10000000
    """)
    a(f"""
    s_waitcnt lgkmcnt(0)
    s_barrier
    s_setprio 3
    """)
    if opt.prof: a("v_mov_b32 v255, 0")
    stamp(a, 21, opt)
    a(f"buffer_store_dwordx4 v[48:51], v44, {SRD_WS}, s47 offen sc1")
    a(f"""
    s_cmp_eq_u32 s{S_BR}, 0
    s_cbranch_scc0 L_nosent
    s_lshl_b32 s47, s{S_PAIR}, 3
    s_add_u32 s47, s47, s{S_RB}
    s_lshl_b32 s47, s47, 2
    s_add_u32 s47, s47, s46
    s_lshl_b32 s47, s47, 12
    s_add_u32 s47, s47, {WS_PART}
    v_mov_b32 v40, -1
    v_mov_b32 v41, -1
    v_mov_b32 v42, -1
    v_mov_b32 v43, -1
    buffer_store_dwordx4 v[40:43], v44, {SRD_WS}, s47 offen sc1
    s_mov_b64 exec, 0xff
    buffer_store_dwordx4 v[40:43], v44, {SRD_WS}, s47 offen offset:1024 sc1
    s_mov_b64 exec, -1
    """)
    a.label("L_nosent")
    a("s_mov_b32 s56, 128"); a(f"s_add_u32 s59, s54, {XSLOT}")
    if opt.ord0 < 3: issue_w(a, "s57", "s58"); issue_x(a, "s56", "s59")
    else:
        issue_x(a, "s56", "s59", (0,)); issue_w(a, "s57", "s58", (0, 1)); issue_x(a, "s56", "s59", (1,)); issue_w(a, "s57", "s58", (2,))
    a("s_mov_b32 s57, 256"); a(f"s_add_u32 s58, s54, {2*XSLOT}")
    issue_x(a, "s57", "s58")
    if opt.constearly:
        assert not opt.wovec
        b_consts(a); a(f"s_and_b32 s46, s{S_WAVE}, 3")
    a(f"s_cmp_lt_u32 s46, {opt.early}\ns_cbranch_scc1 L_nolate")
    touch()
    a(f"s_waitcnt vmcnt({8 + NT})\ns_branch L_late")
    a.label("L_nolate")
    a("s_waitcnt vmcnt(8)")
    a.label("L_late")
    a("s_barrier")
    stamp(a, 0, opt); cstamp(a, 30, opt)
    if opt.prof:
        a("s_getreg_b32 s94, hwreg(HW_REG_XCC_ID)\nv_writelane_b32 v255, s94, 33")
    a(f"""
    s_cmp_lt_u32 s46, 2
    s_cselect_b32 s80, s8, s14
    s_cselect_b32 s81, s9, s15
    s_and_b32 s81, s81, 0xffff
    s_mov_b32 s82, 0x200000
    s_mov_b32 s83, 0x20000
    s_and_b32 s84, s2, {0xe7 if opt.tmode >= 3 else 0xef if opt.tmode else 0xff}
    s_lshl_b32 s84, s84, 1
    s_and_b32 s48, s46, 1
    s_add_u32 s84, s84, s48
    s_lshl_b32 s84, s84, 12
    v_lshlrev_b32 v34, 7, v0
    v_cmp_gt_u32 vcc, 16, v0
    s_nop 1
    v_cndmask_b32 v34, v7, v34, vcc
    """)
    if opt.tmode >= 1:
        a(f"""
        v_and_b32 v4, 15, v0
        v_lshlrev_b32 v4, 7, v4
        v_lshrrev_b32 v5, 4, v0
        v_lshl_add_u32 v4, v5, {16 if opt.tmode >= 3 else 17}, v4
        s_mov_b32 vcc_lo, s93
        s_mov_b32 vcc_hi, {"s93" if opt.tmode >= 3 else 0}
        v_cndmask_b32 v34, v7, v4, vcc
        """)
    a(f"""
    s_mov_b32 s50, 0
    s_mov_b32 s56, {2*64*6144}
    s_mov_b32 s57, {3*128}
    s_mov_b32 s58, s55
    s_mov_b32 s59, s54
    s_mov_b32 s51, 0
    """)
    if opt.wovec:
        a(f"""
        s_mov_b32 s68, s14
        s_and_b32 s69, s15, 0xffff
        s_mov_b32 s70, 0x200000
        s_mov_b32 s71, 0x20000
        s_sub_u32 s88, 3, s46
        s_lshl_b32 s88, s88, 5
        s_add_u32 s88, s88, s{S_J}
        s_lshl_b32 s88, s88, 14
        s_and_b32 s48, s{S_XCD}, 1
        s_lshl_b32 s48, s48, 10
        s_add_u32 s88, s88, s48
        v_lshrrev_b32 v39, 3, v0
        v_lshlrev_b32 v39, 4, v39
        v_and_or_b32 v39, v0, 7, v39
        v_lshlrev_b32 v39, 7, v39
        s_lshr_b32 s89, s46, 1
        s_add_u32 s89, s89, 9
        """)
    if opt.prew:
        a(f"""
        s_lshl_b32 s73, s{S_RB}, 1
        s_add_u32 s73, s73, s{S_BR}
        s_lshl_b32 s73, s73, 4
        s_add_u32 s73, s73, s{S_PAIR}
        s_lshl_b32 s73, s73, 2
        s_add_u32 s73, s73, s46
        s_lshl_b32 s73, s73, 13
        s_lshl_b32 s74, s{S_PAIR}, 3
        s_add_u32 s74, s74, s{S_RB}
        s_lshl_b32 s74, s74, 2
        s_add_u32 s74, s74, s46
        s_lshl_b32 s74, s74, 14
        s_add_u32 s74, s74, {WS_KV}
        s_cmp_eq_u32 s{S_BR}, 0
        s_cselect_b32 s74, 0x10000000, s74
        v_lshlrev_b32 v8, {7 if opt.prew == 1 else 4}, v0
        """)
    if opt.exp & 64: a("s_mov_b64 exec, 1")
    a.label("L_prod")
    issue_w(a, "s56", "s58")
    ga, gb = {0: ((), (0, 1)), 1: ((0,), (1,)), 2: ((0, 1), ())}[opt.tpos]
    issue_x(a, "s57", "s59", ga)
    a(f"""
    s_and_b32 s47, s50, 3
    s_cmp_eq_u32 s47, s46
    s_cbranch_scc0 L_notouch
    s_cmp_lt_u32 s62, 16
    s_cbranch_scc0 L_lateturn
    """)
    touch()
    a(f"""
    s_cmp_eq_u32 s50, 1
    s_cbranch_scc0 L_noatom
    s_mov_b64 exec, 1
    buffer_atomic_add v36, off, {SRD_DBG}, s85 sc1
    s_mov_b64 exec, {1 if opt.exp & 64 else -1}
    s_branch L_three
    """)
    a.label("L_noatom")
    a(f"""
    s_sub_u32 s47, s50, {opt.wo_from}
    s_cmp_lt_u32 s47, 8
    s_cselect_b32 s47, s84, 0x200000
    s_cselect_b32 s49, 2048, 0
    buffer_load_dword v35, v34, s[80:83], s47 offen
    s_add_u32 s84, s84, s49
    """)
    a.label("L_three")
    issue_x(a, "s57", "s59", gb)
    a(f"s_waitcnt vmcnt({9 + NT})\ns_branch L_touched")
    a.label("L_lateturn")
    if opt.codepf & 2:
        a("s_cmp_eq_u32 s50, 11\ns_cbranch_scc0 L_late12\nglobal_load_dword v38, v37, s[86:87]")
        issue_x(a, "s57", "s59", gb)
        a("s_waitcnt vmcnt(9)\ns_branch L_touched")
        a.label("L_late12")
        if opt.tlb:
            a(f"""
            v_min_u32 v38, {(20 << 20 >> opt.tlb) - 1}, v0
            v_lshlrev_b32 v38, {opt.tlb}, v38
            buffer_load_dword v35, v38, {SRD_WS}, 0 offen
            v_and_b32 v38, 0x3fffff, v38
            global_load_dword v35, v38, s[18:19]
            """)
            issue_x(a, "s57", "s59", gb)
            a("s_waitcnt vmcnt(10)\ns_branch L_touched")
    a.label("L_notouch")
    issue_x(a, "s57", "s59", gb)
    a("s_waitcnt vmcnt(8)")
    a.label("L_touched")
    if opt.na11 or opt.na12:
        a(f"""
        s_lshl_b32 s47, s{S_BR}, 4
        s_add_u32 s47, s47, s50
        s_cmp_eq_u32 s47, 11
        s_cbranch_scc1 L_a11
        s_cmp_eq_u32 s47, 12
        s_cbranch_scc1 L_a12
        L_aback:
        """)
    if opt.prew == 1:
        a(f"""
        s_sub_u32 s47, s50, {opt.prew_at}
        s_cmp_lt_u32 s47, 3
        s_cbranch_scc0 L_noprew
        s_cmp_eq_u32 s47, 2
        s_cselect_b32 s47, s73, s74
        buffer_store_dword v0, v8, {SRD_WS}, s47 offen sc1
        s_add_u32 s74, s74, 8192
        L_noprew:
        """)
    if opt.prew == 2:
        a(f"""
        s_sub_u32 s47, s50, {opt.prew_at}
        s_cmp_lt_u32 s47, 8
        s_cbranch_scc0 L_noprew
        buffer_store_dwordx4 v[0:3], v8, {SRD_WS}, s74 offen sc1
        buffer_store_dwordx4 v[0:3], v8, {SRD_WS}, s74 offen offset:1024 sc1
        buffer_store_dwordx4 v[0:3], v8, {SRD_WS}, s73 offen sc1
        s_add_u32 s74, s74, 2048
        s_add_u32 s73, s73, 1024
        L_noprew:
        """)
    if opt.wovec:
        a(f"""
        s_cmp_eq_u32 s50, s89
        s_cbranch_scc0 L_nowo2
        buffer_load_dword v35, v39, s[68:71], s88 offen
        s_add_u32 s89, s89, 2
        s_mov_b32 s68, s8
        s_and_b32 s69, s9, 0xffff
        s_xor_b32 s88, s88, {3 << 19}
        L_nowo2:
        """)
    a(f"""
    s_add_u32 s56, s56, {64*6144}
    s_add_u32 s57, s57, 128
    s_cmp_eq_u32 s58, s55
    s_cselect_b32 s58, {WSLOT}, 0
    s_add_u32 s58, s58, s55
    s_add_u32 s51, s51, 1
    s_cmp_eq_u32 s51, 3
    s_cselect_b32 s51, 0, s51
    s_lshl_b32 s59, s51, 15
    s_add_u32 s59, s59, s54
    s_add_u32 s50, s50, 1
    s_barrier
    """)
    if opt.prof:
        a("s_mov_b32 m0, s50"); stamp(a, "m0", opt)
    a("""
    s_cmp_lt_u32 s50, 13
    s_cbranch_scc1 L_prod
    s_mov_b64 exec, -1
    """)
    issue_w(a, "s56", "s58")
    a(f"""
    s_lshl_b32 s47, s{S_RB}, 1
    s_add_u32 s47, s47, s{S_BR}
    s_lshl_b32 s47, s47, 4
    s_add_u32 s47, s47, s{S_PAIR}
    s_lshl_b32 s47, s47, 2
    s_add_u32 s47, s47, s46
    s_lshl_b32 s48, s47, 12
    v_lshlrev_b32 v1, 5, v0
    s_mov_b32 s64, s16
    s_and_b32 s65, s17, 0xffff
    s_mov_b32 s66, 2048
    s_mov_b32 s67, 0x20000
    v_and_b32 v254, 31, v0
    v_lshlrev_b32 v254, 3, v254
    buffer_load_dwordx4 v[40:43], v1, s[64:67], 0 offen
    buffer_load_dwordx4 v[44:47], v1, s[64:67], 0 offen offset:16
    buffer_load_dwordx4 v[48:51], v1, {SRD_X}, s48 offen
    buffer_load_dwordx4 v[52:55], v1, {SRD_X}, s48 offen offset:16
    buffer_load_dwordx4 v[56:59], v1, {SRD_X}, s48 offen offset:2048
    buffer_load_dwordx4 v[60:63], v1, {SRD_X}, s48 offen offset:2064
    buffer_load_dword v253, v254, {SRD_DBG}, 0 offen sc1
    """)
    a("s_mov_b32 s93, s47")
    f_setup(a, opt)
    f_regload(a, 32 - opt.n13, 32)
    a(f"s_waitcnt vmcnt({7 + 2*opt.n13})\ns_barrier")
    f_regload(a, 32 - opt.n13 - opt.n14, 32 - opt.n13)
    a(f"s_mov_b32 s47, s93\ns_setprio {opt.tailprio}")
    stamp(a, 14, opt); cstamp(a, 31, opt)

def producer_gate(a, opt, tag=''):
    nw = 2 * (opt.n13 + opt.n14)
    a(f"v_mov_b32 v6, 0\nv_mov_b32 v7, 0")
    for i in range(8):
        a(f"v_dot2c_f32_bf16 v6, v{48+i}, v{40+i}")
        a(f"v_dot2c_f32_bf16 v7, v{56+i}, v{40+i}")
    a("s_nop 2")
    a("""
    v_permlane32_swap_b32 v6, v7
    s_nop 1
    v_add_f32 v6, v6, v7
    v_mov_b32 v7, v6
    s_nop 1
    v_permlane16_swap_b32 v6, v7
    s_nop 1
    v_add_f32 v6, v6, v7
    """)
    for sh in (8, 4, 2, 1):
        a("s_nop 1")
        a(f"v_add_f32_dpp v6, v6, v6 row_ror:{sh} row_mask:0xf bank_mask:0xf")
    a(f"""
    v_mul_f32 v6, {hex(f2u(-LOG2E))}, v6
    v_exp_f32 v6, v6
    v_lshlrev_b32 v7, 2, v{V_LANE}
    v_add_f32 v6, 1.0, v6
    v_rcp_f32 v6, v6
    s_lshl_b32 s47, s93, 8
    s_add_u32 s47, s47, {WS_G}
    buffer_store_dword v6, v7, {SRD_WS}, s47 offen sc1
    s_mov_b32 s48, {SPIN_MAX}
    """)
    a.label(f"L_initpoll{tag}")
    a(f"""
    v_cmp_gt_u32 vcc, 8, v253
    s_cbranch_vccz L_initdone{tag}
    s_sub_u32 s48, s48, 1
    s_cmp_eq_u32 s48, 0
    s_cbranch_scc1 L_initdone{tag}
    buffer_load_dword v253, v254, {SRD_DBG}, 0 offen sc1
    s_waitcnt vmcnt(0)
    s_branch L_initpoll{tag}
    """)
    a.label(f"L_initdone{tag}")

T_S, T_P, T_K, T_V = 0, 32, 40, 48
class U:
    def __init__(s, sr_, q, o, l, sq): s.s, s.q, s.o, s.l, s.sq = sr_, q, o, l, sq
UA = U(0, 56, 64, 80, 70); UB = U(16, 84, 92, 108, 71)
T_MD, T_ME, T_SEL, T_PAT, T_ADR, T_T0, T_Z = 112, 128, 144, 148, 149, 150, 156
T_C = 16
T_PUB = 160
S_HB = 72
LQ = 131072
def swap34(i): return (i & 7) | ((i >> 4 & 1) << 3) | ((i >> 3 & 1) << 4)

def b_consts(a):
    a(f"v_mov_b32 v{T_T0}, {hex(f2u(-1e30))}")
    for n in range(16):
        g, r = n >> 2, n & 3
        m = 0
        for l in range(64):
            j, h = l & 31, l >> 5
            if swap34(8 * g + 4 * h + r) <= swap34(j): m |= 1 << l
        s = 64 + 2 * (n & 1)
        a(f"s_mov_b32 s{s}, {hex(m & 0xffffffff)}")
        a(f"s_mov_b32 s{s+1}, {hex(m >> 32)}")
        a(f"v_cndmask_b32_e64 v{T_MD+n}, v{T_T0}, 0, s[{s}:{s+1}]")
        a(f"v_cndmask_b32_e64 v{T_ME+n}, 0, v{T_T0}, s[{s}:{s+1}]")
    L = V_LANE
    a(f"""
    v_lshrrev_b32 v{T_T0}, 2, v{L}
    v_xor_b32 v{T_T0}, v{T_T0}, v{L}
    v_bfe_u32 v{T_T0}, v{T_T0}, 2, 1
    v_add_u32 v{T_T0}, -1, v{T_T0}
    v_and_b32 v{T_SEL}, 0x3f803f80, v{T_T0}
    v_mov_b32 v{T_Z}, 0
    v_mov_b32 v{T_Z+1}, 0
    v_mov_b32 v{T_Z+2}, 0
    v_mov_b32 v{T_Z+3}, 0
    v_mov_b32 v{T_SEL+1}, v{T_SEL}
    v_mov_b32 v{T_SEL+2}, v{T_SEL}
    v_mov_b32 v{T_SEL+3}, v{T_SEL}
    v_and_b32 v{T_PAT}, 7, v{L}
    v_lshlrev_b32 v{T_PAT}, 4, v{T_PAT}
    v_lshrrev_b32 v{T_T0}, 4, v{L}
    v_lshl_add_u32 v{T_PAT}, v{T_T0}, 7, v{T_PAT}
    v_bfe_u32 v{T_T0}, v{L}, 3, 1
    v_lshl_add_u32 v{T_PAT}, v{T_T0}, 10, v{T_PAT}
    s_and_b32 s46, s{S_WAVE}, 1
    s_lshl_b32 s{S_HB}, s46, 15
    s_and_b32 s46, s{S_WAVE}, 2
    s_sub_u32 s{UA.sq}, 6, s46
    s_cmp_lt_u32 s{S_WAVE}, 4
    s_cselect_b32 s{UA.sq}, s46, s{UA.sq}
    s_add_u32 s{UB.sq}, s{UA.sq}, 1
    """)
    for u in (UA, UB):
        a(f"v_mfma_f32_32x32x16_bf16 {vr(u.o,16)}, {vr(T_Z,4)}, {vr(T_Z,4)}, 0")
        a(f"v_mfma_f32_16x16x32_bf16 {vr(u.l,4)}, {vr(T_Z,4)}, {vr(T_Z,4)}, 0")

def b_epilogue(a, opt, part):
    L = V_LANE
    c = LOG2E / 32 ** 0.5
    if part == 0: a(f"""
    s_lshr_b32 s46, s{S_WAVE}, 1
    s_and_b32 s47, s{S_WAVE}, 1
    s_lshl_b32 s48, s47, 15
    s_lshl_b32 s49, s46, 12
    s_add_u32 s48, s48, s49
    s_add_u32 s48, s48, 65536
    v_lshlrev_b32 v253, 4, v{L}
    v_add_u32 v248, s48, v253
    s_lshl_b32 s48, s47, 14
    s_add_u32 s48, s48, s49
    s_add_u32 s48, s48, {LQ}
    v_add_u32 v249, s48, v253
    s_lshl_b32 s48, s{S_PAIR}, 3
    s_add_u32 s48, s48, s{S_RB}
    s_mul_i32 s48, s48, {opt.kvs}
    s_lshl_b32 s47, s47, 15
    s_add_u32 s48, s48, s47
    s_add_u32 s48, s48, s49
    s_add_u32 s48, s48, {WS_KV if not (opt.exp & 1) else 0x10000000}
    s_cmp_eq_u32 s{S_RB}, {7 if opt.exp & 32 else 99}
    s_cselect_b32 s48, 0x10000000, s48
    s_mov_b32 s49, s48
    s_add_u32 s48, s49, 8192
    s_add_u32 s50, s49, {16384+8192}
    s_add_u32 s51, s49, 16384
    s_mov_b32 s64, {hex(f2u(c))}
    """)
    def pack(dst, x, y):
        a(f"v_cvt_pk_bf16_f32 v{dst}, v{x}, v{x+1}")
        a(f"v_cvt_pk_bf16_f32 v{dst+1}, v{x+2}, v{x+3}")
        a(f"v_cvt_pk_bf16_f32 v{dst+2}, v{y}, v{y+1}")
        a(f"v_cvt_pk_bf16_f32 v{dst+3}, v{y+2}, v{y+3}")
    def qpack(sb):
        d = acc(sb, 0)
        for r in range(0, 8, 2):
            a(f"v_pk_mul_f32 {vr(d+r,2)}, {vr(d+r,2)}, s[64:65] op_sel_hi:[1,0]")
        pack(d, acc(sb, 0), acc(sb, 1))
    late = []
    def store(n, txt):
        if n >= 16 - opt.stlate: late.append(txt)
        else: a(txt)
    n = 8 * part
    for m in (2 * part, 2 * part + 1):
        for sb in (2 * m, 2 * m + 1):
            d = acc(sb, 2)
            pack(d, acc(sb, 2), acc(sb, 3))
            store(n, f"buffer_store_dwordx4 {vr(d,4)}, v253, {SRD_WS}, s{48 + (sb >> 2)} offen offset:{(sb & 3)*1024} {opt.kvst}"); n += 1
            a(f"ds_write_b128 v248, {vr(d,4)} offset:{blk(sb)*1024}")
            if part:
                qpack(sb - 4)
                a(f"ds_write_b128 v249, {vr(acc(sb-4,0),4)} offset:{blk(sb-4)*1024}")
        for nb in range(2):
            d = acc(2 * m, 4 + nb); i = 2 * m + nb
            pack(d, acc(2 * m, 4 + nb), acc(2 * m + 1, 4 + nb))
            store(n, f"buffer_store_dwordx4 {vr(d,4)}, v253, {SRD_WS}, s{50 + (i >> 2)} offen offset:{(i & 3)*1024} {opt.kvst}"); n += 1
            a(f"ds_write_b128 v248, {vr(d,4)} offset:{16384 + blk(i)*1024}")
    if part == 0: return
    a("s_setprio 2\ns_waitcnt lgkmcnt(0)\ns_barrier")
    for t in late: a(t)
    for sb in range(4, 8):
        qpack(sb)
        a(f"ds_write_b128 v249, {vr(acc(sb,0),4)} offset:{blk(sb)*1024}")

def b_phase(a, X, Y, kind, step, mask=None):
    S, P = X.s, T_P
    M32 = "v_mfma_f32_32x32x16_bf16"; M16 = "v_mfma_f32_16x16x32_bf16"
    e = lambda n: a(f"v_exp_f32 v{S+n}, v{S+n}")
    c = lambda k: a(f"v_cvt_pk_bf16_f32 v{P+k}, v{S+2*k}, v{S+2*k+1}")
    if kind == 'B': a("s_waitcnt lgkmcnt(1)")
    a(f"{M32} {vr(Y.s,16)}, {vr(T_K,4)}, {vr(Y.q,4)}, {vr(mask,16) if mask is not None else 0}")
    if kind == 'A': a(f"v_add_u32 v{T_ADR}, {step & 0xffffffff}, v{T_ADR}")
    e(0); e(1); e(2); c(0)
    a(f"{M32} {vr(Y.s,16)}, {vr(T_K+4,4)}, {vr(Y.q+4,4)}, {vr(Y.s,16)}")
    if kind == 'A':
        a(f"ds_read_b128 {vr(T_K,4)}, v{T_ADR}")
        a(f"ds_read_b128 {vr(T_K+4,4)}, v{T_ADR} offset:512")
    e(3); e(4); c(1); e(5)
    if kind != 'F':
        if kind == 'B': a("s_waitcnt lgkmcnt(0)")
        a(f"{M32} {vr(Y.o,16)}, {vr(T_V+4,4)}, {vr(P+4,4)}, {vr(Y.o,16)}")
        if kind == 'A': a(f"ds_read_b128 {vr(T_V+4,4)}, v{T_ADR} offset:{16384 + 512 - step}")
    e(6); c(2); e(7); e(8)
    if kind != 'F':
        a(f"{M16} {vr(Y.l,4)}, {vr(T_SEL,4)}, {vr(P+4,4)}, {vr(Y.l,4)}")
    c(3); e(9); e(10); c(4)
    if kind == 'A': a("s_waitcnt lgkmcnt(3)")
    a(f"{M32} {vr(X.o,16)}, {vr(T_V,4)}, {vr(P,4)}, {vr(X.o,16)}")
    if kind != 'A': a(f"ds_read_b128 {vr(T_V,4)}, v{T_ADR} offset:16384")
    e(11); e(12); c(5); e(13)
    a(f"{M16} {vr(X.l,4)}, {vr(T_SEL,4)}, {vr(P,4)}, {vr(X.l,4)}")
    e(14); e(15); c(6)
    if kind == 'B': a("s_sub_u32 s50, s50, 1\ns_cmp_lg_u32 s50, 0")
    c(7)

def b_section(a, own):
    X, Y = (UB, UA) if own else (UA, UB)
    step = -2048 if own else 2048
    mask = T_MD if own else T_ME
    tag = "own" if own else "halo"
    M32 = "v_mfma_f32_32x32x16_bf16"; M16 = "v_mfma_f32_16x16x32_bf16"
    if own: a(f"s_add_u32 s46, s{UA.sq}, 32\ns_add_u32 s50, s{UA.sq}, 1")
    else: a(f"s_add_u32 s46, s{UA.sq}, 1\ns_sub_u32 s50, 7, s{UA.sq}")
    a(f"""
    s_lshl_b32 s46, s46, 11
    s_add_u32 s46, s46, s{S_HB}
    v_add_u32 v{T_ADR}, s46, v{T_PAT}
    v_add_u32 v{T_T0}, {-step & 0xffffffff}, v{T_ADR}
    ds_read_b128 {vr(T_P,4)}, v{T_T0}
    ds_read_b128 {vr(T_P+4,4)}, v{T_T0} offset:512
    ds_read_b128 {vr(T_K,4)}, v{T_ADR}
    ds_read_b128 {vr(T_K+4,4)}, v{T_ADR} offset:512
    ds_read_b128 {vr(T_V,4)}, v{T_T0} offset:16384
    ds_read_b128 {vr(T_V+4,4)}, v{T_T0} offset:{16384+512}
    s_waitcnt lgkmcnt(5)
    {M32} {vr(X.s,16)}, {vr(T_P,4)}, {vr(X.q,4)}, {vr(mask,16)}
    s_waitcnt lgkmcnt(4)
    {M32} {vr(X.s,16)}, {vr(T_P+4,4)}, {vr(X.q+4,4)}, {vr(X.s,16)}
    s_waitcnt lgkmcnt(0)
    s_nop 7
    s_nop 1
    """)
    b_phase(a, X, Y, 'F', step, mask)
    a.label(f"L_pair_{tag}")
    b_phase(a, Y, X, 'A', step)
    b_phase(a, X, Y, 'B', step)
    a(f"""
    s_cbranch_scc1 L_pair_{tag}
    s_nop 0
    {M32} {vr(X.o,16)}, {vr(T_V+4,4)}, {vr(T_P+4,4)}, {vr(X.o,16)}
    {M16} {vr(X.l,4)}, {vr(T_SEL,4)}, {vr(T_P+4,4)}, {vr(X.l,4)}
    """)

def b_final(a, u, tag, opt):
    lo, hi = (2.0 ** -40, 2.0 ** 40) if not opt.force_slow else (2.0 ** 3, 2.0 ** 9)
    a(f"""
    s_lshl_b32 s46, s{S_RB}, 6
    s_lshl_b32 s47, s{S_PAIR}, 1
    s_add_u32 s46, s46, s47
    s_and_b32 s47, s{S_WAVE}, 1
    s_add_u32 s46, s46, s47
    s_add_u32 s46, s46, 32
    s_mul_i32 s46, s46, {opt.os}
    s_lshl_b32 s73, s{u.sq}, 11
    s_add_u32 s73, s73, s46
    v_cmp_le_f32 vcc, {hex(f2u(lo))}, v{u.l}
    s_mov_b64 s[46:47], vcc
    v_cmp_ge_f32 vcc, {hex(f2u(hi))}, v{u.l}
    s_and_b64 s[46:47], s[46:47], vcc
    s_cmp_eq_u64 s[46:47], -1
    {"s_nop 0" if opt.exp else f"s_cbranch_scc0 L_slow_{tag}"}
    """)
    a.label(f"L_back_{tag}")
    a(f"v_rcp_f32 v{T_T0}, v{u.l}")
    a("s_nop 0")
    for r in range(0, 16, 2):
        a(f"v_pk_mul_f32 {vr(u.o+r,2)}, {vr(u.o+r,2)}, {vr(T_T0,2)} op_sel_hi:[1,0]")
    for k in range(8):
        a(f"v_cvt_pk_bf16_f32 v{u.o+k}, v{u.o+2*k}, v{u.o+2*k+1}")
    a(f"buffer_store_dwordx4 {vr(u.o,4)}, v{T_PAT}, {SRD_WS}, s73 offen sc1")
    a(f"buffer_store_dwordx4 {vr(u.o+4,4)}, v{T_PAT}, {SRD_WS}, s73 offen offset:512 sc1")

def b_slow(a, u, tag, opt):
    S, P, M = T_S, T_P, T_T0 + 2
    a.label(f"L_slow_{tag}")
    a(f"""
    s_nop 7
    s_nop 7
    v_mfma_f32_32x32x16_bf16 {vr(u.o,16)}, {vr(T_Z,4)}, {vr(T_Z,4)}, 0
    v_mfma_f32_16x16x32_bf16 {vr(u.l,4)}, {vr(T_Z,4)}, {vr(T_Z,4)}, 0
    v_mov_b32 v{M}, {hex(f2u(-3e38))}
    s_add_u32 s52, s{u.sq}, 8
    """)
    for ps in range(2):
        a(f"""
        s_cmp_eq_u32 s{S_RB}, 0
        s_cselect_b32 s51, 8, s{u.sq}
        """)
        a.label(f"L_slowl_{tag}{ps}")
        a(f"""
        s_lshl_b32 s46, s{S_PAIR}, 3
        s_add_u32 s46, s46, s{S_RB}
        s_lshr_b32 s47, s51, 3
        s_add_u32 s46, s46, s47
        s_mul_i32 s46, s46, {opt.kvs}
        s_and_b32 s47, s51, 7
        s_lshl_b32 s47, s47, 11
        s_add_u32 s46, s46, s47
        s_add_u32 s46, s46, s{S_HB}
        s_add_u32 s46, s46, {WS_KV - opt.kvs}
        s_add_u32 s47, s46, 16384
        buffer_load_dwordx4 {vr(T_K,4)}, v{T_PAT}, {SRD_WS}, s46 offen sc1
        buffer_load_dwordx4 {vr(T_K+4,4)}, v{T_PAT}, {SRD_WS}, s46 offen offset:512 sc1
        buffer_load_dwordx4 {vr(T_V,4)}, v{T_PAT}, {SRD_WS}, s47 offen sc1
        buffer_load_dwordx4 {vr(T_V+4,4)}, v{T_PAT}, {SRD_WS}, s47 offen offset:512 sc1
        s_cmp_eq_u32 s51, s52
        s_cselect_b32 s47, 1.0, 0
        s_cmp_eq_u32 s51, s{u.sq}
        s_cselect_b32 s48, 1.0, 0
        """)
        for n in range(16):
            a(f"v_mul_f32 v{T_C+n}, s47, v{T_MD+n}")
            a(f"v_fmac_f32 v{T_C+n}, s48, v{T_ME+n}")
        a(f"""
        s_waitcnt vmcnt(0)
        s_nop 1
        v_mfma_f32_32x32x16_bf16 {vr(S,16)}, {vr(T_K,4)}, {vr(u.q,4)}, {vr(T_C,16)}
        v_mfma_f32_32x32x16_bf16 {vr(S,16)}, {vr(T_K+4,4)}, {vr(u.q+4,4)}, {vr(S,16)}
        s_nop 7
        s_nop 7
        """)
        if ps == 0:
            for n in range(0, 16, 2):
                a(f"v_max3_f32 v{M}, v{S+n}, v{S+n+1}, v{M}")
        else:
            for n in range(16): a(f"v_sub_f32 v{S+n}, v{S+n}, v{M}")
            for n in range(16): a(f"v_exp_f32 v{S+n}, v{S+n}")
            a("s_nop 0")
            for k in range(8): a(f"v_cvt_pk_bf16_f32 v{P+k}, v{S+2*k}, v{S+2*k+1}")
            a(f"""
            s_nop 1
            v_mfma_f32_32x32x16_bf16 {vr(u.o,16)}, {vr(T_V,4)}, {vr(P,4)}, {vr(u.o,16)}
            v_mfma_f32_32x32x16_bf16 {vr(u.o,16)}, {vr(T_V+4,4)}, {vr(P+4,4)}, {vr(u.o,16)}
            v_mfma_f32_16x16x32_bf16 {vr(u.l,4)}, {vr(T_SEL,4)}, {vr(P,4)}, {vr(u.l,4)}
            v_mfma_f32_16x16x32_bf16 {vr(u.l,4)}, {vr(T_SEL,4)}, {vr(P+4,4)}, {vr(u.l,4)}
            """)
        a(f"""
        s_add_u32 s51, s51, 1
        s_cmp_le_u32 s51, s52
        s_cbranch_scc1 L_slowl_{tag}{ps}
        """)
        if ps == 0:
            a(f"""
            v_mov_b32 v{M+1}, v{M}
            s_nop 1
            v_permlane32_swap_b32 v{M}, v{M+1}
            s_nop 1
            v_max_f32 v{M}, v{M}, v{M+1}
            """)
    a(f"s_nop 7\ns_nop 7\ns_branch L_back_{tag}")

def b_attention(a, opt):
    a(f"""
    s_lshl_b32 s46, s{S_WAVE}, 7
    s_add_u32 s46, s46, s{S_FLAG}
    v_mov_b32 v{T_T0}, 1
    v_lshlrev_b32 v{T_T0+1}, 2, v{V_LANE}
    s_mov_b32 exec_hi, 0
    s_waitcnt vmcnt(0)
    buffer_store_dword v{T_T0}, v{T_T0+1}, {SRD_WS}, s46 offen sc1
    s_mov_b32 exec_hi, -1
    """)
    stamp(a, 25, opt)
    a(f"""
    s_cmp_ge_u32 s{S_WAVE}, 2
    s_cbranch_scc1 L_bnopoll
    s_cmp_eq_u32 s{S_RB}, 0
    s_cbranch_scc1 L_bnopoll
    s_sub_u32 s46, s46, 2048
    s_mov_b32 s48, {SPIN_MAX}
    v_and_b32 v{T_C+1}, 1, v{V_LANE}
    v_lshlrev_b32 v{T_C+1}, 8, v{T_C+1}
    s_lshl_b32 s47, s{S_PAIR}, 3
    s_add_u32 s47, s47, s{S_RB}
    s_mul_i32 s47, s47, {opt.kvs}
    s_add_u32 s47, s47, s{S_HB}
    s_add_u32 s47, s47, {WS_KV - opt.kvs}
    v_lshlrev_b32 v{T_T0}, 4, v{V_LANE}
    """)
    if opt.bwait: a("s_waitcnt vmcnt(0)")
    a.label("L_bpoll_l")
    a(f"""
    buffer_load_dword v{T_C}, v{T_C+1}, {SRD_WS}, s46 offen sc1
    s_sub_u32 s48, s48, 1
    s_cmp_eq_u32 s48, 0
    s_cbranch_scc1 L_bpoll_d
    s_waitcnt vmcnt(0)
    v_cmp_ne_u32 vcc, 1, v{T_C}
    s_cbranch_vccnz L_bpoll_l
    """)
    a.label("L_bpoll_d")
    stamp(a, 26, opt)
    a(f"s_mov_b32 m0, s{S_HB}\ns_mov_b32 s48, 8")
    a.label("L_bdma")
    for k in range(4):
        if not (opt.exp & 2): a(f"buffer_load_dwordx4 v{T_T0}, {SRD_WS}, s47 offen offset:{k*1024} {opt.kvld} lds")
    a("""
    s_add_u32 m0, m0, 4096
    s_add_u32 s47, s47, 4096
    s_sub_u32 s48, s48, 1
    s_cmp_lg_u32 s48, 0
    s_cbranch_scc1 L_bdma
    """)
    a.label("L_bnopoll")
    a(f"s_setprio {opt.oprio}")
    a.label("L_battn1")
    stamp(a, 24, opt); cstamp(a, 34, opt)
    a(f"""
    s_lshr_b32 s46, s{S_HB}, 1
    s_add_u32 s46, s46, {LQ}
    s_lshl_b32 s47, s{UA.sq}, 11
    s_add_u32 s47, s47, s46
    v_add_u32 v{T_ADR}, s47, v{T_PAT}
    ds_read_b128 {vr(UB.q,4)}, v{T_ADR} offset:2048
    ds_read_b128 {vr(UB.q+4,4)}, v{T_ADR} offset:{2048+512}
    ds_read_b128 {vr(UA.q,4)}, v{T_ADR}
    ds_read_b128 {vr(UA.q+4,4)}, v{T_ADR} offset:512
    """)
    b_section(a, True)
    stamp(a, 27, opt)
    a(f"s_cmp_ge_u32 s{S_WAVE}, 4\ns_cbranch_scc1 L_nofsetup")
    f_consumer(a, opt, 0)
    a.label("L_nofsetup")
    a(f"""
    s_setprio 0
    s_waitcnt vmcnt(0) lgkmcnt(0)
    s_barrier
    s_cmp_lt_u32 s{S_WAVE}, 4
    s_cbranch_scc1 L_nofill
    s_setprio {opt.bprio}
    """)
    if opt.fill2: a(f"s_cmp_ge_u32 s{S_WAVE}, 6\ns_cbranch_scc1 L_nofill")
    f_prefill(a, opt, "B")
    a.label("L_nofill")
    stamp(a, 28, opt)
    a(f"""
    s_cmp_eq_u32 s{S_RB}, 0
    s_cbranch_scc1 L_bfin
    """)
    b_section(a, False)
    a.label("L_bfin")
    a("s_waitcnt lgkmcnt(0)\ns_nop 1")
    if opt.f0early:
        a(f"s_cmp_ge_u32 s{S_WAVE}, 4\ns_cbranch_scc1 L_nof0")
        f_consumer(a, opt, 1)
        a.label("L_nof0")
    b_final(a, UB, "b", opt)
    b_final(a, UA, "a", opt)
    stamp(a, 29, opt); cstamp(a, 35, opt)
    a(f"""
    s_cmp_ge_u32 s{S_WAVE}, 4
    s_cbranch_scc1 L_fprod
    """)
    if not opt.f0early: f_consumer(a, opt, 1)
    a("s_branch L_fcons")
    b_slow(a, UA, "a", opt)
    b_slow(a, UB, "b", opt)

def phi_pack(a, dst, x, y, t):
    for i, b in enumerate((x, x + 2, y, y + 2)):
        a(f"v_pk_fma_f32 {vr(t+2*i,2)}, {vr(b,2)}, s[64:65], s[64:65] op_sel_hi:[1,0,0] neg_lo:[0,0,1] neg_hi:[0,0,1]")
    for i in range(8): a(f"v_exp_f32_e64 v{t+i}, v{t+i} clamp")
    for i in range(8): a(f"v_max_f32 v{t+i}, v{t+i}, v{(x if i < 4 else y) + (i & 3)}")
    for i in range(4): a(f"v_pk_add_f32 {vr(t+2*i,2)}, {vr(t+2*i,2)}, s[66:67] op_sel_hi:[1,0]")
    for i in range(4): a(f"v_cvt_pk_bf16_f32 v{dst+i}, v{t+2*i}, v{t+2*i+1}")

A_KV = 192
A_T = 216; A_ONE = 224; A_OP = 228
LA_FIN = 32768
def a_valu(a, m, t):
    for nb in range(2):
        phi_pack(a, acc(2*m, 2+nb), acc(2*m, 2+nb), acc(2*m+1, 2+nb), t)
    for nb in range(2):
        d, x, y = acc(2*m, 4+nb), acc(2*m, 4+nb), acc(2*m+1, 4+nb)
        a(f"v_cvt_pk_bf16_f32 v{d}, v{x}, v{x+1}\nv_cvt_pk_bf16_f32 v{d+1}, v{x+2}, v{x+3}\nv_cvt_pk_bf16_f32 v{d+2}, v{y}, v{y+1}\nv_cvt_pk_bf16_f32 v{d+3}, v{y+2}, v{y+3}")
def a_pre(a, opt):
    L = V_LANE
    a(f"""
    s_mov_b32 s64, {hex(f2u(LOG2E))}
    s_mov_b32 s66, {hex(f2u(1e-6))}
    s_mul_i32 s46, s{S_WAVE}, 6144
    v_lshlrev_b32 v253, 4, v{L}
    v_add_u32 v248, s46, v253
    s_and_b32 s47, s{S_WAVE}, 1
    s_mul_i32 s46, s47, 3072
    s_add_u32 s46, s46, {LA_FIN}
    v_add_u32 v249, s46, v253
    """)
    a_valu(a, 0, XA)

def a_consumer(a, opt):
    L = V_LANE
    for i in range(4): a(f"v_mov_b32 v{A_ONE+i}, 0x3f803f80")
    kvb = lambda db, eb: A_KV + eb * 12 + db * 4
    zb = lambda db: A_KV + db * 12 + 8
    def kvm(m):
        out = []
        for db in range(2):
            c = vr(zb(db), 4)
            out.append(f"v_mfma_f32_16x16x32_bf16 {c}, {vr(acc(2*m,2+db),4)}, {vr(A_ONE,4)}, {c if m else 0}")
        for eb in range(2):
            for db in range(2):
                c = vr(kvb(db, eb), 4)
                out.append(f"v_mfma_f32_16x16x32_bf16 {c}, {vr(acc(2*m,2+db),4)}, {vr(acc(2*m,4+eb),4)}, {c if m else 0}")
        return out
    for m in range(1, 4):
        v = lines_of(a_valu, m, A_T); mf = kvm(m - 1)
        for k, l in enumerate(v):
            a(l)
            if k >= 2 and k % 3 == 2 and mf: a(mf.pop(0))
    for l in kvm(3): a(l)
    a("s_nop 7")
    for i in (2, 5, 0, 1, 3, 4):
        a(f"ds_write_b128 v248, {vr(A_KV+4*i,4)} offset:{i*1024}")
    a("s_waitcnt lgkmcnt(0)\ns_barrier")
    stamp(a, 24, opt)
    for sb in range(8):
        phi_pack(a, acc(sb, 0), acc(sb, 0), acc(sb, 1), A_T)
    a(f"""
    s_lshl_b32 s46, s{S_RB}, 6
    s_lshl_b32 s48, s{S_PAIR}, 1
    s_add_u32 s46, s46, s48
    s_add_u32 s46, s46, s47
    s_mul_i32 s46, s46, {opt.os}
    s_lshr_b32 s48, s{S_WAVE}, 1
    s_lshl_b32 s49, s48, 12
    s_add_u32 s49, s49, s46
    s_add_u32 s48, s49, 8192
    """)
    stamp(a, 25, opt)
    a("s_setprio 3\ns_barrier")
    stamp(a, 28, opt)
    for i in range(3): a(f"ds_read_b128 {vr(A_OP+4*i,4)}, v249 offset:{i*1024}")
    a("s_waitcnt lgkmcnt(0)")
    mf = [f"v_mfma_f32_16x16x32_bf16 {vr(acc(sb,2+i),4)}, {vr(A_OP+4*i,4)}, {vr(acc(sb,0),4)}, 0" for sb in range(8) for i in (2, 0, 1)]
    for _ in range(6): a(mf.pop(0))
    a("s_nop 2")
    for sb in range(8):
        n0, dn = acc(sb, 2), acc(sb, 4)
        a(f"v_add_f32 v{dn}, s66, v{dn}")
        a(f"v_rcp_f32 v{dn}, v{dn}")
        a(mf.pop(0) if mf else "s_nop 0")
        for r in range(0, 8, 2):
            a(f"v_pk_mul_f32 {vr(n0+r,2)}, {vr(n0+r,2)}, {vr(dn,2)} op_sel_hi:[1,0]")
            if r == 4 and mf: a(mf.pop(0))
        for k in range(4):
            a(f"v_cvt_pk_bf16_f32 v{n0+k}, v{n0+2*k}, v{n0+2*k+1}")
            if k == 1 and mf: a(mf.pop(0))
        a(f"buffer_store_dwordx4 {vr(n0,4)}, v253, {SRD_WS}, s{48 + (sb>>2)} offen offset:{(sb&3)*1024} sc1")
    stamp(a, 29, opt)
    if opt.a3 == 1: a("s_barrier")
    f_flag(a)
    if opt.a3 == 2: a("s_barrier")
    a("s_setprio 0")

def a_producer(a, opt):
    L = V_LANE
    V16, VR, VKV, VZ, VQ, VZA, Z = 242, 243, 244, 245, 246, 247, 248
    a(f"""
    s_sub_u32 s46, s{S_WAVE}, 4
    s_and_b32 s47, s46, 1
    s_lshr_b32 s48, s46, 1
    s_mul_i32 s49, s47, 6144
    s_mul_i32 s50, s48, 3072
    s_add_u32 s49, s49, s50
    v_lshlrev_b32 v{V16}, 4, v{L}
    v_add_u32 v{VR}, s49, v{V16}
    s_mul_i32 s49, s47, 3072
    s_add_u32 s49, s49, {LA_FIN}
    s_lshl_b32 s50, s48, 10
    s_add_u32 s50, s50, s49
    v_add_u32 v{VKV}, s50, v{V16}
    s_lshl_b32 s50, s48, 3
    s_add_u32 s50, s50, s49
    v_add_u32 v{VZ}, s50, v{V16}
    v_and_b32 v{VQ}, 48, v{L}
    v_and_b32 v{VZA}, 7, v{L}
    v_lshl_add_u32 v{VZA}, v{VZA}, 14, v{VQ}
    v_and_b32 v6, 3, v{L}
    v_sub_u32 v{VQ}, v{VR}, v{V16}
    v_lshl_add_u32 v{VQ}, v6, 8, v{VQ}
    s_lshl_b32 s51, s{S_PAIR}, 5
    s_add_u32 s51, s51, s46
    s_lshl_b32 s51, s51, 12
    s_add_u32 s51, s51, {WS_PART}
    s_lshl_b32 s52, s{S_RB}, 14
    s_add_u32 s52, s52, s51
    v_mov_b32 v0, 0
    v_mov_b32 v1, 0
    v_mov_b32 v4, 0
    v_mov_b32 v5, 0
    v_and_b32 v6, 1, v{L}
    v_lshlrev_b32 v6, 4, v6
    v_mov_b32 v7, 0x3f80
    v_lshlrev_b32 v6, v6, v7
    s_mov_b32 vcc_lo, 0x00300003
    s_mov_b32 vcc_hi, 0x30000300
    v_cndmask_b32 v2, 0, v6, vcc
    s_mov_b32 vcc_lo, 0x00c0000c
    s_mov_b32 vcc_hi, 0xc0000c00
    v_cndmask_b32 v3, 0, v6, vcc
    s_setprio 2
    s_barrier
    """)
    stamp(a, 24, opt)
    for i in range(3):
        a(f"ds_read_b128 {vr(16+4*i,4)}, v{VR if i < 2 else VQ} offset:{i*1024}")
        a(f"ds_read_b128 {vr(28+4*i,4)}, v{VR if i < 2 else VQ} offset:{12288 + i*1024}")
    a("s_waitcnt lgkmcnt(2)")
    for r in range(0, 8, 2): a(f"v_pk_add_f32 {vr(16+r,2)}, {vr(16+r,2)}, {vr(28+r,2)}")
    for k in range(4): a(f"v_cvt_pk_bf16_f32 v{8+k}, v{16+2*k}, v{17+2*k}")
    a(f"""
    buffer_store_dwordx4 v[8:11], v{V16}, {SRD_WS}, s52 offen sc1
    s_waitcnt lgkmcnt(0)
    v_pk_add_f32 v[12:13], v[24:25], v[36:37]
    v_pk_add_f32 v[14:15], v[26:27], v[38:39]
    s_mov_b32 s48, {SPIN_MAX // 8}
    s_mov_b64 exec, 0xff
    buffer_store_dwordx4 v[12:15], v{V16}, {SRD_WS}, s52 offen offset:1024 sc1
    s_mov_b64 exec, -1
    """)
    if opt.gatelate and opt.agate:
        producer_gate(a, opt, "A")
        a(f"s_mov_b32 s48, {SPIN_MAX // 8}")
    if opt.await0: a(f"s_waitcnt vmcnt({1 if opt.gatelate and opt.agate else 0})")
    stamp(a, 25, opt)
    a.label("L_agather")
    a(f"buffer_load_dwordx4 {vr(Z,4)}, v{VZA}, {SRD_WS}, s51 offen offset:1024 sc1")
    a("s_mov_b32 s53, s51")
    for src in range(8):
        a(f"buffer_load_dwordx4 {vr(16+4*src,4)}, v{V16}, {SRD_WS}, s53 offen sc1")
        if src < 7: a("s_add_u32 s53, s53, 16384")
    a("s_waitcnt vmcnt(8)")
    for sh in (4, 2, 1):
        for r in range(4): a(f"v_add_f32_dpp v{Z+r}, v{Z+r}, v{Z+r} row_ror:{sh} row_mask:0xf bank_mask:0xf")
    for src in range(8):
        a(f"s_waitcnt vmcnt({7-src})")
        a(f"v_mfma_f32_16x16x32_bf16 v[8:11], v[2:5], {vr(16+4*src,4)}, {'v[8:11]' if src else 0}")
        a(f"v_mfma_f32_16x16x32_bf16 v[12:15], v[0:3], {vr(16+4*src,4)}, {'v[12:15]' if src else 0}")
    a(f"""
    v_pk_add_f32 v[6:7], {vr(Z,2)}, {vr(Z+2,2)}
    v_add_f32 v6, v6, v7
    v_cvt_pk_bf16_f32 v{Z}, v{Z}, v{Z+1}
    v_cvt_pk_bf16_f32 v{Z+1}, v{Z+2}, v{Z+3}
    s_nop 3
    v_cmp_u_f32 vcc, v6, v12
    s_cbranch_vccz L_apoll_d
    """)
    a.label("L_apoll")
    a(f"""
    s_sub_u32 s48, s48, 1
    s_cmp_eq_u32 s48, 0
    s_cbranch_scc1 L_apoll_d
    buffer_load_dword v7, v{VZA}, {SRD_WS}, s51 offen offset:1024 sc1
    s_waitcnt vmcnt(0)
    v_cmp_eq_u32 vcc, -1, v7
    s_cbranch_vccnz L_apoll
    s_branch L_agather
    """)
    a.label("L_apoll_d")
    stamp(a, 26, opt)
    if opt.prof: a(f"s_sub_u32 s94, {SPIN_MAX//8+1}, s48\nv_writelane_b32 v255, s94, 38")
    for k in range(4): a(f"v_cvt_pk_bf16_f32 v{8+k}, v{8+2*k}, v{9+2*k}")
    a(f"""
    ds_write_b64 v{VZ}, {vr(Z,2)} offset:2048
    ds_write_b128 v{VKV}, v[8:11]
    s_waitcnt lgkmcnt(0)
    """)
    stamp(a, 27, opt)
    a("s_barrier")
    a("s_setprio 0")
    if opt.a3: a("s_barrier")

F_FL, F_FA = 244, 248
def f_flag(a, wait="s_waitcnt vmcnt(0)"):
    a(f"""
    s_lshl_b32 s46, s{S_WAVE}, 7
    s_add_u32 s46, s46, s{S_FLAG}
    v_mov_b32 v{F_FL+6}, 1
    v_lshlrev_b32 v{F_FL+7}, 2, v{V_LANE}
    s_mov_b32 exec_hi, 0
    {wait}
    buffer_store_dword v{F_FL+6}, v{F_FL+7}, {SRD_WS}, s46 offen offset:1024 sc1
    s_mov_b32 exec_hi, -1
    """)
def f_gate_addr(a, which, opt):
    a(f"""
    v_and_b32 v{F_FA}, 15, v{V_LANE}
    v_lshlrev_b32 v{F_FA}, 14, v{F_FA}
    {f"v_mov_b32 v{F_FL}, 4" if which == "B" else f"v_lshrrev_b32 v{F_FL}, 4, v{V_LANE}"}
    v_lshl_add_u32 v{F_FA}, v{F_FL}, 7, v{F_FA}
    s_lshl_b32 s{S_GA}, s{S_RT}, 11
    s_add_u32 s{S_GA}, s{S_GA}, {WS_FLAG + (262144 if which == "B" else 0)}
    """)
def f_gate(a, which, opt, probed=None):
    assert opt.bflag1
    a(f"s_cmp_lg_u32 s{S_WAVE}, {opt.gwave}\ns_cbranch_scc1 L_gated{which}\ns_mov_b32 s48, {SPIN_MAX}")
    if probed is None: f_gate_addr(a, which, opt)
    else: a(f"s_waitcnt vmcnt({probed})\nv_cmp_ne_u32 vcc, 1, v{F_FL}\ns_cbranch_vccz L_gated{which}")
    a(f"s_branch L_gate_e{which}")
    a.label(f"L_gate{which}")
    a(f"s_sleep {opt.backoff}")
    a.label(f"L_gate_e{which}")
    a(f"""
    buffer_load_dword v{F_FL}, v{F_FA}, {SRD_WS}, s{S_GA} offen offset:1024 sc1
    s_sub_u32 s48, s48, 1
    s_cmp_eq_u32 s48, 0
    s_cbranch_scc1 L_gated{which}
    s_waitcnt vmcnt(0)
    v_cmp_ne_u32 vcc, 1, v{F_FL}
    s_cbranch_vccnz L_gate{which}
    """)
    a.label(f"L_gated{which}")
FV_W0, FV_W1 = 240, 241
S_FW, S_FWL = 90, 91
SRD_WO = "s[80:83]"
NPRE = 12
def grp_addr(g): return ((g + 2) % 5) * 32768
LG = grp_addr(3)

def f_rot(a, opt, dst):
    a(f"s_lshl_b32 s{dst}, s{S_CT}, 1\ns_and_b32 s{dst}, s{dst}, {opt.fstag}")

WR = 80
def f_regload(a, lo, hi, opt=None, tmp=57):
    for st in range(lo, hi):
        r = WR + 8 * (st - NPRE)
        srd = SRD_WO if st < 16 else "s[84:87]"
        a(f"""
        s_mov_b32 s{tmp}, {(st & 15) << 17}
        buffer_load_dwordx4 {vr(r,4)}, v{FV_W0}, {srd}, s{tmp} offen
        buffer_load_dwordx4 {vr(r+4,4)}, v{FV_W1}, {srd}, s{tmp} offen offset:1024
        """)
        if opt and st == lo + opt.flagat - 1 and not opt.bflag1: f_flag(a, f"s_waitcnt vmcnt({2*opt.flagat})")

def f_setup(a, opt):
    L = V_LANE
    a(f"""
    s_sub_u32 s46, s{S_WAVE}, 4
    v_lshrrev_b32 v{FV_W1}, {2 if opt.f32 else 3}, v{L}
    v_xor_b32 v{FV_W0}, v{FV_W1}, v{L}
    v_and_b32 v{FV_W0}, {4 if opt.f32 else 6}, v{FV_W0}
    v_and_or_b32 v{FV_W0}, v{L}, {3 if opt.f32 else 1}, v{FV_W0}
    v_lshrrev_b32 v{FV_W1}, 3, v{L}
    v_lshlrev_b32 v{FV_W0}, 4, v{FV_W0}
    v_lshl_add_u32 v{FV_W0}, v{FV_W1}, 11, v{FV_W0}
    s_lshl_b32 s47, s{S_CT}, 7
    s_lshl_b32 s48, s46, 15
    s_add_u32 s47, s47, s48
    v_add_u32 v{FV_W0}, s47, v{FV_W0}
    v_add_u32 v{FV_W1}, {16384 - 1024}, v{FV_W0}
    s_lshl_b32 s{S_FWL}, s46, 11
    s_add_u32 s{S_FWL}, s{S_FWL}, 65536
    s_mov_b32 s80, s8
    s_and_b32 s81, s9, 0xffff
    s_mov_b32 s82, 0x200000
    s_mov_b32 s83, 0x20000
    s_mov_b32 s84, s14
    s_and_b32 s85, s15, 0xffff
    s_mov_b32 s86, 0x200000
    s_mov_b32 s87, 0x20000
    """)

def f_prefill(a, opt, ty, lo=0, hi=NPRE):
    if opt.exp & 16 or hi <= lo: return
    a(f"s_mov_b32 s49, {hi - lo}\ns_mov_b32 s{S_FW}, {lo}")
    a.label(f"L_fill{ty}")
    a(f"""
    s_lshl_b32 s57, s{S_FW}, 17
    s_xor_b32 s57, s57, s{S_ROT}
    s_mov_b32 m0, s{S_FWL}
    s_add_u32 s{S_FWL}, s{S_FWL}, 8192
    s_add_u32 s{S_FW}, s{S_FW}, 1
    buffer_load_dwordx4 v{FV_W0}, {SRD_WO}, s57 offen lds
    buffer_load_dwordx4 v{FV_W1}, {SRD_WO}, s57 offen offset:1024 lds
    """)
    if ty == "B" and opt.fill2:
        a(f"""
        s_add_u32 m0, m0, 4096
        s_add_u32 s57, s57, 65536
        buffer_load_dwordx4 v{FV_W0}, {SRD_WO}, s57 offen lds
        buffer_load_dwordx4 v{FV_W1}, {SRD_WO}, s57 offen offset:1024 lds
        """)
    a(f"""
    s_sub_u32 s49, s49, 1
    s_cmp_lg_u32 s49, 0
    s_cbranch_scc1 L_fill{ty}
    """)

def f_producer(a, opt):
    L = V_LANE
    hi = 32 - opt.n13 - opt.n14
    rest = 2 * (hi - NPRE - opt.na15)
    a("s_branch L_fprodA")
    a.label("L_fprod")
    a("s_setprio 0\ns_waitcnt vmcnt(4)")
    f_regload(a, NPRE, NPRE + opt.na15)
    a.label("L_fprodA")
    if opt.aprobe:
        f_gate_addr(a, "A", opt)
        a(f"""
        s_cmp_eq_u32 s{S_WAVE}, {opt.gwave}
        s_cbranch_scc0 L_noprobe
        buffer_load_dword v{F_FL}, v{F_FA}, {SRD_WS}, s{S_GA} offen offset:1024 sc1
        L_noprobe:
        """)
    f_regload(a, NPRE + opt.na15, hi)
    a(f"s_cmp_eq_u32 s{S_BR}, 0\ns_cbranch_scc0 L_nowaitfill\ns_waitcnt vmcnt({rest})\nL_nowaitfill:")
    a(f"""
    s_sub_u32 s47, s{S_WAVE}, 4
    s_lshl_b32 s47, s47, 11
    v_lshlrev_b32 v10, 4, v{L}
    v_add_u32 v10, s47, v10
    v_add_u32 v11, 65536, v10
    v_add_u32 v12, 131072, v10
    """)
    stamp(a, 39, opt)
    def gate(which): f_gate(a, which, opt)
    def put(g):
        ad = grp_addr(g)
        for k in range(8):
            off = (ad & 65535) + (k >> 1) * 8192 + (k & 1) * 1024
            a(f"ds_write_b128 v{10 + (ad >> 16)}, {vr(WR + (g-3)*32 + 4*k, 4)} offset:{off}")
    f_gate(a, "A", opt, rest if opt.aprobe else None)
    a("s_barrier")
    stamp(a, 40, opt); cstamp(a, 36, opt)
    a("s_waitcnt vmcnt(0)")
    for k in range(8):
        if k == 1 and opt.bflag1:
            a(f"s_cmp_lg_u32 s{S_WAVE}, 4\ns_cbranch_scc1 L_noflag1\ns_setprio 3")
            f_flag(a, "")
            a("s_setprio 0")
            a.label("L_noflag1")
        if opt.putsh is None:
            if k == 0: put(3); put(4)
            elif k <= 3: put(4 + k)
        elif 3 <= k + opt.putsh <= 7: put(k + opt.putsh)
        if k == 2:
            a("s_setprio 3"); gate("B"); a("s_setprio 0")
            stamp(a, 41, opt)
        if k == 3:
            a(f"""
            s_lshl_b32 s47, s{S_RT}, 1
            s_add_u32 s47, s47, s{S_RH}
            s_lshl_b32 s47, s47, 2
            s_add_u32 s47, s47, s{S_WAVE}
            s_lshl_b32 s47, s47, 12
            s_add_u32 s47, s47, {WS_G - 4*4096}
            v_and_b32 v2, 31, v{L}
            v_lshlrev_b32 v1, 7, v2
            buffer_load_dword v3, v1, {SRD_WS}, s47 offen sc1
            v_lshlrev_b32 v2, 2, v2
            s_lshl_b32 s47, s{S_WAVE}, 7
            v_add_u32 v2, s47, v2
            """)
        if k == 5:
            a(f"s_waitcnt vmcnt(0)\nds_write_b32 v2, v3 offset:{LG}")
        a("s_waitcnt lgkmcnt(0)\ns_barrier")
        stamp(a, 44 + k, opt)
    stamp(a, 42, opt); cstamp(a, 37, opt)
    prof_dump(a, opt, WS_PROF)
    a("s_endpgm")

def f_consumer(a, opt, part):
    L = V_LANE
    AC, ST, WB, OB = 0, 32, 64, 160
    VO, VW, T = 224, 226, 230
    F32 = opt.f32
    if part: pass
    elif F32:
        a(f"""
        v_and_b32 v{VO}, 15, v{L}
        v_lshlrev_b32 v{VO}, 4, v{VO}
        v_bfe_u32 v{T}, v{L}, 4, 1
        v_lshl_add_u32 v{VO}, v{T}, 10, v{VO}
        v_lshrrev_b32 v{T+1}, 5, v{L}
        v_lshl_add_u32 v{VO}, v{T+1}, 8, v{VO}
        v_lshlrev_b32 v{T}, 5, v{T}
        v_lshl_add_u32 v{T}, v{T+1}, 9, v{T}
        v_bfe_u32 v{T+1}, v{L}, 2, 2
        v_lshl_add_u32 v{T}, v{T+1}, 7, v{T}
        v_bfe_u32 v{T+1}, v{L}, 3, 1
        v_lshl_add_u32 v{T}, v{T+1}, 6, v{T}
        v_and_b32 v{T+1}, 3, v{L}
        v_lshl_add_u32 v{T}, v{T+1}, 3, v{T}
        v_add_u32 v{VW}, {grp_addr(0)}, v{T}
        v_xor_b32 v{VW+1}, 64, v{VW}
        """)
    else:
        a(f"""
        v_lshlrev_b32 v{VO}, 4, v{L}
        v_lshrrev_b32 v{T}, 2, v{L}
        v_lshlrev_b32 v{T}, 7, v{T}
        v_bfe_u32 v{T+1}, v{L}, 3, 2
        v_lshl_add_u32 v{T}, v{T+1}, 5, v{T}
        v_and_b32 v{T+1}, 3, v{L}
        v_lshl_add_u32 v{T}, v{T+1}, 3, v{T}
        v_add_u32 v{VW}, {grp_addr(0)}, v{T}
        v_xor_b32 v{VW+1}, 32, v{VW}
        v_xor_b32 v{VW+2}, 64, v{VW}
        v_xor_b32 v{VW+3}, 96, v{VW}
        """)
    if part == 0: a(f"""
    s_mul_i32 s59, s{S_RT}, {64 * opt.os}
    s_add_u32 s26, s59, {64 * opt.os}
    s_lshl_b32 s47, s{S_RH}, 13
    s_add_u32 s59, s59, s47
    s_lshl_b32 s47, s{S_WAVE}, 11
    s_add_u32 s59, s59, s47
    v_mov_b32 v{T}, 0
    v_mov_b32 v{T+1}, 0
    v_mov_b32 v{T+2}, 0
    v_mov_b32 v{T+3}, 0
    s_mov_b32 s28, s18
    s_and_b32 s29, s19, 0xffff
    s_mov_b32 s30, 0x400000
    s_mov_b32 s53, 32768
    s_mov_b32 s24, s32
    s_mov_b32 s25, s33
    s_movk_i32 s61, 0x108
    """)
    if part == 0: return
    def oload(t, i): return f"buffer_load_dwordx4 {vr(OB + (t % 8)*8 + 4*i, 4)}, v{VO}, s[24:27], s59 offen offset:{i*(512 if F32 else 1024)} sc1"
    def wread(t, f, u):
        if F32: ad, off = VW + (f & 1), (f >> 1) * 1024
        else: ad, off = VW + f, 0
        return dict(txt=f"ds_read_b64_tr_b16 {vr(WB + (t & 1)*16 + f*4 + 2*u, 2)}, v{ad} offset:{(t % 8)*4096 + u*2048 + off}", loads=('w', t & 1, f, u))
    if part == 1:
        assert opt.bflag1
        a("s_barrier")
        stamp(a, 40, opt); diag(a, opt, "F0")
        for t in range(opt.nearly):
            a(oload(t, 0)); a(oload(t, 1))
            a(f"s_add_u32 s59, s59, {opt.os}")
        return
    a.label("L_fcons")
    for t in range(opt.nearly, 7):
        a(oload(t, 0)); a(oload(t, 1))
        a(f"s_add_u32 s59, s59, {opt.os}")
    for r in (0, 16): a(f"v_mfma_f32_32x32x16_bf16 {vr(AC+r,16)}, {vr(T,4)}, {vr(T,4)}, 0")
    a("s_mov_b32 s50, 0")
    pre = [wread(0, f, u) for f in range(4) for u in range(2)]
    lines, q0 = schedule_waits(pre)
    for l in lines: a(l)
    a("s_nop 1")
    a.label("L2_loop")
    body = []
    X = lambda *l: [dict(txt=x) for x in l]
    nva = 2 if F32 else 4
    for t in range(8):
        body.append(dict(txt="s_waitcnt vmcnt(12)"))
        assert opt.frot == 0
        nxt = f"s_add_u32 s59, s59, {opt.os}"
        misc = {4: X("s_add_u32 s50, s50, 1"),
                5: X("s_bitcmp1_b32 s61, s50", f"s_cselect_b32 s52, {-4*32768 & 0xffffffff}, s53"),
                6: X(*[f"v_add_u32 v{VW+k}, s52, v{VW+k}" for k in range(nva)]), 7: X("s_and_b32 s47, s50, 3")}.get(t, [])
        if F32:
            for m in range(4):
                u, cb = m >> 1, m & 1
                c = vr(AC + cb * 16, 16)
                body.append(dict(txt=f"v_mfma_f32_32x32x16_bf16 {c}, {vr(WB + (t&1)*16 + m*4, 4)}, {vr(OB + t*8 + 4*u, 4)}, {c}", reads={('w', t & 1, m | 1, 1)}))
                if t == 7 and m == 0: body.append(dict(txt="s_barrier", drain=True))
                if m < 2: body += [wread(t + 1, 2 * m + k, u_) for k in range(2) for u_ in range(2)]
                if m >= 2: body.append(dict(txt=oload(t + 7, m - 2)))
                if m == 3: body += X(nxt) + misc
        else:
            m = 0
            for nb in range(4):
                for i in ((0, 1) if nb % 2 == 0 else (1, 0)):
                    c = vr(AC + (i * 4 + nb) * 4, 4)
                    body.append(dict(txt=f"v_mfma_f32_16x16x32_bf16 {c}, {vr(WB + (t&1)*16 + nb*4, 4)}, {vr(OB + t*8 + 4*i, 4)}, {c}", reads={('w', t & 1, nb | 1, 1)}))
                    if t == 7 and m == 0: body.append(dict(txt="s_barrier", drain=True))
                    if m < 4: body += [wread(t + 1, m, 0), wread(t + 1, m, 1)]
                    if m in (4, 5): body.append(dict(txt=oload(t + 7, m - 4)))
                    if m == 5: body += X(nxt)
                    if m == 6: body += misc[:2]
                    if m == 7: body += misc[2:]
                    m += 1
    lines, q1 = schedule_waits(body, q0)
    assert q1 == q0, (q0, q1)
    k = 0
    while k < len(lines):
        if k + 1 < len(lines) and lines[k].startswith("s_waitcnt vmcnt") and lines[k+1].startswith("s_waitcnt lgkmcnt"):
            a(lines[k] + " " + lines[k+1].split()[1]); k += 2
        else:
            a(lines[k]); k += 1
    a(f"""
    s_cbranch_scc1 L2_loop
    s_cmp_eq_u32 s50, 8
    s_cbranch_scc1 L2_done
    s_nop 4
    """)
    for r in range(0, 32, 2): a(f"v_pk_mul_f32 {vr(ST+r,2)}, {vr(AC+r,2)}, 1.0 op_sel_hi:[1,0]")
    a("s_branch L2_loop")
    a.label("L2_done")
    a(f"""
    v_and_b32 v{T}, {31 if F32 else 15}, v{L}
    v_lshlrev_b32 v{T+1}, 2, v{T}
    s_lshl_b32 s47, s{S_WAVE}, 7
    v_add_u32 v{T+1}, s47, v{T+1}
    ds_read_b32 v{T+2}, v{T+1} offset:{LG + 512}
    ds_read_b32 v{T+6}, v{T+1} offset:{LG + 512 + (0 if F32 else 64)}
    v_lshlrev_b32 v{T}, 11, v{T}
    """)
    if not F32: a(f"v_bfe_u32 v{T+1}, v{L}, 4, 1\nv_lshl_add_u32 v{T}, v{T+1}, 5, v{T}")
    a(f"""
    v_lshrrev_b32 v{T+1}, 5, v{L}
    v_lshl_add_u32 v{T}, v{T+1}, 4, v{T}
    s_lshl_b32 s48, s{S_RT}, 1
    s_add_u32 s48, s48, s{S_RH}
    s_lshl_b32 s48, s48, 2
    s_add_u32 s48, s48, s{S_WAVE}
    s_lshl_b32 s48, s48, 16
    s_lshl_b32 s49, s{S_CT}, 7
    s_add_u32 s48, s48, s49
    """)
    TW, TR, TG = T + 10, T + 12, T + 13
    if opt.outt:
        assert not F32
        a(f"""
        v_and_b32 v{TR}, 7, v{L}
        v_bfe_u32 v{TW}, v{T}, 4, 2
        v_xor_b32 v{TW}, v{TW}, v{TR}
        v_lshlrev_b32 v{TW}, 4, v{TW}
        v_and_b32 v{TG}, 15, v{L}
        v_lshl_add_u32 v{TW}, v{TG}, 7, v{TW}
        s_lshl_b32 s47, s{S_WAVE}, 12
        s_add_u32 s47, s47, {grp_addr(4)}
        v_add_u32 v{TW}, s47, v{TW}
        v_xor_b32 v{TW+1}, 64, v{TW}
        v_lshrrev_b32 v{T+1}, 3, v{L}
        v_lshlrev_b32 v{TG}, 4, v{TR}
        v_lshl_add_u32 v{TG}, v{T+1}, 11, v{TG}
        v_xor_b32 v{TR}, v{TR}, v{T+1}
        v_lshlrev_b32 v{TR}, 4, v{TR}
        v_lshl_add_u32 v{TR}, v{T+1}, 7, v{TR}
        v_add_u32 v{TR}, s47, v{TR}
        """)
    a("s_waitcnt lgkmcnt(0)")
    for i in range(2):
        g = T + 2 + 4 * i
        a(f"v_sub_f32 v{g+2}, 1.0, v{g}")
        a(f"v_sub_f32 v{g}, v{g}, v{g+2}")
        for hf in range(2):
            b0 = AC + i * 16 + hf * 8; b1 = ST + i * 16 + hf * 8
            for r in range(0, 8, 2):
                a(f"v_pk_mul_f32 {vr(b1+r,2)}, {vr(b1+r,2)}, {vr(g,2)} op_sel_hi:[1,0]")
            for r in range(0, 8, 2):
                a(f"v_pk_fma_f32 {vr(b0+r,2)}, {vr(b0+r,2)}, {vr(g+2,2)}, {vr(b1+r,2)} op_sel_hi:[1,0,1]")
            for k in range(4): a(f"v_cvt_pk_bf16_f32 v{b0+k}, v{b0+2*k}, v{b0+2*k+1}")
            a("s_nop 1")
            sw = "v_permlane32_swap_b32" if F32 else "v_permlane16_swap_b32"
            a(f"{sw} v{b0}, v{b0+2}")
            a(f"{sw} v{b0+1}, v{b0+3}")
            if opt.outt: a(f"ds_write_b128 v{TW+hf}, {vr(b0,4)} offset:{i*2048}")
            else: a(f"buffer_store_dwordx4 {vr(b0,4)}, v{T}, s[28:31], s48 offen offset:{i*64 + hf*32 if F32 else hf*64} {opt.outaux}")
            if opt.outt and i == 1 and hf == 0:
                for k in range(2):
                    a(f"s_waitcnt lgkmcnt({2-k})\nbuffer_store_dwordx4 {vr(WB+4*k,4)}, v{TG}, s[28:31], s48 offen {opt.outaux}\ns_add_u32 s48, s48, {8*2048}")
        if opt.outt:
            for k in range(2): a(f"ds_read_b128 {vr(WB + 8*i + 4*k,4)}, v{TR} offset:{i*2048 + k*1024}")
        elif i == 0 and not F32: a(f"s_add_u32 s48, s48, {16*2048}")
    if opt.outt:
        for k in range(2):
            a(f"s_waitcnt lgkmcnt({1-k})\nbuffer_store_dwordx4 {vr(WB+8+4*k,4)}, v{TG}, s[28:31], s48 offen {opt.outaux}\ns_add_u32 s48, s48, {8*2048}")
    stamp(a, 43, opt)
    diag_end(a, opt)
    prof_dump(a, opt, WS_PROF)

def gen_k1(opt):
    global GAUX
    GAUX = opt.gaux
    a = Asm()
    k1_prologue(a, opt)
    dma_addrs(a)
    k1_srds(a)
    a(f"s_cmp_ge_u32 s{S_WAVE}, 4")
    a("s_cbranch_scc1 L_producer")
    consumer_setup(a, opt)
    a(f"s_cmp_eq_u32 s{S_BR}, 0")
    a("s_cbranch_scc1 L_consA")
    consumer_gemm(a, True, "B", lines_of(b_epilogue, opt, 0), opt)
    diag(a, opt, "G")
    b_epilogue(a, opt, 1)
    b_consts(a)
    b_attention(a, opt)
    a.label("L_consA")
    consumer_gemm(a, False, "A", lines_of(a_pre, opt), opt)
    diag(a, opt, "G")
    a_consumer(a, opt)
    for part in range(3): f_consumer(a, opt, part)
    a.label("L1_end")
    a("s_endpgm")
    a.label("L_producer")
    producer_gemm(a, opt)
    a(f"s_waitcnt vmcnt({2 * (opt.n13 + opt.n14)})")
    if not opt.gatelate: producer_gate(a, opt)
    if not opt.constearly: b_consts(a)
    a("s_setprio 0")
    a("s_barrier")
    stamp(a, 15, opt)
    a(f"s_cmp_eq_u32 s{S_BR}, 0\ns_cbranch_scc0 L_no15")
    f_regload(a, NPRE + opt.na11 + opt.na12, NPRE + opt.na15)
    a.label("L_no15")
    if opt.gatelate and not opt.agate: producer_gate(a, opt)
    a(f"s_cmp_eq_u32 s{S_BR}, 0")
    a("s_cbranch_scc1 L_prodA")
    if opt.gatelate and opt.agate: producer_gate(a, opt)
    a(f"s_barrier\ns_branch L_battn1")
    a.label("L_prodA")
    f_prefill(a, opt, "A0", 0, opt.afill)
    a_producer(a, opt)
    f_prefill(a, opt, "A", opt.afill, NPRE)
    f_producer(a, opt)
    if opt.na11 or opt.na12:
        assert opt.constearly and opt.na15 >= opt.na11 + opt.na12 and opt.tmode < 3
        for nm, lo, n in (("11", NPRE, opt.na11), ("12", NPRE + opt.na11, opt.na12)):
            a.label("L_a" + nm)
            f_setup(a, opt)
            f_regload(a, lo, lo + n, tmp=47)
            a("s_branch L_aback")
    a.label("L_code_end")
    return a.text()

def kd(name, nv):
    return f""".amdhsa_kernel {name}
  .amdhsa_next_free_vgpr {nv}
  .amdhsa_next_free_sgpr 102
  .amdhsa_accum_offset {nv}
  .amdhsa_group_segment_fixed_size 0
  .amdhsa_kernarg_size 80
  .amdhsa_user_sgpr_count 2
  .amdhsa_user_sgpr_kernarg_segment_ptr 1
  .amdhsa_system_sgpr_workgroup_id_x 1
.end_amdhsa_kernel
"""

def gen_all(opt):
    k1 = NAME + "_kernel"
    launch = f"; @launch kernel={k1} grid=(256,1,1) block=(512,1,1) lds=163840" if opt.aslist else "; @launch grid=(256,1,1) block=(512,1,1) lds=163840"
    s = f"""; Generated by my own generator script (dev/gen.py).
; Kernarg: 0 A_x, 8 A_wqkv, 16 A_wo, 24 B_x, 32 B_wqkv, 40 B_wo, 48 gate_w, 56 out, 64 debug, 72 ws
{launch}
.amdgcn_target "amdgcn-amd-amdhsa--gfx950"
.text
.globl {k1}
.p2align 8
.type {k1},@function
{k1}:
{gen_k1(opt)}
.section .rodata,"a"
.p2align 6
{kd(k1, 256)}"""
    return s

if __name__ == "__main__":
    opt = Opt()
    out = f"cdna_kernels/{NAME}.s"
    for arg in sys.argv[1:]:
        k, v = arg.split("=")
        if k == "out": out = v
        else: setattr(opt, k, eval(v))
    open(out, "w").write(gen_all(opt))
    print("wrote", out)
```

```python
import sys, struct
from asm import *

NAME = "gated_mix__linear_attn_block__sliding_block__prompt"
WS_O = 0
WS_KV = 10 << 20
WS_PART = 20 << 20
WS_FLAG = 22 << 20
WS_G = 23 << 20
WS_PROF = 24 << 20
XSLOT = 32768; NXS = 3
WBASE = XSLOT * NXS; WSLOT = 24576
ACC = 0; XA = 192; XB = 208; WF = 224
V_XA0, V_XA1, V_WA0, V_WA1, V_LANE = 248, 249, 250, 251, 252
S_WAVE, S_RB, S_PAIR, S_BR, S_XCD, S_J = 40, 41, 42, 43, 44, 45
SRD_X, SRD_W, SRD_WS, SRD_DBG = "s[24:27]", "s[28:31]", "s[32:35]", "s[36:39]"
S_GA, S_RH, S_RT, S_CT = 76, 77, 78, 79
S_ROT = 75
S_FLAG = 63
SPIN_MAX = 20000
def f2u(x): return struct.unpack("<I", struct.pack("<f", x))[0]
LOG2E = 1.4426950408889634

def acc(sb, j): return ACC + (sb * 6 + j) * 4
def blk(sb): return 8 + sb if sb < 4 else sb - 4

class Opt:
    pf = 4
    prof = False
    force_slow = False
    fstag = 0
    fpre = 4
    gload = 2
    await0 = True
    a3 = 2
    agate = False
    outaux = 'sc1'
    outt = True
    wfirst = False
    w64 = False
    fprio = 3
    flagat = 4
    tmode = 2
    tpos = 0
    exp = 0
    afill = 0
    wovec = 0
    n13 = 4
    n14 = 6
    fmap = 1
    kvfirst = 0
    flagfirst = False
    afill2 = 8
    putsh = None
    nearly = 7
    cl = (0, 0, 0, 0)
    stwin = 0
    stwin0 = 0
    stmix = False
    stalt = False
    c3 = (11, 9)
    al = (0, 0, 3, 3)
    kvs = 65536 + 1280
    os = 16384
    ord0 = 0
    fill2 = True
    f0early = False
    gwave = 6
    aprobe = False
    f32 = False
    bflag1 = True
    frot = 0
    t0touch = 0
    na15 = 6
    gatelate = True
    constearly = True
    gaux = ''
    diag = ''
    wsoff = 0
    diag0 = ''
    diagm = 1
    bwait = False
    oprio = 0
    stlate = 8
    kvst = 'sc1'
    kvld = 'sc1'
    prew = 0
    prew_at = 4
    tlb = 0
    xl2 = False
    na = 8
    fdepth = 8
    otouch = False
    wo_from = 2
    early = 2
    backoff = 0
    codepf = 3
    bprio = 1
    tailprio = 0
    aslist = False

def stamp(a, idx, opt):
    if not opt.prof: return
    a("s_memrealtime s[94:95]")
    a("s_waitcnt lgkmcnt(0)")
    a(f"v_writelane_b32 v255, s94, {idx}")

def cstamp(a, idx, opt):
    if not opt.prof: return
    a("s_memtime s[94:95]")
    a("s_waitcnt lgkmcnt(0)")
    a(f"v_writelane_b32 v255, s94, {idx}")

def diag(a, opt, name):
    if opt.diag == name: a("s_memrealtime s[98:99]\ns_waitcnt lgkmcnt(0)")
    if opt.diag0 == name: a("s_memrealtime s[96:97]\ns_waitcnt lgkmcnt(0)\ns_mov_b32 s98, s96")
def diag_end(a, opt):
    if not opt.diag: return
    a("""
    s_waitcnt vmcnt(0)
    s_memrealtime s[100:101]
    s_waitcnt lgkmcnt(0)
    """)
    if opt.diag == "end": a("s_mov_b32 s98, s100")
    if opt.diag == "zero": a("s_mov_b32 s98, s96")
    a("""
    s_sub_u32 s98, s98, s96
    """ + f"s_mul_i32 s98, s98, {opt.diagm}" + """
    s_min_u32 s98, s98, 20000
    L_diag:
    s_memrealtime s[96:97]
    s_waitcnt lgkmcnt(0)
    s_sub_u32 s96, s96, s100
    s_cmp_lt_u32 s96, s98
    s_cbranch_scc1 L_diag
    """)

def prof_dump(a, opt, base):
    if not opt.prof: return
    a(f"""
    s_lshl_b32 s94, s2, 3
    s_add_u32 s94, s94, s{S_WAVE}
    s_lshl_b32 s94, s94, 8
    s_add_u32 s94, s94, {base}
    v_mbcnt_lo_u32_b32 v254, -1, 0
    v_mbcnt_hi_u32_b32 v254, -1, v254
    v_lshlrev_b32 v254, 2, v254
    buffer_store_dword v255, v254, {SRD_WS}, s94 offen
    """)

def k1_prologue(a, opt):
    a(f"""
    s_cmp_ge_u32 s2, 256
    s_cbranch_scc1 L1_end
    {"s_memrealtime s[96:97]" if opt.diag else ""}
    s_load_dwordx16 s[4:19], s[0:1], 0
    s_load_dwordx4 s[20:23], s[0:1], 64
    v_lshrrev_b32 v1, 6, v0
    s_and_b32 s{S_XCD}, s2, 7
    s_lshr_b32 s{S_J}, s2, 3
    v_readfirstlane_b32 s{S_WAVE}, v1
    s_lshr_b32 s{S_RB}, s{S_J}, 2
    s_and_b32 s{S_BR}, s{S_J}, 1
    s_bfe_u32 s{S_PAIR}, s{S_J}, 0x10001
    s_lshl_b32 s46, s{S_XCD}, 1
    s_add_u32 s{S_PAIR}, s{S_PAIR}, s46
    v_and_b32 v0, 63, v0
    s_mov_b32 s26, 0x400000
    s_mov_b32 s27, 0x20000
    s_mov_b32 s30, 0x600000
    s_mov_b32 s31, s27
    """)

def k1_srds(a):
    a(f"""
    s_waitcnt lgkmcnt(0)
    s_mov_b32 s24, s4
    s_and_b32 s25, s5, 0xffff
    s_cmp_eq_u32 s{S_BR}, 0
    s_cselect_b32 s28, s6, s12
    s_cselect_b32 s29, s7, s13
    s_and_b32 s29, s29, 0xffff
    """)

def k1_ids(a, opt):
    a(f"""
    s_lshl_b32 s49, s{S_BR}, 4
    s_add_u32 s49, s49, s{S_PAIR}
    s_lshl_b32 s49, s49, 3
    s_add_u32 s49, s49, s{S_RB}
    s_lshl_b32 s49, s49, 11
    s_add_u32 s{S_FLAG}, s49, {WS_FLAG}
    {f"s_and_b32 s{S_CT}, s{S_J}, 7" if opt.fmap else f"s_bfe_u32 s{S_CT}, s{S_J}, 0x30001"}
    s_xor_b32 s{S_CT}, s{S_CT}, {1 if opt.fmap == 1 else 0}
    {f"s_bfe_u32 s{S_RH}, s{S_J}, 0x10003" if opt.fmap else f"s_mov_b32 s{S_RH}, s{S_BR}"}
    s_and_b32 s49, s{S_XCD}, 1
    s_lshl_b32 s49, s49, 3
    s_add_u32 s{S_CT}, s{S_CT}, s49
    s_lshr_b32 s{S_ROT}, s{S_J}, 1
    s_and_b32 s{S_ROT}, s{S_ROT}, {opt.frot}
    s_lshl_b32 s{S_ROT}, s{S_ROT}, 19
    s_lshr_b32 s{S_RT}, s{S_J}, 4
    s_and_b32 s49, s{S_XCD}, 6
    s_add_u32 s{S_RT}, s{S_RT}, s49
    s_add_u32 s32, s22, {opt.wsoff << 20}
    s_addc_u32 s33, s23, 0
    s_and_b32 s33, s33, 0xffff
    s_mov_b32 s34, {26 << 20}
    s_mov_b32 s35, 0x20000
    s_mov_b32 s36, s20
    s_and_b32 s37, s21, 0xffff
    s_mov_b32 s38, 256
    s_mov_b32 s39, 0x20000
    """)

def consumer_substep(kk, wslot, btype, nxt_kk, nxt_wslot, barrier, extra=None):
    items = []
    def xread(grp, i, kk_):
        reg = (XA if grp == 0 else XB) + 4 * i
        sb = grp * 4 + i
        return dict(txt=f"ds_read_b128 {vr(reg,4)}, v{V_XA0 + kk_} offset:{blk(sb)*2048}", loads=('x', grp, i))
    def wread(j, t, kk_, ws):
        reg = WF + 4 * j + 2 * t
        off = ws * WSLOT + (j >> 1) * 8192 + kk_ * 4096 + t * 512
        return dict(txt=f"ds_read_b64_tr_b16 {vr(reg,2)}, v{V_WA0 + (j & 1)} offset:{off}", loads=('w', j, t))
    after = {m: [] for m in range(48)}
    after[0] += [wread(5, 0, kk, wslot)]
    after[1] += [wread(5, 1, kk, wslot)]
    for i in range(4): after[2 + 2 * i] += [xread(1, i, kk)]
    m0 = 24
    if barrier:
        after[24] += [dict(txt="s_barrier", drain=True)]
        m0 = 25
    xpos = [m0, m0 + 1, 29, 30]
    for i in range(4): after[xpos[i]] += [xread(0, i, nxt_kk)]
    for j in range(5):
        after[27 + 4 * j] += [wread(j, 0, nxt_kk, nxt_wslot)]
        after[28 + 4 * j] += [wread(j, 1, nxt_kk, nxt_wslot)]
    for m, txt in (extra or []):
        after[m].append(dict(txt=txt))
    m = 0
    for grp in range(2):
        for j in range(6):
            order = range(4) if j % 2 == 0 else [3, 2, 1, 0]
            for i in order:
                sb = grp * 4 + i
                xr = vr((XA if grp == 0 else XB) + 4 * i, 4); wr = vr(WF + 4 * j, 4)
                seg = j >> 1
                transposed = (seg == 0) or (seg == 1 and btype)
                A, B = (wr, xr) if transposed else (xr, wr)
                c = vr(acc(sb, j), 4)
                items.append(dict(txt=f"v_mfma_f32_16x16x32_bf16 {c}, {A}, {B}, {c}", reads={('x', grp, i), ('w', j, 0), ('w', j, 1)}))
                items += after[m]
                m += 1
    return items

def consumer_gemm(a, btype, tag, filler, opt):
    pre = [dict(txt=f"ds_read_b128 {vr(XA+4*i,4)}, v{V_XA0} offset:{blk(i)*2048}", loads=('x', 0, i)) for i in range(4)]
    def wr(j, t): return dict(txt=f"ds_read_b64_tr_b16 {vr(WF+4*j+2*t,2)}, v{V_WA0 + (j&1)} offset:{(j>>1)*8192 + t*512}", loads=('w', j, t))
    pre = [pre[0], pre[1], wr(0, 0), wr(0, 1), pre[2], pre[3]] + [wr(j, t) for j in range(1, 5) for t in range(2)]
    lines, q0 = schedule_waits(pre)
    a("s_mov_b32 s50, 8")
    a("s_mov_b32 s51, 0")
    for l in lines: a(l)
    body = []
    kvfirst = btype and opt.kvfirst
    for st in range(2):
        ex0 = [(10, "s_add_u32 s51, s51, 1"), (11, "s_cmp_eq_u32 s51, 3"), (12, f"s_cselect_b32 s52, {-2*XSLOT & 0xffffffff}, s53"), (13, "s_cselect_b32 s51, 0, s51"),
               (16, f"v_add_u32 v{V_XA0}, s52, v{V_XA0}")]
        ex1 = [(16, f"v_add_u32 v{V_XA1}, s52, v{V_XA1}")]
        if st == (0 if kvfirst else 1): ex1 += [(18, "s_sub_u32 s50, s50, 1"), (21, "s_cmp_lg_u32 s50, 0")]
        body += consumer_substep(0, st, btype, 1, st, False, ex0)
        body += consumer_substep(1, st, btype, 0, 1 - st, True, ex1)
    lines, q1 = schedule_waits(body, q0)
    assert q1 == q0, (q0, q1)
    cut = (min if kvfirst else max)(i for i, l in enumerate(lines) if l == "s_barrier") + 2
    assert lines[cut - 1].startswith("v_mfma")
    if opt.exp & 128: lines = [l if not l.startswith("ds_read_b128") else "s_nop 0" for l in lines]
    if opt.exp & 256: lines = [l if not l.startswith("ds_read_b64") else "s_nop 0" for l in lines]
    a(f"s_branch L_gemm_e{tag}")
    a.label(f"L_gemm_{tag}")
    for l in lines[cut:]: a(l)
    a.label(f"L_gemm_e{tag}")
    for l in lines[:cut]: a(l)
    a(f"s_cbranch_scc1 L_gemm_{tag}")
    if kvfirst: return kv_first_tail(a, [l for l in lines[cut:] if l.startswith("v_mfma")][:22], filler)
    tail = [l for l in lines[cut:] if l.startswith("v_mfma")]
    tail = tail[6:] + tail[:6]
    per = -(-len(filler) // len(tail))
    for m, l in enumerate(tail):
        a(l)
        for x in filler[m * per:(m + 1) * per]: a(x)

def kv_first_tail(a, t0, filler):
    def xr(grp, i, kk): return dict(txt=f"ds_read_b128 {vr((XA if grp == 0 else XB) + 4*i, 4)}, v{V_XA0 + kk} offset:{blk(grp*4+i)*2048}", loads=('x', grp, i))
    def wr(j, kk, slot): return [dict(txt=f"ds_read_b64_tr_b16 {vr(WF + 4*slot + 2*t, 2)}, v{V_WA0 + (j & 1)} offset:{WSLOT + (j >> 1)*8192 + kk*4096 + t*512}", loads=('w', slot, t)) for t in range(2)]
    seq = [(l, set()) for l in t0]
    for grp, js, off in ((0, (2, 3, 4, 5), 0), (1, (2, 3, 4, 5), 0), (0, (2, 3, 4, 5), 0), (1, (2, 3, 4, 5), 0), (0, (0, 1), 0), (1, (0, 1), 0), (0, (0, 1), 2), (1, (0, 1), 2)):
        for j in js:
            for i in (range(4) if j % 2 == 0 else (3, 2, 1, 0)):
                x_, w_ = vr((XA if grp == 0 else XB) + 4*i, 4), vr(WF + 4*(j + off), 4)
                A, B = (w_, x_) if j < 4 else (x_, w_)
                c = vr(acc(grp*4 + i, j), 4)
                seq.append((f"v_mfma_f32_16x16x32_bf16 {c}, {A}, {B}, {c}", {('x', grp, i), ('w', j + off, 0), ('w', j + off, 1)}))
    after = {m: [] for m in range(len(seq))}
    P = [22, 38, 54, 70, 86, 94, 102, 110]
    for i in range(4): after[i] += [xr(0, i, 0)]
    after[4] += wr(0, 1, 0); after[6] += wr(1, 1, 1)
    for k, j in enumerate((2, 3, 4, 5)):
        after[9 + 4*k] += wr(j, 0, j)
        after[P[1] + 3 + 4*k] += wr(j, 1, j)
    for i in range(4):
        after[P[0] + 1 + 2*i] += [xr(1, i, 0)]
        after[P[1] + (0, 1, 5, 6)[i]] += [xr(0, i, 1)]
        after[P[2] + 1 + 2*i] += [xr(1, i, 1)]
        after[P[4] + 4 + i] += [xr(0, 3 - i, 0)]
        after[P[5] + 4 + i] += [xr(1, 3 - i, 0)]
    after[P[3] + 3] += wr(0, 0, 2); after[P[3] + 7] += wr(1, 0, 3)
    after[P[7]] += [dict(txt="s_barrier", reads={('x', 1, i) for i in range(4)})]
    def spread(lst, lo, hi):
        per = -(-len(lst) // (hi - lo))
        for m in range(lo, hi): after[m] += [dict(txt=x, loads=('st',) if x.startswith("ds_") else None) for x in lst[(m - lo)*per:(m - lo + 1)*per]]
    spread(filler[0], P[1], P[3]); spread(filler[1], P[3], P[4] + 8); spread(filler[2], P[4] + 8, len(seq))
    items = []
    for m, (txt, rd) in enumerate(seq):
        items.append(dict(txt=txt, reads=rd)); items += after[m]
    lines, q = schedule_waits(items, [])
    assert all(t == ('st',) for t in q)
    for l in lines: a(l)

def lines_of(f, *args):
    t = Asm(); f(t, *args)
    return [l.strip() for l in t.L if l.strip()]

def consumer_setup(a, opt):
    if opt.prof: a("v_mov_b32 v255, 0")
    stamp(a, 22, opt); diag(a, opt, "issue")
    if opt.t0touch:
        a(f"""
        s_cmp_lt_u32 s{S_WAVE}, 2
        s_cbranch_scc0 L_t0w
        s_lshl_b32 s47, s{S_J}, 17
        s_lshl_b32 s48, s{S_WAVE}, 7
        s_add_u32 s47, s47, s48
        v_lshlrev_b32 v5, 11, v0
        {"s_cmp_eq_u32 s40, 0" if opt.t0touch == 2 else ""}
        {"s_cbranch_scc1 L_t0d" if opt.t0touch == 2 else ""}
        buffer_load_dword v{XB}, v5, {SRD_X}, s47 offen
        s_branch L_t0d
        L_t0w:
        s_and_b32 s48, s{S_WAVE}, 1
        {"s_cbranch_scc0 L_t0d" if opt.t0touch == 2 else ""}
        s_lshl_b32 s48, s48, 3
        s_add_u32 s48, s48, s{S_RB}
        s_mul_i32 s48, s48, {8*6144}
        s_lshl_b32 s47, s{S_PAIR}, 7
        s_add_u32 s47, s47, s48
        v_min_u32 v5, 23, v0
        v_lshlrev_b32 v5, 11, v5
        buffer_load_dword v{XB}, v5, {SRD_W}, s47 offen
        L_t0d:
        """)
    if opt.ord0 == 0: issue_w(a, "0", "s55"); issue_x(a, "0", "s54")
    elif opt.ord0 == 1: issue_x(a, "0", "s54"); issue_w(a, "0", "s55")
    else:
        issue_w(a, "0", "s55", (0,)); issue_x(a, "0", "s54", (0,)); issue_w(a, "0", "s55", (1,)); issue_x(a, "0", "s54", (1,)); issue_w(a, "0", "s55", (2,))
    a(f"""
    s_barrier
    v_and_b32 v1, 15, v0
    v_lshrrev_b32 v2, 4, v0
    v_bfe_u32 v3, v0, 1, 3
    v_xor_b32 v3, v2, v3
    v_lshlrev_b32 v3, 4, v3
    v_lshl_add_u32 v3, v1, 7, v3
    s_lshr_b32 s46, s{S_WAVE}, 1
    s_lshl_b32 s46, s46, 13
    v_add_u32 v{V_XA0}, s46, v3
    v_xor_b32 v{V_XA1}, 64, v{V_XA0}
    v_bfe_u32 v3, v0, 2, 2
    v_lshl_add_u32 v4, v2, 3, v3
    v_lshlrev_b32 v4, 7, v4
    v_bfe_u32 v5, v0, 3, 2
    s_and_b32 s46, s{S_WAVE}, 1
    s_lshl_b32 s46, s46, 1
    v_xor_b32 v5, s46, v5
    v_lshl_add_u32 v4, v5, 5, v4
    v_and_b32 v5, 3, v0
    v_lshl_add_u32 v4, v5, 3, v4
    v_add_u32 v{V_WA0}, {WBASE}, v4
    v_xor_b32 v{V_WA1}, 32, v{V_WA0}
    s_mov_b32 s53, {XSLOT}
    s_mov_b32 s80, s8
    s_and_b32 s81, s9, 0xffff
    s_mov_b32 s82, 0x200000
    s_mov_b32 s83, 0x20000
    s_mov_b32 s84, s14
    s_and_b32 s85, s15, 0xffff
    s_mov_b32 s86, 0x200000
    s_mov_b32 s87, 0x20000
    """)
    k1_ids(a, opt)
    a(f"s_cmp_eq_u32 s{S_BR}, 0")
    a("s_cselect_b32 s46, 1.0, 0")
    a("s_nop 0")
    for sb in range(8):
        for j in range(6):
            for r in range(4):
                a(f"v_mov_b32 v{acc(sb,j)+r}, {'s46' if j < 4 else '0'}")

    a(f"""
    v_mov_b32 v{XA}, {LCNT}
    v_mov_b32 v{XA+1}, 1
    s_mov_b64 exec, 1
    s_waitcnt vmcnt(0)
    ds_add_u32 v{XA}, v{XA+1}
    s_mov_b64 exec, -1
    """)
    a.label("L_st0")
    a(f"""
    ds_read_b32 v{XA+2}, v{XA}
    s_waitcnt lgkmcnt(0)
    v_readfirstlane_b32 s46, v{XA+2}
    s_cmp_lt_u32 s46, 4
    s_cbranch_scc1 L_st0
    """)
    stamp(a, 20, opt); diag(a, opt, "st0")

LCNT = 147456
def dma_addrs(a):
    a(f"""
    s_and_b32 s46, s{S_WAVE}, 3
    v_lshrrev_b32 v1, 3, v0
    v_and_b32 v2, 7, v0
    v_and_b32 v3, 2, v1
    v_xor_b32 v3, v2, v3
    v_lshlrev_b32 v3, 4, v3
    v_mul_u32_u24 v4, 6144, v1
    s_lshl_b32 s47, s{S_PAIR}, 7
    s_mul_i32 s48, s46, {2*8*6144}
    s_add_u32 s47, s47, s48
    v_add3_u32 v20, v4, v3, s47
    v_xor_b32 v21, 64, v20
    v_add_u32 v21, {8*6144 - 1024}, v21
    v_lshrrev_b32 v3, 1, v1
    v_xor_b32 v3, v2, v3
    v_lshlrev_b32 v3, 4, v3
    s_lshl_b32 s47, s{S_RB}, 8
    s_lshl_b32 s48, s46, 6
    s_add_u32 s47, s47, s48
    v_add_u32 v4, s47, v1
    v_lshl_add_u32 v10, v4, 11, v3
    v_xor_b32 v11, 64, v10
    """)
    for i in (3, 2, 1):
        a(f"v_add_u32 v{10+i}, {i*16384 - i*1024}, v{10 + (i & 1)}")
    a(f"""
    s_lshl_b32 s54, s46, 13
    s_lshl_b32 s55, s46, 11
    s_add_u32 s55, s55, {WBASE}
    v_mov_b32 v{V_LANE}, v0
    """)
def issue_w(a, step_s, slot_off, segs=(0, 1, 2)):
    for seg in segs:
        a(f"s_add_u32 m0, {slot_off}, {seg*8192}")
        a(f"s_add_u32 s48, {step_s}, {seg*2048}")
        a(f"buffer_load_dwordx4 v20, {SRD_W}, s48 offen {GAUX} lds")
        a(f"buffer_load_dwordx4 v21, {SRD_W}, s48 offen offset:1024 {GAUX} lds")
def issue_x(a, step_s, slot_off, groups=(0, 1)):
    for g in groups:
        a(f"s_add_u32 m0, {slot_off}, {g*4096}")
        a(f"s_add_u32 s48, {step_s}, {g*65536}")
        for i in range(4):
            a(f"buffer_load_dwordx4 v{10+i}, {SRD_X}, s48 offen offset:{i*1024} {GAUX} lds")

def producer_gemm(a, opt):
    assert opt.tmode >= 1
    a(f"""
    v_mov_b32 v7, 0x7f000000
    s_add_u32 s62, s46, {2 if opt.t0touch else 1}
    """)
    if opt.tmode >= 1:
        a(f"""
        v_and_b32 v4, 31, v0
        s_mul_i32 s47, s{S_RB}, {8*6144}
        s_and_b32 s48, s{S_PAIR}, 14
        s_lshl_b32 s48, s48, 7
        s_add_u32 s47, s47, s48
        v_lshl_add_u32 v5, v4, 11, s47
        v_lshrrev_b32 v6, 5, v0
        v_lshl_add_u32 v5, v6, 7, v5
        s_add_u32 s48, s46, s{S_PAIR}
        {f"s_or_b32 s48, s48, s{S_BR}" if opt.tmode == 3 else ""}
        s_bitcmp0_b32 {"s48" if opt.tmode >= 2 else f"s{S_PAIR}"}, 0
        {f"s_and_b32 s48, s{S_J}, 3" if opt.tmode == 4 else ""}
        {f"s_cmp_eq_u32 s48, s46" if opt.tmode == 4 else ""}
        s_cselect_b32 s93, -1, 0
        s_and_b32 vcc_lo, s93, 0xffffff
        s_mov_b32 vcc_hi, vcc_lo
        v_cndmask_b32 v30, v7, v5, vcc
        v_and_b32 v4, 7, v0
        v_bfe_u32 v5, v0, 3, {2 if opt.tmode >= 3 else 1}
        v_lshl_add_u32 v4, v5, {6 if opt.tmode >= 3 else 7}, v4
        s_and_b32 s48, s2, {0xe7 if opt.tmode >= 3 else 0xef}
        s_lshl_b32 s48, s48, 3
        v_add_u32 v4, s48, v4
        v_lshlrev_b32 v4, 11, v4
        s_and_b32 vcc_lo, s93, {-1 if opt.tmode >= 3 else 0xffff}
        s_mov_b32 vcc_hi, 0
        v_cndmask_b32 v31, v7, v4, vcc
        """)
    NT = 2
    if opt.tmode >= 3:
        assert not opt.wovec
        NT = 3
        a(f"""
        s_cmp_eq_u32 s{S_BR}, 0
        s_cselect_b32 s88, s12, s6
        s_cselect_b32 s89, s13, s7
        s_and_b32 s89, s89, 0xffff
        s_mov_b32 s90, 0x600000
        s_mov_b32 s91, 0x20000
        """)
    def touch():
        a(f"""
        s_mul_i32 s60, s62, {64*6144}
        s_lshl_b32 s61, s62, 7
        buffer_load_dword v32, v30, {SRD_W}, s60 offen
        buffer_load_dword v33, v31, {SRD_X}, s61 offen
        {"buffer_load_dword v32, v30, s[88:91], s60 offen" if NT == 3 else ""}
        s_add_u32 s62, s62, 4
        """)
    a(f"s_cmp_lt_u32 s46, {opt.early}\ns_cbranch_scc0 L_noearly")
    touch()
    a.label("L_noearly")
    a(f"""
    s_getpc_b64 s[68:69]
    L_pc:
    s_sub_u32 s68, s68, L_pc-{NAME}_kernel
    s_subb_u32 s69, s69, 0
    v_and_b32 v37, 7, v0
    s_lshl_b32 s48, s{S_J}, 3
    v_add_u32 v37, s48, v37
    v_lshlrev_b32 v37, 7, v37
    v_min_u32 v37, L_code_end-{NAME}_kernel-4, v37
    """)
    if opt.codepf & 1:
        a(f"s_cmp_eq_u32 s46, 3\ns_cbranch_scc0 L_nocode\nglobal_load_dword v38, v37, s[68:69]")
        a.label("L_nocode")
    a(f"""
    v_mov_b32 v48, 0
    v_mov_b32 v2, {LCNT}
    ds_write_b32 v2, v48
    v_lshlrev_b32 v44, 4, v0
    v_mov_b32 v49, 0
    v_mov_b32 v50, 0
    v_mov_b32 v51, 0
    s_lshl_b32 s101, s{S_PAIR}, 1
    s_add_u32 s101, s101, s{S_BR}
    s_lshl_b32 s101, s101, 3
    v_mov_b32 v36, 1
    s_mov_b32 s57, {64*6144}
    s_add_u32 s58, s55, {WSLOT}
    """)
    k1_ids(a, opt)
    a(f"""
    s_lshl_b32 s47, s46, 10
    s_add_u32 s47, s47, s{S_FLAG}
    s_cmp_lt_u32 s46, 2
    s_cselect_b32 s47, s47, 0x10000000
    """)
    a(f"""
    s_waitcnt lgkmcnt(0)
    s_barrier
    s_setprio 3
    """)
    if opt.prof: a("v_mov_b32 v255, 0")
    stamp(a, 21, opt)
    a(f"buffer_store_dwordx4 v[48:51], v44, {SRD_WS}, s47 offen sc1")
    a(f"""
    s_cmp_eq_u32 s{S_BR}, 0
    s_cbranch_scc0 L_nosent
    s_lshl_b32 s47, s{S_PAIR}, 3
    s_add_u32 s47, s47, s{S_RB}
    s_lshl_b32 s47, s47, 2
    s_add_u32 s47, s47, s46
    s_lshl_b32 s47, s47, 12
    s_add_u32 s47, s47, {WS_PART}
    v_mov_b32 v40, -1
    v_mov_b32 v41, -1
    v_mov_b32 v42, -1
    v_mov_b32 v43, -1
    buffer_store_dwordx4 v[40:43], v44, {SRD_WS}, s47 offen sc1
    s_mov_b64 exec, 0xff
    buffer_store_dwordx4 v[40:43], v44, {SRD_WS}, s47 offen offset:1024 sc1
    s_mov_b64 exec, -1
    """)
    a.label("L_nosent")
    a("s_mov_b32 s56, 128"); a(f"s_add_u32 s59, s54, {XSLOT}")
    if opt.ord0 < 3: issue_w(a, "s57", "s58"); issue_x(a, "s56", "s59")
    else:
        issue_x(a, "s56", "s59", (0,)); issue_w(a, "s57", "s58", (0, 1)); issue_x(a, "s56", "s59", (1,)); issue_w(a, "s57", "s58", (2,))
    a("s_mov_b32 s57, 256"); a(f"s_add_u32 s58, s54, {2*XSLOT}")
    issue_x(a, "s57", "s58")
    a(f"s_cmp_lt_u32 s46, {opt.early}\ns_cbranch_scc1 L_nolate0")
    touch()
    a.label("L_nolate0")
    if opt.constearly:
        assert not opt.wovec
        b_consts(a); a(f"s_and_b32 s46, s{S_WAVE}, 3")
    a(f"""
    s_cmp_lt_u32 s46, 2
    s_cselect_b32 s96, s8, s14
    s_cselect_b32 s97, s9, s15
    s_and_b32 s97, s97, 0xffff
    s_mov_b32 s98, 0x200000
    s_mov_b32 s99, 0x20000
    s_and_b32 s100, s2, {0xe7 if opt.tmode >= 3 else 0xef if opt.tmode else 0xff}
    s_lshl_b32 s100, s100, 1
    s_and_b32 s48, s46, 1
    s_add_u32 s100, s100, s48
    s_lshl_b32 s100, s100, 12
    v_lshlrev_b32 v34, 7, v0
    v_cmp_gt_u32 vcc, 16, v0
    s_nop 1
    v_cndmask_b32 v34, v7, v34, vcc
    """)
    if opt.tmode >= 1:
        a(f"""
        v_and_b32 v4, 15, v0
        v_lshlrev_b32 v4, 7, v4
        v_lshrrev_b32 v5, 4, v0
        v_lshl_add_u32 v4, v5, {16 if opt.tmode >= 3 else 17}, v4
        s_mov_b32 vcc_lo, s93
        s_mov_b32 vcc_hi, {"s93" if opt.tmode >= 3 else 0}
        v_cndmask_b32 v34, v7, v4, vcc
        """)
    a(f"""
    s_mov_b32 s50, 0
    s_mov_b32 s56, {2*64*6144}
    s_mov_b32 s57, {3*128}
    s_mov_b32 s58, s55
    s_mov_b32 s59, s54
    s_mov_b32 s51, 0
    """)
    if opt.wovec:
        a(f"""
        s_mov_b32 s68, s14
        s_and_b32 s69, s15, 0xffff
        s_mov_b32 s70, 0x200000
        s_mov_b32 s71, 0x20000
        s_sub_u32 s88, 3, s46
        s_lshl_b32 s88, s88, 5
        s_add_u32 s88, s88, s{S_J}
        s_lshl_b32 s88, s88, 14
        s_and_b32 s48, s{S_XCD}, 1
        s_lshl_b32 s48, s48, 10
        s_add_u32 s88, s88, s48
        v_lshrrev_b32 v39, 3, v0
        v_lshlrev_b32 v39, 4, v39
        v_and_or_b32 v39, v0, 7, v39
        v_lshlrev_b32 v39, 7, v39
        s_lshr_b32 s89, s46, 1
        s_add_u32 s89, s89, 9
        """)
    if opt.prew:
        a(f"""
        s_lshl_b32 s73, s{S_RB}, 1
        s_add_u32 s73, s73, s{S_BR}
        s_lshl_b32 s73, s73, 4
        s_add_u32 s73, s73, s{S_PAIR}
        s_lshl_b32 s73, s73, 2
        s_add_u32 s73, s73, s46
        s_lshl_b32 s73, s73, 13
        s_lshl_b32 s74, s{S_PAIR}, 3
        s_add_u32 s74, s74, s{S_RB}
        s_mul_i32 s74, s74, {opt.kvs}
        s_lshl_b32 s48, s46, 14
        s_add_u32 s74, s74, s48
        s_add_u32 s74, s74, {WS_KV}
        s_cmp_eq_u32 s{S_BR}, 0
        s_cselect_b32 s74, 0x10000000, s74
        v_lshlrev_b32 v8, {7 if opt.prew in (1, 3) else 4}, v0
        """)
    f_setup(a, opt)
    a(f"s_cmp_lt_u32 s46, {opt.early}\ns_cbranch_scc1 L_nolate")
    a(f"s_waitcnt vmcnt({8 + NT})\ns_branch L_late")
    a.label("L_nolate")
    a("s_waitcnt vmcnt(8)")
    a.label("L_late")
    a("s_barrier")
    stamp(a, 0, opt); cstamp(a, 30, opt)
    if opt.prof:
        a("s_getreg_b32 s94, hwreg(HW_REG_XCC_ID)\nv_writelane_b32 v255, s94, 33")
    if opt.exp & 64: a("s_mov_b64 exec, 1")
    a.label("L_prod")
    issue_w(a, "s56", "s58")
    ga, gb = {0: ((), (0, 1)), 1: ((0,), (1,)), 2: ((0, 1), ())}[opt.tpos]
    issue_x(a, "s57", "s59", ga)
    a(f"""
    s_and_b32 s47, s50, 3
    s_cmp_eq_u32 s47, s46
    s_cbranch_scc0 L_notouch
    s_cmp_lt_u32 s62, 16
    s_cbranch_scc0 L_lateturn
    """)
    touch()
    a(f"""
    s_cmp_eq_u32 s50, 1
    s_cbranch_scc0 L_noatom
    s_mov_b64 exec, 1
    buffer_atomic_add v36, off, {SRD_DBG}, s101 sc1
    s_mov_b64 exec, {1 if opt.exp & 64 else -1}
    s_branch L_three
    """)
    a.label("L_noatom")
    a(f"""
    s_sub_u32 s47, s50, {opt.wo_from}
    s_cmp_lt_u32 s47, 8
    s_cselect_b32 s47, s100, 0x200000
    s_cselect_b32 s49, 2048, 0
    buffer_load_dword v35, v34, s[96:99], s47 offen
    s_add_u32 s100, s100, s49
    """)
    a.label("L_three")
    issue_x(a, "s57", "s59", gb)
    a(f"s_waitcnt vmcnt({9 + NT})\ns_branch L_touched")
    a.label("L_lateturn")
    if opt.codepf & 2:
        a("s_cmp_eq_u32 s50, 11\ns_cbranch_scc0 L_late12\nglobal_load_dword v38, v37, s[68:69]")
        issue_x(a, "s57", "s59", gb)
        a("s_waitcnt vmcnt(9)\ns_branch L_touched")
        a.label("L_late12")
        if opt.tlb:
            a(f"""
            v_min_u32 v38, {(20 << 20 >> opt.tlb) - 1}, v0
            v_lshlrev_b32 v38, {opt.tlb}, v38
            buffer_load_dword v35, v38, {SRD_WS}, 0 offen
            v_and_b32 v38, 0x3fffff, v38
            global_load_dword v35, v38, s[18:19]
            """)
            issue_x(a, "s57", "s59", gb)
            a("s_waitcnt vmcnt(10)\ns_branch L_touched")
    a.label("L_notouch")
    issue_x(a, "s57", "s59", gb)
    a("s_waitcnt vmcnt(8)")
    a.label("L_touched")
    a("""
    s_cmp_ge_u32 s50, 9
    s_cbranch_scc1 L_wl
    L_aback:
    """)
    if opt.prew == 1:
        a(f"""
        s_sub_u32 s47, s50, {opt.prew_at}
        s_cmp_lt_u32 s47, 3
        s_cbranch_scc0 L_noprew
        s_cmp_eq_u32 s47, 2
        s_cselect_b32 s47, s73, s74
        buffer_store_dword v0, v8, {SRD_WS}, s47 offen sc1
        s_add_u32 s74, s74, 8192
        L_noprew:
        """)
    if opt.prew == 3:
        a(f"""
        s_sub_u32 s47, s50, {opt.prew_at}
        s_cmp_lt_u32 s47, 2
        s_cbranch_scc0 L_noprew
        buffer_load_dword v9, v8, {SRD_WS}, s74 offen
        s_add_u32 s74, s74, 8192
        L_noprew:
        """)
    if opt.prew == 4:
        a(f"""
        s_sub_u32 s47, s50, {opt.prew_at}
        s_cmp_lt_u32 s47, 4
        s_cbranch_scc0 L_noprew
        buffer_store_dwordx4 v[0:3], v8, {SRD_WS}, s74 offen sc1
        buffer_store_dwordx4 v[0:3], v8, {SRD_WS}, s74 offen offset:1024 sc1
        buffer_store_dwordx4 v[0:3], v8, {SRD_WS}, s74 offen offset:2048 sc1
        buffer_store_dwordx4 v[0:3], v8, {SRD_WS}, s74 offen offset:3072 sc1
        s_add_u32 s74, s74, 4096
        L_noprew:
        """)
    if opt.prew == 2:
        a(f"""
        s_sub_u32 s47, s50, {opt.prew_at}
        s_cmp_lt_u32 s47, 8
        s_cbranch_scc0 L_noprew
        buffer_store_dwordx4 v[0:3], v8, {SRD_WS}, s74 offen sc1
        buffer_store_dwordx4 v[0:3], v8, {SRD_WS}, s74 offen offset:1024 sc1
        buffer_store_dwordx4 v[0:3], v8, {SRD_WS}, s73 offen sc1
        s_add_u32 s74, s74, 2048
        s_add_u32 s73, s73, 1024
        L_noprew:
        """)
    if opt.wovec:
        a(f"""
        s_cmp_eq_u32 s50, s89
        s_cbranch_scc0 L_nowo2
        buffer_load_dword v35, v39, s[68:71], s88 offen
        s_add_u32 s89, s89, 2
        s_mov_b32 s68, s8
        s_and_b32 s69, s9, 0xffff
        s_xor_b32 s88, s88, {3 << 19}
        L_nowo2:
        """)
    a(f"""
    s_add_u32 s56, s56, {64*6144}
    s_add_u32 s57, s57, 128
    s_cmp_eq_u32 s58, s55
    s_cselect_b32 s58, {WSLOT}, 0
    s_add_u32 s58, s58, s55
    s_add_u32 s51, s51, 1
    s_cmp_eq_u32 s51, 3
    s_cselect_b32 s51, 0, s51
    s_lshl_b32 s59, s51, 15
    s_add_u32 s59, s59, s54
    s_add_u32 s50, s50, 1
    s_barrier
    """)
    if opt.prof:
        a("s_mov_b32 m0, s50"); stamp(a, "m0", opt)
    a("""
    s_cmp_lt_u32 s50, 13
    s_cbranch_scc1 L_prod
    s_mov_b64 exec, -1
    """)
    issue_w(a, "s56", "s58")
    a(f"""
    s_lshl_b32 s47, s{S_RB}, 1
    s_add_u32 s47, s47, s{S_BR}
    s_lshl_b32 s47, s47, 4
    s_add_u32 s47, s47, s{S_PAIR}
    s_lshl_b32 s47, s47, 2
    s_add_u32 s47, s47, s46
    s_lshl_b32 s48, s47, 12
    v_lshlrev_b32 v1, 5, v0
    s_mov_b32 s64, s16
    s_and_b32 s65, s17, 0xffff
    s_mov_b32 s66, 2048
    s_mov_b32 s67, 0x20000
    v_and_b32 v254, 31, v0
    v_lshlrev_b32 v254, 3, v254
    buffer_load_dwordx4 v[40:43], v1, s[64:67], 0 offen
    buffer_load_dwordx4 v[44:47], v1, s[64:67], 0 offen offset:16
    buffer_load_dwordx4 v[48:51], v1, {SRD_X}, s48 offen
    buffer_load_dwordx4 v[52:55], v1, {SRD_X}, s48 offen offset:16
    buffer_load_dwordx4 v[56:59], v1, {SRD_X}, s48 offen offset:2048
    buffer_load_dwordx4 v[60:63], v1, {SRD_X}, s48 offen offset:2064
    buffer_load_dword v253, v254, {SRD_DBG}, 0 offen sc1
    """)
    a("s_mov_b32 s93, s47")
    top = 32 - sum(opt.cl)
    f_regload(a, top - opt.n13, top)
    a(f"s_waitcnt vmcnt({7 + 2*opt.n13})\ns_barrier")
    f_regload(a, top - opt.n13 - opt.n14, top - opt.n13)
    a(f"s_mov_b32 s47, s93\ns_setprio {opt.tailprio}")
    stamp(a, 14, opt); cstamp(a, 31, opt)

def producer_gate(a, opt, tag=''):
    nw = 2 * (opt.n13 + opt.n14)
    a(f"v_mov_b32 v6, 0\nv_mov_b32 v7, 0")
    for i in range(8):
        a(f"v_dot2c_f32_bf16 v6, v{48+i}, v{40+i}")
        a(f"v_dot2c_f32_bf16 v7, v{56+i}, v{40+i}")
    a("s_nop 2")
    a("""
    v_permlane32_swap_b32 v6, v7
    s_nop 1
    v_add_f32 v6, v6, v7
    v_mov_b32 v7, v6
    s_nop 1
    v_permlane16_swap_b32 v6, v7
    s_nop 1
    v_add_f32 v6, v6, v7
    """)
    for sh in (8, 4, 2, 1):
        a("s_nop 1")
        a(f"v_add_f32_dpp v6, v6, v6 row_ror:{sh} row_mask:0xf bank_mask:0xf")
    a(f"""
    v_mul_f32 v6, {hex(f2u(-LOG2E))}, v6
    v_exp_f32 v6, v6
    v_lshlrev_b32 v7, 2, v{V_LANE}
    v_add_f32 v6, 1.0, v6
    v_rcp_f32 v6, v6
    s_lshl_b32 s47, s93, 8
    s_add_u32 s47, s47, {WS_G}
    buffer_store_dword v6, v7, {SRD_WS}, s47 offen sc1
    s_mov_b32 s48, {SPIN_MAX}
    """)
    a.label(f"L_initpoll{tag}")
    a(f"""
    v_cmp_gt_u32 vcc, 8, v253
    s_cbranch_vccz L_initdone{tag}
    s_sub_u32 s48, s48, 1
    s_cmp_eq_u32 s48, 0
    s_cbranch_scc1 L_initdone{tag}
    buffer_load_dword v253, v254, {SRD_DBG}, 0 offen sc1
    s_waitcnt vmcnt(0)
    s_branch L_initpoll{tag}
    """)
    a.label(f"L_initdone{tag}")

T_S, T_P, T_K, T_V = 0, 32, 40, 48
class U:
    def __init__(s, sr_, q, o, l, sq): s.s, s.q, s.o, s.l, s.sq = sr_, q, o, l, sq
UA = U(0, 56, 64, 80, 70); UB = U(16, 84, 92, 108, 71)
T_MD, T_ME, T_SEL, T_PAT, T_ADR, T_T0, T_Z = 112, 128, 144, 148, 149, 150, 156
T_C = 16
T_PUB = 160
S_HB = 72
LQ = 131072
def swap34(i): return (i & 7) | ((i >> 4 & 1) << 3) | ((i >> 3 & 1) << 4)

def b_consts(a):
    a(f"v_mov_b32 v{T_T0}, {hex(f2u(-1e30))}")
    for n in range(16):
        g, r = n >> 2, n & 3
        m = 0
        for l in range(64):
            j, h = l & 31, l >> 5
            if swap34(8 * g + 4 * h + r) <= swap34(j): m |= 1 << l
        s = 64 + 2 * (n & 1)
        a(f"s_mov_b32 s{s}, {hex(m & 0xffffffff)}")
        a(f"s_mov_b32 s{s+1}, {hex(m >> 32)}")
        a(f"v_cndmask_b32_e64 v{T_MD+n}, v{T_T0}, 0, s[{s}:{s+1}]")
        a(f"v_cndmask_b32_e64 v{T_ME+n}, 0, v{T_T0}, s[{s}:{s+1}]")
    L = V_LANE
    a(f"""
    v_lshrrev_b32 v{T_T0}, 2, v{L}
    v_xor_b32 v{T_T0}, v{T_T0}, v{L}
    v_bfe_u32 v{T_T0}, v{T_T0}, 2, 1
    v_add_u32 v{T_T0}, -1, v{T_T0}
    v_and_b32 v{T_SEL}, 0x3f803f80, v{T_T0}
    v_mov_b32 v{T_Z}, 0
    v_mov_b32 v{T_Z+1}, 0
    v_mov_b32 v{T_Z+2}, 0
    v_mov_b32 v{T_Z+3}, 0
    v_mov_b32 v{T_SEL+1}, v{T_SEL}
    v_mov_b32 v{T_SEL+2}, v{T_SEL}
    v_mov_b32 v{T_SEL+3}, v{T_SEL}
    v_and_b32 v{T_PAT}, 7, v{L}
    v_lshlrev_b32 v{T_PAT}, 4, v{T_PAT}
    v_lshrrev_b32 v{T_T0}, 4, v{L}
    v_lshl_add_u32 v{T_PAT}, v{T_T0}, 7, v{T_PAT}
    v_bfe_u32 v{T_T0}, v{L}, 3, 1
    v_lshl_add_u32 v{T_PAT}, v{T_T0}, 10, v{T_PAT}
    s_and_b32 s46, s{S_WAVE}, 1
    s_lshl_b32 s{S_HB}, s46, 15
    s_and_b32 s46, s{S_WAVE}, 2
    s_sub_u32 s{UA.sq}, 6, s46
    s_cmp_lt_u32 s{S_WAVE}, 4
    s_cselect_b32 s{UA.sq}, s46, s{UA.sq}
    s_add_u32 s{UB.sq}, s{UA.sq}, 1
    """)
    for u in (UA, UB):
        a(f"v_mfma_f32_32x32x16_bf16 {vr(u.o,16)}, {vr(T_Z,4)}, {vr(T_Z,4)}, 0")
        a(f"v_mfma_f32_16x16x32_bf16 {vr(u.l,4)}, {vr(T_Z,4)}, {vr(T_Z,4)}, 0")

def b_epilogue(a, opt, part):
    L = V_LANE
    c = LOG2E / 32 ** 0.5
    if part == 0: a(f"""
    s_lshr_b32 s46, s{S_WAVE}, 1
    s_and_b32 s47, s{S_WAVE}, 1
    s_lshl_b32 s48, s47, 15
    s_lshl_b32 s49, s46, 12
    s_add_u32 s48, s48, s49
    s_add_u32 s48, s48, 65536
    v_lshlrev_b32 v253, 4, v{L}
    {"s_mov_b32 s68, s48" if opt.kvfirst else "v_add_u32 v248, s48, v253"}
    s_lshl_b32 s48, s47, 14
    s_add_u32 s48, s48, s49
    s_add_u32 s48, s48, {LQ}
    {"s_mov_b32 s69, s48" if opt.kvfirst else "v_add_u32 v249, s48, v253"}
    s_lshl_b32 s48, s{S_PAIR}, 3
    s_add_u32 s48, s48, s{S_RB}
    s_mul_i32 s48, s48, {opt.kvs}
    s_lshl_b32 s47, s47, 15
    s_add_u32 s48, s48, s47
    s_add_u32 s48, s48, s49
    s_add_u32 s48, s48, {WS_KV if not (opt.exp & 1) else 0x10000000}
    s_cmp_eq_u32 s{S_RB}, {7 if opt.exp & 32 else 99}
    s_cselect_b32 s48, 0x10000000, s48
    s_mov_b32 s49, s48
    s_add_u32 s48, s49, 8192
    s_add_u32 s50, s49, {16384+8192}
    s_add_u32 s51, s49, 16384
    s_mov_b32 s64, {hex(f2u(c))}
    """)
    def pack(dst, x, y):
        a(f"v_cvt_pk_bf16_f32 v{dst}, v{x}, v{x+1}")
        a(f"v_cvt_pk_bf16_f32 v{dst+1}, v{x+2}, v{x+3}")
        a(f"v_cvt_pk_bf16_f32 v{dst+2}, v{y}, v{y+1}")
        a(f"v_cvt_pk_bf16_f32 v{dst+3}, v{y+2}, v{y+3}")
    def qpack(sb):
        d = acc(sb, 0)
        for r in range(0, 8, 2):
            a(f"v_pk_mul_f32 {vr(d+r,2)}, {vr(d+r,2)}, s[64:65] op_sel_hi:[1,0]")
        pack(d, acc(sb, 0), acc(sb, 1))
    if opt.kvfirst:
        blocks = lambda g: [(acc(sb, 2), acc(sb, 3), 48, sb, 0) for sb in range(4*g, 4*g + 4)] + [(acc(i & ~1, 4 + (i & 1)), acc(i | 1, 4 + (i & 1)), 50, i, 16384) for i in range(4*g, 4*g + 4)]
        st = lambda x, sreg, i: f"buffer_store_dwordx4 {vr(x,4)}, v253, {SRD_WS}, s{sreg + (i >> 2)} offen offset:{(i & 3)*1024} {opt.kvst}"
        wr = lambda x, i, off: f"ds_write_b128 v254, {vr(x,4)} offset:{off + blk(i)*1024}"
        allb = blocks(0) + blocks(1)
        early_w = [n for n in range(16) if not 4 <= n < 8] if opt.kvfirst == 2 else []
        if part == 0:
            a("v_add_u32 v254, s68, v253")
            return
        if part >= 2:
            for n in range(8 * (part - 2), 8 * (part - 1)):
                x, y, sreg, i, off = allb[n]
                pack(x, x, y)
                if n < 16 - opt.stlate: a(st(x, sreg, i))
                if n in early_w: a(wr(x, i, off))
            return
        a("v_add_u32 v249, s69, v253")
        rest = [wr(allb[n][0], allb[n][3], allb[n][4]) for n in range(16) if n not in early_w]
        per = len(rest) // 4
        for sb in range(4):
            for l in rest[sb*per:(sb+1)*per]: a(l)
            qpack(sb)
            a(f"ds_write_b128 v249, {vr(acc(sb,0),4)} offset:{blk(sb)*1024}")
        a("s_setprio 2\ns_waitcnt lgkmcnt(0)\ns_barrier")
        for n in range(16 - opt.stlate, 16): a(st(allb[n][0], allb[n][2], allb[n][3]))
        for sb in range(4, 8):
            qpack(sb)
            a(f"ds_write_b128 v249, {vr(acc(sb,0),4)} offset:{blk(sb)*1024}")
        return
    if part == 0: opt._late = []
    late = opt._late
    def store(n, txt):
        if (n % 2 == 1 if opt.stalt else n >= 16 - opt.stlate): late.append(txt)
        else:
            if opt.stwin0 and n >= opt.stwin0: a(f"s_waitcnt vmcnt({opt.stwin0 - 1})")
            a(txt)
    n = 8 * part
    for m in (2 * part, 2 * part + 1):
        for sb in (2 * m, 2 * m + 1):
            d = acc(sb, 2)
            pack(d, acc(sb, 2), acc(sb, 3))
            store(n, f"buffer_store_dwordx4 {vr(d,4)}, v253, {SRD_WS}, s{48 + (sb >> 2)} offen offset:{(sb & 3)*1024} {opt.kvst}"); n += 1
            a(f"ds_write_b128 v248, {vr(d,4)} offset:{blk(sb)*1024}")
            if part:
                qpack(sb - 4)
                a(f"ds_write_b128 v249, {vr(acc(sb-4,0),4)} offset:{blk(sb-4)*1024}")
        for nb in range(2):
            d = acc(2 * m, 4 + nb); i = 2 * m + nb
            pack(d, acc(2 * m, 4 + nb), acc(2 * m + 1, 4 + nb))
            store(n, f"buffer_store_dwordx4 {vr(d,4)}, v253, {SRD_WS}, s{50 + (i >> 2)} offen offset:{(i & 3)*1024} {opt.kvst}"); n += 1
            a(f"ds_write_b128 v248, {vr(d,4)} offset:{16384 + blk(i)*1024}")
    if part == 0: return
    a("s_setprio 2\ns_waitcnt lgkmcnt(0)\ns_barrier")
    qs = list(range(4, 8))
    def ownq():
        sb = qs.pop(0); qpack(sb)
        a(f"ds_write_b128 v249, {vr(acc(sb,0),4)} offset:{blk(sb)*1024}")
    for k, t in enumerate(late):
        if opt.stwin: a(f"s_waitcnt vmcnt({opt.stwin - 1})")
        a(t)
        if opt.stmix and k % 2 == 1 and qs: ownq()
    while qs: ownq()
    a("s_nop 1")

def b_phase(a, X, Y, kind, step, mask=None):
    S, P = X.s, T_P
    M32 = "v_mfma_f32_32x32x16_bf16"; M16 = "v_mfma_f32_16x16x32_bf16"
    e = lambda n: a(f"v_exp_f32 v{S+n}, v{S+n}")
    c = lambda k: a(f"v_cvt_pk_bf16_f32 v{P+k}, v{S+2*k}, v{S+2*k+1}")
    if kind == 'B': a("s_waitcnt lgkmcnt(1)")
    a(f"{M32} {vr(Y.s,16)}, {vr(T_K,4)}, {vr(Y.q,4)}, {vr(mask,16) if mask is not None else 0}")
    if kind == 'A': a(f"v_add_u32 v{T_ADR}, {step & 0xffffffff}, v{T_ADR}")
    e(0); e(1); e(2); c(0)
    a(f"{M32} {vr(Y.s,16)}, {vr(T_K+4,4)}, {vr(Y.q+4,4)}, {vr(Y.s,16)}")
    if kind == 'A':
        a(f"ds_read_b128 {vr(T_K,4)}, v{T_ADR}")
        a(f"ds_read_b128 {vr(T_K+4,4)}, v{T_ADR} offset:512")
    e(3); e(4); c(1); e(5)
    if kind != 'F':
        if kind == 'B': a("s_waitcnt lgkmcnt(0)")
        a(f"{M32} {vr(Y.o,16)}, {vr(T_V+4,4)}, {vr(P+4,4)}, {vr(Y.o,16)}")
        if kind == 'A': a(f"ds_read_b128 {vr(T_V+4,4)}, v{T_ADR} offset:{16384 + 512 - step}")
    e(6); c(2); e(7); e(8)
    if kind != 'F':
        a(f"{M16} {vr(Y.l,4)}, {vr(T_SEL,4)}, {vr(P+4,4)}, {vr(Y.l,4)}")
    c(3); e(9); e(10); c(4)
    if kind == 'A': a("s_waitcnt lgkmcnt(3)")
    a(f"{M32} {vr(X.o,16)}, {vr(T_V,4)}, {vr(P,4)}, {vr(X.o,16)}")
    if kind != 'A': a(f"ds_read_b128 {vr(T_V,4)}, v{T_ADR} offset:16384")
    e(11); e(12); c(5); e(13)
    a(f"{M16} {vr(X.l,4)}, {vr(T_SEL,4)}, {vr(P,4)}, {vr(X.l,4)}")
    e(14); e(15); c(6)
    if kind == 'B': a("s_sub_u32 s50, s50, 1\ns_cmp_lg_u32 s50, 0")
    c(7)

def b_section(a, own):
    X, Y = (UB, UA) if own else (UA, UB)
    step = -2048 if own else 2048
    mask = T_MD if own else T_ME
    tag = "own" if own else "halo"
    M32 = "v_mfma_f32_32x32x16_bf16"; M16 = "v_mfma_f32_16x16x32_bf16"
    if own: a(f"s_add_u32 s46, s{UA.sq}, 32\ns_add_u32 s50, s{UA.sq}, 1")
    else: a(f"s_add_u32 s46, s{UA.sq}, 1\ns_sub_u32 s50, 7, s{UA.sq}")
    a(f"""
    s_lshl_b32 s46, s46, 11
    s_add_u32 s46, s46, s{S_HB}
    v_add_u32 v{T_ADR}, s46, v{T_PAT}
    v_add_u32 v{T_T0}, {-step & 0xffffffff}, v{T_ADR}
    ds_read_b128 {vr(T_P,4)}, v{T_T0}
    ds_read_b128 {vr(T_P+4,4)}, v{T_T0} offset:512
    ds_read_b128 {vr(T_K,4)}, v{T_ADR}
    ds_read_b128 {vr(T_K+4,4)}, v{T_ADR} offset:512
    ds_read_b128 {vr(T_V,4)}, v{T_T0} offset:16384
    ds_read_b128 {vr(T_V+4,4)}, v{T_T0} offset:{16384+512}
    s_waitcnt lgkmcnt(5)
    {M32} {vr(X.s,16)}, {vr(T_P,4)}, {vr(X.q,4)}, {vr(mask,16)}
    s_waitcnt lgkmcnt(4)
    {M32} {vr(X.s,16)}, {vr(T_P+4,4)}, {vr(X.q+4,4)}, {vr(X.s,16)}
    s_waitcnt lgkmcnt(0)
    s_nop 7
    s_nop 1
    """)
    b_phase(a, X, Y, 'F', step, mask)
    a.label(f"L_pair_{tag}")
    b_phase(a, Y, X, 'A', step)
    b_phase(a, X, Y, 'B', step)
    a(f"""
    s_cbranch_scc1 L_pair_{tag}
    s_nop 0
    {M32} {vr(X.o,16)}, {vr(T_V+4,4)}, {vr(T_P+4,4)}, {vr(X.o,16)}
    {M16} {vr(X.l,4)}, {vr(T_SEL,4)}, {vr(T_P+4,4)}, {vr(X.l,4)}
    """)

def b_final(a, u, tag, opt):
    lo, hi = (2.0 ** -40, 2.0 ** 40) if not opt.force_slow else (2.0 ** 3, 2.0 ** 9)
    a(f"""
    s_lshl_b32 s46, s{S_RB}, 6
    s_lshl_b32 s47, s{S_PAIR}, 1
    s_add_u32 s46, s46, s47
    s_and_b32 s47, s{S_WAVE}, 1
    s_add_u32 s46, s46, s47
    s_add_u32 s46, s46, 32
    s_mul_i32 s46, s46, {opt.os}
    s_lshl_b32 s73, s{u.sq}, 11
    s_add_u32 s73, s73, s46
    v_cmp_le_f32 vcc, {hex(f2u(lo))}, v{u.l}
    s_mov_b64 s[46:47], vcc
    v_cmp_ge_f32 vcc, {hex(f2u(hi))}, v{u.l}
    s_and_b64 s[46:47], s[46:47], vcc
    s_cmp_eq_u64 s[46:47], -1
    {"s_nop 0" if opt.exp else f"s_cbranch_scc0 L_slow_{tag}"}
    """)
    a.label(f"L_back_{tag}")
    a(f"v_rcp_f32 v{T_T0}, v{u.l}")
    a("s_nop 0")
    for r in range(0, 16, 2):
        a(f"v_pk_mul_f32 {vr(u.o+r,2)}, {vr(u.o+r,2)}, {vr(T_T0,2)} op_sel_hi:[1,0]")
    for k in range(8):
        a(f"v_cvt_pk_bf16_f32 v{u.o+k}, v{u.o+2*k}, v{u.o+2*k+1}")
    a(f"buffer_store_dwordx4 {vr(u.o,4)}, v{T_PAT}, {SRD_WS}, s73 offen sc1")
    a(f"buffer_store_dwordx4 {vr(u.o+4,4)}, v{T_PAT}, {SRD_WS}, s73 offen offset:512 sc1")

def b_slow(a, u, tag, opt):
    S, P, M = T_S, T_P, T_T0 + 2
    a.label(f"L_slow_{tag}")
    a(f"""
    s_nop 7
    s_nop 7
    v_mfma_f32_32x32x16_bf16 {vr(u.o,16)}, {vr(T_Z,4)}, {vr(T_Z,4)}, 0
    v_mfma_f32_16x16x32_bf16 {vr(u.l,4)}, {vr(T_Z,4)}, {vr(T_Z,4)}, 0
    v_mov_b32 v{M}, {hex(f2u(-3e38))}
    s_add_u32 s52, s{u.sq}, 8
    """)
    for ps in range(2):
        a(f"""
        s_cmp_eq_u32 s{S_RB}, 0
        s_cselect_b32 s51, 8, s{u.sq}
        """)
        a.label(f"L_slowl_{tag}{ps}")
        a(f"""
        s_lshl_b32 s46, s{S_PAIR}, 3
        s_add_u32 s46, s46, s{S_RB}
        s_lshr_b32 s47, s51, 3
        s_add_u32 s46, s46, s47
        s_mul_i32 s46, s46, {opt.kvs}
        s_and_b32 s47, s51, 7
        s_lshl_b32 s47, s47, 11
        s_add_u32 s46, s46, s47
        s_add_u32 s46, s46, s{S_HB}
        s_add_u32 s46, s46, {WS_KV - opt.kvs}
        s_add_u32 s47, s46, 16384
        buffer_load_dwordx4 {vr(T_K,4)}, v{T_PAT}, {SRD_WS}, s46 offen sc1
        buffer_load_dwordx4 {vr(T_K+4,4)}, v{T_PAT}, {SRD_WS}, s46 offen offset:512 sc1
        buffer_load_dwordx4 {vr(T_V,4)}, v{T_PAT}, {SRD_WS}, s47 offen sc1
        buffer_load_dwordx4 {vr(T_V+4,4)}, v{T_PAT}, {SRD_WS}, s47 offen offset:512 sc1
        s_cmp_eq_u32 s51, s52
        s_cselect_b32 s47, 1.0, 0
        s_cmp_eq_u32 s51, s{u.sq}
        s_cselect_b32 s48, 1.0, 0
        """)
        for n in range(16):
            a(f"v_mul_f32 v{T_C+n}, s47, v{T_MD+n}")
            a(f"v_fmac_f32 v{T_C+n}, s48, v{T_ME+n}")
        a(f"""
        s_waitcnt vmcnt(0)
        s_nop 1
        v_mfma_f32_32x32x16_bf16 {vr(S,16)}, {vr(T_K,4)}, {vr(u.q,4)}, {vr(T_C,16)}
        v_mfma_f32_32x32x16_bf16 {vr(S,16)}, {vr(T_K+4,4)}, {vr(u.q+4,4)}, {vr(S,16)}
        s_nop 7
        s_nop 7
        """)
        if ps == 0:
            for n in range(0, 16, 2):
                a(f"v_max3_f32 v{M}, v{S+n}, v{S+n+1}, v{M}")
        else:
            for n in range(16): a(f"v_sub_f32 v{S+n}, v{S+n}, v{M}")
            for n in range(16): a(f"v_exp_f32 v{S+n}, v{S+n}")
            a("s_nop 0")
            for k in range(8): a(f"v_cvt_pk_bf16_f32 v{P+k}, v{S+2*k}, v{S+2*k+1}")
            a(f"""
            s_nop 1
            v_mfma_f32_32x32x16_bf16 {vr(u.o,16)}, {vr(T_V,4)}, {vr(P,4)}, {vr(u.o,16)}
            v_mfma_f32_32x32x16_bf16 {vr(u.o,16)}, {vr(T_V+4,4)}, {vr(P+4,4)}, {vr(u.o,16)}
            v_mfma_f32_16x16x32_bf16 {vr(u.l,4)}, {vr(T_SEL,4)}, {vr(P,4)}, {vr(u.l,4)}
            v_mfma_f32_16x16x32_bf16 {vr(u.l,4)}, {vr(T_SEL,4)}, {vr(P+4,4)}, {vr(u.l,4)}
            """)
        a(f"""
        s_add_u32 s51, s51, 1
        s_cmp_le_u32 s51, s52
        s_cbranch_scc1 L_slowl_{tag}{ps}
        """)
        if ps == 0:
            a(f"""
            v_mov_b32 v{M+1}, v{M}
            s_nop 1
            v_permlane32_swap_b32 v{M}, v{M+1}
            s_nop 1
            v_max_f32 v{M}, v{M}, v{M+1}
            """)
    a(f"s_nop 7\ns_nop 7\ns_branch L_back_{tag}")

def b_attention(a, opt):
    a(f"""
    s_lshl_b32 s46, s{S_WAVE}, 7
    s_add_u32 s46, s46, s{S_FLAG}
    v_mov_b32 v{T_T0}, 1
    v_lshlrev_b32 v{T_T0+1}, 2, v{V_LANE}
    s_mov_b32 exec_hi, 0
    s_waitcnt vmcnt(0)
    buffer_store_dword v{T_T0}, v{T_T0+1}, {SRD_WS}, s46 offen sc1
    s_mov_b32 exec_hi, -1
    """)
    stamp(a, 25, opt); diag(a, opt, "flag")
    if opt.flagfirst:
        a("s_mov_b32 s68, s46"); b_consts(a); a("s_mov_b32 s46, s68")
    a(f"""
    s_cmp_ge_u32 s{S_WAVE}, 2
    s_cbranch_scc1 L_bnopoll
    s_cmp_eq_u32 s{S_RB}, 0
    s_cbranch_scc1 L_bnopoll
    s_sub_u32 s46, s46, 2048
    s_mov_b32 s48, {SPIN_MAX}
    v_and_b32 v{T_C+1}, 1, v{V_LANE}
    v_lshlrev_b32 v{T_C+1}, 8, v{T_C+1}
    s_lshl_b32 s47, s{S_PAIR}, 3
    s_add_u32 s47, s47, s{S_RB}
    s_mul_i32 s47, s47, {opt.kvs}
    s_add_u32 s47, s47, s{S_HB}
    s_add_u32 s47, s47, {WS_KV - opt.kvs}
    v_lshlrev_b32 v{T_T0}, 4, v{V_LANE}
    """)
    if opt.bwait: a("s_waitcnt vmcnt(0)")
    a.label("L_bpoll_l")
    a(f"""
    buffer_load_dword v{T_C}, v{T_C+1}, {SRD_WS}, s46 offen sc1
    s_sub_u32 s48, s48, 1
    s_cmp_eq_u32 s48, 0
    s_cbranch_scc1 L_bpoll_d
    s_waitcnt vmcnt(0)
    v_cmp_ne_u32 vcc, 1, v{T_C}
    s_cbranch_vccnz L_bpoll_l
    """)
    a.label("L_bpoll_d")
    stamp(a, 26, opt)
    a(f"s_mov_b32 m0, s{S_HB}\ns_mov_b32 s48, 8")
    a.label("L_bdma")
    for k in range(4):
        if not (opt.exp & 2): a(f"buffer_load_dwordx4 v{T_T0}, {SRD_WS}, s47 offen offset:{k*1024} {opt.kvld} lds")
    a("""
    s_add_u32 m0, m0, 4096
    s_add_u32 s47, s47, 4096
    s_sub_u32 s48, s48, 1
    s_cmp_lg_u32 s48, 0
    s_cbranch_scc1 L_bdma
    """)
    a.label("L_bnopoll")
    a(f"s_setprio {opt.oprio}")
    a.label("L_battn1")
    stamp(a, 24, opt); cstamp(a, 34, opt)
    a(f"""
    s_lshr_b32 s46, s{S_HB}, 1
    s_add_u32 s46, s46, {LQ}
    s_lshl_b32 s47, s{UA.sq}, 11
    s_add_u32 s47, s47, s46
    v_add_u32 v{T_ADR}, s47, v{T_PAT}
    ds_read_b128 {vr(UB.q,4)}, v{T_ADR} offset:2048
    ds_read_b128 {vr(UB.q+4,4)}, v{T_ADR} offset:{2048+512}
    ds_read_b128 {vr(UA.q,4)}, v{T_ADR}
    ds_read_b128 {vr(UA.q+4,4)}, v{T_ADR} offset:512
    """)
    b_section(a, True)
    stamp(a, 27, opt)
    a(f"s_cmp_ge_u32 s{S_WAVE}, 4\ns_cbranch_scc1 L_nofsetup")
    f_consumer(a, opt, 0)
    a.label("L_nofsetup")
    a(f"""
    s_setprio 0
    s_waitcnt vmcnt(0) lgkmcnt(0)
    s_barrier
    s_cmp_lt_u32 s{S_WAVE}, 4
    s_cbranch_scc1 L_nofill
    s_setprio {opt.bprio}
    """)
    if opt.fill2: a(f"s_cmp_ge_u32 s{S_WAVE}, 6\ns_cbranch_scc1 L_nofill")
    f_prefill(a, opt, "B")
    a.label("L_nofill")
    stamp(a, 28, opt); diag(a, opt, "T2")
    a(f"""
    s_cmp_eq_u32 s{S_RB}, 0
    s_cbranch_scc1 L_bfin
    """)
    b_section(a, False)
    a.label("L_bfin")
    a("s_waitcnt lgkmcnt(0)\ns_nop 1")
    if opt.f0early:
        a(f"s_cmp_ge_u32 s{S_WAVE}, 4\ns_cbranch_scc1 L_nof0")
        f_consumer(a, opt, 1)
        a.label("L_nof0")
    b_final(a, UB, "b", opt)
    b_final(a, UA, "a", opt)
    stamp(a, 29, opt); cstamp(a, 35, opt)
    a(f"""
    s_cmp_ge_u32 s{S_WAVE}, 4
    s_cbranch_scc1 L_fprod
    """)
    if not opt.f0early: f_consumer(a, opt, 1)
    a("s_branch L_fcons")
    b_slow(a, UA, "a", opt)
    b_slow(a, UB, "b", opt)

def phi_pack(a, dst, x, y, t):
    for i, b in enumerate((x, x + 2, y, y + 2)):
        a(f"v_pk_fma_f32 {vr(t+2*i,2)}, {vr(b,2)}, s[64:65], s[64:65] op_sel_hi:[1,0,0] neg_lo:[0,0,1] neg_hi:[0,0,1]")
    for i in range(8): a(f"v_exp_f32_e64 v{t+i}, v{t+i} clamp")
    for i in range(8): a(f"v_max_f32 v{t+i}, v{t+i}, v{(x if i < 4 else y) + (i & 3)}")
    for i in range(4): a(f"v_pk_add_f32 {vr(t+2*i,2)}, {vr(t+2*i,2)}, s[66:67] op_sel_hi:[1,0]")
    for i in range(4): a(f"v_cvt_pk_bf16_f32 v{dst+i}, v{t+2*i}, v{t+2*i+1}")

A_KV = 192
A_T = 216; A_ONE = 224; A_OP = 228
LA_FIN = 32768
def a_valu(a, m, t):
    for nb in range(2):
        phi_pack(a, acc(2*m, 2+nb), acc(2*m, 2+nb), acc(2*m+1, 2+nb), t)
    for nb in range(2):
        d, x, y = acc(2*m, 4+nb), acc(2*m, 4+nb), acc(2*m+1, 4+nb)
        a(f"v_cvt_pk_bf16_f32 v{d}, v{x}, v{x+1}\nv_cvt_pk_bf16_f32 v{d+1}, v{x+2}, v{x+3}\nv_cvt_pk_bf16_f32 v{d+2}, v{y}, v{y+1}\nv_cvt_pk_bf16_f32 v{d+3}, v{y+2}, v{y+3}")
def a_pre(a, opt):
    L = V_LANE
    a(f"""
    s_mov_b32 s64, {hex(f2u(LOG2E))}
    s_mov_b32 s66, {hex(f2u(1e-6))}
    s_mul_i32 s46, s{S_WAVE}, 6144
    v_lshlrev_b32 v253, 4, v{L}
    v_add_u32 v248, s46, v253
    s_and_b32 s47, s{S_WAVE}, 1
    s_mul_i32 s46, s47, 3072
    s_add_u32 s46, s46, {LA_FIN}
    v_add_u32 v249, s46, v253
    """)
    a_valu(a, 0, XA)

def a_consumer(a, opt):
    L = V_LANE
    for i in range(4): a(f"v_mov_b32 v{A_ONE+i}, 0x3f803f80")
    kvb = lambda db, eb: A_KV + eb * 12 + db * 4
    zb = lambda db: A_KV + db * 12 + 8
    def kvm(m):
        out = []
        for db in range(2):
            c = vr(zb(db), 4)
            out.append(f"v_mfma_f32_16x16x32_bf16 {c}, {vr(acc(2*m,2+db),4)}, {vr(A_ONE,4)}, {c if m else 0}")
        for eb in range(2):
            for db in range(2):
                c = vr(kvb(db, eb), 4)
                out.append(f"v_mfma_f32_16x16x32_bf16 {c}, {vr(acc(2*m,2+db),4)}, {vr(acc(2*m,4+eb),4)}, {c if m else 0}")
        return out
    for m in range(1, 4):
        v = lines_of(a_valu, m, A_T); mf = kvm(m - 1)
        for k, l in enumerate(v):
            a(l)
            if k >= 2 and k % 3 == 2 and mf: a(mf.pop(0))
    for l in kvm(3): a(l)
    a("s_nop 7")
    for i in (2, 5, 0, 1, 3, 4):
        a(f"ds_write_b128 v248, {vr(A_KV+4*i,4)} offset:{i*1024}")
    a("s_waitcnt lgkmcnt(0)\ns_barrier")
    stamp(a, 24, opt)
    for sb in range(8):
        phi_pack(a, acc(sb, 0), acc(sb, 0), acc(sb, 1), A_T)
    a(f"""
    s_lshl_b32 s46, s{S_RB}, 6
    s_lshl_b32 s48, s{S_PAIR}, 1
    s_add_u32 s46, s46, s48
    s_add_u32 s46, s46, s47
    s_mul_i32 s46, s46, {opt.os}
    s_lshr_b32 s48, s{S_WAVE}, 1
    s_lshl_b32 s49, s48, 12
    s_add_u32 s49, s49, s46
    s_add_u32 s48, s49, 8192
    """)
    stamp(a, 25, opt)
    a("s_setprio 3\ns_barrier")
    stamp(a, 28, opt); diag(a, opt, "A2")
    for i in range(3): a(f"ds_read_b128 {vr(A_OP+4*i,4)}, v249 offset:{i*1024}")
    a("s_waitcnt lgkmcnt(0)")
    mf = [f"v_mfma_f32_16x16x32_bf16 {vr(acc(sb,2+i),4)}, {vr(A_OP+4*i,4)}, {vr(acc(sb,0),4)}, 0" for sb in range(8) for i in (2, 0, 1)]
    for _ in range(6): a(mf.pop(0))
    a("s_nop 2")
    for sb in range(8):
        n0, dn = acc(sb, 2), acc(sb, 4)
        a(f"v_add_f32 v{dn}, s66, v{dn}")
        a(f"v_rcp_f32 v{dn}, v{dn}")
        a(mf.pop(0) if mf else "s_nop 0")
        for r in range(0, 8, 2):
            a(f"v_pk_mul_f32 {vr(n0+r,2)}, {vr(n0+r,2)}, {vr(dn,2)} op_sel_hi:[1,0]")
            if r == 4 and mf: a(mf.pop(0))
        for k in range(4):
            a(f"v_cvt_pk_bf16_f32 v{n0+k}, v{n0+2*k}, v{n0+2*k+1}")
            if k == 1 and mf: a(mf.pop(0))
        a(f"buffer_store_dwordx4 {vr(n0,4)}, v253, {SRD_WS}, s{48 + (sb>>2)} offen offset:{(sb&3)*1024} sc1")
    stamp(a, 29, opt)
    if opt.a3 == 1: a("s_barrier")
    f_flag(a)
    if opt.a3 == 2: a("s_barrier")
    a("s_setprio 0")

def a_producer(a, opt):
    L = V_LANE
    V16, VR, VKV, VZ, VQ, VZA, Z = 242, 243, 244, 245, 246, 247, 248
    a(f"""
    s_sub_u32 s46, s{S_WAVE}, 4
    s_and_b32 s47, s46, 1
    s_lshr_b32 s48, s46, 1
    s_mul_i32 s49, s47, 6144
    s_mul_i32 s50, s48, 3072
    s_add_u32 s49, s49, s50
    v_lshlrev_b32 v{V16}, 4, v{L}
    v_add_u32 v{VR}, s49, v{V16}
    s_mul_i32 s49, s47, 3072
    s_add_u32 s49, s49, {LA_FIN}
    s_lshl_b32 s50, s48, 10
    s_add_u32 s50, s50, s49
    v_add_u32 v{VKV}, s50, v{V16}
    s_lshl_b32 s50, s48, 3
    s_add_u32 s50, s50, s49
    v_add_u32 v{VZ}, s50, v{V16}
    v_and_b32 v{VQ}, 48, v{L}
    v_and_b32 v{VZA}, 7, v{L}
    v_lshl_add_u32 v{VZA}, v{VZA}, 14, v{VQ}
    v_and_b32 v6, 3, v{L}
    v_sub_u32 v{VQ}, v{VR}, v{V16}
    v_lshl_add_u32 v{VQ}, v6, 8, v{VQ}
    s_lshl_b32 s51, s{S_PAIR}, 5
    s_add_u32 s51, s51, s46
    s_lshl_b32 s51, s51, 12
    s_add_u32 s51, s51, {WS_PART}
    s_lshl_b32 s52, s{S_RB}, 14
    s_add_u32 s52, s52, s51
    v_mov_b32 v0, 0
    v_mov_b32 v1, 0
    v_mov_b32 v4, 0
    v_mov_b32 v5, 0
    v_and_b32 v6, 1, v{L}
    v_lshlrev_b32 v6, 4, v6
    v_mov_b32 v7, 0x3f80
    v_lshlrev_b32 v6, v6, v7
    s_mov_b32 vcc_lo, 0x00300003
    s_mov_b32 vcc_hi, 0x30000300
    v_cndmask_b32 v2, 0, v6, vcc
    s_mov_b32 vcc_lo, 0x00c0000c
    s_mov_b32 vcc_hi, 0xc0000c00
    v_cndmask_b32 v3, 0, v6, vcc
    s_setprio 2
    s_barrier
    """)
    stamp(a, 24, opt)
    for i in range(3):
        a(f"ds_read_b128 {vr(16+4*i,4)}, v{VR if i < 2 else VQ} offset:{i*1024}")
        a(f"ds_read_b128 {vr(28+4*i,4)}, v{VR if i < 2 else VQ} offset:{12288 + i*1024}")
    a("s_waitcnt lgkmcnt(2)")
    for r in range(0, 8, 2): a(f"v_pk_add_f32 {vr(16+r,2)}, {vr(16+r,2)}, {vr(28+r,2)}")
    for k in range(4): a(f"v_cvt_pk_bf16_f32 v{8+k}, v{16+2*k}, v{17+2*k}")
    a(f"""
    buffer_store_dwordx4 v[8:11], v{V16}, {SRD_WS}, s52 offen sc1
    s_waitcnt lgkmcnt(0)
    v_pk_add_f32 v[12:13], v[24:25], v[36:37]
    v_pk_add_f32 v[14:15], v[26:27], v[38:39]
    s_mov_b32 s48, {SPIN_MAX // 8}
    s_mov_b64 exec, 0xff
    buffer_store_dwordx4 v[12:15], v{V16}, {SRD_WS}, s52 offen offset:1024 sc1
    s_mov_b64 exec, -1
    """)
    if opt.gatelate and opt.agate:
        producer_gate(a, opt, "A")
        a(f"s_mov_b32 s48, {SPIN_MAX // 8}")
    f_prefill(a, opt, "A1", opt.afill, opt.afill + opt.afill2)
    if opt.await0: a(f"s_waitcnt vmcnt({2 * opt.afill2 + (1 if opt.gatelate and opt.agate else 0)})")
    stamp(a, 25, opt)
    a.label("L_agather")
    a(f"buffer_load_dwordx4 {vr(Z,4)}, v{VZA}, {SRD_WS}, s51 offen offset:1024 sc1")
    a("s_mov_b32 s53, s51")
    for src in range(8):
        a(f"buffer_load_dwordx4 {vr(16+4*src,4)}, v{V16}, {SRD_WS}, s53 offen sc1")
        if src < 7: a("s_add_u32 s53, s53, 16384")
    a("s_waitcnt vmcnt(8)")
    for sh in (4, 2, 1):
        for r in range(4): a(f"v_add_f32_dpp v{Z+r}, v{Z+r}, v{Z+r} row_ror:{sh} row_mask:0xf bank_mask:0xf")
    for src in range(8):
        a(f"s_waitcnt vmcnt({7-src})")
        a(f"v_mfma_f32_16x16x32_bf16 v[8:11], v[2:5], {vr(16+4*src,4)}, {'v[8:11]' if src else 0}")
        a(f"v_mfma_f32_16x16x32_bf16 v[12:15], v[0:3], {vr(16+4*src,4)}, {'v[12:15]' if src else 0}")
    a(f"""
    v_pk_add_f32 v[6:7], {vr(Z,2)}, {vr(Z+2,2)}
    v_add_f32 v6, v6, v7
    v_cvt_pk_bf16_f32 v{Z}, v{Z}, v{Z+1}
    v_cvt_pk_bf16_f32 v{Z+1}, v{Z+2}, v{Z+3}
    s_nop 3
    v_cmp_u_f32 vcc, v6, v12
    s_cbranch_vccz L_apoll_d
    """)
    a.label("L_apoll")
    a(f"""
    s_sub_u32 s48, s48, 1
    s_cmp_eq_u32 s48, 0
    s_cbranch_scc1 L_apoll_d
    buffer_load_dword v7, v{VZA}, {SRD_WS}, s51 offen offset:1024 sc1
    s_waitcnt vmcnt(0)
    v_cmp_eq_u32 vcc, -1, v7
    s_cbranch_vccnz L_apoll
    s_branch L_agather
    """)
    a.label("L_apoll_d")
    stamp(a, 26, opt)
    if opt.prof: a(f"s_sub_u32 s94, {SPIN_MAX//8+1}, s48\nv_writelane_b32 v255, s94, 38")
    for k in range(4): a(f"v_cvt_pk_bf16_f32 v{8+k}, v{8+2*k}, v{9+2*k}")
    a(f"""
    ds_write_b64 v{VZ}, {vr(Z,2)} offset:2048
    ds_write_b128 v{VKV}, v[8:11]
    s_waitcnt lgkmcnt(0)
    """)
    stamp(a, 27, opt)
    a("s_barrier")
    a("s_setprio 0")
    if opt.a3: a("s_barrier")

F_FL, F_FA = 244, 248
def f_flag(a, wait="s_waitcnt vmcnt(0)"):
    a(f"""
    s_lshl_b32 s46, s{S_WAVE}, 7
    s_add_u32 s46, s46, s{S_FLAG}
    v_mov_b32 v{F_FL+6}, 1
    v_lshlrev_b32 v{F_FL+7}, 2, v{V_LANE}
    s_mov_b32 exec_hi, 0
    {wait}
    buffer_store_dword v{F_FL+6}, v{F_FL+7}, {SRD_WS}, s46 offen offset:1024 sc1
    s_mov_b32 exec_hi, -1
    """)
def f_gate_addr(a, which, opt):
    a(f"""
    v_and_b32 v{F_FA}, 15, v{V_LANE}
    v_lshlrev_b32 v{F_FA}, 14, v{F_FA}
    {f"v_mov_b32 v{F_FL}, 4" if which == "B" else f"v_lshrrev_b32 v{F_FL}, 4, v{V_LANE}"}
    v_lshl_add_u32 v{F_FA}, v{F_FL}, 7, v{F_FA}
    s_lshl_b32 s{S_GA}, s{S_RT}, 11
    s_add_u32 s{S_GA}, s{S_GA}, {WS_FLAG + (262144 if which == "B" else 0)}
    """)
def f_gate(a, which, opt, probed=None):
    assert opt.bflag1
    a(f"s_cmp_lg_u32 s{S_WAVE}, {opt.gwave}\ns_cbranch_scc1 L_gated{which}\ns_mov_b32 s48, {SPIN_MAX}")
    if probed is None: f_gate_addr(a, which, opt)
    else: a(f"s_waitcnt vmcnt({probed})\nv_cmp_ne_u32 vcc, 1, v{F_FL}\ns_cbranch_vccz L_gated{which}")
    a(f"s_branch L_gate_e{which}")
    a.label(f"L_gate{which}")
    if opt.backoff: a(f"s_sleep {opt.backoff}")
    a.label(f"L_gate_e{which}")
    a(f"""
    buffer_load_dword v{F_FL}, v{F_FA}, {SRD_WS}, s{S_GA} offen offset:1024 sc1
    s_sub_u32 s48, s48, 1
    s_cmp_eq_u32 s48, 0
    s_cbranch_scc1 L_gated{which}
    s_waitcnt vmcnt(0)
    v_cmp_ne_u32 vcc, 1, v{F_FL}
    s_cbranch_vccnz L_gate{which}
    """)
    a.label(f"L_gated{which}")
FV_W0, FV_W1 = 240, 241
S_FW, S_FWL = 90, 91
SRD_WO = "s[80:83]"
NPRE = 12
def grp_addr(g): return ((g + 2) % 5) * 32768
LG = grp_addr(3)

def f_rot(a, opt, dst):
    a(f"s_lshl_b32 s{dst}, s{S_CT}, 1\ns_and_b32 s{dst}, s{dst}, {opt.fstag}")

WR = 80
def f_regload(a, lo, hi, opt=None, tmp=57):
    for st in range(lo, hi):
        r = WR + 8 * (st - NPRE)
        srd = SRD_WO if st < 16 else "s[84:87]"
        a(f"""
        s_mov_b32 s{tmp}, {(st & 15) << 17}
        buffer_load_dwordx4 {vr(r,4)}, v{FV_W0}, {srd}, s{tmp} offen
        buffer_load_dwordx4 {vr(r+4,4)}, v{FV_W1}, {srd}, s{tmp} offen offset:1024
        """)
        if opt and st == lo + opt.flagat - 1 and not opt.bflag1: f_flag(a, f"s_waitcnt vmcnt({2*opt.flagat})")

def f_setup(a, opt):
    L = V_LANE
    a(f"""
    s_sub_u32 s46, s{S_WAVE}, 4
    v_lshrrev_b32 v{FV_W1}, {2 if opt.f32 else 3}, v{L}
    v_xor_b32 v{FV_W0}, v{FV_W1}, v{L}
    v_and_b32 v{FV_W0}, {4 if opt.f32 else 6}, v{FV_W0}
    v_and_or_b32 v{FV_W0}, v{L}, {3 if opt.f32 else 1}, v{FV_W0}
    v_lshrrev_b32 v{FV_W1}, 3, v{L}
    v_lshlrev_b32 v{FV_W0}, 4, v{FV_W0}
    v_lshl_add_u32 v{FV_W0}, v{FV_W1}, 11, v{FV_W0}
    s_lshl_b32 s47, s{S_CT}, 7
    s_lshl_b32 s48, s46, 15
    s_add_u32 s47, s47, s48
    v_add_u32 v{FV_W0}, s47, v{FV_W0}
    v_add_u32 v{FV_W1}, {16384 - 1024}, v{FV_W0}
    v_mov_b32 v224, 0
    s_lshl_b32 s{S_FWL}, s46, 11
    s_add_u32 s{S_FWL}, s{S_FWL}, 65536
    s_mov_b32 s80, s8
    s_and_b32 s81, s9, 0xffff
    s_mov_b32 s82, 0x200000
    s_mov_b32 s83, 0x20000
    s_mov_b32 s84, s14
    s_and_b32 s85, s15, 0xffff
    s_mov_b32 s86, 0x200000
    s_mov_b32 s87, 0x20000
    """)

def f_prefill(a, opt, ty, lo=0, hi=NPRE):
    if opt.exp & 16 or hi <= lo: return
    a(f"s_mov_b32 s49, {hi - lo}\ns_mov_b32 s{S_FW}, {lo}")
    a.label(f"L_fill{ty}")
    a(f"""
    s_lshl_b32 s57, s{S_FW}, 17
    s_xor_b32 s57, s57, s{S_ROT}
    s_mov_b32 m0, s{S_FWL}
    s_add_u32 s{S_FWL}, s{S_FWL}, 8192
    s_add_u32 s{S_FW}, s{S_FW}, 1
    buffer_load_dwordx4 v{FV_W0}, {SRD_WO}, s57 offen lds
    buffer_load_dwordx4 v{FV_W1}, {SRD_WO}, s57 offen offset:1024 lds
    """)
    if ty == "B" and opt.fill2:
        a(f"""
        s_add_u32 m0, m0, 4096
        s_add_u32 s57, s57, 65536
        buffer_load_dwordx4 v{FV_W0}, {SRD_WO}, s57 offen lds
        buffer_load_dwordx4 v{FV_W1}, {SRD_WO}, s57 offen offset:1024 lds
        """)
    a(f"""
    s_sub_u32 s49, s49, 1
    s_cmp_lg_u32 s49, 0
    s_cbranch_scc1 L_fill{ty}
    """)

def f_producer(a, opt):
    L = V_LANE
    hi = 32 - opt.n13 - opt.n14 - sum(opt.cl)
    rest = 2 * (hi - NPRE - opt.na15)
    a("s_branch L_fprodA")
    a.label("L_fprod")
    a("s_setprio 0\ns_waitcnt vmcnt(4)")
    f_regload(a, NPRE, NPRE + opt.na15)
    a.label("L_fprodA")
    if opt.aprobe:
        f_gate_addr(a, "A", opt)
        a(f"""
        s_cmp_eq_u32 s{S_WAVE}, {opt.gwave}
        s_cbranch_scc0 L_noprobe
        buffer_load_dword v{F_FL}, v{F_FA}, {SRD_WS}, s{S_GA} offen offset:1024 sc1
        L_noprobe:
        """)
    f_regload(a, NPRE + opt.na15, hi)
    a(f"s_cmp_eq_u32 s{S_BR}, 0\ns_cbranch_scc0 L_nowaitfill\ns_waitcnt vmcnt({rest})\nL_nowaitfill:")
    a(f"""
    s_sub_u32 s47, s{S_WAVE}, 4
    s_lshl_b32 s47, s47, 11
    v_lshlrev_b32 v10, 4, v{L}
    v_add_u32 v10, s47, v10
    v_add_u32 v11, 65536, v10
    v_add_u32 v12, 131072, v10
    """)
    stamp(a, 39, opt)
    def gate(which): f_gate(a, which, opt)
    def put(g):
        ad = grp_addr(g)
        for k in range(8):
            off = (ad & 65535) + (k >> 1) * 8192 + (k & 1) * 1024
            a(f"ds_write_b128 v{10 + (ad >> 16)}, {vr(WR + (g-3)*32 + 4*k, 4)} offset:{off}")
    f_gate(a, "A", opt, rest if opt.aprobe else None)
    a("s_barrier")
    stamp(a, 40, opt); cstamp(a, 36, opt)
    a("s_waitcnt vmcnt(0)")
    for k in range(8):
        if k == 1 and opt.bflag1:
            a(f"s_cmp_lg_u32 s{S_WAVE}, 4\ns_cbranch_scc1 L_noflag1\ns_setprio 3")
            f_flag(a, "")
            a("s_setprio 0")
            a.label("L_noflag1")
        if opt.putsh is None:
            if k == 0: put(3); put(4)
            elif k <= 3: put(4 + k)
        elif 3 <= k + opt.putsh <= 7: put(k + opt.putsh)
        if k == 2:
            a("s_setprio 3"); gate("B"); a("s_setprio 0")
            stamp(a, 41, opt)
        if k == 3:
            a(f"""
            s_lshl_b32 s47, s{S_RT}, 1
            s_add_u32 s47, s47, s{S_RH}
            s_lshl_b32 s47, s47, 2
            s_add_u32 s47, s47, s{S_WAVE}
            s_lshl_b32 s47, s47, 12
            s_add_u32 s47, s47, {WS_G - 4*4096}
            v_and_b32 v2, 31, v{L}
            v_lshlrev_b32 v1, 7, v2
            buffer_load_dword v3, v1, {SRD_WS}, s47 offen sc1
            v_lshlrev_b32 v2, 2, v2
            s_lshl_b32 s47, s{S_WAVE}, 7
            v_add_u32 v2, s47, v2
            """)
        if k == 5:
            a(f"s_waitcnt vmcnt(0)\nds_write_b32 v2, v3 offset:{LG}")
        a("s_waitcnt lgkmcnt(0)\ns_barrier")
        stamp(a, 44 + k, opt)
    stamp(a, 42, opt); cstamp(a, 37, opt)
    prof_dump(a, opt, WS_PROF)
    a("s_endpgm")

def f_consumer(a, opt, part):
    L = V_LANE
    AC, ST, WB, OB = 0, 32, 64, 160
    VO, VW, T = 224, 226, 230
    F32 = opt.f32
    if part: pass
    elif F32:
        a(f"""
        v_and_b32 v{VO}, 15, v{L}
        v_lshlrev_b32 v{VO}, 4, v{VO}
        v_bfe_u32 v{T}, v{L}, 4, 1
        v_lshl_add_u32 v{VO}, v{T}, 10, v{VO}
        v_lshrrev_b32 v{T+1}, 5, v{L}
        v_lshl_add_u32 v{VO}, v{T+1}, 8, v{VO}
        v_lshlrev_b32 v{T}, 5, v{T}
        v_lshl_add_u32 v{T}, v{T+1}, 9, v{T}
        v_bfe_u32 v{T+1}, v{L}, 2, 2
        v_lshl_add_u32 v{T}, v{T+1}, 7, v{T}
        v_bfe_u32 v{T+1}, v{L}, 3, 1
        v_lshl_add_u32 v{T}, v{T+1}, 6, v{T}
        v_and_b32 v{T+1}, 3, v{L}
        v_lshl_add_u32 v{T}, v{T+1}, 3, v{T}
        v_add_u32 v{VW}, {grp_addr(0)}, v{T}
        v_xor_b32 v{VW+1}, 64, v{VW}
        """)
    else:
        a(f"""
        v_lshlrev_b32 v{VO}, 4, v{L}
        v_lshrrev_b32 v{T}, 2, v{L}
        v_lshlrev_b32 v{T}, 7, v{T}
        v_bfe_u32 v{T+1}, v{L}, 3, 2
        v_lshl_add_u32 v{T}, v{T+1}, 5, v{T}
        v_and_b32 v{T+1}, 3, v{L}
        v_lshl_add_u32 v{T}, v{T+1}, 3, v{T}
        v_add_u32 v{VW}, {grp_addr(0)}, v{T}
        v_xor_b32 v{VW+1}, 32, v{VW}
        v_xor_b32 v{VW+2}, 64, v{VW}
        v_xor_b32 v{VW+3}, 96, v{VW}
        """)
    if part == 0: a(f"""
    s_mul_i32 s59, s{S_RT}, {64 * opt.os}
    s_add_u32 s26, s59, {64 * opt.os}
    s_lshl_b32 s47, s{S_RH}, 13
    s_add_u32 s59, s59, s47
    s_lshl_b32 s47, s{S_WAVE}, 11
    s_add_u32 s59, s59, s47
    v_mov_b32 v{T}, 0
    v_mov_b32 v{T+1}, 0
    v_mov_b32 v{T+2}, 0
    v_mov_b32 v{T+3}, 0
    s_mov_b32 s28, s18
    s_and_b32 s29, s19, 0xffff
    s_mov_b32 s30, 0x400000
    s_mov_b32 s53, 32768
    s_mov_b32 s24, s32
    s_mov_b32 s25, s33
    s_movk_i32 s61, 0x108
    """)
    if part == 0: return
    def oload(t, i): return f"buffer_load_dwordx4 {vr(OB + (t % 8)*8 + 4*i, 4)}, v{VO}, s[24:27], s59 offen offset:{i*(512 if F32 else 1024)} sc1"
    def wread(t, f, u):
        if F32: ad, off = VW + (f & 1), (f >> 1) * 1024
        else: ad, off = VW + f, 0
        return dict(txt=f"ds_read_b64_tr_b16 {vr(WB + (t & 1)*16 + f*4 + 2*u, 2)}, v{ad} offset:{(t % 8)*4096 + u*2048 + off}", loads=('w', t & 1, f, u))
    if part == 1:
        assert opt.bflag1
        a("s_barrier")
        stamp(a, 40, opt); diag(a, opt, "F0")
        for t in range(opt.nearly):
            a(oload(t, 0)); a(oload(t, 1))
            a(f"s_add_u32 s59, s59, {opt.os}")
        return
    a.label("L_fcons")
    for t in range(opt.nearly, 7):
        a(oload(t, 0)); a(oload(t, 1))
        a(f"s_add_u32 s59, s59, {opt.os}")
    for r in (0, 16): a(f"v_mfma_f32_32x32x16_bf16 {vr(AC+r,16)}, {vr(T,4)}, {vr(T,4)}, 0")
    a("s_mov_b32 s50, 0")
    pre = [wread(0, f, u) for f in range(4) for u in range(2)]
    lines, q0 = schedule_waits(pre)
    for l in lines: a(l)
    a("s_nop 1")
    a.label("L2_loop")
    body = []
    X = lambda *l: [dict(txt=x) for x in l]
    nva = 2 if F32 else 4
    for t in range(8):
        body.append(dict(txt="s_waitcnt vmcnt(12)"))
        assert opt.frot == 0
        nxt = f"s_add_u32 s59, s59, {opt.os}"
        misc = {4: X("s_add_u32 s50, s50, 1"),
                5: X("s_bitcmp1_b32 s61, s50", f"s_cselect_b32 s52, {-4*32768 & 0xffffffff}, s53"),
                6: X(*[f"v_add_u32 v{VW+k}, s52, v{VW+k}" for k in range(nva)]), 7: X("s_and_b32 s47, s50, 3")}.get(t, [])
        if F32:
            for m in range(4):
                u, cb = m >> 1, m & 1
                c = vr(AC + cb * 16, 16)
                body.append(dict(txt=f"v_mfma_f32_32x32x16_bf16 {c}, {vr(WB + (t&1)*16 + m*4, 4)}, {vr(OB + t*8 + 4*u, 4)}, {c}", reads={('w', t & 1, m | 1, 1)}))
                if t == 7 and m == 0: body.append(dict(txt="s_barrier", drain=True))
                if m < 2: body += [wread(t + 1, 2 * m + k, u_) for k in range(2) for u_ in range(2)]
                if m >= 2: body.append(dict(txt=oload(t + 7, m - 2)))
                if m == 3: body += X(nxt) + misc
        else:
            m = 0
            for nb in range(4):
                for i in ((0, 1) if nb % 2 == 0 else (1, 0)):
                    c = vr(AC + (i * 4 + nb) * 4, 4)
                    body.append(dict(txt=f"v_mfma_f32_16x16x32_bf16 {c}, {vr(WB + (t&1)*16 + nb*4, 4)}, {vr(OB + t*8 + 4*i, 4)}, {c}", reads={('w', t & 1, nb | 1, 1)}))
                    if t == 7 and m == 0: body.append(dict(txt="s_barrier", drain=True))
                    if m < 4: body += [wread(t + 1, m, 0), wread(t + 1, m, 1)]
                    if m in (4, 5): body.append(dict(txt=oload(t + 7, m - 4)))
                    if m == 5: body += X(nxt)
                    if m == 6: body += misc[:2]
                    if m == 7: body += misc[2:]
                    m += 1
    lines, q1 = schedule_waits(body, q0)
    assert q1 == q0, (q0, q1)
    k = 0
    while k < len(lines):
        if k + 1 < len(lines) and lines[k].startswith("s_waitcnt vmcnt") and lines[k+1].startswith("s_waitcnt lgkmcnt"):
            a(lines[k] + " " + lines[k+1].split()[1]); k += 2
        else:
            a(lines[k]); k += 1
    a(f"""
    s_cbranch_scc1 L2_loop
    s_cmp_eq_u32 s50, 8
    s_cbranch_scc1 L2_done
    s_nop 4
    """)
    for r in range(0, 32, 2): a(f"v_pk_mul_f32 {vr(ST+r,2)}, {vr(AC+r,2)}, 1.0 op_sel_hi:[1,0]")
    a("s_branch L2_loop")
    a.label("L2_done")
    a(f"""
    v_and_b32 v{T}, {31 if F32 else 15}, v{L}
    v_lshlrev_b32 v{T+1}, 2, v{T}
    s_lshl_b32 s47, s{S_WAVE}, 7
    v_add_u32 v{T+1}, s47, v{T+1}
    ds_read_b32 v{T+2}, v{T+1} offset:{LG + 512}
    ds_read_b32 v{T+6}, v{T+1} offset:{LG + 512 + (0 if F32 else 64)}
    v_lshlrev_b32 v{T}, 11, v{T}
    """)
    if not F32: a(f"v_bfe_u32 v{T+1}, v{L}, 4, 1\nv_lshl_add_u32 v{T}, v{T+1}, 5, v{T}")
    a(f"""
    v_lshrrev_b32 v{T+1}, 5, v{L}
    v_lshl_add_u32 v{T}, v{T+1}, 4, v{T}
    s_lshl_b32 s48, s{S_RT}, 1
    s_add_u32 s48, s48, s{S_RH}
    s_lshl_b32 s48, s48, 2
    s_add_u32 s48, s48, s{S_WAVE}
    s_lshl_b32 s48, s48, 16
    s_lshl_b32 s49, s{S_CT}, 7
    s_add_u32 s48, s48, s49
    """)
    TW, TR, TG = T + 10, T + 12, T + 13
    if opt.outt:
        assert not F32
        a(f"""
        v_and_b32 v{TR}, 7, v{L}
        v_bfe_u32 v{TW}, v{T}, 4, 2
        v_xor_b32 v{TW}, v{TW}, v{TR}
        v_lshlrev_b32 v{TW}, 4, v{TW}
        v_and_b32 v{TG}, 15, v{L}
        v_lshl_add_u32 v{TW}, v{TG}, 7, v{TW}
        s_lshl_b32 s47, s{S_WAVE}, 12
        s_add_u32 s47, s47, {grp_addr(4)}
        v_add_u32 v{TW}, s47, v{TW}
        v_xor_b32 v{TW+1}, 64, v{TW}
        v_lshrrev_b32 v{T+1}, 3, v{L}
        v_lshlrev_b32 v{TG}, 4, v{TR}
        v_lshl_add_u32 v{TG}, v{T+1}, 11, v{TG}
        v_xor_b32 v{TR}, v{TR}, v{T+1}
        v_lshlrev_b32 v{TR}, 4, v{TR}
        v_lshl_add_u32 v{TR}, v{T+1}, 7, v{TR}
        v_add_u32 v{TR}, s47, v{TR}
        """)
    a("s_waitcnt lgkmcnt(0)")
    for i in range(2):
        g = T + 2 + 4 * i
        a(f"v_sub_f32 v{g+2}, 1.0, v{g}")
        a(f"v_sub_f32 v{g}, v{g}, v{g+2}")
        for hf in range(2):
            b0 = AC + i * 16 + hf * 8; b1 = ST + i * 16 + hf * 8
            for r in range(0, 8, 2):
                a(f"v_pk_mul_f32 {vr(b1+r,2)}, {vr(b1+r,2)}, {vr(g,2)} op_sel_hi:[1,0]")
            for r in range(0, 8, 2):
                a(f"v_pk_fma_f32 {vr(b0+r,2)}, {vr(b0+r,2)}, {vr(g+2,2)}, {vr(b1+r,2)} op_sel_hi:[1,0,1]")
            for k in range(4): a(f"v_cvt_pk_bf16_f32 v{b0+k}, v{b0+2*k}, v{b0+2*k+1}")
            a("s_nop 1")
            sw = "v_permlane32_swap_b32" if F32 else "v_permlane16_swap_b32"
            a(f"{sw} v{b0}, v{b0+2}")
            a(f"{sw} v{b0+1}, v{b0+3}")
            if opt.outt: a(f"ds_write_b128 v{TW+hf}, {vr(b0,4)} offset:{i*2048}")
            else: a(f"buffer_store_dwordx4 {vr(b0,4)}, v{T}, s[28:31], s48 offen offset:{i*64 + hf*32 if F32 else hf*64} {opt.outaux}")
            if opt.outt and i == 1 and hf == 0:
                for k in range(2):
                    a(f"s_waitcnt lgkmcnt({2-k})\nbuffer_store_dwordx4 {vr(WB+4*k,4)}, v{TG}, s[28:31], s48 offen {opt.outaux}\ns_add_u32 s48, s48, {8*2048}")
        if opt.outt:
            for k in range(2): a(f"ds_read_b128 {vr(WB + 8*i + 4*k,4)}, v{TR} offset:{i*2048 + k*1024}")
        elif i == 0 and not F32: a(f"s_add_u32 s48, s48, {16*2048}")
    if opt.outt:
        for k in range(2):
            a(f"s_waitcnt lgkmcnt({1-k})\nbuffer_store_dwordx4 {vr(WB+8+4*k,4)}, v{TG}, s[28:31], s48 offen {opt.outaux}\ns_add_u32 s48, s48, {8*2048}")
    stamp(a, 43, opt)
    diag_end(a, opt)
    prof_dump(a, opt, WS_PROF)

def gen_k1(opt):
    global GAUX
    GAUX = opt.gaux
    a = Asm()
    k1_prologue(a, opt)
    dma_addrs(a)
    k1_srds(a)
    a(f"s_cmp_ge_u32 s{S_WAVE}, 4")
    a("s_cbranch_scc1 L_producer")
    consumer_setup(a, opt)
    a(f"s_cmp_eq_u32 s{S_BR}, 0")
    a("s_cbranch_scc1 L_consA")
    consumer_gemm(a, True, "B", [lines_of(b_epilogue, opt, p_) for p_ in (0, 2, 3)] if opt.kvfirst else lines_of(b_epilogue, opt, 0), opt)
    diag(a, opt, "G")
    b_epilogue(a, opt, 1)
    if not opt.flagfirst: b_consts(a)
    b_attention(a, opt)
    a.label("L_consA")
    consumer_gemm(a, False, "A", lines_of(a_pre, opt), opt)
    diag(a, opt, "G")
    a_consumer(a, opt)
    for part in range(3): f_consumer(a, opt, part)
    a.label("L1_end")
    a("s_endpgm")
    a.label("L_producer")
    producer_gemm(a, opt)
    a(f"s_waitcnt vmcnt({2 * (opt.n13 + opt.n14)})")
    if not opt.gatelate: producer_gate(a, opt)
    if not opt.constearly: b_consts(a)
    a("s_setprio 0")
    a("s_barrier")
    stamp(a, 15, opt)
    a(f"s_cmp_eq_u32 s{S_BR}, 0\ns_cbranch_scc0 L_no15")
    f_regload(a, NPRE + sum(opt.al), NPRE + opt.na15)
    a.label("L_no15")
    if opt.gatelate and not opt.agate: producer_gate(a, opt)
    a(f"s_cmp_eq_u32 s{S_BR}, 0")
    a("s_cbranch_scc1 L_prodA")
    if opt.gatelate and opt.agate: producer_gate(a, opt)
    a(f"s_barrier\ns_branch L_battn1")
    a.label("L_prodA")
    f_prefill(a, opt, "A0", 0, opt.afill)
    a_producer(a, opt)
    f_prefill(a, opt, "A", opt.afill + opt.afill2, NPRE)
    f_producer(a, opt)
    assert opt.constearly and opt.na15 >= sum(opt.al) and opt.tmode < 3 and not opt.wovec
    assert sum(opt.cl) + opt.n13 + opt.n14 <= 10
    a.label("L_wl")
    hi_, lo_ = 32, NPRE + sum(opt.al)
    for k in range(4):
        if k < 3: a(f"s_cmp_eq_u32 s50, {9 + k}\ns_cbranch_scc0 L_wl{k+1}")
        for half, at in enumerate(opt.c3):
            if at == 9 + k:
                a(f"""
                s_lshr_b32 s47, s{S_J}, 4
                s_lshl_b32 s47, s47, 2
                s_add_u32 s47, s47, s46
                s_cmp_eq_u32 s47, {4 * half + ((at + 1) & 3)}
                s_cbranch_scc0 L_noc3{half}
                s_and_b32 s47, s{S_J}, 15
                s_lshl_b32 s47, s47, 17
                s_and_b32 s48, s{S_XCD}, 1
                s_lshl_b32 s48, s48, 10
                s_add_u32 s47, s47, s48
                v_lshlrev_b32 v39, 11, v0
                buffer_load_dword v35, v39, {"s[84:87]" if half else SRD_WO}, s47 offen offset:384
                L_noc3{half}:
                """)
        f_regload(a, hi_ - opt.cl[k], hi_, tmp=47); hi_ -= opt.cl[k]
        if opt.al[k]:
            a(f"s_cmp_eq_u32 s{S_BR}, 0\ns_cbranch_scc0 L_aback")
            f_regload(a, lo_ - opt.al[k], lo_, tmp=47); lo_ -= opt.al[k]
        a("s_branch L_aback")
        if k < 3: a.label(f"L_wl{k+1}")
    a.label("L_code_end")
    return a.text()

def kd(name, nv):
    return f""".amdhsa_kernel {name}
  .amdhsa_next_free_vgpr {nv}
  .amdhsa_next_free_sgpr 102
  .amdhsa_accum_offset {nv}
  .amdhsa_group_segment_fixed_size 0
  .amdhsa_kernarg_size 80
  .amdhsa_user_sgpr_count 2
  .amdhsa_user_sgpr_kernarg_segment_ptr 1
  .amdhsa_system_sgpr_workgroup_id_x 1
.end_amdhsa_kernel
"""

def gen_all(opt):
    k1 = NAME + "_kernel"
    launch = f"; @launch kernel={k1} grid=(256,1,1) block=(512,1,1) lds=163840" if opt.aslist else "; @launch grid=(256,1,1) block=(512,1,1) lds=163840"
    s = f"""; Generated by my own generator script (dev/gen.py).
; Kernarg: 0 A_x, 8 A_wqkv, 16 A_wo, 24 B_x, 32 B_wqkv, 40 B_wo, 48 gate_w, 56 out, 64 debug, 72 ws
{launch}
.amdgcn_target "amdgcn-amd-amdhsa--gfx950"
.text
.globl {k1}
.p2align 8
.type {k1},@function
{k1}:
{gen_k1(opt)}
.section .rodata,"a"
.p2align 6
{kd(k1, 256)}"""
    return s

if __name__ == "__main__":
    opt = Opt()
    out = f"cdna_kernels/{NAME}.s"
    for arg in sys.argv[1:]:
        k, v = arg.split("=")
        if k == "out": out = v
        else: setattr(opt, k, eval(v))
    open(out, "w").write(gen_all(opt))
    print("wrote", out)
```

```python
import sys, struct
from asm import *

NAME = "gated_mix__linear_attn_block__sliding_block__prompt"
WS_O = 0
WS_KV = 10 << 20
WS_PART = 20 << 20
WS_FLAG = 22 << 20
WS_G = 23 << 20
WS_PROF = 24 << 20
XSLOT = 32768; NXS = 3
WBASE = XSLOT * NXS; WSLOT = 24576
ACC = 0; XA = 192; XB = 208; WF = 224
V_XA0, V_XA1, V_WA0, V_WA1, V_LANE = 248, 249, 250, 251, 252
S_WAVE, S_RB, S_PAIR, S_BR, S_XCD, S_J = 40, 41, 42, 43, 44, 45
SRD_X, SRD_W, SRD_WS, SRD_DBG = "s[24:27]", "s[28:31]", "s[32:35]", "s[36:39]"
S_GA, S_RH, S_RT, S_CT = 76, 77, 78, 79
S_ROT = 75
S_FLAG = 63
SPIN_MAX = 20000
def f2u(x): return struct.unpack("<I", struct.pack("<f", x))[0]
LOG2E = 1.4426950408889634

def acc(sb, j): return ACC + (sb * 6 + j) * 4
def blk(sb): return 8 + sb if sb < 4 else sb - 4

class Opt:
    pf = 4
    prof = False
    force_slow = False
    fstag = 0
    fpre = 4
    gload = 2
    await0 = True
    a3 = 2
    agate = False
    outaux = 'sc1'
    outt = True
    wfirst = False
    w64 = False
    fprio = 3
    flagat = 4
    tmode = 3
    tpos = 2
    exp = 0
    afill = 0
    wovec = 0
    n13 = 4
    n14 = 6
    fmap = 1
    kvfirst = 0
    flagfirst = False
    afill2 = 8
    putsh = None
    nearly = 7
    cl = (0, 0, 0, 0)
    atom = 0
    al8 = True
    f1ds = None
    alg = None
    alt = None
    alf = None
    midinit = 0
    woa = False
    stwin = 0
    stwin0 = 0
    stmix = False
    stalt = False
    c3 = (11, 9)
    al = (0, 0, 3, 3)
    kvs = 65536 + 1280
    os = 16384
    ord0 = 0
    fill2 = True
    f0early = False
    gwave = 6
    aprobe = False
    f32 = False
    bflag1 = True
    frot = 0
    t0touch = 0
    na15 = 6
    gatelate = True
    constearly = True
    gaux = ''
    diag = ''
    wsoff = 0
    diag0 = ''
    diagm = 1
    bwait = False
    oprio = 0
    stlate = 8
    kvst = 'sc1'
    kvld = 'sc1'
    prew = 0
    prew_at = 4
    tlb = 0
    xl2 = False
    na = 8
    fdepth = 8
    otouch = False
    wo_from = 2
    early = 0
    backoff = 0
    codepf = 6
    bprio = 1
    tailprio = 0
    aslist = False

def stamp(a, idx, opt):
    if not opt.prof: return
    a("s_memrealtime s[94:95]")
    a("s_waitcnt lgkmcnt(0)")
    a(f"v_writelane_b32 v255, s94, {idx}")

def cstamp(a, idx, opt):
    if not opt.prof: return
    a("s_memtime s[94:95]")
    a("s_waitcnt lgkmcnt(0)")
    a(f"v_writelane_b32 v255, s94, {idx}")

def al8(a):
    if AL8: a(".p2align 3")

def align(a, spec):
    if spec:
        a(f".p2align {spec[0]}")
        for _ in range(spec[1]): a("s_nop 0")

def diag(a, opt, name):
    if opt.diag == name: a("s_memrealtime s[98:99]\ns_waitcnt lgkmcnt(0)")
    if opt.diag0 == name: a("s_memrealtime s[96:97]\ns_waitcnt lgkmcnt(0)\ns_mov_b32 s98, s96")
def diag_end(a, opt):
    if not opt.diag: return
    a("""
    s_waitcnt vmcnt(0)
    s_memrealtime s[100:101]
    s_waitcnt lgkmcnt(0)
    """)
    if opt.diag == "end": a("s_mov_b32 s98, s100")
    if opt.diag == "zero": a("s_mov_b32 s98, s96")
    a("""
    s_sub_u32 s98, s98, s96
    """ + f"s_mul_i32 s98, s98, {opt.diagm}" + """
    s_min_u32 s98, s98, 20000
    L_diag:
    s_memrealtime s[96:97]
    s_waitcnt lgkmcnt(0)
    s_sub_u32 s96, s96, s100
    s_cmp_lt_u32 s96, s98
    s_cbranch_scc1 L_diag
    """)

def prof_dump(a, opt, base):
    if not opt.prof: return
    a(f"""
    s_lshl_b32 s94, s2, 3
    s_add_u32 s94, s94, s{S_WAVE}
    s_lshl_b32 s94, s94, 8
    s_add_u32 s94, s94, {base}
    v_mbcnt_lo_u32_b32 v254, -1, 0
    v_mbcnt_hi_u32_b32 v254, -1, v254
    v_lshlrev_b32 v254, 2, v254
    buffer_store_dword v255, v254, {SRD_WS}, s94 offen
    """)

def k1_prologue(a, opt):
    a(f"""
    s_cmp_ge_u32 s2, 256
    s_cbranch_scc1 L1_end
    {"s_memrealtime s[96:97]" if opt.diag else ""}
    s_load_dwordx16 s[4:19], s[0:1], 0
    s_load_dwordx4 s[20:23], s[0:1], 64
    v_lshrrev_b32 v1, 6, v0
    """)
    if opt.codepf & 4:
        a(f"""
        s_getpc_b64 s[68:69]
        L_pc0:
        s_and_b32 s46, s2, 0xf8
        v_add_lshl_u32 v2, v1, s46, 7
        v_min_u32 v2, L_code_end-L_pc0-4, v2
        global_load_dword v254, v2, s[68:69]
        """)
    a(f"""
    s_and_b32 s{S_XCD}, s2, 7
    s_lshr_b32 s{S_J}, s2, 3
    v_readfirstlane_b32 s{S_WAVE}, v1
    s_lshr_b32 s{S_RB}, s{S_J}, 2
    s_and_b32 s{S_BR}, s{S_J}, 1
    s_bfe_u32 s{S_PAIR}, s{S_J}, 0x10001
    s_lshl_b32 s46, s{S_XCD}, 1
    s_add_u32 s{S_PAIR}, s{S_PAIR}, s46
    v_and_b32 v0, 63, v0
    s_mov_b32 s26, 0x400000
    s_mov_b32 s27, 0x20000
    s_mov_b32 s30, 0x600000
    s_mov_b32 s31, s27
    """)

def k1_srds(a):
    a(f"""
    s_waitcnt lgkmcnt(0)
    s_mov_b32 s24, s4
    s_and_b32 s25, s5, 0xffff
    s_cmp_eq_u32 s{S_BR}, 0
    s_cselect_b32 s28, s6, s12
    s_cselect_b32 s29, s7, s13
    s_and_b32 s29, s29, 0xffff
    """)

def k1_ids(a, opt):
    a(f"""
    s_lshl_b32 s49, s{S_BR}, 4
    s_add_u32 s49, s49, s{S_PAIR}
    s_lshl_b32 s49, s49, 3
    s_add_u32 s49, s49, s{S_RB}
    s_lshl_b32 s49, s49, 11
    s_add_u32 s{S_FLAG}, s49, {WS_FLAG}
    {f"s_and_b32 s{S_CT}, s{S_J}, 7" if opt.fmap else f"s_bfe_u32 s{S_CT}, s{S_J}, 0x30001"}
    s_xor_b32 s{S_CT}, s{S_CT}, {1 if opt.fmap == 1 else 0}
    {f"s_bfe_u32 s{S_RH}, s{S_J}, 0x10003" if opt.fmap else f"s_mov_b32 s{S_RH}, s{S_BR}"}
    s_and_b32 s49, s{S_XCD}, 1
    s_lshl_b32 s49, s49, 3
    s_add_u32 s{S_CT}, s{S_CT}, s49
    s_lshr_b32 s{S_ROT}, s{S_J}, 1
    s_and_b32 s{S_ROT}, s{S_ROT}, {opt.frot}
    s_lshl_b32 s{S_ROT}, s{S_ROT}, 19
    s_lshr_b32 s{S_RT}, s{S_J}, 4
    s_and_b32 s49, s{S_XCD}, 6
    s_add_u32 s{S_RT}, s{S_RT}, s49
    s_add_u32 s32, s22, {opt.wsoff << 20}
    s_addc_u32 s33, s23, 0
    s_and_b32 s33, s33, 0xffff
    s_mov_b32 s34, {26 << 20}
    s_mov_b32 s35, 0x20000
    s_mov_b32 s36, s20
    s_and_b32 s37, s21, 0xffff
    s_mov_b32 s38, 256
    s_mov_b32 s39, 0x20000
    """)

def consumer_substep(kk, wslot, btype, nxt_kk, nxt_wslot, barrier, extra=None):
    items = []
    def xread(grp, i, kk_):
        reg = (XA if grp == 0 else XB) + 4 * i
        sb = grp * 4 + i
        return dict(txt=f"ds_read_b128 {vr(reg,4)}, v{V_XA0 + kk_} offset:{blk(sb)*2048}", loads=('x', grp, i))
    def wread(j, t, kk_, ws):
        reg = WF + 4 * j + 2 * t
        off = ws * WSLOT + (j >> 1) * 8192 + kk_ * 4096 + t * 512
        return dict(txt=f"ds_read_b64_tr_b16 {vr(reg,2)}, v{V_WA0 + (j & 1)} offset:{off}", loads=('w', j, t))
    after = {m: [] for m in range(48)}
    after[0] += [wread(5, 0, kk, wslot)]
    after[1] += [wread(5, 1, kk, wslot)]
    for i in range(4): after[2 + 2 * i] += [xread(1, i, kk)]
    m0 = 24
    if barrier:
        after[24] += [dict(txt="s_barrier", drain=True)]
        m0 = 25
    xpos = [m0, m0 + 1, 29, 30]
    for i in range(4): after[xpos[i]] += [xread(0, i, nxt_kk)]
    for j in range(5):
        after[27 + 4 * j] += [wread(j, 0, nxt_kk, nxt_wslot)]
        after[28 + 4 * j] += [wread(j, 1, nxt_kk, nxt_wslot)]
    for m, txt in (extra or []):
        after[m].append(dict(txt=txt))
    m = 0
    for grp in range(2):
        for j in range(6):
            order = range(4) if j % 2 == 0 else [3, 2, 1, 0]
            for i in order:
                sb = grp * 4 + i
                xr = vr((XA if grp == 0 else XB) + 4 * i, 4); wr = vr(WF + 4 * j, 4)
                seg = j >> 1
                transposed = (seg == 0) or (seg == 1 and btype)
                A, B = (wr, xr) if transposed else (xr, wr)
                c = vr(acc(sb, j), 4)
                items.append(dict(txt=f"v_mfma_f32_16x16x32_bf16 {c}, {A}, {B}, {c}", reads={('x', grp, i), ('w', j, 0), ('w', j, 1)}))
                items += after[m]
                m += 1
    return items

def consumer_gemm(a, btype, tag, filler, opt):
    pre = [dict(txt=f"ds_read_b128 {vr(XA+4*i,4)}, v{V_XA0} offset:{blk(i)*2048}", loads=('x', 0, i)) for i in range(4)]
    def wr(j, t): return dict(txt=f"ds_read_b64_tr_b16 {vr(WF+4*j+2*t,2)}, v{V_WA0 + (j&1)} offset:{(j>>1)*8192 + t*512}", loads=('w', j, t))
    pre = [pre[0], pre[1], wr(0, 0), wr(0, 1), pre[2], pre[3]] + [wr(j, t) for j in range(1, 5) for t in range(2)]
    lines, q0 = schedule_waits(pre)
    a("s_mov_b32 s50, 8")
    a("s_mov_b32 s51, 0")
    for l in lines: a(l)
    body = []
    kvfirst = btype and opt.kvfirst
    for st in range(2):
        ex0 = [(10, "s_add_u32 s51, s51, 1"), (11, "s_cmp_eq_u32 s51, 3"), (12, f"s_cselect_b32 s52, {-2*XSLOT & 0xffffffff}, s53"), (13, "s_cselect_b32 s51, 0, s51"),
               (16, f"v_add_u32 v{V_XA0}, s52, v{V_XA0}")]
        ex1 = [(16, f"v_add_u32 v{V_XA1}, s52, v{V_XA1}")]
        if st == (0 if kvfirst else 1): ex1 += [(18, "s_sub_u32 s50, s50, 1"), (21, "s_cmp_lg_u32 s50, 0")]
        body += consumer_substep(0, st, btype, 1, st, False, ex0)
        body += consumer_substep(1, st, btype, 0, 1 - st, True, ex1)
    lines, q1 = schedule_waits(body, q0)
    assert q1 == q0, (q0, q1)
    cut = (min if kvfirst else max)(i for i, l in enumerate(lines) if l == "s_barrier") + 2
    assert lines[cut - 1].startswith("v_mfma")
    if opt.exp & 128: lines = [l if not l.startswith("ds_read_b128") else "s_nop 0" for l in lines]
    if opt.exp & 256: lines = [l if not l.startswith("ds_read_b64") else "s_nop 0" for l in lines]
    a(f"s_branch L_gemm_e{tag}")
    align(a, opt.alg)
    a.label(f"L_gemm_{tag}")
    for l in lines[cut:]: a(l)
    a.label(f"L_gemm_e{tag}")
    for l in lines[:cut]: a(l)
    a(f"s_cbranch_scc1 L_gemm_{tag}")
    if kvfirst: return kv_first_tail(a, [l for l in lines[cut:] if l.startswith("v_mfma")][:22], filler)
    tail = [l for l in lines[cut:] if l.startswith("v_mfma")]
    tail = tail[6:] + tail[:6]
    per = -(-len(filler) // len(tail))
    for m, l in enumerate(tail):
        a(l)
        for x in filler[m * per:(m + 1) * per]: a(x)

def kv_first_tail(a, t0, filler):
    def xr(grp, i, kk): return dict(txt=f"ds_read_b128 {vr((XA if grp == 0 else XB) + 4*i, 4)}, v{V_XA0 + kk} offset:{blk(grp*4+i)*2048}", loads=('x', grp, i))
    def wr(j, kk, slot): return [dict(txt=f"ds_read_b64_tr_b16 {vr(WF + 4*slot + 2*t, 2)}, v{V_WA0 + (j & 1)} offset:{WSLOT + (j >> 1)*8192 + kk*4096 + t*512}", loads=('w', slot, t)) for t in range(2)]
    seq = [(l, set()) for l in t0]
    for grp, js, off in ((0, (2, 3, 4, 5), 0), (1, (2, 3, 4, 5), 0), (0, (2, 3, 4, 5), 0), (1, (2, 3, 4, 5), 0), (0, (0, 1), 0), (1, (0, 1), 0), (0, (0, 1), 2), (1, (0, 1), 2)):
        for j in js:
            for i in (range(4) if j % 2 == 0 else (3, 2, 1, 0)):
                x_, w_ = vr((XA if grp == 0 else XB) + 4*i, 4), vr(WF + 4*(j + off), 4)
                A, B = (w_, x_) if j < 4 else (x_, w_)
                c = vr(acc(grp*4 + i, j), 4)
                seq.append((f"v_mfma_f32_16x16x32_bf16 {c}, {A}, {B}, {c}", {('x', grp, i), ('w', j + off, 0), ('w', j + off, 1)}))
    after = {m: [] for m in range(len(seq))}
    P = [22, 38, 54, 70, 86, 94, 102, 110]
    for i in range(4): after[i] += [xr(0, i, 0)]
    after[4] += wr(0, 1, 0); after[6] += wr(1, 1, 1)
    for k, j in enumerate((2, 3, 4, 5)):
        after[9 + 4*k] += wr(j, 0, j)
        after[P[1] + 3 + 4*k] += wr(j, 1, j)
    for i in range(4):
        after[P[0] + 1 + 2*i] += [xr(1, i, 0)]
        after[P[1] + (0, 1, 5, 6)[i]] += [xr(0, i, 1)]
        after[P[2] + 1 + 2*i] += [xr(1, i, 1)]
        after[P[4] + 4 + i] += [xr(0, 3 - i, 0)]
        after[P[5] + 4 + i] += [xr(1, 3 - i, 0)]
    after[P[3] + 3] += wr(0, 0, 2); after[P[3] + 7] += wr(1, 0, 3)
    after[P[7]] += [dict(txt="s_barrier", reads={('x', 1, i) for i in range(4)})]
    def spread(lst, lo, hi):
        per = -(-len(lst) // (hi - lo))
        for m in range(lo, hi): after[m] += [dict(txt=x, loads=('st',) if x.startswith("ds_") else None) for x in lst[(m - lo)*per:(m - lo + 1)*per]]
    spread(filler[0], P[1], P[3]); spread(filler[1], P[3], P[4] + 8); spread(filler[2], P[4] + 8, len(seq))
    items = []
    for m, (txt, rd) in enumerate(seq):
        items.append(dict(txt=txt, reads=rd)); items += after[m]
    lines, q = schedule_waits(items, [])
    assert all(t == ('st',) for t in q)
    for l in lines: a(l)

def lines_of(f, *args):
    t = Asm(); f(t, *args)
    return [l.strip() for l in t.L if l.strip()]

def consumer_setup(a, opt):
    if opt.prof: a("v_mov_b32 v255, 0")
    stamp(a, 22, opt); diag(a, opt, "issue")
    if opt.t0touch:
        a(f"""
        s_cmp_lt_u32 s{S_WAVE}, 2
        s_cbranch_scc0 L_t0w
        s_lshl_b32 s47, s{S_J}, 17
        s_lshl_b32 s48, s{S_WAVE}, 7
        s_add_u32 s47, s47, s48
        v_lshlrev_b32 v5, 11, v0
        {"s_cmp_eq_u32 s40, 0" if opt.t0touch == 2 else ""}
        {"s_cbranch_scc1 L_t0d" if opt.t0touch == 2 else ""}
        buffer_load_dword v{XB}, v5, {SRD_X}, s47 offen
        s_branch L_t0d
        L_t0w:
        s_and_b32 s48, s{S_WAVE}, 1
        {"s_cbranch_scc0 L_t0d" if opt.t0touch == 2 else ""}
        s_lshl_b32 s48, s48, 3
        s_add_u32 s48, s48, s{S_RB}
        s_mul_i32 s48, s48, {8*6144}
        s_lshl_b32 s47, s{S_PAIR}, 7
        s_add_u32 s47, s47, s48
        v_min_u32 v5, 23, v0
        v_lshlrev_b32 v5, 11, v5
        buffer_load_dword v{XB}, v5, {SRD_W}, s47 offen
        L_t0d:
        """)
    def accinit(sbs):
        a(f"s_cmp_eq_u32 s{S_BR}, 0\ns_cselect_b32 s46, 1.0, 0")
        al8(a)
        for sb in sbs:
            for j in range(6):
                for r in range(0, 4, 2):
                    a(f"v_pk_mul_f32 {vr(acc(sb,j)+r,2)}, s[46:47], {'1.0' if j < 4 else '0'} op_sel_hi:[0,0]")
    if opt.ord0 == 0:
        issue_w(a, "0", "s55")
        if opt.midinit:
            xl = lines_of(issue_x, "0", "s54")
            k = [i for i, l in enumerate(xl) if l.startswith("buffer")][opt.midinit - 1] + 1
            for l in xl[:k]: a(l)
            accinit(range(1, 8))
            for l in xl[k:]: a(l)
        else: issue_x(a, "0", "s54")
    elif opt.ord0 == 1: issue_x(a, "0", "s54"); issue_w(a, "0", "s55")
    else:
        issue_w(a, "0", "s55", (0,)); issue_x(a, "0", "s54", (0,)); issue_w(a, "0", "s55", (1,)); issue_x(a, "0", "s54", (1,)); issue_w(a, "0", "s55", (2,))
    a(f"""
    s_barrier
    v_and_b32 v1, 15, v0
    v_lshrrev_b32 v2, 4, v0
    v_bfe_u32 v3, v0, 1, 3
    v_xor_b32 v3, v2, v3
    v_lshlrev_b32 v3, 4, v3
    v_lshl_add_u32 v3, v1, 7, v3
    s_lshr_b32 s46, s{S_WAVE}, 1
    s_lshl_b32 s46, s46, 13
    v_add_u32 v{V_XA0}, s46, v3
    v_xor_b32 v{V_XA1}, 64, v{V_XA0}
    v_bfe_u32 v3, v0, 2, 2
    v_lshl_add_u32 v4, v2, 3, v3
    v_lshlrev_b32 v4, 7, v4
    v_bfe_u32 v5, v0, 3, 2
    s_and_b32 s46, s{S_WAVE}, 1
    s_lshl_b32 s46, s46, 1
    v_xor_b32 v5, s46, v5
    v_lshl_add_u32 v4, v5, 5, v4
    v_and_b32 v5, 3, v0
    v_lshl_add_u32 v4, v5, 3, v4
    v_add_u32 v{V_WA0}, {WBASE}, v4
    v_xor_b32 v{V_WA1}, 32, v{V_WA0}
    s_mov_b32 s53, {XSLOT}
    s_mov_b32 s80, s8
    s_and_b32 s81, s9, 0xffff
    s_mov_b32 s82, 0x200000
    s_mov_b32 s83, 0x20000
    s_mov_b32 s84, s14
    s_and_b32 s85, s15, 0xffff
    s_mov_b32 s86, 0x200000
    s_mov_b32 s87, 0x20000
    """)
    k1_ids(a, opt)
    accinit((0,) if opt.midinit else range(8))
    a(f"""
    v_mov_b32 v{XA}, {LCNT}
    v_mov_b32 v{XA+1}, 1
    s_mov_b64 exec, 1
    s_waitcnt vmcnt(0)
    ds_add_u32 v{XA}, v{XA+1}
    s_mov_b64 exec, -1
    """)
    a.label("L_st0")
    a(f"""
    ds_read_b32 v{XA+2}, v{XA}
    s_waitcnt lgkmcnt(0)
    v_readfirstlane_b32 s46, v{XA+2}
    s_cmp_lt_u32 s46, 4
    s_cbranch_scc1 L_st0
    """)
    stamp(a, 20, opt); diag(a, opt, "st0")

LCNT = 147456
def dma_addrs(a):
    a(f"""
    s_and_b32 s46, s{S_WAVE}, 3
    v_lshrrev_b32 v1, 3, v0
    v_and_b32 v2, 7, v0
    v_and_b32 v3, 2, v1
    v_xor_b32 v3, v2, v3
    v_lshlrev_b32 v3, 4, v3
    v_mul_u32_u24 v4, 6144, v1
    s_lshl_b32 s47, s{S_PAIR}, 7
    s_mul_i32 s48, s46, {2*8*6144}
    s_add_u32 s47, s47, s48
    v_add3_u32 v20, v4, v3, s47
    v_xor_b32 v21, 64, v20
    v_add_u32 v21, {8*6144 - 1024}, v21
    v_lshrrev_b32 v3, 1, v1
    v_xor_b32 v3, v2, v3
    v_lshlrev_b32 v3, 4, v3
    s_lshl_b32 s47, s{S_RB}, 8
    s_lshl_b32 s48, s46, 6
    s_add_u32 s47, s47, s48
    v_add_u32 v4, s47, v1
    v_lshl_add_u32 v10, v4, 11, v3
    v_xor_b32 v11, 64, v10
    """)
    for i in (3, 2, 1):
        a(f"v_add_u32 v{10+i}, {i*16384 - i*1024}, v{10 + (i & 1)}")
    a(f"""
    s_lshl_b32 s54, s46, 13
    s_lshl_b32 s55, s46, 11
    s_add_u32 s55, s55, {WBASE}
    v_mov_b32 v{V_LANE}, v0
    """)
def issue_w(a, step_s, slot_off, segs=(0, 1, 2)):
    for seg in segs:
        a(f"s_add_u32 m0, {slot_off}, {seg*8192}")
        a(f"s_add_u32 s48, {step_s}, {seg*2048}")
        a(f"buffer_load_dwordx4 v20, {SRD_W}, s48 offen {GAUX} lds")
        a(f"buffer_load_dwordx4 v21, {SRD_W}, s48 offen offset:1024 {GAUX} lds")
def issue_x(a, step_s, slot_off, groups=(0, 1)):
    for g in groups:
        a(f"s_add_u32 m0, {slot_off}, {g*4096}")
        a(f"s_add_u32 s48, {step_s}, {g*65536}")
        for i in range(4):
            a(f"buffer_load_dwordx4 v{10+i}, {SRD_X}, s48 offen offset:{i*1024} {GAUX} lds")

def producer_gemm(a, opt):
    assert opt.tmode >= 1
    a(f"""
    v_mov_b32 v7, 0x7f000000
    s_add_u32 s62, s46, {2 if opt.t0touch else 1}
    """)
    if opt.tmode >= 1:
        a(f"""
        v_and_b32 v4, 31, v0
        s_mul_i32 s47, s{S_RB}, {8*6144}
        s_and_b32 s48, s{S_PAIR}, 14
        s_lshl_b32 s48, s48, 7
        s_add_u32 s47, s47, s48
        v_lshl_add_u32 v5, v4, 11, s47
        v_lshrrev_b32 v6, 5, v0
        v_lshl_add_u32 v5, v6, 7, v5
        s_add_u32 s48, s46, s{S_PAIR}
        {f"s_or_b32 s48, s48, s{S_BR}" if opt.tmode == 3 else ""}
        s_bitcmp0_b32 {"s48" if opt.tmode >= 2 else f"s{S_PAIR}"}, 0
        {f"s_and_b32 s48, s{S_J}, 3" if opt.tmode == 4 else ""}
        {f"s_cmp_eq_u32 s48, s46" if opt.tmode == 4 else ""}
        s_cselect_b32 s93, -1, 0
        s_and_b32 vcc_lo, s93, 0xffffff
        s_mov_b32 vcc_hi, vcc_lo
        v_cndmask_b32 v30, v7, v5, vcc
        v_and_b32 v4, 7, v0
        v_bfe_u32 v5, v0, 3, {2 if opt.tmode >= 3 else 1}
        v_lshl_add_u32 v4, v5, {6 if opt.tmode >= 3 else 7}, v4
        s_and_b32 s48, s2, {0xe7 if opt.tmode >= 3 else 0xef}
        s_lshl_b32 s48, s48, 3
        v_add_u32 v4, s48, v4
        v_lshlrev_b32 v4, 11, v4
        s_and_b32 vcc_lo, s93, {-1 if opt.tmode >= 3 else 0xffff}
        s_mov_b32 vcc_hi, 0
        v_cndmask_b32 v31, v7, v4, vcc
        """)
    NT = 2
    if opt.tmode >= 3:
        assert not opt.wovec
        NT = 3
    def srd2():
        if NT == 3: a(f"""
        s_cmp_eq_u32 s{S_BR}, 0
        s_cselect_b32 s64, s12, s6
        s_cselect_b32 s65, s13, s7
        s_and_b32 s65, s65, 0xffff
        s_mov_b32 s66, 0x600000
        s_mov_b32 s67, 0x20000
        """)
    srd2()
    def touch():
        a(f"""
        s_mul_i32 s60, s62, {64*6144}
        s_lshl_b32 s61, s62, 7
        buffer_load_dword v32, v30, {SRD_W}, s60 offen
        buffer_load_dword v33, v31, {SRD_X}, s61 offen
        {"buffer_load_dword v32, v30, s[64:67], s60 offen" if NT == 3 else ""}
        s_add_u32 s62, s62, 4
        """)
    a(f"s_cmp_lt_u32 s46, {opt.early}\ns_cbranch_scc0 L_noearly")
    touch()
    a.label("L_noearly")
    a(f"""
    s_getpc_b64 s[68:69]
    L_pc:
    s_sub_u32 s68, s68, L_pc-{NAME}_kernel
    s_subb_u32 s69, s69, 0
    v_and_b32 v37, 7, v0
    s_lshl_b32 s48, s{S_J}, 3
    v_add_u32 v37, s48, v37
    v_lshlrev_b32 v37, 7, v37
    v_min_u32 v37, L_code_end-{NAME}_kernel-4, v37
    """)
    if opt.codepf & 1:
        a(f"s_cmp_eq_u32 s46, 3\ns_cbranch_scc0 L_nocode\nglobal_load_dword v38, v37, s[68:69]")
        a.label("L_nocode")
    a(f"""
    v_mov_b32 v48, 0
    v_mov_b32 v2, {LCNT}
    ds_write_b32 v2, v48
    v_lshlrev_b32 v44, 4, v0
    v_mov_b32 v49, 0
    v_mov_b32 v50, 0
    v_mov_b32 v51, 0
    s_lshl_b32 s101, s{S_PAIR}, 1
    s_add_u32 s101, s101, s{S_BR}
    s_lshl_b32 s101, s101, 3
    v_mov_b32 v36, 1
    s_and_b32 s92, s{S_RB}, {max(opt.atom - 1, 0)}
    s_add_u32 s92, s92, 1
    s_cmp_eq_u32 s46, 1
    s_cselect_b32 s92, s92, 99
    s_mov_b32 s57, {64*6144}
    s_add_u32 s58, s55, {WSLOT}
    """)
    k1_ids(a, opt)
    if opt.constearly:
        assert not opt.wovec
        b_consts(a); a(f"s_and_b32 s46, s{S_WAVE}, 3"); srd2()
    a(f"""
    s_cmp_lt_u32 s46, 2
    s_cselect_b32 s96, s8, s14
    s_cselect_b32 s97, s9, s15
    s_and_b32 s97, s97, 0xffff
    s_mov_b32 s98, 0x200000
    s_mov_b32 s99, 0x20000
    s_and_b32 s100, s2, {0xe7 if opt.tmode >= 3 or opt.woa else 0xef if opt.tmode else 0xff}
    s_lshl_b32 s100, s100, 1
    s_and_b32 s48, s46, 1
    s_add_u32 s100, s100, s48
    s_lshl_b32 s100, s100, 12
    v_lshlrev_b32 v34, 7, v0
    v_cmp_gt_u32 vcc, 16, v0
    s_nop 1
    v_cndmask_b32 v34, v7, v34, vcc
    """)
    if opt.tmode >= 1:
        a(f"""
        v_and_b32 v4, 15, v0
        v_lshlrev_b32 v4, 7, v4
        v_lshrrev_b32 v5, 4, v0
        v_lshl_add_u32 v4, v5, {16 if opt.tmode >= 3 or opt.woa else 17}, v4
        s_cmp_eq_u32 s{S_BR}, {1 if opt.woa else 2}
        s_cselect_b32 vcc_lo, 0, s93
        s_mov_b32 vcc_hi, {"vcc_lo" if opt.tmode >= 3 or opt.woa else 0}
        v_cndmask_b32 v34, v7, v4, vcc
        """)
    if opt.wovec:
        a(f"""
        s_mov_b32 s68, s14
        s_and_b32 s69, s15, 0xffff
        s_mov_b32 s70, 0x200000
        s_mov_b32 s71, 0x20000
        s_sub_u32 s88, 3, s46
        s_lshl_b32 s88, s88, 5
        s_add_u32 s88, s88, s{S_J}
        s_lshl_b32 s88, s88, 14
        s_and_b32 s48, s{S_XCD}, 1
        s_lshl_b32 s48, s48, 10
        s_add_u32 s88, s88, s48
        v_lshrrev_b32 v39, 3, v0
        v_lshlrev_b32 v39, 4, v39
        v_and_or_b32 v39, v0, 7, v39
        v_lshlrev_b32 v39, 7, v39
        s_lshr_b32 s89, s46, 1
        s_add_u32 s89, s89, 9
        """)
    if opt.prew:
        a(f"""
        s_lshl_b32 s73, s{S_RB}, 1
        s_add_u32 s73, s73, s{S_BR}
        s_lshl_b32 s73, s73, 4
        s_add_u32 s73, s73, s{S_PAIR}
        s_lshl_b32 s73, s73, 2
        s_add_u32 s73, s73, s46
        s_lshl_b32 s73, s73, 13
        s_lshl_b32 s74, s{S_PAIR}, 3
        s_add_u32 s74, s74, s{S_RB}
        s_mul_i32 s74, s74, {opt.kvs}
        s_lshl_b32 s48, s46, 14
        s_add_u32 s74, s74, s48
        s_add_u32 s74, s74, {WS_KV}
        s_cmp_eq_u32 s{S_BR}, 0
        s_cselect_b32 s74, 0x10000000, s74
        v_lshlrev_b32 v8, {7 if opt.prew in (1, 3) else 4}, v0
        """)
    f_setup(a, opt)
    a(f"""
    s_lshl_b32 s47, s46, 10
    s_add_u32 s47, s47, s{S_FLAG}
    s_cmp_lt_u32 s46, 2
    s_cselect_b32 s47, s47, 0x10000000
    """)
    a(f"""
    s_waitcnt lgkmcnt(0)
    s_barrier
    s_setprio 3
    """)
    if opt.prof: a("v_mov_b32 v255, 0")
    stamp(a, 21, opt)
    a(f"buffer_store_dwordx4 v[48:51], v44, {SRD_WS}, s47 offen sc1")
    a(f"""
    s_cmp_eq_u32 s{S_BR}, 0
    s_cbranch_scc0 L_nosent
    s_lshl_b32 s47, s{S_PAIR}, 3
    s_add_u32 s47, s47, s{S_RB}
    s_lshl_b32 s47, s47, 2
    s_add_u32 s47, s47, s46
    s_lshl_b32 s47, s47, 12
    s_add_u32 s47, s47, {WS_PART}
    v_mov_b32 v40, -1
    v_mov_b32 v41, -1
    v_mov_b32 v42, -1
    v_mov_b32 v43, -1
    buffer_store_dwordx4 v[40:43], v44, {SRD_WS}, s47 offen sc1
    s_mov_b64 exec, 0xff
    buffer_store_dwordx4 v[40:43], v44, {SRD_WS}, s47 offen offset:1024 sc1
    s_mov_b64 exec, -1
    """)
    a.label("L_nosent")
    a("s_mov_b32 s56, 128"); a(f"s_add_u32 s59, s54, {XSLOT}")
    if opt.ord0 < 3: issue_w(a, "s57", "s58"); issue_x(a, "s56", "s59")
    else:
        issue_x(a, "s56", "s59", (0,)); issue_w(a, "s57", "s58", (0, 1)); issue_x(a, "s56", "s59", (1,)); issue_w(a, "s57", "s58", (2,))
    a("s_mov_b32 s57, 256"); a(f"s_add_u32 s58, s54, {2*XSLOT}")
    issue_x(a, "s57", "s58")
    a(f"s_cmp_lt_u32 s46, {opt.early}\ns_cbranch_scc1 L_nolate0")
    touch()
    a.label("L_nolate0")
    a(f"""
    s_mov_b32 s50, 0
    s_mov_b32 s56, {2*64*6144}
    s_mov_b32 s57, {3*128}
    s_mov_b32 s58, s55
    s_mov_b32 s59, s54
    s_mov_b32 s51, 0
    """)
    a(f"s_cmp_lt_u32 s46, {opt.early}\ns_cbranch_scc1 L_nolate")
    a(f"s_waitcnt vmcnt({8 + NT})\ns_branch L_late")
    a.label("L_nolate")
    a("s_waitcnt vmcnt(8)")
    a.label("L_late")
    a("s_barrier")
    stamp(a, 0, opt); cstamp(a, 30, opt)
    if opt.prof:
        a("s_getreg_b32 s94, hwreg(HW_REG_XCC_ID)\nv_writelane_b32 v255, s94, 33")
    if opt.exp & 64: a("s_mov_b64 exec, 1")
    a.label("L_prod")
    issue_w(a, "s56", "s58")
    ga, gb = {0: ((), (0, 1)), 1: ((0,), (1,)), 2: ((0, 1), ())}[opt.tpos]
    issue_x(a, "s57", "s59", ga)
    a(f"""
    s_and_b32 s47, s50, 3
    s_cmp_eq_u32 s47, s46
    s_cbranch_scc0 L_notouch
    s_cmp_lt_u32 s62, 16
    s_cbranch_scc0 L_lateturn
    """)
    touch()
    if opt.atom == 0:
        a(f"""
        s_cmp_eq_u32 s50, 1
        s_cbranch_scc0 L_noatom
        s_mov_b64 exec, 1
        buffer_atomic_add v36, off, {SRD_DBG}, s101 sc1
        s_mov_b64 exec, {1 if opt.exp & 64 else -1}
        s_branch L_three
        """)
    a.label("L_noatom")
    a(f"""
    s_sub_u32 s47, s50, {opt.wo_from}
    s_cmp_lt_u32 s47, 8
    s_cselect_b32 s47, s100, 0x200000
    s_cselect_b32 s49, 2048, 0
    buffer_load_dword v35, v34, s[96:99], s47 offen
    s_add_u32 s100, s100, s49
    """)
    a.label("L_three")
    issue_x(a, "s57", "s59", gb)
    a(f"s_waitcnt vmcnt({9 + NT})\ns_branch L_touched")
    a.label("L_lateturn")
    if opt.codepf & 2:
        a("s_cmp_eq_u32 s50, 11\ns_cbranch_scc0 L_late12\nglobal_load_dword v38, v37, s[68:69]")
        issue_x(a, "s57", "s59", gb)
        a("s_waitcnt vmcnt(9)\ns_branch L_touched")
        a.label("L_late12")
        if opt.tlb:
            a(f"""
            v_min_u32 v38, {(20 << 20 >> opt.tlb) - 1}, v0
            v_lshlrev_b32 v38, {opt.tlb}, v38
            buffer_load_dword v35, v38, {SRD_WS}, 0 offen
            v_and_b32 v38, 0x3fffff, v38
            global_load_dword v35, v38, s[18:19]
            """)
            issue_x(a, "s57", "s59", gb)
            a("s_waitcnt vmcnt(10)\ns_branch L_touched")
    a.label("L_notouch")
    issue_x(a, "s57", "s59", gb)
    a("s_waitcnt vmcnt(8)")
    a.label("L_touched")
    if opt.atom > 0:
        a(f"""
        s_cmp_eq_u32 s50, s92
        s_cbranch_scc0 L_noatom2
        s_mov_b64 exec, 1
        buffer_atomic_add v36, off, {SRD_DBG}, s101 sc1
        s_mov_b64 exec, -1
        L_noatom2:
        """)
    a("""
    s_cmp_ge_u32 s50, 9
    s_cbranch_scc1 L_wl
    L_aback:
    """)
    if opt.prew == 1:
        a(f"""
        s_sub_u32 s47, s50, {opt.prew_at}
        s_cmp_lt_u32 s47, 3
        s_cbranch_scc0 L_noprew
        s_cmp_eq_u32 s47, 2
        s_cselect_b32 s47, s73, s74
        buffer_store_dword v0, v8, {SRD_WS}, s47 offen sc1
        s_add_u32 s74, s74, 8192
        L_noprew:
        """)
    if opt.prew == 3:
        a(f"""
        s_sub_u32 s47, s50, {opt.prew_at}
        s_cmp_lt_u32 s47, 2
        s_cbranch_scc0 L_noprew
        buffer_load_dword v9, v8, {SRD_WS}, s74 offen
        s_add_u32 s74, s74, 8192
        L_noprew:
        """)
    if opt.prew == 4:
        a(f"""
        s_sub_u32 s47, s50, {opt.prew_at}
        s_cmp_lt_u32 s47, 4
        s_cbranch_scc0 L_noprew
        buffer_store_dwordx4 v[0:3], v8, {SRD_WS}, s74 offen sc1
        buffer_store_dwordx4 v[0:3], v8, {SRD_WS}, s74 offen offset:1024 sc1
        buffer_store_dwordx4 v[0:3], v8, {SRD_WS}, s74 offen offset:2048 sc1
        buffer_store_dwordx4 v[0:3], v8, {SRD_WS}, s74 offen offset:3072 sc1
        s_add_u32 s74, s74, 4096
        L_noprew:
        """)
    if opt.prew == 2:
        a(f"""
        s_sub_u32 s47, s50, {opt.prew_at}
        s_cmp_lt_u32 s47, 8
        s_cbranch_scc0 L_noprew
        buffer_store_dwordx4 v[0:3], v8, {SRD_WS}, s74 offen sc1
        buffer_store_dwordx4 v[0:3], v8, {SRD_WS}, s74 offen offset:1024 sc1
        buffer_store_dwordx4 v[0:3], v8, {SRD_WS}, s73 offen sc1
        s_add_u32 s74, s74, 2048
        s_add_u32 s73, s73, 1024
        L_noprew:
        """)
    if opt.wovec:
        a(f"""
        s_cmp_eq_u32 s50, s89
        s_cbranch_scc0 L_nowo2
        buffer_load_dword v35, v39, s[68:71], s88 offen
        s_add_u32 s89, s89, 2
        s_mov_b32 s68, s8
        s_and_b32 s69, s9, 0xffff
        s_xor_b32 s88, s88, {3 << 19}
        L_nowo2:
        """)
    a(f"""
    s_add_u32 s56, s56, {64*6144}
    s_add_u32 s57, s57, 128
    s_cmp_eq_u32 s58, s55
    s_cselect_b32 s58, {WSLOT}, 0
    s_add_u32 s58, s58, s55
    s_add_u32 s51, s51, 1
    s_cmp_eq_u32 s51, 3
    s_cselect_b32 s51, 0, s51
    s_lshl_b32 s59, s51, 15
    s_add_u32 s59, s59, s54
    s_add_u32 s50, s50, 1
    s_barrier
    """)
    if opt.prof:
        a("s_mov_b32 m0, s50"); stamp(a, "m0", opt)
    a("""
    s_cmp_lt_u32 s50, 13
    s_cbranch_scc1 L_prod
    s_mov_b64 exec, -1
    """)
    issue_w(a, "s56", "s58")
    a(f"""
    s_lshl_b32 s47, s{S_RB}, 1
    s_add_u32 s47, s47, s{S_BR}
    s_lshl_b32 s47, s47, 4
    s_add_u32 s47, s47, s{S_PAIR}
    s_lshl_b32 s47, s47, 2
    s_add_u32 s47, s47, s46
    s_lshl_b32 s48, s47, 12
    v_lshlrev_b32 v1, 5, v0
    s_mov_b32 s64, s16
    s_and_b32 s65, s17, 0xffff
    s_mov_b32 s66, 2048
    s_mov_b32 s67, 0x20000
    v_and_b32 v254, 31, v0
    v_lshlrev_b32 v254, 3, v254
    buffer_load_dwordx4 v[40:43], v1, s[64:67], 0 offen
    buffer_load_dwordx4 v[44:47], v1, s[64:67], 0 offen offset:16
    buffer_load_dwordx4 v[48:51], v1, {SRD_X}, s48 offen
    buffer_load_dwordx4 v[52:55], v1, {SRD_X}, s48 offen offset:16
    buffer_load_dwordx4 v[56:59], v1, {SRD_X}, s48 offen offset:2048
    buffer_load_dwordx4 v[60:63], v1, {SRD_X}, s48 offen offset:2064
    buffer_load_dword v253, v254, {SRD_DBG}, 0 offen sc1
    """)
    a("s_mov_b32 s93, s47")
    top = 32 - sum(opt.cl)
    f_regload(a, top - opt.n13, top)
    a(f"s_waitcnt vmcnt({7 + 2*opt.n13})\ns_barrier")
    f_regload(a, top - opt.n13 - opt.n14, top - opt.n13)
    a(f"s_mov_b32 s47, s93\ns_setprio {opt.tailprio}")
    stamp(a, 14, opt); cstamp(a, 31, opt)

def producer_gate(a, opt, tag=''):
    nw = 2 * (opt.n13 + opt.n14)
    a(f"v_mov_b32 v6, 0\nv_mov_b32 v7, 0")
    for i in range(8):
        a(f"v_dot2c_f32_bf16 v6, v{48+i}, v{40+i}")
        a(f"v_dot2c_f32_bf16 v7, v{56+i}, v{40+i}")
    a("s_nop 2")
    a("""
    v_permlane32_swap_b32 v6, v7
    s_nop 1
    v_add_f32 v6, v6, v7
    v_mov_b32 v7, v6
    s_nop 1
    v_permlane16_swap_b32 v6, v7
    s_nop 1
    v_add_f32 v6, v6, v7
    """)
    for sh in (8, 4, 2, 1):
        a("s_nop 1")
        a(f"v_add_f32_dpp v6, v6, v6 row_ror:{sh} row_mask:0xf bank_mask:0xf")
    a(f"""
    v_mul_f32 v6, {hex(f2u(-LOG2E))}, v6
    v_exp_f32 v6, v6
    v_lshlrev_b32 v7, 2, v{V_LANE}
    v_add_f32 v6, 1.0, v6
    v_rcp_f32 v6, v6
    s_lshl_b32 s47, s93, 8
    s_add_u32 s47, s47, {WS_G}
    buffer_store_dword v6, v7, {SRD_WS}, s47 offen sc1
    s_mov_b32 s48, {SPIN_MAX}
    """)
    a.label(f"L_initpoll{tag}")
    a(f"""
    v_cmp_gt_u32 vcc, {0 if opt.atom < 0 else 8}, v253
    s_cbranch_vccz L_initdone{tag}
    s_sub_u32 s48, s48, 1
    s_cmp_eq_u32 s48, 0
    s_cbranch_scc1 L_initdone{tag}
    buffer_load_dword v253, v254, {SRD_DBG}, 0 offen sc1
    s_waitcnt vmcnt(0)
    s_branch L_initpoll{tag}
    """)
    a.label(f"L_initdone{tag}")

T_S, T_P, T_K, T_V = 0, 32, 40, 48
class U:
    def __init__(s, sr_, q, o, l, sq): s.s, s.q, s.o, s.l, s.sq = sr_, q, o, l, sq
UA = U(0, 56, 64, 80, 70); UB = U(16, 84, 92, 108, 71)
T_MD, T_ME, T_SEL, T_PAT, T_ADR, T_T0, T_Z = 112, 128, 144, 148, 149, 150, 156
T_C = 16
T_PUB = 160
S_HB = 72
LQ = 131072
def swap34(i): return (i & 7) | ((i >> 4 & 1) << 3) | ((i >> 3 & 1) << 4)

def b_consts(a):
    al8(a)
    a(f"v_mov_b32 v{T_T0}, {hex(f2u(-1e30))}")
    for n in range(16):
        g, r = n >> 2, n & 3
        m = 0
        for l in range(64):
            j, h = l & 31, l >> 5
            if swap34(8 * g + 4 * h + r) <= swap34(j): m |= 1 << l
        s = 64 + 2 * (n & 1)
        a(f"s_mov_b32 s{s}, {hex(m & 0xffffffff)}")
        a(f"s_mov_b32 s{s+1}, {hex(m >> 32)}")
        a(f"v_cndmask_b32_e64 v{T_MD+n}, v{T_T0}, 0, s[{s}:{s+1}]")
        a(f"v_cndmask_b32_e64 v{T_ME+n}, 0, v{T_T0}, s[{s}:{s+1}]")
    L = V_LANE
    a(f"""
    v_lshrrev_b32 v{T_T0}, 2, v{L}
    v_xor_b32 v{T_T0}, v{T_T0}, v{L}
    v_bfe_u32 v{T_T0}, v{T_T0}, 2, 1
    v_add_u32 v{T_T0}, -1, v{T_T0}
    v_and_b32 v{T_SEL}, 0x3f803f80, v{T_T0}
    v_mov_b32 v{T_Z}, 0
    v_mov_b32 v{T_Z+1}, 0
    v_mov_b32 v{T_Z+2}, 0
    v_mov_b32 v{T_Z+3}, 0
    v_mov_b32 v{T_SEL+1}, v{T_SEL}
    v_mov_b32 v{T_SEL+2}, v{T_SEL}
    v_mov_b32 v{T_SEL+3}, v{T_SEL}
    v_and_b32 v{T_PAT}, 7, v{L}
    v_lshlrev_b32 v{T_PAT}, 4, v{T_PAT}
    v_lshrrev_b32 v{T_T0}, 4, v{L}
    v_lshl_add_u32 v{T_PAT}, v{T_T0}, 7, v{T_PAT}
    v_bfe_u32 v{T_T0}, v{L}, 3, 1
    v_lshl_add_u32 v{T_PAT}, v{T_T0}, 10, v{T_PAT}
    s_and_b32 s46, s{S_WAVE}, 1
    s_lshl_b32 s{S_HB}, s46, 15
    s_and_b32 s46, s{S_WAVE}, 2
    s_sub_u32 s{UA.sq}, 6, s46
    s_cmp_lt_u32 s{S_WAVE}, 4
    s_cselect_b32 s{UA.sq}, s46, s{UA.sq}
    s_add_u32 s{UB.sq}, s{UA.sq}, 1
    """)
    for u in (UA, UB):
        a(f"v_mfma_f32_32x32x16_bf16 {vr(u.o,16)}, {vr(T_Z,4)}, {vr(T_Z,4)}, 0")
        a(f"v_mfma_f32_16x16x32_bf16 {vr(u.l,4)}, {vr(T_Z,4)}, {vr(T_Z,4)}, 0")

def b_epilogue(a, opt, part):
    L = V_LANE
    c = LOG2E / 32 ** 0.5
    if part == 0: a(f"""
    s_lshr_b32 s46, s{S_WAVE}, 1
    s_and_b32 s47, s{S_WAVE}, 1
    s_lshl_b32 s48, s47, 15
    s_lshl_b32 s49, s46, 12
    s_add_u32 s48, s48, s49
    s_add_u32 s48, s48, 65536
    v_lshlrev_b32 v253, 4, v{L}
    {"s_mov_b32 s68, s48" if opt.kvfirst else "v_add_u32 v248, s48, v253"}
    s_lshl_b32 s48, s47, 14
    s_add_u32 s48, s48, s49
    s_add_u32 s48, s48, {LQ}
    {"s_mov_b32 s69, s48" if opt.kvfirst else "v_add_u32 v249, s48, v253"}
    s_lshl_b32 s48, s{S_PAIR}, 3
    s_add_u32 s48, s48, s{S_RB}
    s_mul_i32 s48, s48, {opt.kvs}
    s_lshl_b32 s47, s47, 15
    s_add_u32 s48, s48, s47
    s_add_u32 s48, s48, s49
    s_add_u32 s48, s48, {WS_KV if not (opt.exp & 1) else 0x10000000}
    s_cmp_eq_u32 s{S_RB}, {7 if opt.exp & 32 else 99}
    s_cselect_b32 s48, 0x10000000, s48
    s_mov_b32 s49, s48
    s_add_u32 s48, s49, 8192
    s_add_u32 s50, s49, {16384+8192}
    s_add_u32 s51, s49, 16384
    s_mov_b32 s64, {hex(f2u(c))}
    """)
    def pack(dst, x, y):
        a(f"v_cvt_pk_bf16_f32 v{dst}, v{x}, v{x+1}")
        a(f"v_cvt_pk_bf16_f32 v{dst+1}, v{x+2}, v{x+3}")
        a(f"v_cvt_pk_bf16_f32 v{dst+2}, v{y}, v{y+1}")
        a(f"v_cvt_pk_bf16_f32 v{dst+3}, v{y+2}, v{y+3}")
    def qpack(sb):
        d = acc(sb, 0)
        for r in range(0, 8, 2):
            a(f"v_pk_mul_f32 {vr(d+r,2)}, {vr(d+r,2)}, s[64:65] op_sel_hi:[1,0]")
        pack(d, acc(sb, 0), acc(sb, 1))
    if opt.kvfirst:
        blocks = lambda g: [(acc(sb, 2), acc(sb, 3), 48, sb, 0) for sb in range(4*g, 4*g + 4)] + [(acc(i & ~1, 4 + (i & 1)), acc(i | 1, 4 + (i & 1)), 50, i, 16384) for i in range(4*g, 4*g + 4)]
        st = lambda x, sreg, i: f"buffer_store_dwordx4 {vr(x,4)}, v253, {SRD_WS}, s{sreg + (i >> 2)} offen offset:{(i & 3)*1024} {opt.kvst}"
        wr = lambda x, i, off: f"ds_write_b128 v254, {vr(x,4)} offset:{off + blk(i)*1024}"
        allb = blocks(0) + blocks(1)
        early_w = [n for n in range(16) if not 4 <= n < 8] if opt.kvfirst == 2 else []
        if part == 0:
            a("v_add_u32 v254, s68, v253")
            return
        if part >= 2:
            for n in range(8 * (part - 2), 8 * (part - 1)):
                x, y, sreg, i, off = allb[n]
                pack(x, x, y)
                if n < 16 - opt.stlate: a(st(x, sreg, i))
                if n in early_w: a(wr(x, i, off))
            return
        a("v_add_u32 v249, s69, v253")
        rest = [wr(allb[n][0], allb[n][3], allb[n][4]) for n in range(16) if n not in early_w]
        per = len(rest) // 4
        for sb in range(4):
            for l in rest[sb*per:(sb+1)*per]: a(l)
            qpack(sb)
            a(f"ds_write_b128 v249, {vr(acc(sb,0),4)} offset:{blk(sb)*1024}")
        a("s_setprio 2\ns_waitcnt lgkmcnt(0)\ns_barrier")
        for n in range(16 - opt.stlate, 16): a(st(allb[n][0], allb[n][2], allb[n][3]))
        for sb in range(4, 8):
            qpack(sb)
            a(f"ds_write_b128 v249, {vr(acc(sb,0),4)} offset:{blk(sb)*1024}")
        return
    if part == 0: opt._late = []
    late = opt._late
    def store(n, txt):
        if (n % 2 == 1 if opt.stalt else n >= 16 - opt.stlate): late.append(txt)
        else:
            if opt.stwin0 and n >= opt.stwin0: a(f"s_waitcnt vmcnt({opt.stwin0 - 1})")
            a(txt)
    n = 8 * part
    al8(a)
    for m in (2 * part, 2 * part + 1):
        for sb in (2 * m, 2 * m + 1):
            d = acc(sb, 2)
            pack(d, acc(sb, 2), acc(sb, 3))
            store(n, f"buffer_store_dwordx4 {vr(d,4)}, v253, {SRD_WS}, s{48 + (sb >> 2)} offen offset:{(sb & 3)*1024} {opt.kvst}"); n += 1
            a(f"ds_write_b128 v248, {vr(d,4)} offset:{blk(sb)*1024}")
            if part:
                qpack(sb - 4)
                a(f"ds_write_b128 v249, {vr(acc(sb-4,0),4)} offset:{blk(sb-4)*1024}")
        for nb in range(2):
            d = acc(2 * m, 4 + nb); i = 2 * m + nb
            pack(d, acc(2 * m, 4 + nb), acc(2 * m + 1, 4 + nb))
            store(n, f"buffer_store_dwordx4 {vr(d,4)}, v253, {SRD_WS}, s{50 + (i >> 2)} offen offset:{(i & 3)*1024} {opt.kvst}"); n += 1
            a(f"ds_write_b128 v248, {vr(d,4)} offset:{16384 + blk(i)*1024}")
    if part == 0: return
    a("s_setprio 2\ns_waitcnt lgkmcnt(0)\ns_barrier")
    al8(a)
    qs = list(range(4, 8))
    def ownq():
        sb = qs.pop(0); qpack(sb)
        a(f"ds_write_b128 v249, {vr(acc(sb,0),4)} offset:{blk(sb)*1024}")
    for k, t in enumerate(late):
        if opt.stwin: a(f"s_waitcnt vmcnt({opt.stwin - 1})")
        a(t)
        if opt.stmix and k % 2 == 1 and qs: ownq()
    while qs: ownq()
    a("s_nop 1")

def b_phase(a, X, Y, kind, step, mask=None):
    S, P = X.s, T_P
    M32 = "v_mfma_f32_32x32x16_bf16"; M16 = "v_mfma_f32_16x16x32_bf16"
    e = lambda n: a(f"v_exp_f32 v{S+n}, v{S+n}")
    c = lambda k: a(f"v_cvt_pk_bf16_f32 v{P+k}, v{S+2*k}, v{S+2*k+1}")
    if kind == 'B': a("s_waitcnt lgkmcnt(1)")
    a(f"{M32} {vr(Y.s,16)}, {vr(T_K,4)}, {vr(Y.q,4)}, {vr(mask,16) if mask is not None else 0}")
    if kind == 'A': a(f"v_add_u32 v{T_ADR}, {step & 0xffffffff}, v{T_ADR}")
    e(0); e(1); e(2); c(0)
    a(f"{M32} {vr(Y.s,16)}, {vr(T_K+4,4)}, {vr(Y.q+4,4)}, {vr(Y.s,16)}")
    if kind == 'A':
        a(f"ds_read_b128 {vr(T_K,4)}, v{T_ADR}")
        a(f"ds_read_b128 {vr(T_K+4,4)}, v{T_ADR} offset:512")
    e(3); e(4); c(1); e(5)
    if kind != 'F':
        if kind == 'B': a("s_waitcnt lgkmcnt(0)")
        a(f"{M32} {vr(Y.o,16)}, {vr(T_V+4,4)}, {vr(P+4,4)}, {vr(Y.o,16)}")
        if kind == 'A': a(f"ds_read_b128 {vr(T_V+4,4)}, v{T_ADR} offset:{16384 + 512 - step}")
    e(6); c(2); e(7); e(8)
    if kind != 'F':
        a(f"{M16} {vr(Y.l,4)}, {vr(T_SEL,4)}, {vr(P+4,4)}, {vr(Y.l,4)}")
    c(3); e(9); e(10); c(4)
    if kind == 'A': a("s_waitcnt lgkmcnt(3)")
    a(f"{M32} {vr(X.o,16)}, {vr(T_V,4)}, {vr(P,4)}, {vr(X.o,16)}")
    if kind != 'A': a(f"ds_read_b128 {vr(T_V,4)}, v{T_ADR} offset:16384")
    e(11); e(12); c(5); e(13)
    a(f"{M16} {vr(X.l,4)}, {vr(T_SEL,4)}, {vr(P,4)}, {vr(X.l,4)}")
    e(14); e(15); c(6)
    if kind == 'B': a("s_sub_u32 s50, s50, 1\ns_cmp_lg_u32 s50, 0")
    c(7)

def b_section(a, own):
    X, Y = (UB, UA) if own else (UA, UB)
    step = -2048 if own else 2048
    mask = T_MD if own else T_ME
    tag = "own" if own else "halo"
    M32 = "v_mfma_f32_32x32x16_bf16"; M16 = "v_mfma_f32_16x16x32_bf16"
    if own: a(f"s_add_u32 s46, s{UA.sq}, 32\ns_add_u32 s50, s{UA.sq}, 1")
    else: a(f"s_add_u32 s46, s{UA.sq}, 1\ns_sub_u32 s50, 7, s{UA.sq}")
    a(f"""
    s_lshl_b32 s46, s46, 11
    s_add_u32 s46, s46, s{S_HB}
    v_add_u32 v{T_ADR}, s46, v{T_PAT}
    v_add_u32 v{T_T0}, {-step & 0xffffffff}, v{T_ADR}
    ds_read_b128 {vr(T_P,4)}, v{T_T0}
    ds_read_b128 {vr(T_P+4,4)}, v{T_T0} offset:512
    ds_read_b128 {vr(T_K,4)}, v{T_ADR}
    ds_read_b128 {vr(T_K+4,4)}, v{T_ADR} offset:512
    ds_read_b128 {vr(T_V,4)}, v{T_T0} offset:16384
    ds_read_b128 {vr(T_V+4,4)}, v{T_T0} offset:{16384+512}
    s_waitcnt lgkmcnt(5)
    {M32} {vr(X.s,16)}, {vr(T_P,4)}, {vr(X.q,4)}, {vr(mask,16)}
    s_waitcnt lgkmcnt(4)
    {M32} {vr(X.s,16)}, {vr(T_P+4,4)}, {vr(X.q+4,4)}, {vr(X.s,16)}
    s_waitcnt lgkmcnt(0)
    s_nop 7
    s_nop 1
    """)
    b_phase(a, X, Y, 'F', step, mask)
    align(a, ALT)
    a.label(f"L_pair_{tag}")
    b_phase(a, Y, X, 'A', step)
    b_phase(a, X, Y, 'B', step)
    a(f"""
    s_cbranch_scc1 L_pair_{tag}
    s_nop 0
    {M32} {vr(X.o,16)}, {vr(T_V+4,4)}, {vr(T_P+4,4)}, {vr(X.o,16)}
    {M16} {vr(X.l,4)}, {vr(T_SEL,4)}, {vr(T_P+4,4)}, {vr(X.l,4)}
    """)

def b_final(a, u, tag, opt):
    lo, hi = (2.0 ** -40, 2.0 ** 40) if not opt.force_slow else (2.0 ** 3, 2.0 ** 9)
    a(f"""
    s_lshl_b32 s46, s{S_RB}, 6
    s_lshl_b32 s47, s{S_PAIR}, 1
    s_add_u32 s46, s46, s47
    s_and_b32 s47, s{S_WAVE}, 1
    s_add_u32 s46, s46, s47
    s_add_u32 s46, s46, 32
    s_mul_i32 s46, s46, {opt.os}
    s_lshl_b32 s73, s{u.sq}, 11
    s_add_u32 s73, s73, s46
    v_cmp_le_f32 vcc, {hex(f2u(lo))}, v{u.l}
    s_mov_b64 s[46:47], vcc
    v_cmp_ge_f32 vcc, {hex(f2u(hi))}, v{u.l}
    s_and_b64 s[46:47], s[46:47], vcc
    s_cmp_eq_u64 s[46:47], -1
    {"s_nop 0" if opt.exp else f"s_cbranch_scc0 L_slow_{tag}"}
    """)
    al8(a)
    a.label(f"L_back_{tag}")
    a(f"v_rcp_f32 v{T_T0}, v{u.l}")
    a("s_nop 0")
    for r in range(0, 16, 2):
        a(f"v_pk_mul_f32 {vr(u.o+r,2)}, {vr(u.o+r,2)}, {vr(T_T0,2)} op_sel_hi:[1,0]")
    for k in range(8):
        a(f"v_cvt_pk_bf16_f32 v{u.o+k}, v{u.o+2*k}, v{u.o+2*k+1}")
    a(f"buffer_store_dwordx4 {vr(u.o,4)}, v{T_PAT}, {SRD_WS}, s73 offen sc1")
    a(f"buffer_store_dwordx4 {vr(u.o+4,4)}, v{T_PAT}, {SRD_WS}, s73 offen offset:512 sc1")

def b_slow(a, u, tag, opt):
    S, P, M = T_S, T_P, T_T0 + 2
    a.label(f"L_slow_{tag}")
    a(f"""
    s_nop 7
    s_nop 7
    v_mfma_f32_32x32x16_bf16 {vr(u.o,16)}, {vr(T_Z,4)}, {vr(T_Z,4)}, 0
    v_mfma_f32_16x16x32_bf16 {vr(u.l,4)}, {vr(T_Z,4)}, {vr(T_Z,4)}, 0
    v_mov_b32 v{M}, {hex(f2u(-3e38))}
    s_add_u32 s52, s{u.sq}, 8
    """)
    for ps in range(2):
        a(f"""
        s_cmp_eq_u32 s{S_RB}, 0
        s_cselect_b32 s51, 8, s{u.sq}
        """)
        a.label(f"L_slowl_{tag}{ps}")
        a(f"""
        s_lshl_b32 s46, s{S_PAIR}, 3
        s_add_u32 s46, s46, s{S_RB}
        s_lshr_b32 s47, s51, 3
        s_add_u32 s46, s46, s47
        s_mul_i32 s46, s46, {opt.kvs}
        s_and_b32 s47, s51, 7
        s_lshl_b32 s47, s47, 11
        s_add_u32 s46, s46, s47
        s_add_u32 s46, s46, s{S_HB}
        s_add_u32 s46, s46, {WS_KV - opt.kvs}
        s_add_u32 s47, s46, 16384
        buffer_load_dwordx4 {vr(T_K,4)}, v{T_PAT}, {SRD_WS}, s46 offen sc1
        buffer_load_dwordx4 {vr(T_K+4,4)}, v{T_PAT}, {SRD_WS}, s46 offen offset:512 sc1
        buffer_load_dwordx4 {vr(T_V,4)}, v{T_PAT}, {SRD_WS}, s47 offen sc1
        buffer_load_dwordx4 {vr(T_V+4,4)}, v{T_PAT}, {SRD_WS}, s47 offen offset:512 sc1
        s_cmp_eq_u32 s51, s52
        s_cselect_b32 s47, 1.0, 0
        s_cmp_eq_u32 s51, s{u.sq}
        s_cselect_b32 s48, 1.0, 0
        """)
        for n in range(16):
            a(f"v_mul_f32 v{T_C+n}, s47, v{T_MD+n}")
            a(f"v_fmac_f32 v{T_C+n}, s48, v{T_ME+n}")
        a(f"""
        s_waitcnt vmcnt(0)
        s_nop 1
        v_mfma_f32_32x32x16_bf16 {vr(S,16)}, {vr(T_K,4)}, {vr(u.q,4)}, {vr(T_C,16)}
        v_mfma_f32_32x32x16_bf16 {vr(S,16)}, {vr(T_K+4,4)}, {vr(u.q+4,4)}, {vr(S,16)}
        s_nop 7
        s_nop 7
        """)
        if ps == 0:
            for n in range(0, 16, 2):
                a(f"v_max3_f32 v{M}, v{S+n}, v{S+n+1}, v{M}")
        else:
            for n in range(16): a(f"v_sub_f32 v{S+n}, v{S+n}, v{M}")
            for n in range(16): a(f"v_exp_f32 v{S+n}, v{S+n}")
            a("s_nop 0")
            for k in range(8): a(f"v_cvt_pk_bf16_f32 v{P+k}, v{S+2*k}, v{S+2*k+1}")
            a(f"""
            s_nop 1
            v_mfma_f32_32x32x16_bf16 {vr(u.o,16)}, {vr(T_V,4)}, {vr(P,4)}, {vr(u.o,16)}
            v_mfma_f32_32x32x16_bf16 {vr(u.o,16)}, {vr(T_V+4,4)}, {vr(P+4,4)}, {vr(u.o,16)}
            v_mfma_f32_16x16x32_bf16 {vr(u.l,4)}, {vr(T_SEL,4)}, {vr(P,4)}, {vr(u.l,4)}
            v_mfma_f32_16x16x32_bf16 {vr(u.l,4)}, {vr(T_SEL,4)}, {vr(P+4,4)}, {vr(u.l,4)}
            """)
        a(f"""
        s_add_u32 s51, s51, 1
        s_cmp_le_u32 s51, s52
        s_cbranch_scc1 L_slowl_{tag}{ps}
        """)
        if ps == 0:
            a(f"""
            v_mov_b32 v{M+1}, v{M}
            s_nop 1
            v_permlane32_swap_b32 v{M}, v{M+1}
            s_nop 1
            v_max_f32 v{M}, v{M}, v{M+1}
            """)
    a(f"s_nop 7\ns_nop 7\ns_branch L_back_{tag}")

def b_attention(a, opt):
    a(f"""
    s_lshl_b32 s46, s{S_WAVE}, 7
    s_add_u32 s46, s46, s{S_FLAG}
    v_mov_b32 v{T_T0}, 1
    v_lshlrev_b32 v{T_T0+1}, 2, v{V_LANE}
    s_mov_b32 exec_hi, 0
    s_waitcnt vmcnt(0)
    buffer_store_dword v{T_T0}, v{T_T0+1}, {SRD_WS}, s46 offen sc1
    s_mov_b32 exec_hi, -1
    """)
    stamp(a, 25, opt); diag(a, opt, "flag")
    if opt.flagfirst:
        a("s_mov_b32 s68, s46"); b_consts(a); a("s_mov_b32 s46, s68")
    a(f"""
    s_cmp_ge_u32 s{S_WAVE}, 2
    s_cbranch_scc1 L_bnopoll
    s_cmp_eq_u32 s{S_RB}, 0
    s_cbranch_scc1 L_bnopoll
    s_sub_u32 s46, s46, 2048
    s_mov_b32 s48, {SPIN_MAX}
    v_and_b32 v{T_C+1}, 1, v{V_LANE}
    v_lshlrev_b32 v{T_C+1}, 8, v{T_C+1}
    s_lshl_b32 s47, s{S_PAIR}, 3
    s_add_u32 s47, s47, s{S_RB}
    s_mul_i32 s47, s47, {opt.kvs}
    s_add_u32 s47, s47, s{S_HB}
    s_add_u32 s47, s47, {WS_KV - opt.kvs}
    v_lshlrev_b32 v{T_T0}, 4, v{V_LANE}
    """)
    if opt.bwait: a("s_waitcnt vmcnt(0)")
    a.label("L_bpoll_l")
    a(f"""
    buffer_load_dword v{T_C}, v{T_C+1}, {SRD_WS}, s46 offen sc1
    s_sub_u32 s48, s48, 1
    s_cmp_eq_u32 s48, 0
    s_cbranch_scc1 L_bpoll_d
    s_waitcnt vmcnt(0)
    v_cmp_ne_u32 vcc, 1, v{T_C}
    s_cbranch_vccnz L_bpoll_l
    """)
    a.label("L_bpoll_d")
    stamp(a, 26, opt)
    a(f"s_mov_b32 m0, s{S_HB}\ns_mov_b32 s48, 8")
    a.label("L_bdma")
    for k in range(4):
        if not (opt.exp & 2): a(f"buffer_load_dwordx4 v{T_T0}, {SRD_WS}, s47 offen offset:{k*1024} {opt.kvld} lds")
    a("""
    s_add_u32 m0, m0, 4096
    s_add_u32 s47, s47, 4096
    s_sub_u32 s48, s48, 1
    s_cmp_lg_u32 s48, 0
    s_cbranch_scc1 L_bdma
    """)
    a.label("L_bnopoll")
    a(f"s_setprio {opt.oprio}")
    a.label("L_battn1")
    stamp(a, 24, opt); cstamp(a, 34, opt)
    a(f"""
    s_lshr_b32 s46, s{S_HB}, 1
    s_add_u32 s46, s46, {LQ}
    s_lshl_b32 s47, s{UA.sq}, 11
    s_add_u32 s47, s47, s46
    v_add_u32 v{T_ADR}, s47, v{T_PAT}
    ds_read_b128 {vr(UB.q,4)}, v{T_ADR} offset:2048
    ds_read_b128 {vr(UB.q+4,4)}, v{T_ADR} offset:{2048+512}
    ds_read_b128 {vr(UA.q,4)}, v{T_ADR}
    ds_read_b128 {vr(UA.q+4,4)}, v{T_ADR} offset:512
    """)
    b_section(a, True)
    stamp(a, 27, opt)
    a(f"s_cmp_ge_u32 s{S_WAVE}, 4\ns_cbranch_scc1 L_nofsetup")
    f_consumer(a, opt, 0)
    a.label("L_nofsetup")
    a(f"""
    s_setprio 0
    s_waitcnt vmcnt(0) lgkmcnt(0)
    s_barrier
    s_cmp_lt_u32 s{S_WAVE}, 4
    s_cbranch_scc1 L_nofill
    s_setprio {opt.bprio}
    """)
    if opt.fill2: a(f"s_cmp_ge_u32 s{S_WAVE}, 6\ns_cbranch_scc1 L_nofill")
    f_prefill(a, opt, "B")
    a.label("L_nofill")
    stamp(a, 28, opt); diag(a, opt, "T2")
    a(f"""
    s_cmp_eq_u32 s{S_RB}, 0
    s_cbranch_scc1 L_bfin
    """)
    b_section(a, False)
    a.label("L_bfin")
    a("s_waitcnt lgkmcnt(0)\ns_nop 1")
    if opt.f0early:
        a(f"s_cmp_ge_u32 s{S_WAVE}, 4\ns_cbranch_scc1 L_nof0")
        f_consumer(a, opt, 1)
        a.label("L_nof0")
    b_final(a, UB, "b", opt)
    b_final(a, UA, "a", opt)
    stamp(a, 29, opt); cstamp(a, 35, opt)
    a(f"""
    s_cmp_ge_u32 s{S_WAVE}, 4
    s_cbranch_scc1 L_fprod
    """)
    if not opt.f0early: f_consumer(a, opt, 1)
    a("s_branch L_fcons")
    b_slow(a, UA, "a", opt)
    b_slow(a, UB, "b", opt)

def phi_pack(a, dst, x, y, t):
    for i, b in enumerate((x, x + 2, y, y + 2)):
        a(f"v_pk_fma_f32 {vr(t+2*i,2)}, {vr(b,2)}, s[64:65], s[64:65] op_sel_hi:[1,0,0] neg_lo:[0,0,1] neg_hi:[0,0,1]")
    for i in range(8): a(f"v_exp_f32_e64 v{t+i}, v{t+i} clamp")
    for i in range(8): a(f"v_max_f32 v{t+i}, v{t+i}, v{(x if i < 4 else y) + (i & 3)}")
    for i in range(4): a(f"v_pk_add_f32 {vr(t+2*i,2)}, {vr(t+2*i,2)}, s[66:67] op_sel_hi:[1,0]")
    for i in range(4): a(f"v_cvt_pk_bf16_f32 v{dst+i}, v{t+2*i}, v{t+2*i+1}")

A_KV = 192
A_T = 216; A_ONE = 224; A_OP = 228
LA_FIN = 32768
def a_valu(a, m, t):
    for nb in range(2):
        phi_pack(a, acc(2*m, 2+nb), acc(2*m, 2+nb), acc(2*m+1, 2+nb), t)
    for nb in range(2):
        d, x, y = acc(2*m, 4+nb), acc(2*m, 4+nb), acc(2*m+1, 4+nb)
        a(f"v_cvt_pk_bf16_f32 v{d}, v{x}, v{x+1}\nv_cvt_pk_bf16_f32 v{d+1}, v{x+2}, v{x+3}\nv_cvt_pk_bf16_f32 v{d+2}, v{y}, v{y+1}\nv_cvt_pk_bf16_f32 v{d+3}, v{y+2}, v{y+3}")
def a_pre(a, opt):
    L = V_LANE
    a(f"""
    s_mov_b32 s64, {hex(f2u(LOG2E))}
    s_mov_b32 s66, {hex(f2u(1e-6))}
    s_mul_i32 s46, s{S_WAVE}, 6144
    v_lshlrev_b32 v253, 4, v{L}
    v_add_u32 v248, s46, v253
    s_and_b32 s47, s{S_WAVE}, 1
    s_mul_i32 s46, s47, 3072
    s_add_u32 s46, s46, {LA_FIN}
    v_add_u32 v249, s46, v253
    """)
    al8(a)
    a_valu(a, 0, XA)

def a_consumer(a, opt):
    L = V_LANE
    for i in range(4): a(f"v_mov_b32 v{A_ONE+i}, 0x3f803f80")
    kvb = lambda db, eb: A_KV + eb * 12 + db * 4
    zb = lambda db: A_KV + db * 12 + 8
    def kvm(m):
        out = []
        for db in range(2):
            c = vr(zb(db), 4)
            out.append(f"v_mfma_f32_16x16x32_bf16 {c}, {vr(acc(2*m,2+db),4)}, {vr(A_ONE,4)}, {c if m else 0}")
        for eb in range(2):
            for db in range(2):
                c = vr(kvb(db, eb), 4)
                out.append(f"v_mfma_f32_16x16x32_bf16 {c}, {vr(acc(2*m,2+db),4)}, {vr(acc(2*m,4+eb),4)}, {c if m else 0}")
        return out
    for m in range(1, 4):
        v = lines_of(a_valu, m, A_T); mf = kvm(m - 1)
        for k, l in enumerate(v):
            a(l)
            if k >= 2 and k % 3 == 2 and mf: a(mf.pop(0))
    for l in kvm(3): a(l)
    a("s_nop 7")
    for i in (2, 5, 0, 1, 3, 4):
        a(f"ds_write_b128 v248, {vr(A_KV+4*i,4)} offset:{i*1024}")
    a("s_waitcnt lgkmcnt(0)\ns_barrier")
    stamp(a, 24, opt)
    al8(a)
    for sb in range(8):
        phi_pack(a, acc(sb, 0), acc(sb, 0), acc(sb, 1), A_T)
    a(f"""
    s_lshl_b32 s46, s{S_RB}, 6
    s_lshl_b32 s48, s{S_PAIR}, 1
    s_add_u32 s46, s46, s48
    s_add_u32 s46, s46, s47
    s_mul_i32 s46, s46, {opt.os}
    s_lshr_b32 s48, s{S_WAVE}, 1
    s_lshl_b32 s49, s48, 12
    s_add_u32 s49, s49, s46
    s_add_u32 s48, s49, 8192
    """)
    stamp(a, 25, opt)
    a("s_setprio 3\ns_barrier")
    stamp(a, 28, opt); diag(a, opt, "A2")
    for i in range(3): a(f"ds_read_b128 {vr(A_OP+4*i,4)}, v249 offset:{i*1024}")
    a("s_waitcnt lgkmcnt(0)")
    mf = [f"v_mfma_f32_16x16x32_bf16 {vr(acc(sb,2+i),4)}, {vr(A_OP+4*i,4)}, {vr(acc(sb,0),4)}, 0" for sb in range(8) for i in (2, 0, 1)]
    for _ in range(6): a(mf.pop(0))
    a("s_nop 2")
    al8(a)
    for sb in range(8):
        n0, dn = acc(sb, 2), acc(sb, 4)
        a(f"v_add_f32 v{dn}, s66, v{dn}")
        a(f"v_rcp_f32 v{dn}, v{dn}")
        a(mf.pop(0) if mf else "v_nop_e64")
        for r in range(0, 8, 2):
            a(f"v_pk_mul_f32 {vr(n0+r,2)}, {vr(n0+r,2)}, {vr(dn,2)} op_sel_hi:[1,0]")
            if r == 4 and mf: a(mf.pop(0))
        for k in range(4):
            a(f"v_cvt_pk_bf16_f32 v{n0+k}, v{n0+2*k}, v{n0+2*k+1}")
            if k == 1 and mf: a(mf.pop(0))
        a(f"buffer_store_dwordx4 {vr(n0,4)}, v253, {SRD_WS}, s{48 + (sb>>2)} offen offset:{(sb&3)*1024} sc1")
    stamp(a, 29, opt)
    if opt.a3 == 1: a("s_barrier")
    f_flag(a)
    if opt.a3 == 2: a("s_barrier")
    a("s_setprio 0")

def a_producer(a, opt):
    L = V_LANE
    V16, VR, VKV, VZ, VQ, VZA, Z = 242, 243, 244, 245, 246, 247, 248
    a(f"""
    s_sub_u32 s46, s{S_WAVE}, 4
    s_and_b32 s47, s46, 1
    s_lshr_b32 s48, s46, 1
    s_mul_i32 s49, s47, 6144
    s_mul_i32 s50, s48, 3072
    s_add_u32 s49, s49, s50
    v_lshlrev_b32 v{V16}, 4, v{L}
    v_add_u32 v{VR}, s49, v{V16}
    s_mul_i32 s49, s47, 3072
    s_add_u32 s49, s49, {LA_FIN}
    s_lshl_b32 s50, s48, 10
    s_add_u32 s50, s50, s49
    v_add_u32 v{VKV}, s50, v{V16}
    s_lshl_b32 s50, s48, 3
    s_add_u32 s50, s50, s49
    v_add_u32 v{VZ}, s50, v{V16}
    v_and_b32 v{VQ}, 48, v{L}
    v_and_b32 v{VZA}, 7, v{L}
    v_lshl_add_u32 v{VZA}, v{VZA}, 14, v{VQ}
    v_and_b32 v6, 3, v{L}
    v_sub_u32 v{VQ}, v{VR}, v{V16}
    v_lshl_add_u32 v{VQ}, v6, 8, v{VQ}
    s_lshl_b32 s51, s{S_PAIR}, 5
    s_add_u32 s51, s51, s46
    s_lshl_b32 s51, s51, 12
    s_add_u32 s51, s51, {WS_PART}
    s_lshl_b32 s52, s{S_RB}, 14
    s_add_u32 s52, s52, s51
    v_mov_b32 v0, 0
    v_mov_b32 v1, 0
    v_mov_b32 v4, 0
    v_mov_b32 v5, 0
    v_and_b32 v6, 1, v{L}
    v_lshlrev_b32 v6, 4, v6
    v_mov_b32 v7, 0x3f80
    v_lshlrev_b32 v6, v6, v7
    s_mov_b32 vcc_lo, 0x00300003
    s_mov_b32 vcc_hi, 0x30000300
    v_cndmask_b32 v2, 0, v6, vcc
    s_mov_b32 vcc_lo, 0x00c0000c
    s_mov_b32 vcc_hi, 0xc0000c00
    v_cndmask_b32 v3, 0, v6, vcc
    s_setprio 2
    s_barrier
    """)
    stamp(a, 24, opt)
    for i in range(3):
        a(f"ds_read_b128 {vr(16+4*i,4)}, v{VR if i < 2 else VQ} offset:{i*1024}")
        a(f"ds_read_b128 {vr(28+4*i,4)}, v{VR if i < 2 else VQ} offset:{12288 + i*1024}")
    a("s_waitcnt lgkmcnt(2)")
    for r in range(0, 8, 2): a(f"v_pk_add_f32 {vr(16+r,2)}, {vr(16+r,2)}, {vr(28+r,2)}")
    for k in range(4): a(f"v_cvt_pk_bf16_f32 v{8+k}, v{16+2*k}, v{17+2*k}")
    a(f"""
    buffer_store_dwordx4 v[8:11], v{V16}, {SRD_WS}, s52 offen sc1
    s_waitcnt lgkmcnt(0)
    v_pk_add_f32 v[12:13], v[24:25], v[36:37]
    v_pk_add_f32 v[14:15], v[26:27], v[38:39]
    s_mov_b32 s48, {SPIN_MAX // 8}
    s_mov_b64 exec, 0xff
    buffer_store_dwordx4 v[12:15], v{V16}, {SRD_WS}, s52 offen offset:1024 sc1
    s_mov_b64 exec, -1
    """)
    if opt.gatelate and opt.agate:
        producer_gate(a, opt, "A")
        a(f"s_mov_b32 s48, {SPIN_MAX // 8}")
    f_prefill(a, opt, "A1", opt.afill, opt.afill + opt.afill2)
    if opt.await0: a(f"s_waitcnt vmcnt({2 * opt.afill2 + (1 if opt.gatelate and opt.agate else 0)})")
    stamp(a, 25, opt)
    a.label("L_agather")
    a(f"buffer_load_dwordx4 {vr(Z,4)}, v{VZA}, {SRD_WS}, s51 offen offset:1024 sc1")
    a("s_mov_b32 s53, s51")
    for src in range(8):
        a(f"buffer_load_dwordx4 {vr(16+4*src,4)}, v{V16}, {SRD_WS}, s53 offen sc1")
        if src < 7: a("s_add_u32 s53, s53, 16384")
    a("s_waitcnt vmcnt(8)")
    for sh in (4, 2, 1):
        for r in range(4): a(f"v_add_f32_dpp v{Z+r}, v{Z+r}, v{Z+r} row_ror:{sh} row_mask:0xf bank_mask:0xf")
    for src in range(8):
        a(f"s_waitcnt vmcnt({7-src})")
        a(f"v_mfma_f32_16x16x32_bf16 v[8:11], v[2:5], {vr(16+4*src,4)}, {'v[8:11]' if src else 0}")
        a(f"v_mfma_f32_16x16x32_bf16 v[12:15], v[0:3], {vr(16+4*src,4)}, {'v[12:15]' if src else 0}")
    a(f"""
    v_pk_add_f32 v[6:7], {vr(Z,2)}, {vr(Z+2,2)}
    v_add_f32 v6, v6, v7
    v_cvt_pk_bf16_f32 v{Z}, v{Z}, v{Z+1}
    v_cvt_pk_bf16_f32 v{Z+1}, v{Z+2}, v{Z+3}
    s_nop 3
    v_cmp_u_f32 vcc, v6, v12
    s_cbranch_vccz L_apoll_d
    """)
    a.label("L_apoll")
    a(f"""
    s_sub_u32 s48, s48, 1
    s_cmp_eq_u32 s48, 0
    s_cbranch_scc1 L_apoll_d
    buffer_load_dword v7, v{VZA}, {SRD_WS}, s51 offen offset:1024 sc1
    s_waitcnt vmcnt(0)
    v_cmp_eq_u32 vcc, -1, v7
    s_cbranch_vccnz L_apoll
    s_branch L_agather
    """)
    a.label("L_apoll_d")
    stamp(a, 26, opt)
    if opt.prof: a(f"s_sub_u32 s94, {SPIN_MAX//8+1}, s48\nv_writelane_b32 v255, s94, 38")
    for k in range(4): a(f"v_cvt_pk_bf16_f32 v{8+k}, v{8+2*k}, v{9+2*k}")
    a(f"""
    ds_write_b64 v{VZ}, {vr(Z,2)} offset:2048
    ds_write_b128 v{VKV}, v[8:11]
    s_waitcnt lgkmcnt(0)
    """)
    stamp(a, 27, opt)
    a("s_barrier")
    a("s_setprio 0")
    if opt.a3: a("s_barrier")

F_FL, F_FA = 244, 248
def f_flag(a, wait="s_waitcnt vmcnt(0)"):
    a(f"""
    s_lshl_b32 s46, s{S_WAVE}, 7
    s_add_u32 s46, s46, s{S_FLAG}
    v_mov_b32 v{F_FL+6}, 1
    v_lshlrev_b32 v{F_FL+7}, 2, v{V_LANE}
    s_mov_b32 exec_hi, 0
    {wait}
    buffer_store_dword v{F_FL+6}, v{F_FL+7}, {SRD_WS}, s46 offen offset:1024 sc1
    s_mov_b32 exec_hi, -1
    """)
def f_gate_addr(a, which, opt):
    a(f"""
    v_and_b32 v{F_FA}, 15, v{V_LANE}
    v_lshlrev_b32 v{F_FA}, 14, v{F_FA}
    {f"v_mov_b32 v{F_FL}, 4" if which == "B" else f"v_lshrrev_b32 v{F_FL}, 4, v{V_LANE}"}
    v_lshl_add_u32 v{F_FA}, v{F_FL}, 7, v{F_FA}
    s_lshl_b32 s{S_GA}, s{S_RT}, 11
    s_add_u32 s{S_GA}, s{S_GA}, {WS_FLAG + (262144 if which == "B" else 0)}
    """)
def f_gate(a, which, opt, probed=None):
    assert opt.bflag1
    a(f"s_cmp_lg_u32 s{S_WAVE}, {opt.gwave}\ns_cbranch_scc1 L_gated{which}\ns_mov_b32 s48, {SPIN_MAX}")
    if probed is None: f_gate_addr(a, which, opt)
    else: a(f"s_waitcnt vmcnt({probed})\nv_cmp_ne_u32 vcc, 1, v{F_FL}\ns_cbranch_vccz L_gated{which}")
    a(f"s_branch L_gate_e{which}")
    a.label(f"L_gate{which}")
    if opt.backoff: a(f"s_sleep {opt.backoff}")
    a.label(f"L_gate_e{which}")
    a(f"""
    buffer_load_dword v{F_FL}, v{F_FA}, {SRD_WS}, s{S_GA} offen offset:1024 sc1
    s_sub_u32 s48, s48, 1
    s_cmp_eq_u32 s48, 0
    s_cbranch_scc1 L_gated{which}
    s_waitcnt vmcnt(0)
    v_cmp_ne_u32 vcc, 1, v{F_FL}
    s_cbranch_vccnz L_gate{which}
    """)
    a.label(f"L_gated{which}")
FV_W0, FV_W1 = 240, 241
S_FW, S_FWL = 90, 91
SRD_WO = "s[80:83]"
NPRE = 12
def grp_addr(g): return ((g + 2) % 5) * 32768
LG = grp_addr(3)

def f_rot(a, opt, dst):
    a(f"s_lshl_b32 s{dst}, s{S_CT}, 1\ns_and_b32 s{dst}, s{dst}, {opt.fstag}")

WR = 80
def f_regload(a, lo, hi, opt=None, tmp=57):
    for st in range(lo, hi):
        r = WR + 8 * (st - NPRE)
        srd = SRD_WO if st < 16 else "s[84:87]"
        a(f"""
        s_mov_b32 s{tmp}, {(st & 15) << 17}
        buffer_load_dwordx4 {vr(r,4)}, v{FV_W0}, {srd}, s{tmp} offen
        buffer_load_dwordx4 {vr(r+4,4)}, v{FV_W1}, {srd}, s{tmp} offen offset:1024
        """)
        if opt and st == lo + opt.flagat - 1 and not opt.bflag1: f_flag(a, f"s_waitcnt vmcnt({2*opt.flagat})")

def f_setup(a, opt):
    L = V_LANE
    a(f"""
    s_sub_u32 s46, s{S_WAVE}, 4
    v_lshrrev_b32 v{FV_W1}, {2 if opt.f32 else 3}, v{L}
    v_xor_b32 v{FV_W0}, v{FV_W1}, v{L}
    v_and_b32 v{FV_W0}, {4 if opt.f32 else 6}, v{FV_W0}
    v_and_or_b32 v{FV_W0}, v{L}, {3 if opt.f32 else 1}, v{FV_W0}
    v_lshrrev_b32 v{FV_W1}, 3, v{L}
    v_lshlrev_b32 v{FV_W0}, 4, v{FV_W0}
    v_lshl_add_u32 v{FV_W0}, v{FV_W1}, 11, v{FV_W0}
    s_lshl_b32 s47, s{S_CT}, 7
    s_lshl_b32 s48, s46, 15
    s_add_u32 s47, s47, s48
    v_add_u32 v{FV_W0}, s47, v{FV_W0}
    v_add_u32 v{FV_W1}, {16384 - 1024}, v{FV_W0}
    v_mov_b32 v224, 0
    s_lshl_b32 s{S_FWL}, s46, 11
    s_add_u32 s{S_FWL}, s{S_FWL}, 65536
    s_mov_b32 s80, s8
    s_and_b32 s81, s9, 0xffff
    s_mov_b32 s82, 0x200000
    s_mov_b32 s83, 0x20000
    s_mov_b32 s84, s14
    s_and_b32 s85, s15, 0xffff
    s_mov_b32 s86, 0x200000
    s_mov_b32 s87, 0x20000
    """)

def f_prefill(a, opt, ty, lo=0, hi=NPRE):
    if opt.exp & 16 or hi <= lo: return
    a(f"s_mov_b32 s49, {hi - lo}\ns_mov_b32 s{S_FW}, {lo}")
    a.label(f"L_fill{ty}")
    a(f"""
    s_lshl_b32 s57, s{S_FW}, 17
    s_xor_b32 s57, s57, s{S_ROT}
    s_mov_b32 m0, s{S_FWL}
    s_add_u32 s{S_FWL}, s{S_FWL}, 8192
    s_add_u32 s{S_FW}, s{S_FW}, 1
    buffer_load_dwordx4 v{FV_W0}, {SRD_WO}, s57 offen lds
    buffer_load_dwordx4 v{FV_W1}, {SRD_WO}, s57 offen offset:1024 lds
    """)
    if ty == "B" and opt.fill2:
        a(f"""
        s_add_u32 m0, m0, 4096
        s_add_u32 s57, s57, 65536
        buffer_load_dwordx4 v{FV_W0}, {SRD_WO}, s57 offen lds
        buffer_load_dwordx4 v{FV_W1}, {SRD_WO}, s57 offen offset:1024 lds
        """)
    a(f"""
    s_sub_u32 s49, s49, 1
    s_cmp_lg_u32 s49, 0
    s_cbranch_scc1 L_fill{ty}
    """)

def f_producer(a, opt):
    L = V_LANE
    hi = 32 - opt.n13 - opt.n14 - sum(opt.cl)
    rest = 2 * (hi - NPRE - opt.na15)
    a("s_branch L_fprodA")
    a.label("L_fprod")
    a("s_setprio 0\ns_waitcnt vmcnt(4)")
    f_regload(a, NPRE, NPRE + opt.na15)
    a.label("L_fprodA")
    if opt.aprobe:
        f_gate_addr(a, "A", opt)
        a(f"""
        s_cmp_eq_u32 s{S_WAVE}, {opt.gwave}
        s_cbranch_scc0 L_noprobe
        buffer_load_dword v{F_FL}, v{F_FA}, {SRD_WS}, s{S_GA} offen offset:1024 sc1
        L_noprobe:
        """)
    f_regload(a, NPRE + opt.na15, hi)
    a(f"s_cmp_eq_u32 s{S_BR}, 0\ns_cbranch_scc0 L_nowaitfill\ns_waitcnt vmcnt({rest})\nL_nowaitfill:")
    a(f"""
    s_sub_u32 s47, s{S_WAVE}, 4
    s_lshl_b32 s47, s47, 11
    v_lshlrev_b32 v10, 4, v{L}
    v_add_u32 v10, s47, v10
    v_add_u32 v11, 65536, v10
    v_add_u32 v12, 131072, v10
    """)
    stamp(a, 39, opt)
    def gate(which): f_gate(a, which, opt)
    def put(g):
        ad = grp_addr(g)
        for k in range(8):
            off = (ad & 65535) + (k >> 1) * 8192 + (k & 1) * 1024
            a(f"ds_write_b128 v{10 + (ad >> 16)}, {vr(WR + (g-3)*32 + 4*k, 4)} offset:{off}")
    f_gate(a, "A", opt, rest if opt.aprobe else None)
    a("s_barrier")
    stamp(a, 40, opt); cstamp(a, 36, opt)
    a("s_waitcnt vmcnt(0)")
    for k in range(8):
        if k == 1 and opt.bflag1:
            a(f"s_cmp_lg_u32 s{S_WAVE}, 4\ns_cbranch_scc1 L_noflag1\ns_setprio 3")
            f_flag(a, "")
            a("s_setprio 0")
            a.label("L_noflag1")
        if opt.putsh is None:
            if k == 0: put(3); put(4)
            elif k <= 3: put(4 + k)
        elif 3 <= k + opt.putsh <= 7: put(k + opt.putsh)
        if k == 2:
            a("s_setprio 3"); gate("B"); a("s_setprio 0")
            stamp(a, 41, opt)
        if k == 3:
            a(f"""
            s_lshl_b32 s47, s{S_RT}, 1
            s_add_u32 s47, s47, s{S_RH}
            s_lshl_b32 s47, s47, 2
            s_add_u32 s47, s47, s{S_WAVE}
            s_lshl_b32 s47, s47, 12
            s_add_u32 s47, s47, {WS_G - 4*4096}
            v_and_b32 v2, 31, v{L}
            v_lshlrev_b32 v1, 7, v2
            buffer_load_dword v3, v1, {SRD_WS}, s47 offen sc1
            v_lshlrev_b32 v2, 2, v2
            s_lshl_b32 s47, s{S_WAVE}, 7
            v_add_u32 v2, s47, v2
            """)
        if k == 5:
            a(f"s_waitcnt vmcnt(0)\nds_write_b32 v2, v3 offset:{LG}")
        a("s_waitcnt lgkmcnt(0)\ns_barrier")
        stamp(a, 44 + k, opt)
    stamp(a, 42, opt); cstamp(a, 37, opt)
    prof_dump(a, opt, WS_PROF)
    a("s_endpgm")

def f_consumer(a, opt, part):
    L = V_LANE
    AC, ST, WB, OB = 0, 32, 64, 160
    VO, VW, T = 224, 226, 230
    F32 = opt.f32
    if part: pass
    elif F32:
        a(f"""
        v_and_b32 v{VO}, 15, v{L}
        v_lshlrev_b32 v{VO}, 4, v{VO}
        v_bfe_u32 v{T}, v{L}, 4, 1
        v_lshl_add_u32 v{VO}, v{T}, 10, v{VO}
        v_lshrrev_b32 v{T+1}, 5, v{L}
        v_lshl_add_u32 v{VO}, v{T+1}, 8, v{VO}
        v_lshlrev_b32 v{T}, 5, v{T}
        v_lshl_add_u32 v{T}, v{T+1}, 9, v{T}
        v_bfe_u32 v{T+1}, v{L}, 2, 2
        v_lshl_add_u32 v{T}, v{T+1}, 7, v{T}
        v_bfe_u32 v{T+1}, v{L}, 3, 1
        v_lshl_add_u32 v{T}, v{T+1}, 6, v{T}
        v_and_b32 v{T+1}, 3, v{L}
        v_lshl_add_u32 v{T}, v{T+1}, 3, v{T}
        v_add_u32 v{VW}, {grp_addr(0)}, v{T}
        v_xor_b32 v{VW+1}, 64, v{VW}
        """)
    else:
        a(f"""
        v_lshlrev_b32 v{VO}, 4, v{L}
        v_lshrrev_b32 v{T}, 2, v{L}
        v_lshlrev_b32 v{T}, 7, v{T}
        v_bfe_u32 v{T+1}, v{L}, 3, 2
        v_lshl_add_u32 v{T}, v{T+1}, 5, v{T}
        v_and_b32 v{T+1}, 3, v{L}
        v_lshl_add_u32 v{T}, v{T+1}, 3, v{T}
        v_add_u32 v{VW}, {grp_addr(0)}, v{T}
        v_xor_b32 v{VW+1}, 32, v{VW}
        v_xor_b32 v{VW+2}, 64, v{VW}
        v_xor_b32 v{VW+3}, 96, v{VW}
        """)
    if part == 0: a(f"""
    s_mul_i32 s59, s{S_RT}, {64 * opt.os}
    s_add_u32 s26, s59, {64 * opt.os}
    s_lshl_b32 s47, s{S_RH}, 13
    s_add_u32 s59, s59, s47
    s_lshl_b32 s47, s{S_WAVE}, 11
    s_add_u32 s59, s59, s47
    v_mov_b32 v{T}, 0
    v_mov_b32 v{T+1}, 0
    v_mov_b32 v{T+2}, 0
    v_mov_b32 v{T+3}, 0
    s_mov_b32 s28, s18
    s_and_b32 s29, s19, 0xffff
    s_mov_b32 s30, 0x400000
    s_mov_b32 s53, 32768
    s_mov_b32 s24, s32
    s_mov_b32 s25, s33
    s_movk_i32 s61, 0x108
    """)
    if part == 0: return
    def oload(t, i): return f"buffer_load_dwordx4 {vr(OB + (t % 8)*8 + 4*i, 4)}, v{VO}, s[24:27], s59 offen offset:{i*(512 if F32 else 1024)} sc1"
    def wread(t, f, u):
        if F32: ad, off = VW + (f & 1), (f >> 1) * 1024
        else: ad, off = VW + f, 0
        return dict(txt=f"ds_read_b64_tr_b16 {vr(WB + (t & 1)*16 + f*4 + 2*u, 2)}, v{ad} offset:{(t % 8)*4096 + u*2048 + off}", loads=('w', t & 1, f, u))
    if part == 1:
        assert opt.bflag1
        a("s_barrier")
        stamp(a, 40, opt); diag(a, opt, "F0")
        for t in range(opt.nearly):
            a(oload(t, 0)); a(oload(t, 1))
            a(f"s_add_u32 s59, s59, {opt.os}")
        return
    a.label("L_fcons")
    for t in range(opt.nearly, 7):
        a(oload(t, 0)); a(oload(t, 1))
        a(f"s_add_u32 s59, s59, {opt.os}")
    for r in (0, 16): a(f"v_mfma_f32_32x32x16_bf16 {vr(AC+r,16)}, {vr(T,4)}, {vr(T,4)}, 0")
    a("s_mov_b32 s50, 0")
    pre = [wread(0, f, u) for f in range(4) for u in range(2)]
    lines, q0 = schedule_waits(pre)
    for l in lines: a(l)
    a("s_nop 1")
    align(a, opt.alf)
    a.label("L2_loop")
    body = []
    X = lambda *l: [dict(txt=x) for x in l]
    nva = 2 if F32 else 4
    for t in range(8):
        body.append(dict(txt="s_waitcnt vmcnt(12)"))
        assert opt.frot == 0
        nxt = f"s_add_u32 s59, s59, {opt.os}"
        misc = {4: X("s_add_u32 s50, s50, 1"),
                5: X("s_bitcmp1_b32 s61, s50", f"s_cselect_b32 s52, {-4*32768 & 0xffffffff}, s53"),
                6: X(*[f"v_add_u32 v{VW+k}, s52, v{VW+k}" for k in range(nva)]), 7: X("s_and_b32 s47, s50, 3")}.get(t, [])
        if F32:
            for m in range(4):
                u, cb = m >> 1, m & 1
                c = vr(AC + cb * 16, 16)
                body.append(dict(txt=f"v_mfma_f32_32x32x16_bf16 {c}, {vr(WB + (t&1)*16 + m*4, 4)}, {vr(OB + t*8 + 4*u, 4)}, {c}", reads={('w', t & 1, m | 1, 1)}))
                if t == 7 and m == 0: body.append(dict(txt="s_barrier", drain=True))
                if m < 2: body += [wread(t + 1, 2 * m + k, u_) for k in range(2) for u_ in range(2)]
                if m >= 2: body.append(dict(txt=oload(t + 7, m - 2)))
                if m == 3: body += X(nxt) + misc
        else:
            m = 0
            for nb in range(4):
                for i in ((0, 1) if nb % 2 == 0 else (1, 0)):
                    c = vr(AC + (i * 4 + nb) * 4, 4)
                    body.append(dict(txt=f"v_mfma_f32_16x16x32_bf16 {c}, {vr(WB + (t&1)*16 + nb*4, 4)}, {vr(OB + t*8 + 4*i, 4)}, {c}", reads={('w', t & 1, nb | 1, 1)}))
                    if opt.f1ds:
                        if t == 7:
                            if m < 2: body += X(oload(t + 7, m), f"v_add_u32 v{VW+2*m}, s52, v{VW+2*m}", f"v_add_u32 v{VW+2*m+1}, s52, v{VW+2*m+1}")
                            if m == 2: body += X(nxt) + misc
                            if m == 3: body.append(dict(txt="s_barrier", drain=True))
                            if m >= 3 and m < 7: body += [wread(t + 1, m - 3, 0), wread(t + 1, m - 3, 1)]
                        else:
                            body.append(wread(t + 1, m >> 1, m & 1))
                            if m in opt.f1ds: body.append(dict(txt=oload(t + 7, opt.f1ds.index(m))))
                            if m == 6: body += X(nxt)
                            if m == 2 and t != 6: body += misc
                        m += 1
                        continue
                    if t == 7 and m == 0: body.append(dict(txt="s_barrier", drain=True))
                    if m < 4: body += [wread(t + 1, m, 0), wread(t + 1, m, 1)]
                    if m in (4, 5): body.append(dict(txt=oload(t + 7, m - 4)))
                    if m == 5: body += X(nxt)
                    if m == 6: body += misc[:2]
                    if m == 7: body += misc[2:]
                    m += 1
    lines, q1 = schedule_waits(body, q0)
    assert q1 == q0, (q0, q1)
    k = 0
    while k < len(lines):
        if k + 1 < len(lines) and lines[k].startswith("s_waitcnt vmcnt") and lines[k+1].startswith("s_waitcnt lgkmcnt"):
            a(lines[k] + " " + lines[k+1].split()[1]); k += 2
        else:
            a(lines[k]); k += 1
    a(f"""
    s_cbranch_scc1 L2_loop
    s_cmp_eq_u32 s50, 8
    s_cbranch_scc1 L2_done
    s_nop 4
    """)
    al8(a)
    for r in range(0, 32, 2): a(f"v_pk_mul_f32 {vr(ST+r,2)}, {vr(AC+r,2)}, 1.0 op_sel_hi:[1,0]")
    a("s_branch L2_loop")
    a.label("L2_done")
    a(f"""
    v_and_b32 v{T}, {31 if F32 else 15}, v{L}
    v_lshlrev_b32 v{T+1}, 2, v{T}
    s_lshl_b32 s47, s{S_WAVE}, 7
    v_add_u32 v{T+1}, s47, v{T+1}
    ds_read_b32 v{T+2}, v{T+1} offset:{LG + 512}
    ds_read_b32 v{T+6}, v{T+1} offset:{LG + 512 + (0 if F32 else 64)}
    v_lshlrev_b32 v{T}, 11, v{T}
    """)
    if not F32: a(f"v_bfe_u32 v{T+1}, v{L}, 4, 1\nv_lshl_add_u32 v{T}, v{T+1}, 5, v{T}")
    a(f"""
    v_lshrrev_b32 v{T+1}, 5, v{L}
    v_lshl_add_u32 v{T}, v{T+1}, 4, v{T}
    s_lshl_b32 s48, s{S_RT}, 1
    s_add_u32 s48, s48, s{S_RH}
    s_lshl_b32 s48, s48, 2
    s_add_u32 s48, s48, s{S_WAVE}
    s_lshl_b32 s48, s48, 16
    s_lshl_b32 s49, s{S_CT}, 7
    s_add_u32 s48, s48, s49
    """)
    TW, TR, TG = T + 10, T + 12, T + 13
    if opt.outt:
        assert not F32
        a(f"""
        v_and_b32 v{TR}, 7, v{L}
        v_bfe_u32 v{TW}, v{T}, 4, 2
        v_xor_b32 v{TW}, v{TW}, v{TR}
        v_lshlrev_b32 v{TW}, 4, v{TW}
        v_and_b32 v{TG}, 15, v{L}
        v_lshl_add_u32 v{TW}, v{TG}, 7, v{TW}
        s_lshl_b32 s47, s{S_WAVE}, 12
        s_add_u32 s47, s47, {grp_addr(4)}
        v_add_u32 v{TW}, s47, v{TW}
        v_xor_b32 v{TW+1}, 64, v{TW}
        v_lshrrev_b32 v{T+1}, 3, v{L}
        v_lshlrev_b32 v{TG}, 4, v{TR}
        v_lshl_add_u32 v{TG}, v{T+1}, 11, v{TG}
        v_xor_b32 v{TR}, v{TR}, v{T+1}
        v_lshlrev_b32 v{TR}, 4, v{TR}
        v_lshl_add_u32 v{TR}, v{T+1}, 7, v{TR}
        v_add_u32 v{TR}, s47, v{TR}
        """)
    a("s_waitcnt lgkmcnt(0)")
    for i in range(2):
        g = T + 2 + 4 * i
        a(f"v_sub_f32 v{g+2}, 1.0, v{g}")
        a(f"v_sub_f32 v{g}, v{g}, v{g+2}")
        for hf in range(2):
            al8(a)
            b0 = AC + i * 16 + hf * 8; b1 = ST + i * 16 + hf * 8
            for r in range(0, 8, 2):
                a(f"v_pk_mul_f32 {vr(b1+r,2)}, {vr(b1+r,2)}, {vr(g,2)} op_sel_hi:[1,0]")
            for r in range(0, 8, 2):
                a(f"v_pk_fma_f32 {vr(b0+r,2)}, {vr(b0+r,2)}, {vr(g+2,2)}, {vr(b1+r,2)} op_sel_hi:[1,0,1]")
            for k in range(4): a(f"v_cvt_pk_bf16_f32 v{b0+k}, v{b0+2*k}, v{b0+2*k+1}")
            a("s_nop 1")
            sw = "v_permlane32_swap_b32" if F32 else "v_permlane16_swap_b32"
            a(f"{sw} v{b0}, v{b0+2}")
            a(f"{sw} v{b0+1}, v{b0+3}")
            if opt.outt: a(f"ds_write_b128 v{TW+hf}, {vr(b0,4)} offset:{i*2048}")
            else: a(f"buffer_store_dwordx4 {vr(b0,4)}, v{T}, s[28:31], s48 offen offset:{i*64 + hf*32 if F32 else hf*64} {opt.outaux}")
            if opt.outt and i == 1 and hf == 0:
                for k in range(2):
                    a(f"s_waitcnt lgkmcnt({2-k})\nbuffer_store_dwordx4 {vr(WB+4*k,4)}, v{TG}, s[28:31], s48 offen {opt.outaux}\ns_add_u32 s48, s48, {8*2048}")
        if opt.outt:
            for k in range(2): a(f"ds_read_b128 {vr(WB + 8*i + 4*k,4)}, v{TR} offset:{i*2048 + k*1024}")
        elif i == 0 and not F32: a(f"s_add_u32 s48, s48, {16*2048}")
    if opt.outt:
        for k in range(2):
            a(f"s_waitcnt lgkmcnt({1-k})\nbuffer_store_dwordx4 {vr(WB+8+4*k,4)}, v{TG}, s[28:31], s48 offen {opt.outaux}\ns_add_u32 s48, s48, {8*2048}")
    stamp(a, 43, opt)
    diag_end(a, opt)
    prof_dump(a, opt, WS_PROF)

def gen_k1(opt):
    global GAUX, ALT, AL8
    GAUX = opt.gaux; ALT = opt.alt; AL8 = opt.al8
    a = Asm()
    k1_prologue(a, opt)
    dma_addrs(a)
    k1_srds(a)
    a(f"s_cmp_ge_u32 s{S_WAVE}, 4")
    a("s_cbranch_scc1 L_producer")
    consumer_setup(a, opt)
    a(f"s_cmp_eq_u32 s{S_BR}, 0")
    a("s_cbranch_scc1 L_consA")
    consumer_gemm(a, True, "B", [lines_of(b_epilogue, opt, p_) for p_ in (0, 2, 3)] if opt.kvfirst else lines_of(b_epilogue, opt, 0), opt)
    diag(a, opt, "G")
    b_epilogue(a, opt, 1)
    if not opt.flagfirst: b_consts(a)
    b_attention(a, opt)
    a.label("L_consA")
    consumer_gemm(a, False, "A", lines_of(a_pre, opt), opt)
    diag(a, opt, "G")
    a_consumer(a, opt)
    for part in range(3): f_consumer(a, opt, part)
    a.label("L1_end")
    a("s_endpgm")
    a.label("L_producer")
    producer_gemm(a, opt)
    a(f"s_waitcnt vmcnt({2 * (opt.n13 + opt.n14)})")
    if not opt.gatelate: producer_gate(a, opt)
    if not opt.constearly: b_consts(a)
    a("s_setprio 0")
    a("s_barrier")
    stamp(a, 15, opt)
    a(f"s_cmp_eq_u32 s{S_BR}, 0\ns_cbranch_scc0 L_no15")
    f_regload(a, NPRE + sum(opt.al), NPRE + opt.na15)
    a.label("L_no15")
    if opt.gatelate and not opt.agate: producer_gate(a, opt)
    a(f"s_cmp_eq_u32 s{S_BR}, 0")
    a("s_cbranch_scc1 L_prodA")
    if opt.gatelate and opt.agate: producer_gate(a, opt)
    a(f"s_barrier\ns_branch L_battn1")
    a.label("L_prodA")
    f_prefill(a, opt, "A0", 0, opt.afill)
    a_producer(a, opt)
    f_prefill(a, opt, "A", opt.afill + opt.afill2, NPRE)
    f_producer(a, opt)
    assert opt.constearly and opt.na15 >= sum(opt.al) and not opt.wovec
    assert sum(opt.cl) + opt.n13 + opt.n14 <= 10
    a.label("L_wl")
    hi_, lo_ = 32, NPRE + sum(opt.al)
    for k in range(4):
        if k < 3: a(f"s_cmp_eq_u32 s50, {9 + k}\ns_cbranch_scc0 L_wl{k+1}")
        for half, at in enumerate(opt.c3):
            if at == 9 + k:
                a(f"""
                s_lshr_b32 s47, s{S_J}, 4
                s_lshl_b32 s47, s47, 2
                s_add_u32 s47, s47, s46
                s_cmp_eq_u32 s47, {4 * half + ((at + 1) & 3)}
                s_cbranch_scc0 L_noc3{half}
                s_and_b32 s47, s{S_J}, 15
                s_lshl_b32 s47, s47, 17
                s_and_b32 s48, s{S_XCD}, 1
                s_lshl_b32 s48, s48, 10
                s_add_u32 s47, s47, s48
                v_lshlrev_b32 v39, 11, v0
                buffer_load_dword v35, v39, {"s[84:87]" if half else SRD_WO}, s47 offen offset:384
                L_noc3{half}:
                """)
        f_regload(a, hi_ - opt.cl[k], hi_, tmp=47); hi_ -= opt.cl[k]
        if opt.al[k]:
            a(f"s_cmp_eq_u32 s{S_BR}, 0\ns_cbranch_scc0 L_aback")
            f_regload(a, lo_ - opt.al[k], lo_, tmp=47); lo_ -= opt.al[k]
        a("s_branch L_aback")
        if k < 3: a.label(f"L_wl{k+1}")
    a.label("L_code_end")
    return a.text()

def kd(name, nv):
    return f""".amdhsa_kernel {name}
  .amdhsa_next_free_vgpr {nv}
  .amdhsa_next_free_sgpr 102
  .amdhsa_accum_offset {nv}
  .amdhsa_group_segment_fixed_size 0
  .amdhsa_kernarg_size 80
  .amdhsa_user_sgpr_count 2
  .amdhsa_user_sgpr_kernarg_segment_ptr 1
  .amdhsa_system_sgpr_workgroup_id_x 1
.end_amdhsa_kernel
"""

def gen_all(opt):
    k1 = NAME + "_kernel"
    launch = f"; @launch kernel={k1} grid=(256,1,1) block=(512,1,1) lds=163840" if opt.aslist else "; @launch grid=(256,1,1) block=(512,1,1) lds=163840"
    s = f"""; Generated by my own generator script (dev/gen.py).
; Kernarg: 0 A_x, 8 A_wqkv, 16 A_wo, 24 B_x, 32 B_wqkv, 40 B_wo, 48 gate_w, 56 out, 64 debug, 72 ws
{launch}
.amdgcn_target "amdgcn-amd-amdhsa--gfx950"
.text
.globl {k1}
.p2align 8
.type {k1},@function
{k1}:
{gen_k1(opt)}
.section .rodata,"a"
.p2align 6
{kd(k1, 256)}"""
    return s

if __name__ == "__main__":
    opt = Opt()
    out = f"cdna_kernels/{NAME}.s"
    for arg in sys.argv[1:]:
        k, v = arg.split("=")
        if k == "out": out = v
        else: setattr(opt, k, eval(v))
    open(out, "w").write(gen_all(opt))
    print("wrote", out)
```

```python
import sys, struct
from asm import *

NAME = "gated_mix__linear_attn_block__sliding_block__prompt"
WS_O = 0
WS_KV = 10 << 20
WS_PART = 20 << 20
WS_FLAG = 22 << 20
WS_G = 23 << 20
WS_PROF = 24 << 20
XSLOT = 32768; NXS = 3
WBASE = XSLOT * NXS; WSLOT = 24576
ACC = 0; XA = 192; XB = 208; WF = 224
V_XA0, V_XA1, V_WA0, V_WA1, V_LANE = 248, 249, 250, 251, 252
S_WAVE, S_RB, S_PAIR, S_BR, S_XCD, S_J = 40, 41, 42, 43, 44, 45
SRD_X, SRD_W, SRD_WS, SRD_DBG = "s[24:27]", "s[28:31]", "s[32:35]", "s[36:39]"
S_GA, S_RH, S_RT, S_CT = 76, 77, 78, 79
S_ROT = 75
S_FLAG = 63
SPIN_MAX = 20000
def f2u(x): return struct.unpack("<I", struct.pack("<f", x))[0]
LOG2E = 1.4426950408889634

def acc(sb, j): return ACC + (sb * 6 + j) * 4
def blk(sb): return 8 + sb if sb < 4 else sb - 4

class Opt:
    pf = 4
    prof = False
    force_slow = False
    fstag = 0
    fpre = 4
    gload = 2
    await0 = True
    a3 = 2
    agate = False
    outaux = 'sc1'
    outt = True
    wfirst = False
    w64 = False
    fprio = 3
    flagat = 4
    tmode = 3
    tpos = 2
    exp = 0
    afill = 0
    wovec = 0
    n13 = 4
    n14 = 6
    fmap = 1
    kvfirst = 0
    flagfirst = False
    afill2 = 8
    putsh = None
    nearly = 7
    cl = (0, 0, 0, 0)
    astag = 0
    dist0 = 1
    x2wait = 0
    nd = 4
    skip0 = False
    wob = 0
    bhelp = 0
    earlyb = None
    atom = 0
    al8 = True
    f1ds = None
    alg = None
    alt = None
    alf = None
    midinit = -6
    woa = False
    stwin = 0
    stwin0 = 0
    stmix = False
    stalt = False
    c3 = (11, 9)
    al = (0, 0, 3, 3)
    kvs = 65536 + 1280
    os = 16384
    ord0 = 0
    fill2 = True
    f0early = False
    gwave = 6
    aprobe = False
    f32 = False
    bflag1 = True
    frot = 0
    t0touch = 0
    na15 = 6
    gatelate = True
    constearly = True
    gaux = ''
    diag = ''
    wsoff = 0
    diag0 = ''
    diagm = 1
    bwait = False
    oprio = 0
    stlate = 4
    kvst = 'sc1'
    kvld = 'sc1'
    prew = 0
    prew_at = 4
    tlb = 0
    xl2 = False
    na = 8
    fdepth = 8
    otouch = False
    wo_from = 2
    early = 0
    backoff = 0
    codepf = 6
    bprio = 1
    tailprio = 0
    aslist = False

def stamp(a, idx, opt):
    if not opt.prof: return
    a("s_memrealtime s[94:95]")
    a("s_waitcnt lgkmcnt(0)")
    a(f"v_writelane_b32 v255, s94, {idx}")

def cstamp(a, idx, opt):
    if not opt.prof: return
    a("s_memtime s[94:95]")
    a("s_waitcnt lgkmcnt(0)")
    a(f"v_writelane_b32 v255, s94, {idx}")

def al8(a):
    if AL8: a(".p2align 3")

def align(a, spec):
    if spec:
        a(f".p2align {spec[0]}")
        for _ in range(spec[1]): a("s_nop 0")

def diag(a, opt, name):
    if opt.diag == name: a("s_memrealtime s[98:99]\ns_waitcnt lgkmcnt(0)")
    if opt.diag0 == name: a("s_memrealtime s[96:97]\ns_waitcnt lgkmcnt(0)\ns_mov_b32 s98, s96")
def diag_end(a, opt):
    if not opt.diag: return
    a("""
    s_waitcnt vmcnt(0)
    s_memrealtime s[100:101]
    s_waitcnt lgkmcnt(0)
    """)
    if opt.diag == "end": a("s_mov_b32 s98, s100")
    if opt.diag == "zero": a("s_mov_b32 s98, s96")
    a("""
    s_sub_u32 s98, s98, s96
    """ + f"s_mul_i32 s98, s98, {opt.diagm}" + """
    s_min_u32 s98, s98, 20000
    L_diag:
    s_memrealtime s[96:97]
    s_waitcnt lgkmcnt(0)
    s_sub_u32 s96, s96, s100
    s_cmp_lt_u32 s96, s98
    s_cbranch_scc1 L_diag
    """)

def prof_dump(a, opt, base):
    if not opt.prof: return
    a(f"""
    s_lshl_b32 s94, s2, 3
    s_add_u32 s94, s94, s{S_WAVE}
    s_lshl_b32 s94, s94, 8
    s_add_u32 s94, s94, {base}
    v_mbcnt_lo_u32_b32 v254, -1, 0
    v_mbcnt_hi_u32_b32 v254, -1, v254
    v_lshlrev_b32 v254, 2, v254
    buffer_store_dword v255, v254, {SRD_WS}, s94 offen
    """)

def k1_prologue(a, opt):
    a(f"""
    s_cmp_ge_u32 s2, 256
    s_cbranch_scc1 L1_end
    {"s_memrealtime s[96:97]" if opt.diag else ""}
    s_load_dwordx16 s[4:19], s[0:1], 0
    s_load_dwordx4 s[20:23], s[0:1], 64
    v_lshrrev_b32 v1, 6, v0
    """)
    if opt.codepf & 4:
        a(f"""
        s_getpc_b64 s[68:69]
        L_pc0:
        s_and_b32 s46, s2, 0xf8
        v_add_lshl_u32 v2, v1, s46, 7
        v_min_u32 v2, L_code_end-L_pc0-4, v2
        global_load_dword v254, v2, s[68:69]
        """)
    a(f"""
    s_and_b32 s{S_XCD}, s2, 7
    s_lshr_b32 s{S_J}, s2, 3
    v_readfirstlane_b32 s{S_WAVE}, v1
    s_lshr_b32 s{S_RB}, s{S_J}, 2
    s_and_b32 s{S_BR}, s{S_J}, 1
    s_bfe_u32 s{S_PAIR}, s{S_J}, 0x10001
    s_lshl_b32 s46, s{S_XCD}, 1
    s_add_u32 s{S_PAIR}, s{S_PAIR}, s46
    v_and_b32 v0, 63, v0
    s_mov_b32 s26, 0x400000
    s_mov_b32 s27, 0x20000
    s_mov_b32 s30, 0x600000
    s_mov_b32 s31, s27
    """)

def k1_srds(a):
    a(f"""
    s_waitcnt lgkmcnt(0)
    s_mov_b32 s24, s4
    s_and_b32 s25, s5, 0xffff
    s_cmp_eq_u32 s{S_BR}, 0
    s_cselect_b32 s28, s6, s12
    s_cselect_b32 s29, s7, s13
    s_and_b32 s29, s29, 0xffff
    """)

def k1_ids(a, opt):
    a(f"""
    s_lshl_b32 s49, s{S_BR}, 4
    s_add_u32 s49, s49, s{S_PAIR}
    s_lshl_b32 s49, s49, 3
    s_add_u32 s49, s49, s{S_RB}
    s_lshl_b32 s49, s49, 11
    s_add_u32 s{S_FLAG}, s49, {WS_FLAG}
    {f"s_and_b32 s{S_CT}, s{S_J}, 7" if opt.fmap else f"s_bfe_u32 s{S_CT}, s{S_J}, 0x30001"}
    s_xor_b32 s{S_CT}, s{S_CT}, {1 if opt.fmap == 1 else 0}
    {f"s_bfe_u32 s{S_RH}, s{S_J}, 0x10003" if opt.fmap else f"s_mov_b32 s{S_RH}, s{S_BR}"}
    s_and_b32 s49, s{S_XCD}, 1
    s_lshl_b32 s49, s49, 3
    s_add_u32 s{S_CT}, s{S_CT}, s49
    s_lshr_b32 s{S_ROT}, s{S_J}, 1
    s_and_b32 s{S_ROT}, s{S_ROT}, {opt.frot}
    s_lshl_b32 s{S_ROT}, s{S_ROT}, 19
    s_lshr_b32 s{S_RT}, s{S_J}, 4
    s_and_b32 s49, s{S_XCD}, 6
    s_add_u32 s{S_RT}, s{S_RT}, s49
    s_add_u32 s32, s22, {opt.wsoff << 20}
    s_addc_u32 s33, s23, 0
    s_and_b32 s33, s33, 0xffff
    s_mov_b32 s34, {26 << 20}
    s_mov_b32 s35, 0x20000
    s_mov_b32 s36, s20
    s_and_b32 s37, s21, 0xffff
    s_mov_b32 s38, 256
    s_mov_b32 s39, 0x20000
    """)

def consumer_substep(kk, wslot, btype, nxt_kk, nxt_wslot, barrier, extra=None):
    items = []
    def xread(grp, i, kk_):
        reg = (XA if grp == 0 else XB) + 4 * i
        sb = grp * 4 + i
        return dict(txt=f"ds_read_b128 {vr(reg,4)}, v{V_XA0 + kk_} offset:{blk(sb)*2048}", loads=('x', grp, i))
    def wread(j, t, kk_, ws):
        reg = WF + 4 * j + 2 * t
        off = ws * WSLOT + (j >> 1) * 8192 + kk_ * 4096 + t * 512
        return dict(txt=f"ds_read_b64_tr_b16 {vr(reg,2)}, v{V_WA0 + (j & 1)} offset:{off}", loads=('w', j, t))
    after = {m: [] for m in range(48)}
    after[0] += [wread(5, 0, kk, wslot)]
    after[1] += [wread(5, 1, kk, wslot)]
    for i in range(4): after[2 + 2 * i] += [xread(1, i, kk)]
    m0 = 24
    if barrier:
        after[24] += [dict(txt="s_barrier", drain=True)]
        m0 = 25
    xpos = [m0, m0 + 1, 29, 30]
    for i in range(4): after[xpos[i]] += [xread(0, i, nxt_kk)]
    for j in range(5):
        after[27 + 4 * j] += [wread(j, 0, nxt_kk, nxt_wslot)]
        after[28 + 4 * j] += [wread(j, 1, nxt_kk, nxt_wslot)]
    for m, txt in (extra or []):
        after[m].append(dict(txt=txt))
    m = 0
    for grp in range(2):
        for j in range(6):
            order = range(4) if j % 2 == 0 else [3, 2, 1, 0]
            for i in order:
                sb = grp * 4 + i
                xr = vr((XA if grp == 0 else XB) + 4 * i, 4); wr = vr(WF + 4 * j, 4)
                seg = j >> 1
                transposed = (seg == 0) or (seg == 1 and btype)
                A, B = (wr, xr) if transposed else (xr, wr)
                c = vr(acc(sb, j), 4)
                items.append(dict(txt=f"v_mfma_f32_16x16x32_bf16 {c}, {A}, {B}, {c}", reads={('x', grp, i), ('w', j, 0), ('w', j, 1)}))
                items += after[m]
                m += 1
    return items

def consumer_gemm(a, btype, tag, filler, opt):
    pre = [dict(txt=f"ds_read_b128 {vr(XA+4*i,4)}, v{V_XA0} offset:{blk(i)*2048}", loads=('x', 0, i)) for i in range(4)]
    def wr(j, t): return dict(txt=f"ds_read_b64_tr_b16 {vr(WF+4*j+2*t,2)}, v{V_WA0 + (j&1)} offset:{(j>>1)*8192 + t*512}", loads=('w', j, t))
    pre = [pre[0], pre[1], wr(0, 0), wr(0, 1), pre[2], pre[3]] + [wr(j, t) for j in range(1, 5) for t in range(2)]
    lines, q0 = schedule_waits(pre)
    a("s_mov_b32 s50, 8")
    a("s_mov_b32 s51, 0")
    for l in lines: a(l)
    body = []
    kvfirst = btype and opt.kvfirst
    for st in range(2):
        ex0 = [(10, "s_add_u32 s51, s51, 1"), (11, "s_cmp_eq_u32 s51, 3"), (12, f"s_cselect_b32 s52, {-2*XSLOT & 0xffffffff}, s53"), (13, "s_cselect_b32 s51, 0, s51"),
               (16, f"v_add_u32 v{V_XA0}, s52, v{V_XA0}")]
        ex1 = [(16, f"v_add_u32 v{V_XA1}, s52, v{V_XA1}")]
        if st == (0 if kvfirst else 1): ex1 += [(18, "s_sub_u32 s50, s50, 1"), (21, "s_cmp_lg_u32 s50, 0")]
        body += consumer_substep(0, st, btype, 1, st, False, ex0)
        body += consumer_substep(1, st, btype, 0, 1 - st, True, ex1)
    lines, q1 = schedule_waits(body, q0)
    assert q1 == q0, (q0, q1)
    cut = (min if kvfirst else max)(i for i, l in enumerate(lines) if l == "s_barrier") + 2
    assert lines[cut - 1].startswith("v_mfma")
    if opt.exp & 128: lines = [l if not l.startswith("ds_read_b128") else "s_nop 0" for l in lines]
    if opt.exp & 256: lines = [l if not l.startswith("ds_read_b64") else "s_nop 0" for l in lines]
    a(f"s_branch L_gemm_e{tag}")
    align(a, opt.alg)
    a.label(f"L_gemm_{tag}")
    for l in lines[cut:]: a(l)
    a.label(f"L_gemm_e{tag}")
    for l in lines[:cut]: a(l)
    a(f"s_cbranch_scc1 L_gemm_{tag}")
    if kvfirst: return kv_first_tail(a, [l for l in lines[cut:] if l.startswith("v_mfma")][:22], filler)
    tail = [l for l in lines[cut:] if l.startswith("v_mfma")]
    tail = tail[6:] + tail[:6]
    per = -(-len(filler) // len(tail))
    for m, l in enumerate(tail):
        a(l)
        for x in filler[m * per:(m + 1) * per]: a(x)

def kv_first_tail(a, t0, filler):
    def xr(grp, i, kk): return dict(txt=f"ds_read_b128 {vr((XA if grp == 0 else XB) + 4*i, 4)}, v{V_XA0 + kk} offset:{blk(grp*4+i)*2048}", loads=('x', grp, i))
    def wr(j, kk, slot): return [dict(txt=f"ds_read_b64_tr_b16 {vr(WF + 4*slot + 2*t, 2)}, v{V_WA0 + (j & 1)} offset:{WSLOT + (j >> 1)*8192 + kk*4096 + t*512}", loads=('w', slot, t)) for t in range(2)]
    seq = [(l, set()) for l in t0]
    for grp, js, off in ((0, (2, 3, 4, 5), 0), (1, (2, 3, 4, 5), 0), (0, (2, 3, 4, 5), 0), (1, (2, 3, 4, 5), 0), (0, (0, 1), 0), (1, (0, 1), 0), (0, (0, 1), 2), (1, (0, 1), 2)):
        for j in js:
            for i in (range(4) if j % 2 == 0 else (3, 2, 1, 0)):
                x_, w_ = vr((XA if grp == 0 else XB) + 4*i, 4), vr(WF + 4*(j + off), 4)
                A, B = (w_, x_) if j < 4 else (x_, w_)
                c = vr(acc(grp*4 + i, j), 4)
                seq.append((f"v_mfma_f32_16x16x32_bf16 {c}, {A}, {B}, {c}", {('x', grp, i), ('w', j + off, 0), ('w', j + off, 1)}))
    after = {m: [] for m in range(len(seq))}
    P = [22, 38, 54, 70, 86, 94, 102, 110]
    for i in range(4): after[i] += [xr(0, i, 0)]
    after[4] += wr(0, 1, 0); after[6] += wr(1, 1, 1)
    for k, j in enumerate((2, 3, 4, 5)):
        after[9 + 4*k] += wr(j, 0, j)
        after[P[1] + 3 + 4*k] += wr(j, 1, j)
    for i in range(4):
        after[P[0] + 1 + 2*i] += [xr(1, i, 0)]
        after[P[1] + (0, 1, 5, 6)[i]] += [xr(0, i, 1)]
        after[P[2] + 1 + 2*i] += [xr(1, i, 1)]
        after[P[4] + 4 + i] += [xr(0, 3 - i, 0)]
        after[P[5] + 4 + i] += [xr(1, 3 - i, 0)]
    after[P[3] + 3] += wr(0, 0, 2); after[P[3] + 7] += wr(1, 0, 3)
    after[P[7]] += [dict(txt="s_barrier", reads={('x', 1, i) for i in range(4)})]
    def spread(lst, lo, hi):
        per = -(-len(lst) // (hi - lo))
        for m in range(lo, hi): after[m] += [dict(txt=x, loads=('st',) if x.startswith("ds_") else None) for x in lst[(m - lo)*per:(m - lo + 1)*per]]
    spread(filler[0], P[1], P[3]); spread(filler[1], P[3], P[4] + 8); spread(filler[2], P[4] + 8, len(seq))
    items = []
    for m, (txt, rd) in enumerate(seq):
        items.append(dict(txt=txt, reads=rd)); items += after[m]
    lines, q = schedule_waits(items, [])
    assert all(t == ('st',) for t in q)
    for l in lines: a(l)

def lines_of(f, *args):
    t = Asm(); f(t, *args)
    return [l.strip() for l in t.L if l.strip()]

def consumer_setup(a, opt):
    if opt.prof: a("v_mov_b32 v255, 0")
    stamp(a, 22, opt); diag(a, opt, "issue")
    if opt.astag:
        a(f"s_cmp_eq_u32 s{S_BR}, 0\ns_cbranch_scc0 L_nop0c\ns_barrier\nL_nop0c:")
    if opt.t0touch:
        a(f"""
        s_cmp_lt_u32 s{S_WAVE}, 2
        s_cbranch_scc0 L_t0w
        s_lshl_b32 s47, s{S_J}, 17
        s_lshl_b32 s48, s{S_WAVE}, 7
        s_add_u32 s47, s47, s48
        v_lshlrev_b32 v5, 11, v0
        {"s_cmp_eq_u32 s40, 0" if opt.t0touch == 2 else ""}
        {"s_cbranch_scc1 L_t0d" if opt.t0touch == 2 else ""}
        buffer_load_dword v{XB}, v5, {SRD_X}, s47 offen
        s_branch L_t0d
        L_t0w:
        s_and_b32 s48, s{S_WAVE}, 1
        {"s_cbranch_scc0 L_t0d" if opt.t0touch == 2 else ""}
        s_lshl_b32 s48, s48, 3
        s_add_u32 s48, s48, s{S_RB}
        s_mul_i32 s48, s48, {8*6144}
        s_lshl_b32 s47, s{S_PAIR}, 7
        s_add_u32 s47, s47, s48
        v_min_u32 v5, 23, v0
        v_lshlrev_b32 v5, 11, v5
        buffer_load_dword v{XB}, v5, {SRD_W}, s47 offen
        L_t0d:
        """)
    def accinit(sbs):
        a(f"s_cmp_eq_u32 s{S_BR}, 0\ns_cselect_b32 s46, 1.0, 0")
        al8(a)
        for sb in sbs:
            for j in range(6):
                for r in range(0, 4, 2):
                    a(f"v_pk_mul_f32 {vr(acc(sb,j)+r,2)}, s[46:47], {'1.0' if j < 4 else '0'} op_sel_hi:[0,0]")
    if opt.ord0 == 0:
        if not opt.midinit: issue_w(a, "0", "s55")
        if opt.midinit:
            xl = lines_of(issue_w, "0", "s55") + lines_of(issue_x, "0", "s54")
            k = [i for i, l in enumerate(xl) if l.startswith("buffer")][opt.midinit + 5 if opt.midinit > 0 else -opt.midinit - 1] + 1
            for l in xl[:k]: a(l)
            accinit(range(1, 8))
            for l in xl[k:]: a(l)
        else: issue_x(a, "0", "s54")
    elif opt.ord0 == 1: issue_x(a, "0", "s54"); issue_w(a, "0", "s55")
    else:
        issue_w(a, "0", "s55", (0,)); issue_x(a, "0", "s54", (0,)); issue_w(a, "0", "s55", (1,)); issue_x(a, "0", "s54", (1,)); issue_w(a, "0", "s55", (2,))
    a(f"""
    s_barrier
    v_and_b32 v1, 15, v0
    v_lshrrev_b32 v2, 4, v0
    v_bfe_u32 v3, v0, 1, 3
    v_xor_b32 v3, v2, v3
    v_lshlrev_b32 v3, 4, v3
    v_lshl_add_u32 v3, v1, 7, v3
    s_lshr_b32 s46, s{S_WAVE}, 1
    s_lshl_b32 s46, s46, 13
    v_add_u32 v{V_XA0}, s46, v3
    v_xor_b32 v{V_XA1}, 64, v{V_XA0}
    v_bfe_u32 v3, v0, 2, 2
    v_lshl_add_u32 v4, v2, 3, v3
    v_lshlrev_b32 v4, 7, v4
    v_bfe_u32 v5, v0, 3, 2
    s_and_b32 s46, s{S_WAVE}, 1
    s_lshl_b32 s46, s46, 1
    v_xor_b32 v5, s46, v5
    v_lshl_add_u32 v4, v5, 5, v4
    v_and_b32 v5, 3, v0
    v_lshl_add_u32 v4, v5, 3, v4
    v_add_u32 v{V_WA0}, {WBASE}, v4
    v_xor_b32 v{V_WA1}, 32, v{V_WA0}
    s_mov_b32 s53, {XSLOT}
    s_mov_b32 s80, s8
    s_and_b32 s81, s9, 0xffff
    s_mov_b32 s82, 0x200000
    s_mov_b32 s83, 0x20000
    s_mov_b32 s84, s14
    s_and_b32 s85, s15, 0xffff
    s_mov_b32 s86, 0x200000
    s_mov_b32 s87, 0x20000
    """)
    k1_ids(a, opt)
    accinit((0,) if opt.midinit else range(8))
    a(f"""
    v_mov_b32 v{XA}, {LCNT}
    v_mov_b32 v{XA+1}, 1
    s_mov_b64 exec, 1
    s_waitcnt vmcnt(0)
    ds_add_u32 v{XA}, v{XA+1}
    s_mov_b64 exec, -1
    """)
    a.label("L_st0")
    a(f"""
    ds_read_b32 v{XA+2}, v{XA}
    s_waitcnt lgkmcnt(0)
    v_readfirstlane_b32 s46, v{XA+2}
    s_cmp_lt_u32 s46, 4
    s_cbranch_scc1 L_st0
    """)
    stamp(a, 20, opt); diag(a, opt, "st0")

LCNT = 147456
def dma_addrs(a):
    a(f"""
    s_and_b32 s46, s{S_WAVE}, 3
    v_lshrrev_b32 v1, 3, v0
    v_and_b32 v2, 7, v0
    v_and_b32 v3, 2, v1
    v_xor_b32 v3, v2, v3
    v_lshlrev_b32 v3, 4, v3
    v_mul_u32_u24 v4, 6144, v1
    s_lshl_b32 s47, s{S_PAIR}, 7
    s_mul_i32 s48, s46, {2*8*6144}
    s_add_u32 s47, s47, s48
    v_add3_u32 v20, v4, v3, s47
    v_xor_b32 v21, 64, v20
    v_add_u32 v21, {8*6144 - 1024}, v21
    v_lshrrev_b32 v3, 1, v1
    v_xor_b32 v3, v2, v3
    v_lshlrev_b32 v3, 4, v3
    s_lshl_b32 s47, s{S_RB}, 8
    s_lshl_b32 s48, s46, 6
    s_add_u32 s47, s47, s48
    v_add_u32 v4, s47, v1
    v_lshl_add_u32 v10, v4, 11, v3
    v_xor_b32 v11, 64, v10
    """)
    for i in (3, 2, 1):
        a(f"v_add_u32 v{10+i}, {i*16384 - i*1024}, v{10 + (i & 1)}")
    a(f"""
    s_lshl_b32 s54, s46, 13
    s_lshl_b32 s55, s46, 11
    s_add_u32 s55, s55, {WBASE}
    v_mov_b32 v{V_LANE}, v0
    """)
def issue_w(a, step_s, slot_off, segs=(0, 1, 2)):
    for seg in segs:
        a(f"s_add_u32 m0, {slot_off}, {seg*8192}")
        a(f"s_add_u32 s48, {step_s}, {seg*2048}")
        a(f"buffer_load_dwordx4 v20, {SRD_W}, s48 offen {GAUX} lds")
        a(f"buffer_load_dwordx4 v21, {SRD_W}, s48 offen offset:1024 {GAUX} lds")
def issue_x(a, step_s, slot_off, groups=(0, 1)):
    for g in groups:
        a(f"s_add_u32 m0, {slot_off}, {g*4096}")
        a(f"s_add_u32 s48, {step_s}, {g*65536}")
        for i in range(4):
            a(f"buffer_load_dwordx4 v{10+i}, {SRD_X}, s48 offen offset:{i*1024} {GAUX} lds")

def producer_gemm(a, opt):
    assert opt.tmode >= 1
    a(f"""
    v_mov_b32 v7, 0x7f000000
    s_add_u32 s62, s46, {2 if opt.t0touch else opt.dist0}
    """)
    if opt.tmode >= 1:
        a(f"""
        v_and_b32 v4, 31, v0
        s_mul_i32 s47, s{S_RB}, {8*6144}
        s_and_b32 s48, s{S_PAIR}, 14
        s_lshl_b32 s48, s48, 7
        s_add_u32 s47, s47, s48
        v_lshl_add_u32 v5, v4, 11, s47
        v_lshrrev_b32 v6, 5, v0
        v_lshl_add_u32 v5, v6, 7, v5
        s_add_u32 s48, s46, s{S_PAIR}
        {f"s_or_b32 s48, s48, s{S_BR}" if opt.tmode == 3 else ""}
        s_bitcmp0_b32 {"s48" if opt.tmode >= 2 else f"s{S_PAIR}"}, 0
        {f"s_and_b32 s48, s{S_J}, 3" if opt.tmode == 4 else ""}
        {f"s_cmp_eq_u32 s48, s46" if opt.tmode == 4 else ""}
        s_cselect_b32 s93, -1, 0
        s_and_b32 vcc_lo, s93, 0xffffff
        s_mov_b32 vcc_hi, vcc_lo
        v_cndmask_b32 v30, v7, v5, vcc
        v_and_b32 v4, 7, v0
        v_bfe_u32 v5, v0, 3, {2 if opt.tmode >= 3 else 1}
        v_lshl_add_u32 v4, v5, {6 if opt.tmode >= 3 else 7}, v4
        s_and_b32 s48, s2, {0xe7 if opt.tmode >= 3 else 0xef}
        s_lshl_b32 s48, s48, 3
        v_add_u32 v4, s48, v4
        v_lshlrev_b32 v4, 11, v4
        s_and_b32 vcc_lo, s93, {-1 if opt.tmode >= 3 else 0xffff}
        s_mov_b32 vcc_hi, 0
        v_cndmask_b32 v31, v7, v4, vcc
        """)
    NT = 2
    if opt.tmode >= 3:
        assert not opt.wovec
        NT = 3
    def srd2():
        if NT == 3: a(f"""
        s_cmp_eq_u32 s{S_BR}, 0
        s_cselect_b32 s64, s12, s6
        s_cselect_b32 s65, s13, s7
        s_and_b32 s65, s65, 0xffff
        s_mov_b32 s66, 0x600000
        s_mov_b32 s67, 0x20000
        """)
    srd2()
    def touch():
        a(f"""
        s_mul_i32 s60, s62, {64*6144}
        s_lshl_b32 s61, s62, 7
        buffer_load_dword v32, v30, {SRD_W}, s60 offen
        buffer_load_dword v33, v31, {SRD_X}, s61 offen
        {"buffer_load_dword v32, v30, s[64:67], s60 offen" if NT == 3 else ""}
        s_add_u32 s62, s62, 4
        """)
    a(f"s_cmp_lt_u32 s46, {opt.early}\ns_cbranch_scc0 L_noearly")
    if opt.skip0: a("s_add_u32 s62, s62, 4")
    else: touch()
    a.label("L_noearly")
    if opt.astag:
        a(f"s_cmp_eq_u32 s{S_BR}, 0\ns_cbranch_scc0 L_nop0p")
        if opt.astag == 2: a("s_waitcnt vmcnt(0)")
        a("s_barrier\nL_nop0p:")
    if opt.earlyb:
        lo, hi, wx = opt.earlyb
        a(f"""
        s_sub_u32 s60, s46, {lo}
        s_cmp_lt_u32 s60, {hi - lo}
        s_cbranch_scc0 L_noearlyb
        s_mul_i32 s60, s62, {64*6144}
        s_lshl_b32 s61, s62, 7
        {"buffer_load_dword v32, v30, s[64:67], s60 offen" if wx & 1 else ""}
        {f"buffer_load_dword v33, v31, {SRD_X}, s61 offen" if wx & 2 else ""}
        L_noearlyb:
        """)
    a(f"""
    s_getpc_b64 s[68:69]
    L_pc:
    s_sub_u32 s68, s68, L_pc-{NAME}_kernel
    s_subb_u32 s69, s69, 0
    v_and_b32 v37, 7, v0
    s_lshl_b32 s48, s{S_J}, 3
    v_add_u32 v37, s48, v37
    v_lshlrev_b32 v37, 7, v37
    v_min_u32 v37, L_code_end-{NAME}_kernel-4, v37
    """)
    if opt.codepf & 1:
        a(f"s_cmp_eq_u32 s46, 3\ns_cbranch_scc0 L_nocode\nglobal_load_dword v38, v37, s[68:69]")
        a.label("L_nocode")
    a(f"""
    v_mov_b32 v48, 0
    v_mov_b32 v2, {LCNT}
    ds_write_b32 v2, v48
    v_lshlrev_b32 v44, 4, v0
    v_mov_b32 v49, 0
    v_mov_b32 v50, 0
    v_mov_b32 v51, 0
    s_lshl_b32 s101, s{S_PAIR}, 1
    s_add_u32 s101, s101, s{S_BR}
    s_lshl_b32 s101, s101, 3
    v_mov_b32 v36, 1
    s_and_b32 s92, s{S_RB}, {max(opt.atom - 1, 0)}
    s_add_u32 s92, s92, 1
    s_cmp_eq_u32 s46, 1
    s_cselect_b32 s92, s92, 99
    s_mov_b32 s57, {64*6144}
    s_add_u32 s58, s55, {WSLOT}
    """)
    k1_ids(a, opt)
    if opt.constearly:
        assert not opt.wovec
        b_consts(a); a(f"s_and_b32 s46, s{S_WAVE}, 3"); srd2()
    a(f"""
    s_cmp_lt_u32 s46, 2
    s_cselect_b32 s96, s8, s14
    s_cselect_b32 s97, s9, s15
    s_and_b32 s97, s97, 0xffff
    s_mov_b32 s98, 0x200000
    s_mov_b32 s99, 0x20000
    s_and_b32 s100, s2, {0xe7 if opt.tmode >= 3 or opt.woa else 0xef if opt.tmode else 0xff}
    s_lshl_b32 s100, s100, 1
    s_and_b32 s48, s46, 1
    s_add_u32 s100, s100, s48
    s_lshl_b32 s100, s100, 12
    v_lshlrev_b32 v34, 7, v0
    v_cmp_gt_u32 vcc, 16, v0
    s_nop 1
    v_cndmask_b32 v34, v7, v34, vcc
    """)
    if opt.tmode >= 1:
        a(f"""
        v_and_b32 v4, 15, v0
        v_lshlrev_b32 v4, 7, v4
        v_lshrrev_b32 v5, 4, v0
        v_lshl_add_u32 v4, v5, {16 if opt.tmode >= 3 or opt.woa else 17}, v4
        s_cmp_eq_u32 s{S_BR}, {1 if opt.woa else 2}
        s_cselect_b32 vcc_lo, 0, s93
        """)
        if opt.wob: a(f"""
        s_add_u32 s48, s46, s{S_PAIR}
        s_add_u32 s48, s48, {opt.wob & 1}
        s_and_b32 s48, s48, 1
        s_xor_b32 s49, s{S_BR}, {0 if opt.wob < 3 else 1}
        s_and_b32 s48, s48, s49
        s_cselect_b32 vcc_lo, -1, 0
        """)
        a(f"""
        s_mov_b32 vcc_hi, {"vcc_lo" if opt.tmode >= 3 or opt.woa else 0}
        v_cndmask_b32 v34, v7, v4, vcc
        """)
    if opt.wovec:
        a(f"""
        s_mov_b32 s68, s14
        s_and_b32 s69, s15, 0xffff
        s_mov_b32 s70, 0x200000
        s_mov_b32 s71, 0x20000
        s_sub_u32 s88, 3, s46
        s_lshl_b32 s88, s88, 5
        s_add_u32 s88, s88, s{S_J}
        s_lshl_b32 s88, s88, 14
        s_and_b32 s48, s{S_XCD}, 1
        s_lshl_b32 s48, s48, 10
        s_add_u32 s88, s88, s48
        v_lshrrev_b32 v39, 3, v0
        v_lshlrev_b32 v39, 4, v39
        v_and_or_b32 v39, v0, 7, v39
        v_lshlrev_b32 v39, 7, v39
        s_lshr_b32 s89, s46, 1
        s_add_u32 s89, s89, 9
        """)
    if opt.prew:
        a(f"""
        s_lshl_b32 s73, s{S_RB}, 1
        s_add_u32 s73, s73, s{S_BR}
        s_lshl_b32 s73, s73, 4
        s_add_u32 s73, s73, s{S_PAIR}
        s_lshl_b32 s73, s73, 2
        s_add_u32 s73, s73, s46
        s_lshl_b32 s73, s73, 13
        s_lshl_b32 s74, s{S_PAIR}, 3
        s_add_u32 s74, s74, s{S_RB}
        s_mul_i32 s74, s74, {opt.kvs}
        s_lshl_b32 s48, s46, 14
        s_add_u32 s74, s74, s48
        s_add_u32 s74, s74, {WS_KV}
        s_cmp_eq_u32 s{S_BR}, 0
        s_cselect_b32 s74, 0x10000000, s74
        v_lshlrev_b32 v8, {7 if opt.prew in (1, 3) else 4}, v0
        """)
    f_setup(a, opt)
    a(f"""
    s_lshl_b32 s47, s46, 10
    s_add_u32 s47, s47, s{S_FLAG}
    s_cmp_lt_u32 s46, 2
    s_cselect_b32 s47, s47, 0x10000000
    """)
    a(f"""
    s_waitcnt lgkmcnt(0)
    s_barrier
    s_setprio 3
    """)
    if opt.prof: a("v_mov_b32 v255, 0")
    stamp(a, 21, opt)
    a(f"buffer_store_dwordx4 v[48:51], v44, {SRD_WS}, s47 offen sc1")
    a(f"""
    s_cmp_eq_u32 s{S_BR}, 0
    s_cbranch_scc0 L_nosent
    s_lshl_b32 s47, s{S_PAIR}, 3
    s_add_u32 s47, s47, s{S_RB}
    s_lshl_b32 s47, s47, 2
    s_add_u32 s47, s47, s46
    s_lshl_b32 s47, s47, 12
    s_add_u32 s47, s47, {WS_PART}
    v_mov_b32 v40, -1
    v_mov_b32 v41, -1
    v_mov_b32 v42, -1
    v_mov_b32 v43, -1
    buffer_store_dwordx4 v[40:43], v44, {SRD_WS}, s47 offen sc1
    s_mov_b64 exec, 0xff
    buffer_store_dwordx4 v[40:43], v44, {SRD_WS}, s47 offen offset:1024 sc1
    s_mov_b64 exec, -1
    """)
    a.label("L_nosent")
    a("s_mov_b32 s56, 128"); a(f"s_add_u32 s59, s54, {XSLOT}")
    if opt.ord0 < 3: issue_w(a, "s57", "s58"); issue_x(a, "s56", "s59")
    else:
        issue_x(a, "s56", "s59", (0,)); issue_w(a, "s57", "s58", (0, 1)); issue_x(a, "s56", "s59", (1,)); issue_w(a, "s57", "s58", (2,))
    a("s_mov_b32 s57, 256"); a(f"s_add_u32 s58, s54, {2*XSLOT}")
    if opt.x2wait is not None: a(f"s_waitcnt vmcnt({opt.x2wait})")
    issue_x(a, "s57", "s58")
    a(f"s_cmp_lt_u32 s46, {opt.early}\ns_cbranch_scc1 L_nolate0")
    touch()
    a.label("L_nolate0")
    a(f"""
    s_mov_b32 s50, 0
    s_mov_b32 s56, {2*64*6144}
    s_mov_b32 s57, {3*128}
    s_mov_b32 s58, s55
    s_mov_b32 s59, s54
    s_mov_b32 s51, 0
    """)
    a(f"s_cmp_lt_u32 s46, {opt.early}\ns_cbranch_scc1 L_nolate")
    a(f"s_waitcnt vmcnt({8 + NT})\ns_branch L_late")
    a.label("L_nolate")
    a("s_waitcnt vmcnt(8)")
    a.label("L_late")
    a("s_barrier")
    stamp(a, 0, opt); cstamp(a, 30, opt)
    if opt.prof:
        a("s_getreg_b32 s94, hwreg(HW_REG_XCC_ID)\nv_writelane_b32 v255, s94, 33")
    if opt.exp & 64: a("s_mov_b64 exec, 1")
    a.label("L_prod")
    issue_w(a, "s56", "s58")
    ga, gb = {0: ((), (0, 1)), 1: ((0,), (1,)), 2: ((0, 1), ())}[opt.tpos]
    issue_x(a, "s57", "s59", ga)
    a(f"""
    s_and_b32 s47, s50, 3
    s_cmp_eq_u32 s47, s46
    s_cbranch_scc0 L_notouch
    s_cmp_lt_u32 s62, 16
    s_cbranch_scc0 L_lateturn
    """)
    touch()
    if opt.atom == 0:
        a(f"""
        s_cmp_eq_u32 s50, 1
        s_cbranch_scc0 L_noatom
        s_mov_b64 exec, 1
        buffer_atomic_add v36, off, {SRD_DBG}, s101 sc1
        s_mov_b64 exec, {1 if opt.exp & 64 else -1}
        s_branch L_three
        """)
    a.label("L_noatom")
    a(f"""
    s_sub_u32 s47, s50, {opt.wo_from}
    s_cmp_lt_u32 s47, 8
    s_cselect_b32 s47, s100, 0x200000
    s_cselect_b32 s49, 2048, 0
    buffer_load_dword v35, v34, s[96:99], s47 offen
    s_add_u32 s100, s100, s49
    """)
    a.label("L_three")
    issue_x(a, "s57", "s59", gb)
    a(f"s_waitcnt vmcnt({9 + NT})\ns_branch L_touched")
    a.label("L_lateturn")
    if opt.codepf & 2:
        a(f"s_cmp_eq_u32 s50, {12 - min(opt.dist0, 1)}\ns_cbranch_scc0 L_late12\nglobal_load_dword v38, v37, s[68:69]")
        issue_x(a, "s57", "s59", gb)
        a("s_waitcnt vmcnt(9)\ns_branch L_touched")
        a.label("L_late12")
        if opt.tlb:
            a(f"""
            v_min_u32 v38, {(20 << 20 >> opt.tlb) - 1}, v0
            v_lshlrev_b32 v38, {opt.tlb}, v38
            buffer_load_dword v35, v38, {SRD_WS}, 0 offen
            v_and_b32 v38, 0x3fffff, v38
            global_load_dword v35, v38, s[18:19]
            """)
            issue_x(a, "s57", "s59", gb)
            a("s_waitcnt vmcnt(10)\ns_branch L_touched")
    a.label("L_notouch")
    issue_x(a, "s57", "s59", gb)
    a("s_waitcnt vmcnt(8)")
    a.label("L_touched")
    if opt.atom > 0:
        a(f"""
        s_cmp_eq_u32 s50, s92
        s_cbranch_scc0 L_noatom2
        s_mov_b64 exec, 1
        buffer_atomic_add v36, off, {SRD_DBG}, s101 sc1
        s_mov_b64 exec, -1
        L_noatom2:
        """)
    a("""
    s_cmp_ge_u32 s50, 9
    s_cbranch_scc1 L_wl
    L_aback:
    """)
    if opt.prew == 1:
        a(f"""
        s_sub_u32 s47, s50, {opt.prew_at}
        s_cmp_lt_u32 s47, 3
        s_cbranch_scc0 L_noprew
        s_cmp_eq_u32 s47, 2
        s_cselect_b32 s47, s73, s74
        buffer_store_dword v0, v8, {SRD_WS}, s47 offen sc1
        s_add_u32 s74, s74, 8192
        L_noprew:
        """)
    if opt.prew == 3:
        a(f"""
        s_sub_u32 s47, s50, {opt.prew_at}
        s_cmp_lt_u32 s47, 2
        s_cbranch_scc0 L_noprew
        buffer_load_dword v9, v8, {SRD_WS}, s74 offen
        s_add_u32 s74, s74, 8192
        L_noprew:
        """)
    if opt.prew == 4:
        a(f"""
        s_sub_u32 s47, s50, {opt.prew_at}
        s_cmp_lt_u32 s47, 4
        s_cbranch_scc0 L_noprew
        buffer_store_dwordx4 v[0:3], v8, {SRD_WS}, s74 offen sc1
        buffer_store_dwordx4 v[0:3], v8, {SRD_WS}, s74 offen offset:1024 sc1
        buffer_store_dwordx4 v[0:3], v8, {SRD_WS}, s74 offen offset:2048 sc1
        buffer_store_dwordx4 v[0:3], v8, {SRD_WS}, s74 offen offset:3072 sc1
        s_add_u32 s74, s74, 4096
        L_noprew:
        """)
    if opt.prew == 2:
        a(f"""
        s_sub_u32 s47, s50, {opt.prew_at}
        s_cmp_lt_u32 s47, 8
        s_cbranch_scc0 L_noprew
        buffer_store_dwordx4 v[0:3], v8, {SRD_WS}, s74 offen sc1
        buffer_store_dwordx4 v[0:3], v8, {SRD_WS}, s74 offen offset:1024 sc1
        buffer_store_dwordx4 v[0:3], v8, {SRD_WS}, s73 offen sc1
        s_add_u32 s74, s74, 2048
        s_add_u32 s73, s73, 1024
        L_noprew:
        """)
    if opt.wovec:
        a(f"""
        s_cmp_eq_u32 s50, s89
        s_cbranch_scc0 L_nowo2
        buffer_load_dword v35, v39, s[68:71], s88 offen
        s_add_u32 s89, s89, 2
        s_mov_b32 s68, s8
        s_and_b32 s69, s9, 0xffff
        s_xor_b32 s88, s88, {3 << 19}
        L_nowo2:
        """)
    a(f"""
    s_add_u32 s56, s56, {64*6144}
    s_add_u32 s57, s57, 128
    s_cmp_eq_u32 s58, s55
    s_cselect_b32 s58, {WSLOT}, 0
    s_add_u32 s58, s58, s55
    s_add_u32 s51, s51, 1
    s_cmp_eq_u32 s51, 3
    s_cselect_b32 s51, 0, s51
    s_lshl_b32 s59, s51, 15
    s_add_u32 s59, s59, s54
    s_add_u32 s50, s50, 1
    s_barrier
    """)
    if opt.prof:
        a("s_mov_b32 m0, s50"); stamp(a, "m0", opt)
    a("""
    s_cmp_lt_u32 s50, 13
    s_cbranch_scc1 L_prod
    s_mov_b64 exec, -1
    """)
    issue_w(a, "s56", "s58")
    a(f"""
    s_lshl_b32 s47, s{S_RB}, 1
    s_add_u32 s47, s47, s{S_BR}
    s_lshl_b32 s47, s47, 4
    s_add_u32 s47, s47, s{S_PAIR}
    s_lshl_b32 s47, s47, 2
    s_add_u32 s47, s47, s46
    s_lshl_b32 s48, s47, 12
    v_lshlrev_b32 v1, 5, v0
    s_mov_b32 s64, s16
    s_and_b32 s65, s17, 0xffff
    s_mov_b32 s66, 2048
    s_mov_b32 s67, 0x20000
    v_and_b32 v254, 31, v0
    v_lshlrev_b32 v254, 3, v254
    buffer_load_dwordx4 v[40:43], v1, s[64:67], 0 offen
    buffer_load_dwordx4 v[44:47], v1, s[64:67], 0 offen offset:16
    buffer_load_dwordx4 v[48:51], v1, {SRD_X}, s48 offen
    buffer_load_dwordx4 v[52:55], v1, {SRD_X}, s48 offen offset:16
    buffer_load_dwordx4 v[56:59], v1, {SRD_X}, s48 offen offset:2048
    buffer_load_dwordx4 v[60:63], v1, {SRD_X}, s48 offen offset:2064
    buffer_load_dword v253, v254, {SRD_DBG}, 0 offen sc1
    """)
    a("s_mov_b32 s93, s47")
    top = 32 - opt.nd - sum(opt.cl)
    f_regload(a, top - opt.n13, top)
    a(f"s_waitcnt vmcnt({7 + 2*opt.n13})\ns_barrier")
    f_regload(a, top - opt.n13 - opt.n14, top - opt.n13)
    a(f"s_mov_b32 s47, s93\ns_setprio {opt.tailprio}")
    stamp(a, 14, opt); cstamp(a, 31, opt)

def producer_gate(a, opt, tag=''):
    nw = 2 * (opt.n13 + opt.n14)
    a(f"v_mov_b32 v6, 0\nv_mov_b32 v7, 0")
    for i in range(8):
        a(f"v_dot2c_f32_bf16 v6, v{48+i}, v{40+i}")
        a(f"v_dot2c_f32_bf16 v7, v{56+i}, v{40+i}")
    a("s_nop 2")
    a("""
    v_permlane32_swap_b32 v6, v7
    s_nop 1
    v_add_f32 v6, v6, v7
    v_mov_b32 v7, v6
    s_nop 1
    v_permlane16_swap_b32 v6, v7
    s_nop 1
    v_add_f32 v6, v6, v7
    """)
    for sh in (8, 4, 2, 1):
        a("s_nop 1")
        a(f"v_add_f32_dpp v6, v6, v6 row_ror:{sh} row_mask:0xf bank_mask:0xf")
    a(f"""
    v_mul_f32 v6, {hex(f2u(-LOG2E))}, v6
    v_exp_f32 v6, v6
    v_lshlrev_b32 v7, 2, v{V_LANE}
    v_add_f32 v6, 1.0, v6
    v_rcp_f32 v6, v6
    s_lshl_b32 s47, s93, 8
    s_add_u32 s47, s47, {WS_G}
    buffer_store_dword v6, v7, {SRD_WS}, s47 offen sc1
    s_mov_b32 s48, {SPIN_MAX}
    """)
    a.label(f"L_initpoll{tag}")
    a(f"""
    v_cmp_gt_u32 vcc, {0 if opt.atom < 0 else 8}, v253
    s_cbranch_vccz L_initdone{tag}
    s_sub_u32 s48, s48, 1
    s_cmp_eq_u32 s48, 0
    s_cbranch_scc1 L_initdone{tag}
    buffer_load_dword v253, v254, {SRD_DBG}, 0 offen sc1
    s_waitcnt vmcnt(0)
    s_branch L_initpoll{tag}
    """)
    a.label(f"L_initdone{tag}")

T_S, T_P, T_K, T_V = 0, 32, 48, 56
class U:
    def __init__(s, sr_, q, o, l, sq): s.s, s.q, s.o, s.l, s.sq = sr_, q, o, l, sq
UA = U(0, 64, 72, 88, 70); UB = U(16, 92, 100, 116, 71)
T_MD, T_ME, T_SEL, T_PAT, T_PATK, T_ADR, T_ADRK = 120, 136, 152, 156, 157, 158, 159
T_IDX, T_T0, T_Z = 242, 244, 64
T_C = 16
M32 = "v_mfma_f32_32x32x16_bf16"
def PV(u, h): return f"v_smfmac_f32_32x32x32_bf16 {vr(u.o,16)}, {vr(T_V+4*h,4)}, {vr(T_P+8*h,8)}, v{T_IDX}"
def LS(u, h): return f"v_smfmac_f32_16x16x64_bf16 {vr(u.l,4)}, {vr(T_SEL,4)}, {vr(T_P+8*h,8)}, v{T_IDX}"
def keyof(i): return (i & 3) | ((i >> 3) << 2) | ((i >> 2 & 1) << 4)
S_HB = 72
LQ = 131072
def swap34(i): return (i & 7) | ((i >> 4 & 1) << 3) | ((i >> 3 & 1) << 4)

def b_consts(a):
    al8(a)
    a(f"v_mov_b32 v{T_T0}, {hex(f2u(-1e30))}")
    for n in range(16):
        g, r = n >> 2, n & 3
        m = 0
        for l in range(64):
            j, h = l & 31, l >> 5
            if keyof(8 * g + 4 * h + r) <= swap34(j): m |= 1 << l
        s = 64 + 2 * (n & 1)
        a(f"s_mov_b32 s{s}, {hex(m & 0xffffffff)}")
        a(f"s_mov_b32 s{s+1}, {hex(m >> 32)}")
        a(f"v_cndmask_b32_e64 v{T_MD+n}, v{T_T0}, 0, s[{s}:{s+1}]")
        a(f"v_cndmask_b32_e64 v{T_ME+n}, 0, v{T_T0}, s[{s}:{s+1}]")
    L = V_LANE
    a(f"""
    v_bfe_u32 v{T_T0}, v{L}, 2, 1
    v_mul_u32_u24 v{T_SEL+2}, 0x3f80, v{T_T0}
    v_lshl_add_u32 v{T_SEL+2}, v{T_SEL+2}, 16, v{T_SEL+2}
    v_xor_b32 v{T_SEL}, 0x3f803f80, v{T_SEL+2}
    v_mov_b32 v{T_SEL+3}, v{T_SEL+2}
    v_mov_b32 v{T_SEL+1}, v{T_SEL}
    v_pk_mul_f32 {vr(T_Z,2)}, 0, 0
    v_pk_mul_f32 {vr(T_Z+2,2)}, 0, 0
    v_mov_b32 v{T_IDX}, 0xdddddddd
    v_and_b32 v{T_PATK}, 3, v{L}
    v_lshlrev_b32 v{T_PATK}, 4, v{T_PATK}
    v_lshl_add_u32 v{T_PATK}, v{T_T0}, 10, v{T_PATK}
    v_lshrrev_b32 v{T_T0}, 3, v{L}
    v_lshl_add_u32 v{T_PATK}, v{T_T0}, 6, v{T_PATK}
    v_and_b32 v{T_PAT}, 7, v{L}
    v_lshlrev_b32 v{T_PAT}, 4, v{T_PAT}
    v_lshrrev_b32 v{T_T0}, 4, v{L}
    v_lshl_add_u32 v{T_PAT}, v{T_T0}, 7, v{T_PAT}
    v_bfe_u32 v{T_T0}, v{L}, 3, 1
    v_lshl_add_u32 v{T_PAT}, v{T_T0}, 10, v{T_PAT}
    s_and_b32 s46, s{S_WAVE}, 1
    s_lshl_b32 s{S_HB}, s46, 15
    s_and_b32 s46, s{S_WAVE}, 2
    s_sub_u32 s{UA.sq}, 6, s46
    s_cmp_lt_u32 s{S_WAVE}, 4
    s_cselect_b32 s{UA.sq}, s46, s{UA.sq}
    s_add_u32 s{UB.sq}, s{UA.sq}, 1
    s_lshl_b32 s46, s{S_RB}, 5
    s_add_u32 s46, s46, s{S_PAIR}
    s_lshl_b32 s46, s46, 1
    s_and_b32 s73, s{S_WAVE}, 1
    s_add_u32 s46, s46, s73
    s_add_u32 s46, s46, 32
    s_mul_i32 s46, s46, {OS}
    s_lshl_b32 s73, s{UA.sq}, 11
    s_add_u32 s73, s73, s46
    """)
    for u in (UA, UB):
        a(f"v_mfma_f32_32x32x16_bf16 {vr(u.o,16)}, {vr(T_Z,4)}, {vr(T_Z,4)}, 0")
        a(f"v_mfma_f32_16x16x32_bf16 {vr(u.l,4)}, {vr(T_Z,4)}, {vr(T_Z,4)}, 0")

def b_epilogue(a, opt, part):
    L = V_LANE
    c = LOG2E / 32 ** 0.5
    if part == 0: a(f"""
    s_lshr_b32 s46, s{S_WAVE}, 1
    s_and_b32 s47, s{S_WAVE}, 1
    s_lshl_b32 s48, s47, 15
    s_lshl_b32 s49, s46, 12
    s_add_u32 s48, s48, s49
    s_add_u32 s48, s48, 65536
    v_lshlrev_b32 v253, 4, v{L}
    {"s_mov_b32 s68, s48" if opt.kvfirst else "v_add_u32 v248, s48, v253"}
    s_lshl_b32 s48, s47, 14
    s_add_u32 s48, s48, s49
    s_add_u32 s48, s48, {LQ}
    {"s_mov_b32 s69, s48" if opt.kvfirst else "v_add_u32 v249, s48, v253"}
    s_lshl_b32 s48, s{S_PAIR}, 3
    s_add_u32 s48, s48, s{S_RB}
    s_mul_i32 s48, s48, {opt.kvs}
    s_lshl_b32 s47, s47, 15
    s_add_u32 s48, s48, s47
    s_add_u32 s48, s48, s49
    s_add_u32 s48, s48, {WS_KV if not (opt.exp & 1) else 0x10000000}
    s_cmp_eq_u32 s{S_RB}, {7 if opt.exp & 32 else 99}
    s_cselect_b32 s48, 0x10000000, s48
    s_mov_b32 s49, s48
    s_add_u32 s48, s49, 8192
    s_add_u32 s50, s49, {16384+8192}
    s_add_u32 s51, s49, 16384
    s_mov_b32 s64, {hex(f2u(c))}
    """)
    def pack(dst, x, y):
        a(f"v_cvt_pk_bf16_f32 v{dst}, v{x}, v{x+1}")
        a(f"v_cvt_pk_bf16_f32 v{dst+1}, v{x+2}, v{x+3}")
        a(f"v_cvt_pk_bf16_f32 v{dst+2}, v{y}, v{y+1}")
        a(f"v_cvt_pk_bf16_f32 v{dst+3}, v{y+2}, v{y+3}")
    def qpack(sb):
        d = acc(sb, 0)
        for r in range(0, 8, 2):
            a(f"v_pk_mul_f32 {vr(d+r,2)}, {vr(d+r,2)}, s[64:65] op_sel_hi:[1,0]")
        pack(d, acc(sb, 0), acc(sb, 1))
    if opt.kvfirst:
        blocks = lambda g: [(acc(sb, 2), acc(sb, 3), 48, sb, 0) for sb in range(4*g, 4*g + 4)] + [(acc(i & ~1, 4 + (i & 1)), acc(i | 1, 4 + (i & 1)), 50, i, 16384) for i in range(4*g, 4*g + 4)]
        st = lambda x, sreg, i: f"buffer_store_dwordx4 {vr(x,4)}, v253, {SRD_WS}, s{sreg + (i >> 2)} offen offset:{(i & 3)*1024} {opt.kvst}"
        wr = lambda x, i, off: f"ds_write_b128 v254, {vr(x,4)} offset:{off + blk(i)*1024}"
        allb = blocks(0) + blocks(1)
        early_w = [n for n in range(16) if not 4 <= n < 8] if opt.kvfirst == 2 else []
        if part == 0:
            a("v_add_u32 v254, s68, v253")
            return
        if part >= 2:
            for n in range(8 * (part - 2), 8 * (part - 1)):
                x, y, sreg, i, off = allb[n]
                pack(x, x, y)
                if n < 16 - opt.stlate: a(st(x, sreg, i))
                if n in early_w: a(wr(x, i, off))
            return
        a("v_add_u32 v249, s69, v253")
        rest = [wr(allb[n][0], allb[n][3], allb[n][4]) for n in range(16) if n not in early_w]
        per = len(rest) // 4
        for sb in range(4):
            for l in rest[sb*per:(sb+1)*per]: a(l)
            qpack(sb)
            a(f"ds_write_b128 v249, {vr(acc(sb,0),4)} offset:{blk(sb)*1024}")
        a("s_setprio 2\ns_waitcnt lgkmcnt(0)\ns_barrier")
        for n in range(16 - opt.stlate, 16): a(st(allb[n][0], allb[n][2], allb[n][3]))
        for sb in range(4, 8):
            qpack(sb)
            a(f"ds_write_b128 v249, {vr(acc(sb,0),4)} offset:{blk(sb)*1024}")
        return
    if part == 0: opt._late = []
    late = opt._late
    def store(n, txt):
        if (n % 2 == 1 if opt.stalt else n >= 16 - opt.stlate): late.append(txt)
        else:
            if opt.stwin0 and n >= opt.stwin0: a(f"s_waitcnt vmcnt({opt.stwin0 - 1})")
            a(txt)
    n = 8 * part
    al8(a)
    for m in (2 * part, 2 * part + 1):
        for sb in (2 * m, 2 * m + 1):
            d = acc(sb, 2)
            pack(d, acc(sb, 2), acc(sb, 3))
            store(n, f"buffer_store_dwordx4 {vr(d,4)}, v253, {SRD_WS}, s{48 + (sb >> 2)} offen offset:{(sb & 3)*1024} {opt.kvst}"); n += 1
            a(f"ds_write_b128 v248, {vr(d,4)} offset:{blk(sb)*1024}")
            if part:
                qpack(sb - 4)
                a(f"ds_write_b128 v249, {vr(acc(sb-4,0),4)} offset:{blk(sb-4)*1024}")
        for nb in range(2):
            d = acc(2 * m, 4 + nb); i = 2 * m + nb
            pack(d, acc(2 * m, 4 + nb), acc(2 * m + 1, 4 + nb))
            store(n, f"buffer_store_dwordx4 {vr(d,4)}, v253, {SRD_WS}, s{50 + (i >> 2)} offen offset:{(i & 3)*1024} {opt.kvst}"); n += 1
            a(f"ds_write_b128 v248, {vr(d,4)} offset:{16384 + blk(i)*1024}")
    if part == 0: return
    a("s_setprio 2\ns_waitcnt lgkmcnt(0)\ns_barrier")
    al8(a)
    qs = list(range(4, 8))
    def ownq():
        sb = qs.pop(0); qpack(sb)
        a(f"ds_write_b128 v249, {vr(acc(sb,0),4)} offset:{blk(sb)*1024}")
    for k, t in enumerate(late):
        if opt.stwin: a(f"s_waitcnt vmcnt({opt.stwin - 1})")
        a(t)
        if opt.stmix and k % 2 == 1 and qs: ownq()
    while qs: ownq()
    a("s_nop 1")

def b_phase(a, X, Y, kind, step, mask=None):
    e = lambda *ns: [a(f"v_exp_f32 v{T_P+n}, v{X.s+n}") for n in ns]
    if kind == 'B': a("s_waitcnt lgkmcnt(0)")
    a(f"{M32} {vr(Y.s,16)}, {vr(T_K,4)}, {vr(Y.q,4)}, {vr(mask,16) if mask is not None else 0}")
    if kind == 'A': a(f"v_pk_add_u16 v{T_ADRK}, v{T_ADRK}, v{T_ADRK}" if False else f"v_add_u32 v{T_ADRK}, {step & 0xffffffff}, v{T_ADRK}")
    e(0, 1, 2)
    a(f"{M32} {vr(Y.s,16)}, {vr(T_K+4,4)}, {vr(Y.q+4,4)}, {vr(Y.s,16)}")
    if kind == 'A':
        a(f"ds_read_b128 {vr(T_K,4)}, v{T_ADRK}")
        a(f"ds_read_b128 {vr(T_K+4,4)}, v{T_ADRK} offset:512")
    e(3, 4, 5)
    if kind != 'F': a(LS(Y, 1))
    e(6)
    if kind != 'F':
        a(PV(Y, 1))
        if kind == 'A': a(f"ds_read_b128 {vr(T_V+4,4)}, v{T_ADR} offset:{16384 + 512}")
    if kind == 'B': a(f"v_add_u32 v{T_ADR}, {step & 0xffffffff}, v{T_ADR}")
    e(7, 8, 9)
    if kind == 'A': a("s_waitcnt lgkmcnt(3)")
    a(PV(X, 0))
    if kind != 'A': a(f"ds_read_b128 {vr(T_V,4)}, v{T_ADR} offset:16384")
    e(10, 11, 12)
    a(LS(X, 0))
    e(13, 14)
    if kind == 'B': a("s_sub_u32 s50, s50, 1")
    e(15)

def b_section(a, own):
    X, Y = (UB, UA) if own else (UA, UB)
    step = -2048 if own else 2048
    mask = T_MD if own else T_ME
    tag = "own" if own else "halo"
    if own: a(f"s_add_u32 s46, s{UA.sq}, 32\ns_mov_b32 s50, s{UA.sq}")
    else: a(f"s_add_u32 s46, s{UA.sq}, 1\ns_sub_u32 s50, 6, s{UA.sq}")
    a(f"""
    s_lshl_b32 s46, s46, 11
    s_add_u32 s46, s46, s{S_HB}
    v_add_u32 v{T_ADRK}, s46, v{T_PATK}
    v_add_u32 v{T_T0}, {-step & 0xffffffff}, v{T_ADRK}
    ds_read_b128 {vr(T_P,4)}, v{T_T0}
    ds_read_b128 {vr(T_P+4,4)}, v{T_T0} offset:512
    v_add_u32 v{T_ADR}, s46, v{T_PAT}
    ds_read_b128 {vr(T_K,4)}, v{T_ADRK}
    ds_read_b128 {vr(T_K+4,4)}, v{T_ADRK} offset:512
    ds_read_b128 {vr(T_V,4)}, v{T_ADR} offset:{16384 - step}
    ds_read_b128 {vr(T_V+4,4)}, v{T_ADR} offset:{16384 + 512 - step}
    s_waitcnt lgkmcnt(5)
    {M32} {vr(X.s,16)}, {vr(T_P,4)}, {vr(X.q,4)}, {vr(mask,16)}
    s_waitcnt lgkmcnt(4)
    {M32} {vr(X.s,16)}, {vr(T_P+4,4)}, {vr(X.q+4,4)}, {vr(X.s,16)}
    s_waitcnt lgkmcnt(0)
    s_nop 7
    s_nop 1
    """)
    b_phase(a, X, Y, 'F', step, mask)
    align(a, ALT)
    a.label(f"L_pair_{tag}")
    b_phase(a, Y, X, 'A', step)
    b_phase(a, X, Y, 'B', step)
    a(f"""
    s_cbranch_scc0 L_pair_{tag}
    s_nop 0
    {PV(X, 1)}
    {LS(X, 1)}
    """)

def b_final(a, u, tag, opt):
    lo, hi = (2.0 ** -40, 2.0 ** 40) if not opt.force_slow else (2.0 ** 3, 2.0 ** 9)
    a(f"""
    v_subrev_u32 v{T_T0}, {hex(f2u(lo))}, v{u.l}
    v_cmp_lt_u32 vcc, {hex(f2u(hi) - f2u(lo))}, v{T_T0}
    {"s_nop 0" if opt.exp else f"s_cbranch_vccnz L_slow_{tag}"}
    """)
    al8(a)
    a.label(f"L_back_{tag}")
    a(f"v_rcp_f32 v{T_T0}, v{u.l}")
    a("s_nop 0")
    for r in range(0, 16, 2):
        a(f"v_pk_mul_f32 {vr(u.o+r,2)}, {vr(u.o+r,2)}, {vr(T_T0,2)} op_sel_hi:[1,0]")
    for k in range(8):
        a(f"v_cvt_pk_bf16_f32 v{u.o+k}, v{u.o+2*k}, v{u.o+2*k+1}")
    if opt.f0early != 2: b_store(a, u)

def b_store(a, u):
    a(f"buffer_store_dwordx4 {vr(u.o,4)}, v{T_PAT}, {SRD_WS}, s73 offen offset:{2048 if u is UB else 0} sc1")
    a(f"buffer_store_dwordx4 {vr(u.o+4,4)}, v{T_PAT}, {SRD_WS}, s73 offen offset:{2560 if u is UB else 512} sc1")

def b_slow(a, u, tag, opt):
    S, P, M = T_S, T_P, T_T0 + 2
    a.label(f"L_slow_{tag}")
    a(f"""
    s_nop 7
    s_nop 7
    """)
    for r in range(0, 20, 2): a(f"v_pk_mul_f32 {vr(u.o+r,2)}, 0, 0")
    a(f"""
    v_mov_b32 v{M}, {hex(f2u(-3e38))}
    s_add_u32 s52, s{u.sq}, 8
    """)
    for ps in range(2):
        a(f"""
        s_cmp_eq_u32 s{S_RB}, 0
        s_cselect_b32 s51, 8, s{u.sq}
        """)
        a.label(f"L_slowl_{tag}{ps}")
        a(f"""
        s_lshl_b32 s46, s{S_PAIR}, 3
        s_add_u32 s46, s46, s{S_RB}
        s_lshr_b32 s47, s51, 3
        s_add_u32 s46, s46, s47
        s_mul_i32 s46, s46, {opt.kvs}
        s_and_b32 s47, s51, 7
        s_lshl_b32 s47, s47, 11
        s_add_u32 s46, s46, s47
        s_add_u32 s46, s46, s{S_HB}
        s_add_u32 s46, s46, {WS_KV - opt.kvs}
        s_add_u32 s47, s46, 16384
        buffer_load_dwordx4 {vr(T_K,4)}, v{T_PATK}, {SRD_WS}, s46 offen sc1
        buffer_load_dwordx4 {vr(T_K+4,4)}, v{T_PATK}, {SRD_WS}, s46 offen offset:512 sc1
        buffer_load_dwordx4 {vr(T_V,4)}, v{T_PAT}, {SRD_WS}, s47 offen sc1
        buffer_load_dwordx4 {vr(T_V+4,4)}, v{T_PAT}, {SRD_WS}, s47 offen offset:512 sc1
        s_cmp_eq_u32 s51, s52
        s_cselect_b32 s47, 1.0, 0
        s_cmp_eq_u32 s51, s{u.sq}
        s_cselect_b32 s48, 1.0, 0
        """)
        for n in range(16):
            a(f"v_mul_f32 v{T_C+n}, s47, v{T_MD+n}")
            a(f"v_fmac_f32 v{T_C+n}, s48, v{T_ME+n}")
        a(f"""
        s_waitcnt vmcnt(0)
        s_nop 1
        v_mfma_f32_32x32x16_bf16 {vr(S,16)}, {vr(T_K,4)}, {vr(u.q,4)}, {vr(T_C,16)}
        v_mfma_f32_32x32x16_bf16 {vr(S,16)}, {vr(T_K+4,4)}, {vr(u.q+4,4)}, {vr(S,16)}
        s_nop 7
        s_nop 7
        """)
        if ps == 0:
            for n in range(0, 16, 2):
                a(f"v_max3_f32 v{M}, v{S+n}, v{S+n+1}, v{M}")
        else:
            for n in range(16): a(f"v_sub_f32 v{S+n}, v{S+n}, v{M}")
            for n in range(16): a(f"v_exp_f32 v{P+n}, v{S+n}")
            a("s_nop 1")
            for l in (PV(u, 0), PV(u, 1), LS(u, 0), LS(u, 1)): a(l)
        a(f"""
        s_add_u32 s51, s51, 1
        s_cmp_le_u32 s51, s52
        s_cbranch_scc1 L_slowl_{tag}{ps}
        """)
        if ps == 0:
            a(f"""
            v_mov_b32 v{M+1}, v{M}
            s_nop 1
            v_permlane32_swap_b32 v{M}, v{M+1}
            s_nop 1
            v_max_f32 v{M}, v{M}, v{M+1}
            """)
    a(f"s_nop 7\ns_nop 7\ns_branch L_back_{tag}")

def b_attention(a, opt):
    a(f"""
    s_lshl_b32 s46, s{S_WAVE}, 7
    s_add_u32 s46, s46, s{S_FLAG}
    v_mov_b32 v{T_T0}, 1
    v_lshlrev_b32 v{T_T0+1}, 2, v{V_LANE}
    s_mov_b32 exec_hi, 0
    s_waitcnt vmcnt(0)
    buffer_store_dword v{T_T0}, v{T_T0+1}, {SRD_WS}, s46 offen sc1
    s_mov_b32 exec_hi, -1
    """)
    stamp(a, 25, opt); diag(a, opt, "flag")
    if opt.flagfirst:
        a("s_mov_b32 s68, s46"); b_consts(a); a("s_mov_b32 s46, s68")
    a(f"""
    s_cmp_ge_u32 s{S_WAVE}, 2
    s_cbranch_scc1 L_bnopoll
    s_cmp_eq_u32 s{S_RB}, 0
    s_cbranch_scc1 L_bnopoll
    s_sub_u32 s46, s46, 2048
    s_mov_b32 s48, {SPIN_MAX}
    v_and_b32 v{T_C+1}, 1, v{V_LANE}
    v_lshlrev_b32 v{T_C+1}, 8, v{T_C+1}
    s_lshl_b32 s47, s{S_PAIR}, 3
    s_add_u32 s47, s47, s{S_RB}
    s_mul_i32 s47, s47, {opt.kvs}
    s_add_u32 s47, s47, s{S_HB}
    s_add_u32 s47, s47, {WS_KV - opt.kvs}
    v_lshlrev_b32 v{T_T0}, 4, v{V_LANE}
    """)
    if opt.bwait: a("s_waitcnt vmcnt(0)")
    a.label("L_bpoll_l")
    a(f"""
    buffer_load_dword v{T_C}, v{T_C+1}, {SRD_WS}, s46 offen sc1
    s_sub_u32 s48, s48, 1
    s_cmp_eq_u32 s48, 0
    s_cbranch_scc1 L_bpoll_d
    s_waitcnt vmcnt(0)
    v_cmp_ne_u32 vcc, 1, v{T_C}
    s_cbranch_vccnz L_bpoll_l
    """)
    a.label("L_bpoll_d")
    stamp(a, 26, opt)
    a(f"s_mov_b32 m0, s{S_HB}\ns_mov_b32 s48, 8")
    a.label("L_bdma")
    for k in range(4):
        if not (opt.exp & 2): a(f"buffer_load_dwordx4 v{T_T0}, {SRD_WS}, s47 offen offset:{k*1024} {opt.kvld} lds")
    a("""
    s_add_u32 m0, m0, 4096
    s_add_u32 s47, s47, 4096
    s_sub_u32 s48, s48, 1
    s_cmp_lg_u32 s48, 0
    s_cbranch_scc1 L_bdma
    """)
    a.label("L_bnopoll")
    a(f"s_setprio {opt.oprio}")
    a.label("L_battn1")
    stamp(a, 24, opt); cstamp(a, 34, opt)
    a(f"""
    s_lshr_b32 s46, s{S_HB}, 1
    s_add_u32 s46, s46, {LQ}
    s_lshl_b32 s47, s{UA.sq}, 11
    s_add_u32 s47, s47, s46
    v_add_u32 v{T_ADR}, s47, v{T_PAT}
    ds_read_b128 {vr(UB.q,4)}, v{T_ADR} offset:2048
    ds_read_b128 {vr(UB.q+4,4)}, v{T_ADR} offset:{2048+512}
    ds_read_b128 {vr(UA.q,4)}, v{T_ADR}
    ds_read_b128 {vr(UA.q+4,4)}, v{T_ADR} offset:512
    """)
    b_section(a, True)
    stamp(a, 27, opt)
    a(f"s_cmp_ge_u32 s{S_WAVE}, 4\ns_cbranch_scc1 L_nofsetup")
    f_consumer(a, opt, 0)
    a.label("L_nofsetup")
    a(f"""
    s_setprio 0
    s_waitcnt vmcnt(0) lgkmcnt(0)
    s_barrier
    s_cmp_lt_u32 s{S_WAVE}, 4
    s_cbranch_scc1 L_nofill
    s_setprio {opt.bprio}
    """)
    if opt.fill2: a(f"s_cmp_ge_u32 s{S_WAVE}, 6\ns_cbranch_scc1 L_nofill")
    f_prefill(a, opt, "B")
    a.label("L_nofill")
    stamp(a, 28, opt); diag(a, opt, "T2")
    a(f"""
    s_cmp_eq_u32 s{S_RB}, 0
    s_cbranch_scc0 L_bhalo
    s_nop 7
    s_branch L_bfin
    L_bhalo:
    """)
    b_section(a, False)
    a.label("L_bfin")
    a("s_waitcnt lgkmcnt(0)\ns_nop 1")
    if opt.f0early:
        a(f"s_cmp_ge_u32 s{S_WAVE}, 4\ns_cbranch_scc1 L_nof0")
        f_consumer(a, opt, 1)
        a.label("L_nof0")
    b_final(a, UB, "b", opt)
    b_final(a, UA, "a", opt)
    if opt.f0early == 2:
        a(f"s_cmp_ge_u32 s{S_WAVE}, 4\ns_cbranch_scc1 L_nof1")
        f_consumer(a, opt, 3)
        a.label("L_nof1")
        b_store(a, UB); b_store(a, UA)
    stamp(a, 29, opt); cstamp(a, 35, opt)
    a(f"""
    s_cmp_ge_u32 s{S_WAVE}, 4
    s_cbranch_scc1 L_fprod
    """)
    if not opt.f0early: f_consumer(a, opt, 1)
    a("s_branch L_fcons")
    b_slow(a, UA, "a", opt)
    b_slow(a, UB, "b", opt)

def phi_pack(a, dst, x, y, t):
    for i, b in enumerate((x, x + 2, y, y + 2)):
        a(f"v_pk_fma_f32 {vr(t+2*i,2)}, {vr(b,2)}, s[64:65], s[64:65] op_sel_hi:[1,0,0] neg_lo:[0,0,1] neg_hi:[0,0,1]")
    for i in range(8): a(f"v_exp_f32_e64 v{t+i}, v{t+i} clamp")
    for i in range(8): a(f"v_max_f32 v{t+i}, v{t+i}, v{(x if i < 4 else y) + (i & 3)}")
    for i in range(4): a(f"v_pk_add_f32 {vr(t+2*i,2)}, {vr(t+2*i,2)}, s[66:67] op_sel_hi:[1,0]")
    for i in range(4): a(f"v_cvt_pk_bf16_f32 v{dst+i}, v{t+2*i}, v{t+2*i+1}")

A_KV = 192
A_T = 216; A_ONE = 224; A_OP = 228
LA_FIN = 32768
def a_valu(a, m, t):
    for nb in range(2):
        phi_pack(a, acc(2*m, 2+nb), acc(2*m, 2+nb), acc(2*m+1, 2+nb), t)
    for nb in range(2):
        d, x, y = acc(2*m, 4+nb), acc(2*m, 4+nb), acc(2*m+1, 4+nb)
        a(f"v_cvt_pk_bf16_f32 v{d}, v{x}, v{x+1}\nv_cvt_pk_bf16_f32 v{d+1}, v{x+2}, v{x+3}\nv_cvt_pk_bf16_f32 v{d+2}, v{y}, v{y+1}\nv_cvt_pk_bf16_f32 v{d+3}, v{y+2}, v{y+3}")
def a_pre(a, opt):
    L = V_LANE
    a(f"""
    s_mov_b32 s64, {hex(f2u(LOG2E))}
    s_mov_b32 s66, {hex(f2u(1e-6))}
    s_mul_i32 s46, s{S_WAVE}, 6144
    v_lshlrev_b32 v253, 4, v{L}
    v_add_u32 v248, s46, v253
    s_and_b32 s47, s{S_WAVE}, 1
    s_mul_i32 s46, s47, 3072
    s_add_u32 s46, s46, {LA_FIN}
    v_add_u32 v249, s46, v253
    """)
    al8(a)
    a_valu(a, 0, XA)

def a_consumer(a, opt):
    L = V_LANE
    for i in range(4): a(f"v_mov_b32 v{A_ONE+i}, 0x3f803f80")
    kvb = lambda db, eb: A_KV + eb * 12 + db * 4
    zb = lambda db: A_KV + db * 12 + 8
    def kvm(m):
        out = []
        for db in range(2):
            c = vr(zb(db), 4)
            out.append(f"v_mfma_f32_16x16x32_bf16 {c}, {vr(acc(2*m,2+db),4)}, {vr(A_ONE,4)}, {c if m else 0}")
        for eb in range(2):
            for db in range(2):
                c = vr(kvb(db, eb), 4)
                out.append(f"v_mfma_f32_16x16x32_bf16 {c}, {vr(acc(2*m,2+db),4)}, {vr(acc(2*m,4+eb),4)}, {c if m else 0}")
        return out
    for m in range(1, 4):
        v = lines_of(a_valu, m, A_T); mf = kvm(m - 1)
        for k, l in enumerate(v):
            a(l)
            if k >= 2 and k % 3 == 2 and mf: a(mf.pop(0))
    for l in kvm(3): a(l)
    a("s_nop 7")
    for i in (2, 5, 0, 1, 3, 4):
        a(f"ds_write_b128 v248, {vr(A_KV+4*i,4)} offset:{i*1024}")
    a("s_waitcnt lgkmcnt(0)\ns_barrier")
    stamp(a, 24, opt)
    al8(a)
    for sb in range(8):
        phi_pack(a, acc(sb, 0), acc(sb, 0), acc(sb, 1), A_T)
    a(f"""
    s_lshl_b32 s46, s{S_RB}, 6
    s_lshl_b32 s48, s{S_PAIR}, 1
    s_add_u32 s46, s46, s48
    s_add_u32 s46, s46, s47
    s_mul_i32 s46, s46, {opt.os}
    s_lshr_b32 s48, s{S_WAVE}, 1
    s_lshl_b32 s49, s48, 12
    s_add_u32 s49, s49, s46
    s_add_u32 s48, s49, 8192
    """)
    stamp(a, 25, opt)
    a("s_setprio 3\ns_barrier")
    stamp(a, 28, opt); diag(a, opt, "A2")
    for i in range(3): a(f"ds_read_b128 {vr(A_OP+4*i,4)}, v249 offset:{i*1024}")
    a("s_waitcnt lgkmcnt(0)")
    mf = [f"v_mfma_f32_16x16x32_bf16 {vr(acc(sb,2+i),4)}, {vr(A_OP+4*i,4)}, {vr(acc(sb,0),4)}, 0" for sb in range(8) for i in (2, 0, 1)]
    for _ in range(6): a(mf.pop(0))
    a("s_nop 2")
    al8(a)
    for sb in range(8):
        n0, dn = acc(sb, 2), acc(sb, 4)
        a(f"v_add_f32 v{dn}, s66, v{dn}")
        a(f"v_rcp_f32 v{dn}, v{dn}")
        a(mf.pop(0) if mf else "v_nop_e64")
        for r in range(0, 8, 2):
            a(f"v_pk_mul_f32 {vr(n0+r,2)}, {vr(n0+r,2)}, {vr(dn,2)} op_sel_hi:[1,0]")
            if r == 4 and mf: a(mf.pop(0))
        for k in range(4):
            a(f"v_cvt_pk_bf16_f32 v{n0+k}, v{n0+2*k}, v{n0+2*k+1}")
            if k == 1 and mf: a(mf.pop(0))
        a(f"buffer_store_dwordx4 {vr(n0,4)}, v253, {SRD_WS}, s{48 + (sb>>2)} offen offset:{(sb&3)*1024} sc1")
    stamp(a, 29, opt)
    if opt.a3 == 1: a("s_barrier")
    f_flag(a)
    if opt.a3 == 2: a("s_barrier")
    a("s_setprio 0")

def a_help(a):
    a(f"""
    s_lshl_b32 s57, s{S_J}, 1
    s_add_u32 s57, s57, s{S_WAVE}
    s_sub_u32 s57, s57, 4
    s_cmp_lt_u32 s57, 24
    s_cselect_b32 s56, 0, 0x200000
    s_lshl_b32 s57, s57, 15
    s_and_b32 s49, s{S_XCD}, 1
    s_lshl_b32 s49, s49, 10
    s_add_u32 s57, s57, s49
    s_add_u32 s56, s56, s57
    v_lshrrev_b32 v64, 2, v{V_LANE}
    v_lshlrev_b32 v64, 3, v64
    v_and_or_b32 v64, v{V_LANE}, 3, v64
    v_lshlrev_b32 v64, 8, v64
    buffer_load_dword v65, v64, {SRD_WO}, s57 offen
    buffer_load_dword v65, v64, s[84:87], s56 offen
    """)

def a_producer(a, opt):
    L = V_LANE
    V16, VR, VKV, VZ, VQ, VZA, Z = 242, 243, 244, 245, 246, 247, 248
    a(f"""
    s_sub_u32 s46, s{S_WAVE}, 4
    s_and_b32 s47, s46, 1
    s_lshr_b32 s48, s46, 1
    s_mul_i32 s49, s47, 6144
    s_mul_i32 s50, s48, 3072
    s_add_u32 s49, s49, s50
    v_lshlrev_b32 v{V16}, 4, v{L}
    v_add_u32 v{VR}, s49, v{V16}
    s_mul_i32 s49, s47, 3072
    s_add_u32 s49, s49, {LA_FIN}
    s_lshl_b32 s50, s48, 10
    s_add_u32 s50, s50, s49
    v_add_u32 v{VKV}, s50, v{V16}
    s_lshl_b32 s50, s48, 3
    s_add_u32 s50, s50, s49
    v_add_u32 v{VZ}, s50, v{V16}
    v_and_b32 v{VQ}, 48, v{L}
    v_and_b32 v{VZA}, 7, v{L}
    v_lshl_add_u32 v{VZA}, v{VZA}, 14, v{VQ}
    v_and_b32 v6, 3, v{L}
    v_sub_u32 v{VQ}, v{VR}, v{V16}
    v_lshl_add_u32 v{VQ}, v6, 8, v{VQ}
    s_lshl_b32 s51, s{S_PAIR}, 5
    s_add_u32 s51, s51, s46
    s_lshl_b32 s51, s51, 12
    s_add_u32 s51, s51, {WS_PART}
    s_lshl_b32 s52, s{S_RB}, 14
    s_add_u32 s52, s52, s51
    v_mov_b32 v0, 0
    v_mov_b32 v1, 0
    v_mov_b32 v4, 0
    v_mov_b32 v5, 0
    v_and_b32 v6, 1, v{L}
    v_lshlrev_b32 v6, 4, v6
    v_mov_b32 v7, 0x3f80
    v_lshlrev_b32 v6, v6, v7
    s_mov_b32 vcc_lo, 0x00300003
    s_mov_b32 vcc_hi, 0x30000300
    v_cndmask_b32 v2, 0, v6, vcc
    s_mov_b32 vcc_lo, 0x00c0000c
    s_mov_b32 vcc_hi, 0xc0000c00
    v_cndmask_b32 v3, 0, v6, vcc
    s_setprio 2
    s_barrier
    """)
    stamp(a, 24, opt)
    for i in range(3):
        a(f"ds_read_b128 {vr(16+4*i,4)}, v{VR if i < 2 else VQ} offset:{i*1024}")
        a(f"ds_read_b128 {vr(28+4*i,4)}, v{VR if i < 2 else VQ} offset:{12288 + i*1024}")
    a("s_waitcnt lgkmcnt(2)")
    for r in range(0, 8, 2): a(f"v_pk_add_f32 {vr(16+r,2)}, {vr(16+r,2)}, {vr(28+r,2)}")
    for k in range(4): a(f"v_cvt_pk_bf16_f32 v{8+k}, v{16+2*k}, v{17+2*k}")
    a(f"""
    buffer_store_dwordx4 v[8:11], v{V16}, {SRD_WS}, s52 offen sc1
    s_waitcnt lgkmcnt(0)
    v_pk_add_f32 v[12:13], v[24:25], v[36:37]
    v_pk_add_f32 v[14:15], v[26:27], v[38:39]
    s_mov_b32 s48, {SPIN_MAX // 8}
    s_mov_b64 exec, 0xff
    buffer_store_dwordx4 v[12:15], v{V16}, {SRD_WS}, s52 offen offset:1024 sc1
    s_mov_b64 exec, -1
    """)
    if opt.gatelate and opt.agate:
        producer_gate(a, opt, "A")
        a(f"s_mov_b32 s48, {SPIN_MAX // 8}")
    if opt.bhelp == 2: a_help(a)
    f_prefill(a, opt, "A1", opt.afill, opt.afill + opt.afill2)
    if opt.await0: a(f"s_waitcnt vmcnt({2 * opt.afill2 + (2 if opt.bhelp == 2 else 0) + (1 if opt.gatelate and opt.agate else 0)})")
    stamp(a, 25, opt)
    a.label("L_agather")
    a(f"buffer_load_dwordx4 {vr(Z,4)}, v{VZA}, {SRD_WS}, s51 offen offset:1024 sc1")
    a("s_mov_b32 s53, s51")
    for src in range(8):
        a(f"buffer_load_dwordx4 {vr(16+4*src,4)}, v{V16}, {SRD_WS}, s53 offen sc1")
        if src < 7: a("s_add_u32 s53, s53, 16384")
    a("s_waitcnt vmcnt(8)")
    for sh in (4, 2, 1):
        for r in range(4): a(f"v_add_f32_dpp v{Z+r}, v{Z+r}, v{Z+r} row_ror:{sh} row_mask:0xf bank_mask:0xf")
    for src in range(8):
        a(f"s_waitcnt vmcnt({7-src})")
        a(f"v_mfma_f32_16x16x32_bf16 v[8:11], v[2:5], {vr(16+4*src,4)}, {'v[8:11]' if src else 0}")
        a(f"v_mfma_f32_16x16x32_bf16 v[12:15], v[0:3], {vr(16+4*src,4)}, {'v[12:15]' if src else 0}")
    a(f"""
    v_pk_add_f32 v[6:7], {vr(Z,2)}, {vr(Z+2,2)}
    v_add_f32 v6, v6, v7
    v_cvt_pk_bf16_f32 v{Z}, v{Z}, v{Z+1}
    v_cvt_pk_bf16_f32 v{Z+1}, v{Z+2}, v{Z+3}
    s_nop 3
    v_cmp_u_f32 vcc, v6, v12
    s_cbranch_vccz L_apoll_d
    """)
    a.label("L_apoll")
    a(f"""
    s_sub_u32 s48, s48, 1
    s_cmp_eq_u32 s48, 0
    s_cbranch_scc1 L_apoll_d
    buffer_load_dword v7, v{VZA}, {SRD_WS}, s51 offen offset:1024 sc1
    s_waitcnt vmcnt(0)
    v_cmp_eq_u32 vcc, -1, v7
    s_cbranch_vccnz L_apoll
    s_branch L_agather
    """)
    a.label("L_apoll_d")
    stamp(a, 26, opt)
    if opt.prof: a(f"s_sub_u32 s94, {SPIN_MAX//8+1}, s48\nv_writelane_b32 v255, s94, 38")
    for k in range(4): a(f"v_cvt_pk_bf16_f32 v{8+k}, v{8+2*k}, v{9+2*k}")
    a(f"""
    ds_write_b64 v{VZ}, {vr(Z,2)} offset:2048
    ds_write_b128 v{VKV}, v[8:11]
    s_waitcnt lgkmcnt(0)
    """)
    stamp(a, 27, opt)
    a("s_barrier")
    a("s_setprio 0")
    if opt.a3: a("s_barrier")

F_FL, F_FA = 244, 248
def f_flag(a, wait="s_waitcnt vmcnt(0)"):
    a(f"""
    s_lshl_b32 s46, s{S_WAVE}, 7
    s_add_u32 s46, s46, s{S_FLAG}
    v_mov_b32 v{F_FL+6}, 1
    v_lshlrev_b32 v{F_FL+7}, 2, v{V_LANE}
    s_mov_b32 exec_hi, 0
    {wait}
    buffer_store_dword v{F_FL+6}, v{F_FL+7}, {SRD_WS}, s46 offen offset:1024 sc1
    s_mov_b32 exec_hi, -1
    """)
def f_gate_addr(a, which, opt):
    a(f"""
    v_and_b32 v{F_FA}, 15, v{V_LANE}
    v_lshlrev_b32 v{F_FA}, 14, v{F_FA}
    {f"v_mov_b32 v{F_FL}, 4" if which == "B" else f"v_lshrrev_b32 v{F_FL}, 4, v{V_LANE}"}
    v_lshl_add_u32 v{F_FA}, v{F_FL}, 7, v{F_FA}
    s_lshl_b32 s{S_GA}, s{S_RT}, 11
    s_add_u32 s{S_GA}, s{S_GA}, {WS_FLAG + (262144 if which == "B" else 0)}
    """)
def f_gate(a, which, opt, probed=None):
    assert opt.bflag1
    a(f"s_cmp_lg_u32 s{S_WAVE}, {opt.gwave}\ns_cbranch_scc1 L_gated{which}\ns_mov_b32 s48, {SPIN_MAX}")
    if probed is None: f_gate_addr(a, which, opt)
    else: a(f"s_waitcnt vmcnt({probed})\nv_cmp_ne_u32 vcc, 1, v{F_FL}\ns_cbranch_vccz L_gated{which}")
    a(f"s_branch L_gate_e{which}")
    a.label(f"L_gate{which}")
    if opt.backoff: a(f"s_sleep {opt.backoff}")
    a.label(f"L_gate_e{which}")
    a(f"""
    buffer_load_dword v{F_FL}, v{F_FA}, {SRD_WS}, s{S_GA} offen offset:1024 sc1
    s_sub_u32 s48, s48, 1
    s_cmp_eq_u32 s48, 0
    s_cbranch_scc1 L_gated{which}
    s_waitcnt vmcnt(0)
    v_cmp_ne_u32 vcc, 1, v{F_FL}
    s_cbranch_vccnz L_gate{which}
    """)
    a.label(f"L_gated{which}")
FV_W0, FV_W1 = 240, 241
S_FW, S_FWL = 90, 91
SRD_WO = "s[80:83]"
NPRE = 12
def grp_addr(g): return ((g + 2) % 5) * 32768
LG = grp_addr(3)

def f_rot(a, opt, dst):
    a(f"s_lshl_b32 s{dst}, s{S_CT}, 1\ns_and_b32 s{dst}, s{dst}, {opt.fstag}")

WR = 80
def f_regload(a, lo, hi, opt=None, tmp=57):
    for st in range(lo, hi):
        r = WR + 8 * (st - NPRE)
        srd = SRD_WO if st < 16 else "s[84:87]"
        a(f"""
        s_mov_b32 s{tmp}, {(st & 15) << 17}
        buffer_load_dwordx4 {vr(r,4)}, v{FV_W0}, {srd}, s{tmp} offen
        buffer_load_dwordx4 {vr(r+4,4)}, v{FV_W1}, {srd}, s{tmp} offen offset:1024
        """)
        if opt and st == lo + opt.flagat - 1 and not opt.bflag1: f_flag(a, f"s_waitcnt vmcnt({2*opt.flagat})")

def f_setup(a, opt):
    L = V_LANE
    a(f"""
    s_sub_u32 s46, s{S_WAVE}, 4
    v_lshrrev_b32 v{FV_W1}, {2 if opt.f32 else 3}, v{L}
    v_xor_b32 v{FV_W0}, v{FV_W1}, v{L}
    v_and_b32 v{FV_W0}, {4 if opt.f32 else 6}, v{FV_W0}
    v_and_or_b32 v{FV_W0}, v{L}, {3 if opt.f32 else 1}, v{FV_W0}
    v_lshrrev_b32 v{FV_W1}, 3, v{L}
    v_lshlrev_b32 v{FV_W0}, 4, v{FV_W0}
    v_lshl_add_u32 v{FV_W0}, v{FV_W1}, 11, v{FV_W0}
    s_lshl_b32 s47, s{S_CT}, 7
    s_lshl_b32 s48, s46, 15
    s_add_u32 s47, s47, s48
    v_add_u32 v{FV_W0}, s47, v{FV_W0}
    v_add_u32 v{FV_W1}, {16384 - 1024}, v{FV_W0}
    v_mov_b32 v224, 0
    s_lshl_b32 s{S_FWL}, s46, 11
    s_add_u32 s{S_FWL}, s{S_FWL}, 65536
    s_mov_b32 s80, s8
    s_and_b32 s81, s9, 0xffff
    s_mov_b32 s82, 0x200000
    s_mov_b32 s83, 0x20000
    s_mov_b32 s84, s14
    s_and_b32 s85, s15, 0xffff
    s_mov_b32 s86, 0x200000
    s_mov_b32 s87, 0x20000
    """)

def f_prefill(a, opt, ty, lo=0, hi=NPRE):
    if opt.exp & 16 or hi <= lo: return
    a(f"s_mov_b32 s49, {hi - lo}\ns_mov_b32 s{S_FW}, {lo}")
    a.label(f"L_fill{ty}")
    a(f"""
    s_lshl_b32 s57, s{S_FW}, 17
    s_xor_b32 s57, s57, s{S_ROT}
    s_mov_b32 m0, s{S_FWL}
    s_add_u32 s{S_FWL}, s{S_FWL}, 8192
    s_add_u32 s{S_FW}, s{S_FW}, 1
    buffer_load_dwordx4 v{FV_W0}, {SRD_WO}, s57 offen lds
    buffer_load_dwordx4 v{FV_W1}, {SRD_WO}, s57 offen offset:1024 lds
    """)
    if ty == "B" and opt.fill2:
        a(f"""
        s_add_u32 m0, m0, 4096
        s_add_u32 s57, s57, 65536
        buffer_load_dwordx4 v{FV_W0}, {SRD_WO}, s57 offen lds
        buffer_load_dwordx4 v{FV_W1}, {SRD_WO}, s57 offen offset:1024 lds
        """)
    a(f"""
    s_sub_u32 s49, s49, 1
    s_cmp_lg_u32 s49, 0
    s_cbranch_scc1 L_fill{ty}
    """)

def f_producer(a, opt):
    L = V_LANE
    hi = 32 - opt.nd - opt.n13 - opt.n14 - sum(opt.cl)
    assert hi >= NPRE + opt.na15
    rest = 2 * (hi - NPRE - opt.na15)
    a("s_branch L_fprodA")
    a.label("L_fprod")
    a("s_setprio 0\ns_waitcnt vmcnt(4)")
    f_regload(a, NPRE, NPRE + opt.na15)
    a.label("L_fprodA")
    if opt.aprobe:
        f_gate_addr(a, "A", opt)
        a(f"""
        s_cmp_eq_u32 s{S_WAVE}, {opt.gwave}
        s_cbranch_scc0 L_noprobe
        buffer_load_dword v{F_FL}, v{F_FA}, {SRD_WS}, s{S_GA} offen offset:1024 sc1
        L_noprobe:
        """)
    f_regload(a, NPRE + opt.na15, hi)
    a(f"s_cmp_eq_u32 s{S_BR}, 0\ns_cbranch_scc0 L_nowaitfill\ns_waitcnt vmcnt({rest})\nL_nowaitfill:")
    a(f"""
    s_sub_u32 s47, s{S_WAVE}, 4
    s_lshl_b32 s58, s47, 11
    v_lshlrev_b32 v10, 4, v{L}
    v_add_u32 v10, s58, v10
    v_add_u32 v11, 65536, v10
    v_add_u32 v12, 131072, v10
    """)
    stamp(a, 39, opt)
    def gate(which): f_gate(a, which, opt)
    def dma(st):
        a(f"""
        s_add_u32 m0, s58, {grp_addr(st >> 2) + (st & 3) * 8192}
        s_mov_b32 s57, {(st & 15) << 17}
        buffer_load_dwordx4 v{FV_W0}, s[84:87], s57 offen lds
        buffer_load_dwordx4 v{FV_W1}, s[84:87], s57 offen offset:1024 lds
        """)
    late = {0: {}, 4: {3: (28,), 4: (29, 30), 5: (31,)}, 8: {2: (24, 25), 3: (26, 27), 4: (28, 29), 5: (30, 31)}}[opt.nd]
    def put(g):
        if 4 * g >= 32 - opt.nd: return
        ad = grp_addr(g)
        for k in range(8):
            off = (ad & 65535) + (k >> 1) * 8192 + (k & 1) * 1024
            a(f"ds_write_b128 v{10 + (ad >> 16)}, {vr(WR + (g-3)*32 + 4*k, 4)} offset:{off}")
    f_gate(a, "A", opt, rest if opt.aprobe else None)
    a("s_barrier")
    stamp(a, 40, opt); cstamp(a, 36, opt)
    a("s_waitcnt vmcnt(0)")
    for k in range(8):
        if k == 1 and opt.bflag1:
            a(f"s_cmp_lg_u32 s{S_WAVE}, 4\ns_cbranch_scc1 L_noflag1\ns_setprio 3")
            f_flag(a, "")
            a("s_setprio 0")
            a.label("L_noflag1")
        if opt.putsh is None:
            if k == 0: put(3); put(4)
            elif k <= 3: put(4 + k)
        elif 3 <= k + opt.putsh <= 7: put(k + opt.putsh)
        if k == 2:
            a("s_setprio 3"); gate("B"); a("s_setprio 0")
            stamp(a, 41, opt)
        if k == 3:
            a(f"""
            s_lshl_b32 s47, s{S_RT}, 1
            s_add_u32 s47, s47, s{S_RH}
            s_lshl_b32 s47, s47, 2
            s_add_u32 s47, s47, s{S_WAVE}
            s_lshl_b32 s47, s47, 12
            s_add_u32 s47, s47, {WS_G - 4*4096}
            v_and_b32 v2, 31, v{L}
            v_lshlrev_b32 v1, 7, v2
            buffer_load_dword v3, v1, {SRD_WS}, s47 offen sc1
            v_lshlrev_b32 v2, 2, v2
            s_lshl_b32 s47, s{S_WAVE}, 7
            v_add_u32 v2, s47, v2
            """)
        if k == 5:
            a(f"s_waitcnt vmcnt(0)\nds_write_b32 v2, v3 offset:{LG}")
        for st in late.get(k, ()): dma(st)
        if k == 6 and late: a("s_waitcnt vmcnt(0)")
        a("s_waitcnt lgkmcnt(0)\ns_barrier")
        stamp(a, 44 + k, opt)
    stamp(a, 42, opt); cstamp(a, 37, opt)
    prof_dump(a, opt, WS_PROF)
    a("s_endpgm")

def f_consumer(a, opt, part):
    L = V_LANE
    AC, ST, WB, OB = 0, 32, 64, 160
    VO, VW, T = 224, 226, 230
    F32 = opt.f32
    if part: pass
    elif F32:
        a(f"""
        v_and_b32 v{VO}, 15, v{L}
        v_lshlrev_b32 v{VO}, 4, v{VO}
        v_bfe_u32 v{T}, v{L}, 4, 1
        v_lshl_add_u32 v{VO}, v{T}, 10, v{VO}
        v_lshrrev_b32 v{T+1}, 5, v{L}
        v_lshl_add_u32 v{VO}, v{T+1}, 8, v{VO}
        v_lshlrev_b32 v{T}, 5, v{T}
        v_lshl_add_u32 v{T}, v{T+1}, 9, v{T}
        v_bfe_u32 v{T+1}, v{L}, 2, 2
        v_lshl_add_u32 v{T}, v{T+1}, 7, v{T}
        v_bfe_u32 v{T+1}, v{L}, 3, 1
        v_lshl_add_u32 v{T}, v{T+1}, 6, v{T}
        v_and_b32 v{T+1}, 3, v{L}
        v_lshl_add_u32 v{T}, v{T+1}, 3, v{T}
        v_add_u32 v{VW}, {grp_addr(0)}, v{T}
        v_xor_b32 v{VW+1}, 64, v{VW}
        """)
    else:
        a(f"""
        v_lshlrev_b32 v{VO}, 4, v{L}
        v_lshrrev_b32 v{T}, 2, v{L}
        v_lshlrev_b32 v{T}, 7, v{T}
        v_bfe_u32 v{T+1}, v{L}, 3, 2
        v_lshl_add_u32 v{T}, v{T+1}, 5, v{T}
        v_and_b32 v{T+1}, 3, v{L}
        v_lshl_add_u32 v{T}, v{T+1}, 3, v{T}
        v_add_u32 v{VW}, {grp_addr(0)}, v{T}
        v_xor_b32 v{VW+1}, 32, v{VW}
        v_xor_b32 v{VW+2}, 64, v{VW}
        v_xor_b32 v{VW+3}, 96, v{VW}
        """)
    if part == 0: a(f"""
    s_mul_i32 s59, s{S_RT}, {64 * opt.os}
    s_add_u32 s26, s59, {64 * opt.os}
    s_lshl_b32 s47, s{S_RH}, 13
    s_add_u32 s59, s59, s47
    s_lshl_b32 s47, s{S_WAVE}, 11
    s_add_u32 s59, s59, s47
    v_mov_b32 v{T}, 0
    v_mov_b32 v{T+1}, 0
    v_mov_b32 v{T+2}, 0
    v_mov_b32 v{T+3}, 0
    s_mov_b32 s28, s18
    s_and_b32 s29, s19, 0xffff
    s_mov_b32 s30, 0x400000
    s_mov_b32 s53, 32768
    s_mov_b32 s24, s32
    s_mov_b32 s25, s33
    s_movk_i32 s61, 0x108
    """)
    if part == 0: return
    def oload(t, i): return f"buffer_load_dwordx4 {vr(OB + (t % 8)*8 + 4*i, 4)}, v{VO}, s[24:27], s59 offen offset:{i*(512 if F32 else 1024)} sc1"
    def wread(t, f, u):
        if F32: ad, off = VW + (f & 1), (f >> 1) * 1024
        else: ad, off = VW + f, 0
        return dict(txt=f"ds_read_b64_tr_b16 {vr(WB + (t & 1)*16 + f*4 + 2*u, 2)}, v{ad} offset:{(t % 8)*4096 + u*2048 + off}", loads=('w', t & 1, f, u))
    if part == 1:
        assert opt.bflag1
        a("s_barrier")
        stamp(a, 40, opt); diag(a, opt, "F0")
        for t in range(opt.nearly):
            a(oload(t, 0)); a(oload(t, 1))
            a(f"s_add_u32 s59, s59, {opt.os}")
        return
    if opt.f0early != 2: a.label("L_fcons")
    for t in range(opt.nearly, 7):
        a(oload(t, 0)); a(oload(t, 1))
        a(f"s_add_u32 s59, s59, {opt.os}")
    if part == 3: return
    if opt.f0early == 2: a.label("L_fcons")
    for r in (0, 16): a(f"v_mfma_f32_32x32x16_bf16 {vr(AC+r,16)}, {vr(T,4)}, {vr(T,4)}, 0")
    a("s_mov_b32 s50, 0")
    pre = [wread(0, f, u) for f in range(4) for u in range(2)]
    lines, q0 = schedule_waits(pre)
    for l in lines: a(l)
    E = 96
    a(f"""
    v_and_b32 v{E}, {31 if F32 else 15}, v{L}
    v_lshlrev_b32 v{E+1}, 2, v{E}
    s_lshl_b32 s47, s{S_WAVE}, 7
    v_add_u32 v{E+14}, s47, v{E+1}
    v_lshlrev_b32 v{E}, 11, v{E}
    """)
    if not F32: a(f"v_bfe_u32 v{E+1}, v{L}, 4, 1\nv_lshl_add_u32 v{E}, v{E+1}, 5, v{E}")
    a(f"""
    v_lshrrev_b32 v{E+1}, 5, v{L}
    v_lshl_add_u32 v{E}, v{E+1}, 4, v{E}
    s_lshl_b32 s48, s{S_RT}, 1
    s_add_u32 s48, s48, s{S_RH}
    s_lshl_b32 s48, s48, 2
    s_add_u32 s48, s48, s{S_WAVE}
    s_lshl_b32 s48, s48, 16
    s_lshl_b32 s49, s{S_CT}, 7
    s_add_u32 s48, s48, s49
    """)
    TW, TR, TG = E + 10, E + 12, E + 13
    if opt.outt:
        assert not F32
        a(f"""
        v_and_b32 v{TR}, 7, v{L}
        v_bfe_u32 v{TW}, v{E}, 4, 2
        v_xor_b32 v{TW}, v{TW}, v{TR}
        v_lshlrev_b32 v{TW}, 4, v{TW}
        v_and_b32 v{TG}, 15, v{L}
        v_lshl_add_u32 v{TW}, v{TG}, 7, v{TW}
        s_lshl_b32 s47, s{S_WAVE}, 12
        s_add_u32 s47, s47, {grp_addr(4)}
        v_add_u32 v{TW}, s47, v{TW}
        v_xor_b32 v{TW+1}, 64, v{TW}
        v_lshrrev_b32 v{E+1}, 3, v{L}
        v_lshlrev_b32 v{TG}, 4, v{TR}
        v_lshl_add_u32 v{TG}, v{E+1}, 11, v{TG}
        v_xor_b32 v{TR}, v{TR}, v{E+1}
        v_lshlrev_b32 v{TR}, 4, v{TR}
        v_lshl_add_u32 v{TR}, v{E+1}, 7, v{TR}
        v_add_u32 v{TR}, s47, v{TR}
        """)
    align(a, opt.alf)
    a.label("L2_loop")
    body = []
    X = lambda *l: [dict(txt=x) for x in l]
    nva = 2 if F32 else 4
    for t in range(8):
        body.append(dict(txt="s_waitcnt vmcnt(12)"))
        assert opt.frot == 0
        nxt = f"s_add_u32 s59, s59, {opt.os}"
        misc = {2: [dict(txt=f"ds_read_b32 v{E+2+4*k}, v{E+14} offset:{LG + 512 + (0 if F32 else 64*k)}", loads=('g', k)) for k in range(2)],
                4: X("s_add_u32 s50, s50, 1"),
                5: X("s_bitcmp1_b32 s61, s50", f"s_cselect_b32 s52, {-4*32768 & 0xffffffff}, s53"),
                6: X(*[f"v_add_u32 v{VW+k}, s52, v{VW+k}" for k in range(nva)]), 7: X("s_and_b32 s47, s50, 3")}.get(t, [])
        if F32:
            for m in range(4):
                u, cb = m >> 1, m & 1
                c = vr(AC + cb * 16, 16)
                body.append(dict(txt=f"v_mfma_f32_32x32x16_bf16 {c}, {vr(WB + (t&1)*16 + m*4, 4)}, {vr(OB + t*8 + 4*u, 4)}, {c}", reads={('w', t & 1, m | 1, 1)}))
                if t == 7 and m == 0: body.append(dict(txt="s_barrier", drain=True))
                if m < 2: body += [wread(t + 1, 2 * m + k, u_) for k in range(2) for u_ in range(2)]
                if m >= 2: body.append(dict(txt=oload(t + 7, m - 2)))
                if m == 3: body += X(nxt) + misc
        else:
            m = 0
            for nb in range(4):
                for i in ((0, 1) if nb % 2 == 0 else (1, 0)):
                    c = vr(AC + (i * 4 + nb) * 4, 4)
                    body.append(dict(txt=f"v_mfma_f32_16x16x32_bf16 {c}, {vr(WB + (t&1)*16 + nb*4, 4)}, {vr(OB + t*8 + 4*i, 4)}, {c}", reads={('w', t & 1, nb | 1, 1)}))
                    if opt.f1ds:
                        if t == 7:
                            if m < 2: body += X(oload(t + 7, m), f"v_add_u32 v{VW+2*m}, s52, v{VW+2*m}", f"v_add_u32 v{VW+2*m+1}, s52, v{VW+2*m+1}")
                            if m == 2: body += X(nxt) + misc
                            if m == 3: body.append(dict(txt="s_barrier", drain=True))
                            if m >= 3 and m < 7: body += [wread(t + 1, m - 3, 0), wread(t + 1, m - 3, 1)]
                        else:
                            body.append(wread(t + 1, m >> 1, m & 1))
                            if m in opt.f1ds: body.append(dict(txt=oload(t + 7, opt.f1ds.index(m))))
                            if m == 6: body += X(nxt)
                            if m == 2 and t != 6: body += misc
                        m += 1
                        continue
                    if t == 7 and m == 0: body.append(dict(txt="s_barrier", drain=True))
                    if m < 4: body += [wread(t + 1, m, 0), wread(t + 1, m, 1)]
                    if m in (4, 5): body.append(dict(txt=oload(t + 7, m - 4)))
                    if m == 5: body += X(nxt)
                    if m == 6: body += misc[:2]
                    if m == 7: body += misc[2:]
                    m += 1
    lines, q1 = schedule_waits(body, q0)
    assert q1 == q0, (q0, q1)
    k = 0
    while k < len(lines):
        if k + 1 < len(lines) and lines[k].startswith("s_waitcnt vmcnt") and lines[k+1].startswith("s_waitcnt lgkmcnt"):
            a(lines[k] + " " + lines[k+1].split()[1]); k += 2
        else:
            a(lines[k]); k += 1
    a(f"""
    s_cbranch_scc1 L2_loop
    s_cmp_eq_u32 s50, 8
    s_cbranch_scc1 L2_done
    s_nop 4
    """)
    al8(a)
    for r in range(0, 32, 2): a(f"v_pk_mul_f32 {vr(ST+r,2)}, {vr(AC+r,2)}, 1.0 op_sel_hi:[1,0]")
    a("s_branch L2_loop")
    a.label("L2_done")
    a("s_nop 1")
    for i in range(2):
        g = E + 2 + 4 * i
        a(f"v_sub_f32 v{g+2}, 1.0, v{g}")
        a(f"v_sub_f32 v{g}, v{g}, v{g+2}")
        for hf in range(2):
            al8(a)
            b0 = AC + i * 16 + hf * 8; b1 = ST + i * 16 + hf * 8
            for r in range(0, 8, 2):
                a(f"v_pk_mul_f32 {vr(b1+r,2)}, {vr(b1+r,2)}, {vr(g,2)} op_sel_hi:[1,0]")
            for r in range(0, 8, 2):
                a(f"v_pk_fma_f32 {vr(b0+r,2)}, {vr(b0+r,2)}, {vr(g+2,2)}, {vr(b1+r,2)} op_sel_hi:[1,0,1]")
            for k in range(4): a(f"v_cvt_pk_bf16_f32 v{b0+k}, v{b0+2*k}, v{b0+2*k+1}")
            a("s_nop 1")
            sw = "v_permlane32_swap_b32" if F32 else "v_permlane16_swap_b32"
            a(f"{sw} v{b0}, v{b0+2}")
            a(f"{sw} v{b0+1}, v{b0+3}")
            if opt.outt: a(f"ds_write_b128 v{TW+hf}, {vr(b0,4)} offset:{i*2048}")
            else: a(f"buffer_store_dwordx4 {vr(b0,4)}, v{E}, s[28:31], s48 offen offset:{i*64 + hf*32 if F32 else hf*64} {opt.outaux}")
            if opt.outt and i == 1 and hf == 0:
                for k in range(2):
                    a(f"s_waitcnt lgkmcnt({2-k})\nbuffer_store_dwordx4 {vr(WB+4*k,4)}, v{TG}, s[28:31], s48 offen {opt.outaux}\ns_add_u32 s48, s48, {8*2048}")
        if opt.outt:
            for k in range(2): a(f"ds_read_b128 {vr(WB + 8*i + 4*k,4)}, v{TR} offset:{i*2048 + k*1024}")
        elif i == 0 and not F32: a(f"s_add_u32 s48, s48, {16*2048}")
    if opt.outt:
        for k in range(2):
            a(f"s_waitcnt lgkmcnt({1-k})\nbuffer_store_dwordx4 {vr(WB+8+4*k,4)}, v{TG}, s[28:31], s48 offen {opt.outaux}\ns_add_u32 s48, s48, {8*2048}")
    stamp(a, 43, opt)
    diag_end(a, opt)
    prof_dump(a, opt, WS_PROF)

def gen_k1(opt):
    global GAUX, ALT, AL8, OS, WR
    WR = 80 + 8 * opt.nd
    OS = opt.os
    assert not opt.prew
    GAUX = opt.gaux; ALT = opt.alt; AL8 = opt.al8
    a = Asm()
    k1_prologue(a, opt)
    dma_addrs(a)
    k1_srds(a)
    a(f"s_cmp_ge_u32 s{S_WAVE}, 4")
    a("s_cbranch_scc1 L_producer")
    consumer_setup(a, opt)
    a(f"s_cmp_eq_u32 s{S_BR}, 0")
    a("s_cbranch_scc1 L_consA")
    consumer_gemm(a, True, "B", [lines_of(b_epilogue, opt, p_) for p_ in (0, 2, 3)] if opt.kvfirst else lines_of(b_epilogue, opt, 0), opt)
    diag(a, opt, "G")
    b_epilogue(a, opt, 1)
    if not opt.flagfirst: b_consts(a)
    b_attention(a, opt)
    a.label("L_consA")
    consumer_gemm(a, False, "A", lines_of(a_pre, opt), opt)
    diag(a, opt, "G")
    a_consumer(a, opt)
    for part in range(3): f_consumer(a, opt, part)
    a.label("L1_end")
    a("s_endpgm")
    a.label("L_producer")
    producer_gemm(a, opt)
    a(f"s_waitcnt vmcnt({2 * (opt.n13 + opt.n14)})")
    if not opt.gatelate: producer_gate(a, opt)
    if not opt.constearly: b_consts(a)
    a("s_setprio 0")
    a("s_barrier")
    stamp(a, 15, opt)
    a(f"s_cmp_eq_u32 s{S_BR}, 0\ns_cbranch_scc0 L_no15")
    f_regload(a, NPRE + sum(opt.al), NPRE + opt.na15)
    if opt.bhelp == 1: a_help(a)
    a.label("L_no15")
    if opt.gatelate and not opt.agate: producer_gate(a, opt)
    a(f"s_cmp_eq_u32 s{S_BR}, 0")
    a("s_cbranch_scc1 L_prodA")
    if opt.gatelate and opt.agate: producer_gate(a, opt)
    a(f"s_barrier\ns_branch L_battn1")
    a.label("L_prodA")
    f_prefill(a, opt, "A0", 0, opt.afill)
    a_producer(a, opt)
    f_prefill(a, opt, "A", opt.afill + opt.afill2, NPRE)
    f_producer(a, opt)
    assert opt.constearly and opt.na15 >= sum(opt.al) and not opt.wovec
    assert sum(opt.cl) + opt.n13 + opt.n14 <= 10
    a.label("L_wl")
    hi_, lo_ = 32 - opt.nd, NPRE + sum(opt.al)
    for k in range(4):
        if k < 3: a(f"s_cmp_eq_u32 s50, {9 + k}\ns_cbranch_scc0 L_wl{k+1}")
        for half, at in enumerate(opt.c3):
            if at == 9 + k:
                a(f"""
                s_lshr_b32 s47, s{S_J}, 4
                s_lshl_b32 s47, s47, 2
                s_add_u32 s47, s47, s46
                s_cmp_eq_u32 s47, {4 * half + ((at + 1) & 3)}
                s_cbranch_scc0 L_noc3{half}
                s_and_b32 s47, s{S_J}, 15
                s_lshl_b32 s47, s47, 17
                s_and_b32 s48, s{S_XCD}, 1
                s_lshl_b32 s48, s48, 10
                s_add_u32 s47, s47, s48
                v_lshlrev_b32 v39, 11, v0
                buffer_load_dword v35, v39, {"s[84:87]" if half else SRD_WO}, s47 offen offset:384
                L_noc3{half}:
                """)
        f_regload(a, hi_ - opt.cl[k], hi_, tmp=47); hi_ -= opt.cl[k]
        if opt.al[k]:
            a(f"s_cmp_eq_u32 s{S_BR}, 0\ns_cbranch_scc0 L_aback")
            f_regload(a, lo_ - opt.al[k], lo_, tmp=47); lo_ -= opt.al[k]
        a("s_branch L_aback")
        if k < 3: a.label(f"L_wl{k+1}")
    a.label("L_code_end")
    return a.text()

def kd(name, nv):
    return f""".amdhsa_kernel {name}
  .amdhsa_next_free_vgpr {nv}
  .amdhsa_next_free_sgpr 102
  .amdhsa_accum_offset {nv}
  .amdhsa_group_segment_fixed_size 0
  .amdhsa_kernarg_size 80
  .amdhsa_user_sgpr_count 2
  .amdhsa_user_sgpr_kernarg_segment_ptr 1
  .amdhsa_system_sgpr_workgroup_id_x 1
.end_amdhsa_kernel
"""

def gen_all(opt):
    k1 = NAME + "_kernel"
    launch = f"; @launch kernel={k1} grid=(256,1,1) block=(512,1,1) lds=163840" if opt.aslist else "; @launch grid=(256,1,1) block=(512,1,1) lds=163840"
    s = f"""; Hand-scheduled gfx950 kernel, emitted by my own generator script.
; Kernarg: 0 A_x, 8 A_wqkv, 16 A_wo, 24 B_x, 32 B_wqkv, 40 B_wo, 48 gate_w, 56 out, 64 debug, 72 ws
; One persistent launch, 256 workgroups x 8 waves (one per CU). WG = (256-row block, head pair, branch A|B).
;        exp2 runs without a shift; a unit whose row sum leaves [2^-40, 2^40] (or is NaN) is
;  F: out = g*(oa@A_wo) + (1-g)*(ob@B_wo), 128x64 tile per WG
; Hand-offs: write-through (sc1) stores, sc1 loads, flag lines in ws that every WG clears first;
{launch}
.amdgcn_target "amdgcn-amd-amdhsa--gfx950"
.text
.globl {k1}
.p2align 8
.type {k1},@function
{k1}:
{gen_k1(opt)}
.section .rodata,"a"
.p2align 6
{kd(k1, 256)}"""
    return s

if __name__ == "__main__":
    opt = Opt()
    out = f"cdna_kernels/{NAME}.s"
    for arg in sys.argv[1:]:
        k, v = arg.split("=")
        if k == "out": out = v
        else: setattr(opt, k, eval(v))
    open(out, "w").write(gen_all(opt))
    print("wrote", out)
```

```python
import sys, struct
from asm import *

NAME = "gated_mix__linear_attn_block__sliding_block__prompt"
WS_O = 0
WS_KV = 10 << 20
WS_PART = 20 << 20
WS_FLAG = 22 << 20
WS_G = 23 << 20
WS_PROF = 24 << 20
XSLOT = 32768; NXS = 3
WBASE = XSLOT * NXS; WSLOT = 24576
ACC = 0; XA = 192; XB = 208; WF = 224
V_XA0, V_XA1, V_WA0, V_WA1, V_LANE = 248, 249, 250, 251, 252
S_WAVE, S_RB, S_PAIR, S_BR, S_XCD, S_J = 40, 41, 42, 43, 44, 45
SRD_X, SRD_W, SRD_WS, SRD_DBG = "s[24:27]", "s[28:31]", "s[32:35]", "s[36:39]"
S_GA, S_RH, S_RT, S_CT = 76, 77, 78, 79
S_ROT = 75
S_FLAG = 63
SPIN_MAX = 20000
def f2u(x): return struct.unpack("<I", struct.pack("<f", x))[0]
LOG2E = 1.4426950408889634

def acc(sb, j): return ACC + (sb * 6 + j) * 4
def blk(sb): return 8 + sb if sb < 4 else sb - 4

class Opt:
    pf = 4
    prof = False
    force_slow = False
    fstag = 0
    fpre = 4
    gload = 2
    await0 = True
    a3 = 2
    agate = False
    outaux = 'sc1'
    outt = True
    wfirst = False
    w64 = False
    fprio = 3
    flagat = 4
    tmode = 3
    tpos = 2
    exp = 0
    afill = 0
    wovec = 0
    n13 = 4
    n14 = 6
    fmap = 1
    kvfirst = 0
    flagfirst = False
    afill2 = 8
    putsh = None
    nearly = 7
    cl = (0, 0, 0, 0)
    fpair = False
    inj = ''
    astag = 0
    dist0 = 1
    x2wait = 0
    nd = 4
    skip0 = True
    wob = 0
    bhelp = 0
    earlyb = None
    atom = 0
    al8 = True
    f1ds = None
    alg = None
    alt = None
    alf = None
    midinit = -6
    woa = False
    stwin = 0
    stwin0 = 0
    stmix = False
    stalt = False
    c3 = (11, 9)
    al = (0, 0, 3, 3)
    kvs = 65536 + 1280
    os = 16384
    ord0 = 0
    fill2 = True
    f0early = False
    gwave = 6
    aprobe = False
    f32 = False
    bflag1 = True
    frot = 0
    t0touch = 0
    na15 = 6
    gatelate = True
    constearly = True
    gaux = ''
    diag = ''
    wsoff = 0
    diag0 = ''
    diagm = 1
    bwait = False
    oprio = 0
    stlate = 4
    kvst = 'sc1'
    kvld = 'sc1'
    prew = 0
    prew_at = 4
    tlb = 0
    xl2 = False
    na = 8
    fdepth = 8
    otouch = False
    wo_from = 2
    early = 2
    backoff = 0
    codepf = 6
    bprio = 1
    tailprio = 0
    aslist = False

def stamp(a, idx, opt):
    if not opt.prof: return
    a("s_memrealtime s[94:95]")
    a("s_waitcnt lgkmcnt(0)")
    a(f"v_writelane_b32 v255, s94, {idx}")

def cstamp(a, idx, opt):
    if not opt.prof: return
    a("s_memtime s[94:95]")
    a("s_waitcnt lgkmcnt(0)")
    a(f"v_writelane_b32 v255, s94, {idx}")

def inj(a, opt, name):
    if opt.inj == name: a("s_sleep 8")

def al8(a):
    if AL8: a(".p2align 3")

def align(a, spec):
    if spec:
        a(f".p2align {spec[0]}")
        for _ in range(spec[1]): a("s_nop 0")

def diag(a, opt, name):
    if opt.diag == name: a("s_memrealtime s[98:99]\ns_waitcnt lgkmcnt(0)")
    if opt.diag0 == name: a("s_memrealtime s[96:97]\ns_waitcnt lgkmcnt(0)\ns_mov_b32 s98, s96")
def diag_end(a, opt):
    if not opt.diag: return
    a("""
    s_waitcnt vmcnt(0)
    s_memrealtime s[100:101]
    s_waitcnt lgkmcnt(0)
    """)
    if opt.diag == "lite":
        a(f"""
        s_lshl_b32 s94, s2, 2
        s_add_u32 s94, s94, s{S_WAVE}
        s_lshl_b32 s94, s94, 3
        s_add_u32 s94, s94, {WS_PROF}
        v_mov_b32 v0, s96
        v_mov_b32 v1, s100
        s_mov_b64 exec, 1
        buffer_store_dwordx2 v[0:1], off, {SRD_WS}, s94
        """)
        return
    if opt.diag == "end": a("s_mov_b32 s98, s100")
    if opt.diag == "zero": a("s_mov_b32 s98, s96")
    a("""
    s_sub_u32 s98, s98, s96
    """ + f"s_mul_i32 s98, s98, {opt.diagm}" + """
    s_min_u32 s98, s98, 20000
    L_diag:
    s_memrealtime s[96:97]
    s_waitcnt lgkmcnt(0)
    s_sub_u32 s96, s96, s100
    s_cmp_lt_u32 s96, s98
    s_cbranch_scc1 L_diag
    """)

def prof_dump(a, opt, base):
    if not opt.prof: return
    a(f"""
    s_lshl_b32 s94, s2, 3
    s_add_u32 s94, s94, s{S_WAVE}
    s_lshl_b32 s94, s94, 8
    s_add_u32 s94, s94, {base}
    v_mbcnt_lo_u32_b32 v254, -1, 0
    v_mbcnt_hi_u32_b32 v254, -1, v254
    v_lshlrev_b32 v254, 2, v254
    buffer_store_dword v255, v254, {SRD_WS}, s94 offen
    """)

def k1_prologue(a, opt):
    a(f"""
    s_cmp_ge_u32 s2, 256
    s_cbranch_scc1 L1_end
    {"s_memrealtime s[96:97]" if opt.diag else ""}
    s_load_dwordx16 s[4:19], s[0:1], 0
    s_load_dwordx4 s[20:23], s[0:1], 64
    v_lshrrev_b32 v1, 6, v0
    """)
    if opt.codepf & 4:
        a(f"""
        s_getpc_b64 s[68:69]
        L_pc0:
        s_and_b32 s46, s2, 0xf8
        v_add_lshl_u32 v2, v1, s46, 7
        v_min_u32 v2, L_code_end-L_pc0-4, v2
        global_load_dword v254, v2, s[68:69]
        """)
    a(f"""
    s_and_b32 s{S_XCD}, s2, 7
    s_lshr_b32 s{S_J}, s2, 3
    v_readfirstlane_b32 s{S_WAVE}, v1
    s_lshr_b32 s{S_RB}, s{S_J}, 2
    s_and_b32 s{S_BR}, s{S_J}, 1
    s_bfe_u32 s{S_PAIR}, s{S_J}, 0x10001
    s_lshl_b32 s46, s{S_XCD}, 1
    s_add_u32 s{S_PAIR}, s{S_PAIR}, s46
    v_and_b32 v0, 63, v0
    s_mov_b32 s26, 0x400000
    s_mov_b32 s27, 0x20000
    s_mov_b32 s30, 0x600000
    s_mov_b32 s31, s27
    """)

def k1_srds(a):
    a(f"""
    s_waitcnt lgkmcnt(0)
    s_mov_b32 s24, s4
    s_and_b32 s25, s5, 0xffff
    s_cmp_eq_u32 s{S_BR}, 0
    s_cselect_b32 s28, s6, s12
    s_cselect_b32 s29, s7, s13
    s_and_b32 s29, s29, 0xffff
    """)

def k1_ids(a, opt):
    a(f"""
    s_lshl_b32 s49, s{S_BR}, 4
    s_add_u32 s49, s49, s{S_PAIR}
    s_lshl_b32 s49, s49, 3
    s_add_u32 s49, s49, s{S_RB}
    s_lshl_b32 s49, s49, 11
    s_add_u32 s{S_FLAG}, s49, {WS_FLAG}
    {f"s_and_b32 s{S_CT}, s{S_J}, 7" if opt.fmap else f"s_bfe_u32 s{S_CT}, s{S_J}, 0x30001"}
    s_xor_b32 s{S_CT}, s{S_CT}, {1 if opt.fmap == 1 else 0}
    {f"s_bfe_u32 s{S_RH}, s{S_J}, 0x10003" if opt.fmap else f"s_mov_b32 s{S_RH}, s{S_BR}"}
    s_and_b32 s49, s{S_XCD}, 1
    s_lshl_b32 s49, s49, 3
    s_add_u32 s{S_CT}, s{S_CT}, s49
    s_lshr_b32 s{S_ROT}, s{S_J}, 1
    s_and_b32 s{S_ROT}, s{S_ROT}, {opt.frot}
    s_lshl_b32 s{S_ROT}, s{S_ROT}, 19
    s_lshr_b32 s{S_RT}, s{S_J}, 4
    s_and_b32 s49, s{S_XCD}, 6
    s_add_u32 s{S_RT}, s{S_RT}, s49
    s_add_u32 s32, s22, {opt.wsoff << 20}
    s_addc_u32 s33, s23, 0
    s_and_b32 s33, s33, 0xffff
    s_mov_b32 s34, {26 << 20}
    s_mov_b32 s35, 0x20000
    s_mov_b32 s36, s20
    s_and_b32 s37, s21, 0xffff
    s_mov_b32 s38, 256
    s_mov_b32 s39, 0x20000
    """)

def consumer_substep(kk, wslot, btype, nxt_kk, nxt_wslot, barrier, extra=None):
    items = []
    def xread(grp, i, kk_):
        reg = (XA if grp == 0 else XB) + 4 * i
        sb = grp * 4 + i
        return dict(txt=f"ds_read_b128 {vr(reg,4)}, v{V_XA0 + kk_} offset:{blk(sb)*2048}", loads=('x', grp, i))
    def wread(j, t, kk_, ws):
        reg = WF + 4 * j + 2 * t
        off = ws * WSLOT + (j >> 1) * 8192 + kk_ * 4096 + t * 512
        return dict(txt=f"ds_read_b64_tr_b16 {vr(reg,2)}, v{V_WA0 + (j & 1)} offset:{off}", loads=('w', j, t))
    after = {m: [] for m in range(48)}
    after[0] += [wread(5, 0, kk, wslot)]
    after[1] += [wread(5, 1, kk, wslot)]
    for i in range(4): after[2 + 2 * i] += [xread(1, i, kk)]
    m0 = 24
    if barrier:
        after[24] += [dict(txt="s_barrier", drain=True)]
        m0 = 25
    xpos = [m0, m0 + 1, 29, 30]
    for i in range(4): after[xpos[i]] += [xread(0, i, nxt_kk)]
    for j in range(5):
        after[27 + 4 * j] += [wread(j, 0, nxt_kk, nxt_wslot)]
        after[28 + 4 * j] += [wread(j, 1, nxt_kk, nxt_wslot)]
    for m, txt in (extra or []):
        after[m].append(dict(txt=txt))
    m = 0
    for grp in range(2):
        for j in range(6):
            order = range(4) if j % 2 == 0 else [3, 2, 1, 0]
            for i in order:
                sb = grp * 4 + i
                xr = vr((XA if grp == 0 else XB) + 4 * i, 4); wr = vr(WF + 4 * j, 4)
                seg = j >> 1
                transposed = (seg == 0) or (seg == 1 and btype)
                A, B = (wr, xr) if transposed else (xr, wr)
                c = vr(acc(sb, j), 4)
                items.append(dict(txt=f"v_mfma_f32_16x16x32_bf16 {c}, {A}, {B}, {c}", reads={('x', grp, i), ('w', j, 0), ('w', j, 1)}))
                items += after[m]
                m += 1
    return items

def consumer_gemm(a, btype, tag, filler, opt):
    pre = [dict(txt=f"ds_read_b128 {vr(XA+4*i,4)}, v{V_XA0} offset:{blk(i)*2048}", loads=('x', 0, i)) for i in range(4)]
    def wr(j, t): return dict(txt=f"ds_read_b64_tr_b16 {vr(WF+4*j+2*t,2)}, v{V_WA0 + (j&1)} offset:{(j>>1)*8192 + t*512}", loads=('w', j, t))
    pre = [pre[0], pre[1], wr(0, 0), wr(0, 1), pre[2], pre[3]] + [wr(j, t) for j in range(1, 5) for t in range(2)]
    lines, q0 = schedule_waits(pre)
    a("s_mov_b32 s50, 8")
    a("s_mov_b32 s51, 0")
    for l in lines: a(l)
    body = []
    kvfirst = btype and opt.kvfirst
    for st in range(2):
        ex0 = [(10, "s_add_u32 s51, s51, 1"), (11, "s_cmp_eq_u32 s51, 3"), (12, f"s_cselect_b32 s52, {-2*XSLOT & 0xffffffff}, s53"), (13, "s_cselect_b32 s51, 0, s51"),
               (16, f"v_add_u32 v{V_XA0}, s52, v{V_XA0}")]
        ex1 = [(16, f"v_add_u32 v{V_XA1}, s52, v{V_XA1}")]
        if st == (0 if kvfirst else 1): ex1 += [(18, "s_sub_u32 s50, s50, 1"), (21, "s_cmp_lg_u32 s50, 0")]
        body += consumer_substep(0, st, btype, 1, st, False, ex0)
        body += consumer_substep(1, st, btype, 0, 1 - st, True, ex1)
    lines, q1 = schedule_waits(body, q0)
    assert q1 == q0, (q0, q1)
    cut = (min if kvfirst else max)(i for i, l in enumerate(lines) if l == "s_barrier") + 2
    assert lines[cut - 1].startswith("v_mfma")
    if opt.exp & 128: lines = [l if not l.startswith("ds_read_b128") else "s_nop 0" for l in lines]
    if opt.exp & 256: lines = [l if not l.startswith("ds_read_b64") else "s_nop 0" for l in lines]
    a(f"s_branch L_gemm_e{tag}")
    align(a, opt.alg)
    a.label(f"L_gemm_{tag}")
    for l in lines[cut:]: a(l)
    a.label(f"L_gemm_e{tag}")
    for l in lines[:cut]: a(l)
    a(f"s_cbranch_scc1 L_gemm_{tag}")
    if kvfirst: return kv_first_tail(a, [l for l in lines[cut:] if l.startswith("v_mfma")][:22], filler)
    tail = [l for l in lines[cut:] if l.startswith("v_mfma")]
    tail = tail[6:] + tail[:6]
    per = -(-len(filler) // len(tail))
    for m, l in enumerate(tail):
        a(l)
        for x in filler[m * per:(m + 1) * per]: a(x)

def kv_first_tail(a, t0, filler):
    def xr(grp, i, kk): return dict(txt=f"ds_read_b128 {vr((XA if grp == 0 else XB) + 4*i, 4)}, v{V_XA0 + kk} offset:{blk(grp*4+i)*2048}", loads=('x', grp, i))
    def wr(j, kk, slot): return [dict(txt=f"ds_read_b64_tr_b16 {vr(WF + 4*slot + 2*t, 2)}, v{V_WA0 + (j & 1)} offset:{WSLOT + (j >> 1)*8192 + kk*4096 + t*512}", loads=('w', slot, t)) for t in range(2)]
    seq = [(l, set()) for l in t0]
    for grp, js, off in ((0, (2, 3, 4, 5), 0), (1, (2, 3, 4, 5), 0), (0, (2, 3, 4, 5), 0), (1, (2, 3, 4, 5), 0), (0, (0, 1), 0), (1, (0, 1), 0), (0, (0, 1), 2), (1, (0, 1), 2)):
        for j in js:
            for i in (range(4) if j % 2 == 0 else (3, 2, 1, 0)):
                x_, w_ = vr((XA if grp == 0 else XB) + 4*i, 4), vr(WF + 4*(j + off), 4)
                A, B = (w_, x_) if j < 4 else (x_, w_)
                c = vr(acc(grp*4 + i, j), 4)
                seq.append((f"v_mfma_f32_16x16x32_bf16 {c}, {A}, {B}, {c}", {('x', grp, i), ('w', j + off, 0), ('w', j + off, 1)}))
    after = {m: [] for m in range(len(seq))}
    P = [22, 38, 54, 70, 86, 94, 102, 110]
    for i in range(4): after[i] += [xr(0, i, 0)]
    after[4] += wr(0, 1, 0); after[6] += wr(1, 1, 1)
    for k, j in enumerate((2, 3, 4, 5)):
        after[9 + 4*k] += wr(j, 0, j)
        after[P[1] + 3 + 4*k] += wr(j, 1, j)
    for i in range(4):
        after[P[0] + 1 + 2*i] += [xr(1, i, 0)]
        after[P[1] + (0, 1, 5, 6)[i]] += [xr(0, i, 1)]
        after[P[2] + 1 + 2*i] += [xr(1, i, 1)]
        after[P[4] + 4 + i] += [xr(0, 3 - i, 0)]
        after[P[5] + 4 + i] += [xr(1, 3 - i, 0)]
    after[P[3] + 3] += wr(0, 0, 2); after[P[3] + 7] += wr(1, 0, 3)
    after[P[7]] += [dict(txt="s_barrier", reads={('x', 1, i) for i in range(4)})]
    def spread(lst, lo, hi):
        per = -(-len(lst) // (hi - lo))
        for m in range(lo, hi): after[m] += [dict(txt=x, loads=('st',) if x.startswith("ds_") else None) for x in lst[(m - lo)*per:(m - lo + 1)*per]]
    spread(filler[0], P[1], P[3]); spread(filler[1], P[3], P[4] + 8); spread(filler[2], P[4] + 8, len(seq))
    items = []
    for m, (txt, rd) in enumerate(seq):
        items.append(dict(txt=txt, reads=rd)); items += after[m]
    lines, q = schedule_waits(items, [])
    assert all(t == ('st',) for t in q)
    for l in lines: a(l)

def lines_of(f, *args):
    t = Asm(); f(t, *args)
    return [l.strip() for l in t.L if l.strip()]

def consumer_setup(a, opt):
    if opt.prof: a("v_mov_b32 v255, 0")
    stamp(a, 22, opt); diag(a, opt, "issue")
    if opt.astag:
        a(f"s_cmp_eq_u32 s{S_BR}, 0\ns_cbranch_scc0 L_nop0c\ns_barrier\nL_nop0c:")
    if opt.t0touch:
        a(f"""
        s_cmp_lt_u32 s{S_WAVE}, 2
        s_cbranch_scc0 L_t0w
        s_lshl_b32 s47, s{S_J}, 17
        s_lshl_b32 s48, s{S_WAVE}, 7
        s_add_u32 s47, s47, s48
        v_lshlrev_b32 v5, 11, v0
        {"s_cmp_eq_u32 s40, 0" if opt.t0touch == 2 else ""}
        {"s_cbranch_scc1 L_t0d" if opt.t0touch == 2 else ""}
        buffer_load_dword v{XB}, v5, {SRD_X}, s47 offen
        s_branch L_t0d
        L_t0w:
        s_and_b32 s48, s{S_WAVE}, 1
        {"s_cbranch_scc0 L_t0d" if opt.t0touch == 2 else ""}
        s_lshl_b32 s48, s48, 3
        s_add_u32 s48, s48, s{S_RB}
        s_mul_i32 s48, s48, {8*6144}
        s_lshl_b32 s47, s{S_PAIR}, 7
        s_add_u32 s47, s47, s48
        v_min_u32 v5, 23, v0
        v_lshlrev_b32 v5, 11, v5
        buffer_load_dword v{XB}, v5, {SRD_W}, s47 offen
        L_t0d:
        """)
    def accinit(sbs):
        a(f"s_cmp_eq_u32 s{S_BR}, 0\ns_cselect_b32 s46, 1.0, 0")
        al8(a)
        for sb in sbs:
            for j in range(6):
                for r in range(0, 4, 2):
                    a(f"v_pk_mul_f32 {vr(acc(sb,j)+r,2)}, s[46:47], {'1.0' if j < 4 else '0'} op_sel_hi:[0,0]")
    if opt.ord0 == 0:
        if not opt.midinit: issue_w(a, "0", "s55")
        if opt.midinit:
            xl = lines_of(issue_w, "0", "s55") + lines_of(issue_x, "0", "s54")
            k = [i for i, l in enumerate(xl) if l.startswith("buffer")][opt.midinit + 5 if opt.midinit > 0 else -opt.midinit - 1] + 1
            for l in xl[:k]: a(l)
            accinit(range(1, 8))
            for l in xl[k:]: a(l)
        else: issue_x(a, "0", "s54")
    elif opt.ord0 == 1: issue_x(a, "0", "s54"); issue_w(a, "0", "s55")
    else:
        issue_w(a, "0", "s55", (0,)); issue_x(a, "0", "s54", (0,)); issue_w(a, "0", "s55", (1,)); issue_x(a, "0", "s54", (1,)); issue_w(a, "0", "s55", (2,))
    a(f"""
    s_barrier
    v_and_b32 v1, 15, v0
    v_lshrrev_b32 v2, 4, v0
    v_bfe_u32 v3, v0, 1, 3
    v_xor_b32 v3, v2, v3
    v_lshlrev_b32 v3, 4, v3
    v_lshl_add_u32 v3, v1, 7, v3
    s_lshr_b32 s46, s{S_WAVE}, 1
    s_lshl_b32 s46, s46, 13
    v_add_u32 v{V_XA0}, s46, v3
    v_xor_b32 v{V_XA1}, 64, v{V_XA0}
    v_bfe_u32 v3, v0, 2, 2
    v_lshl_add_u32 v4, v2, 3, v3
    v_lshlrev_b32 v4, 7, v4
    v_bfe_u32 v5, v0, 3, 2
    s_and_b32 s46, s{S_WAVE}, 1
    s_lshl_b32 s46, s46, 1
    v_xor_b32 v5, s46, v5
    v_lshl_add_u32 v4, v5, 5, v4
    v_and_b32 v5, 3, v0
    v_lshl_add_u32 v4, v5, 3, v4
    v_add_u32 v{V_WA0}, {WBASE}, v4
    v_xor_b32 v{V_WA1}, 32, v{V_WA0}
    s_mov_b32 s53, {XSLOT}
    s_mov_b32 s80, s8
    s_and_b32 s81, s9, 0xffff
    s_mov_b32 s82, 0x200000
    s_mov_b32 s83, 0x20000
    s_mov_b32 s84, s14
    s_and_b32 s85, s15, 0xffff
    s_mov_b32 s86, 0x200000
    s_mov_b32 s87, 0x20000
    """)
    k1_ids(a, opt)
    accinit((0,) if opt.midinit else range(8))
    a(f"""
    v_mov_b32 v{XA}, {LCNT}
    v_mov_b32 v{XA+1}, 1
    s_mov_b64 exec, 1
    s_waitcnt vmcnt(0)
    ds_add_u32 v{XA}, v{XA+1}
    s_mov_b64 exec, -1
    """)
    a.label("L_st0")
    a(f"""
    ds_read_b32 v{XA+2}, v{XA}
    s_waitcnt lgkmcnt(0)
    v_readfirstlane_b32 s46, v{XA+2}
    s_cmp_lt_u32 s46, 4
    s_cbranch_scc1 L_st0
    """)
    stamp(a, 20, opt); diag(a, opt, "st0")

LCNT = 147456
def dma_addrs(a):
    a(f"""
    s_and_b32 s46, s{S_WAVE}, 3
    v_lshrrev_b32 v1, 3, v0
    v_and_b32 v2, 7, v0
    v_and_b32 v3, 2, v1
    v_xor_b32 v3, v2, v3
    v_lshlrev_b32 v3, 4, v3
    v_mul_u32_u24 v4, 6144, v1
    s_lshl_b32 s47, s{S_PAIR}, 7
    s_mul_i32 s48, s46, {2*8*6144}
    s_add_u32 s47, s47, s48
    v_add3_u32 v20, v4, v3, s47
    v_xor_b32 v21, 64, v20
    v_add_u32 v21, {8*6144 - 1024}, v21
    v_lshrrev_b32 v3, 1, v1
    v_xor_b32 v3, v2, v3
    v_lshlrev_b32 v3, 4, v3
    s_lshl_b32 s47, s{S_RB}, 8
    s_lshl_b32 s48, s46, 6
    s_add_u32 s47, s47, s48
    v_add_u32 v4, s47, v1
    v_lshl_add_u32 v10, v4, 11, v3
    v_xor_b32 v11, 64, v10
    """)
    for i in (3, 2, 1):
        a(f"v_add_u32 v{10+i}, {i*16384 - i*1024}, v{10 + (i & 1)}")
    a(f"""
    s_lshl_b32 s54, s46, 13
    s_lshl_b32 s55, s46, 11
    s_add_u32 s55, s55, {WBASE}
    v_mov_b32 v{V_LANE}, v0
    """)
def issue_w(a, step_s, slot_off, segs=(0, 1, 2)):
    for seg in segs:
        a(f"s_add_u32 m0, {slot_off}, {seg*8192}")
        a(f"s_add_u32 s48, {step_s}, {seg*2048}")
        a(f"buffer_load_dwordx4 v20, {SRD_W}, s48 offen {GAUX} lds")
        a(f"buffer_load_dwordx4 v21, {SRD_W}, s48 offen offset:1024 {GAUX} lds")
def issue_x(a, step_s, slot_off, groups=(0, 1)):
    for g in groups:
        a(f"s_add_u32 m0, {slot_off}, {g*4096}")
        a(f"s_add_u32 s48, {step_s}, {g*65536}")
        for i in range(4):
            a(f"buffer_load_dwordx4 v{10+i}, {SRD_X}, s48 offen offset:{i*1024} {GAUX} lds")

def producer_gemm(a, opt):
    assert opt.tmode >= 1
    a(f"""
    v_mov_b32 v7, 0x7f000000
    s_add_u32 s62, s46, {2 if opt.t0touch else opt.dist0}
    """)
    if opt.tmode >= 1:
        a(f"""
        v_and_b32 v4, 31, v0
        s_mul_i32 s47, s{S_RB}, {8*6144}
        s_and_b32 s48, s{S_PAIR}, 14
        s_lshl_b32 s48, s48, 7
        s_add_u32 s47, s47, s48
        v_lshl_add_u32 v5, v4, 11, s47
        v_lshrrev_b32 v6, 5, v0
        v_lshl_add_u32 v5, v6, 7, v5
        s_add_u32 s48, s46, s{S_PAIR}
        {f"s_or_b32 s48, s48, s{S_BR}" if opt.tmode == 3 else ""}
        s_bitcmp0_b32 {"s48" if opt.tmode >= 2 else f"s{S_PAIR}"}, 0
        {f"s_and_b32 s48, s{S_J}, 3" if opt.tmode == 4 else ""}
        {f"s_cmp_eq_u32 s48, s46" if opt.tmode == 4 else ""}
        s_cselect_b32 s93, -1, 0
        s_and_b32 vcc_lo, s93, 0xffffff
        s_mov_b32 vcc_hi, vcc_lo
        v_cndmask_b32 v30, v7, v5, vcc
        v_and_b32 v4, 7, v0
        v_bfe_u32 v5, v0, 3, {2 if opt.tmode >= 3 else 1}
        v_lshl_add_u32 v4, v5, {6 if opt.tmode >= 3 else 7}, v4
        s_and_b32 s48, s2, {0xe7 if opt.tmode >= 3 else 0xef}
        s_lshl_b32 s48, s48, 3
        v_add_u32 v4, s48, v4
        v_lshlrev_b32 v4, 11, v4
        s_and_b32 vcc_lo, s93, {-1 if opt.tmode >= 3 else 0xffff}
        s_mov_b32 vcc_hi, 0
        v_cndmask_b32 v31, v7, v4, vcc
        """)
    NT = 2
    if opt.tmode >= 3:
        assert not opt.wovec
        NT = 3
    def srd2():
        if NT == 3: a(f"""
        s_cmp_eq_u32 s{S_BR}, 0
        s_cselect_b32 s64, s12, s6
        s_cselect_b32 s65, s13, s7
        s_and_b32 s65, s65, 0xffff
        s_mov_b32 s66, 0x600000
        s_mov_b32 s67, 0x20000
        """)
    srd2()
    def touch():
        a(f"""
        s_mul_i32 s60, s62, {64*6144}
        s_lshl_b32 s61, s62, 7
        buffer_load_dword v32, v30, {SRD_W}, s60 offen
        buffer_load_dword v33, v31, {SRD_X}, s61 offen
        {"buffer_load_dword v32, v30, s[64:67], s60 offen" if NT == 3 else ""}
        s_add_u32 s62, s62, 4
        """)
    a(f"s_cmp_lt_u32 s46, {opt.early}\ns_cbranch_scc0 L_noearly")
    if opt.skip0: a("s_add_u32 s62, s62, 4")
    else: touch()
    a.label("L_noearly")
    if opt.astag:
        a(f"s_cmp_eq_u32 s{S_BR}, 0\ns_cbranch_scc0 L_nop0p")
        if opt.astag == 2: a("s_waitcnt vmcnt(0)")
        a("s_barrier\nL_nop0p:")
    if opt.earlyb:
        lo, hi, wx = opt.earlyb
        a(f"""
        s_sub_u32 s60, s46, {lo}
        s_cmp_lt_u32 s60, {hi - lo}
        s_cbranch_scc0 L_noearlyb
        s_mul_i32 s60, s62, {64*6144}
        s_lshl_b32 s61, s62, 7
        {"buffer_load_dword v32, v30, s[64:67], s60 offen" if wx & 1 else ""}
        {f"buffer_load_dword v33, v31, {SRD_X}, s61 offen" if wx & 2 else ""}
        L_noearlyb:
        """)
    a(f"""
    s_getpc_b64 s[68:69]
    L_pc:
    s_sub_u32 s68, s68, L_pc-{NAME}_kernel
    s_subb_u32 s69, s69, 0
    v_and_b32 v37, 7, v0
    s_lshl_b32 s48, s{S_J}, 3
    v_add_u32 v37, s48, v37
    v_lshlrev_b32 v37, 7, v37
    v_min_u32 v37, L_code_end-{NAME}_kernel-4, v37
    """)
    if opt.codepf & 1:
        a(f"s_cmp_eq_u32 s46, 3\ns_cbranch_scc0 L_nocode\nglobal_load_dword v38, v37, s[68:69]")
        a.label("L_nocode")
    a(f"""
    v_mov_b32 v48, 0
    v_mov_b32 v2, {LCNT}
    ds_write_b32 v2, v48
    v_lshlrev_b32 v44, 4, v0
    v_mov_b32 v49, 0
    v_mov_b32 v50, 0
    v_mov_b32 v51, 0
    s_lshl_b32 s101, s{S_PAIR}, 1
    s_add_u32 s101, s101, s{S_BR}
    s_lshl_b32 s101, s101, 3
    v_mov_b32 v36, 1
    s_and_b32 s92, s{S_RB}, {max(opt.atom - 1, 0)}
    s_add_u32 s92, s92, 1
    s_cmp_eq_u32 s46, 1
    s_cselect_b32 s92, s92, 99
    s_mov_b32 s57, {64*6144}
    s_add_u32 s58, s55, {WSLOT}
    """)
    k1_ids(a, opt)
    if opt.constearly:
        assert not opt.wovec
        b_consts(a); a(f"s_and_b32 s46, s{S_WAVE}, 3"); srd2()
    a(f"""
    s_cmp_lt_u32 s46, 2
    s_cselect_b32 s96, s8, s14
    s_cselect_b32 s97, s9, s15
    s_and_b32 s97, s97, 0xffff
    s_mov_b32 s98, 0x200000
    s_mov_b32 s99, 0x20000
    s_and_b32 s100, s2, {0xe7 if opt.tmode >= 3 or opt.woa else 0xef if opt.tmode else 0xff}
    s_lshl_b32 s100, s100, 1
    s_and_b32 s48, s46, 1
    s_add_u32 s100, s100, s48
    s_lshl_b32 s100, s100, 12
    v_lshlrev_b32 v34, 7, v0
    v_cmp_gt_u32 vcc, 16, v0
    s_nop 1
    v_cndmask_b32 v34, v7, v34, vcc
    """)
    if opt.tmode >= 1:
        a(f"""
        v_and_b32 v4, 15, v0
        v_lshlrev_b32 v4, 7, v4
        v_lshrrev_b32 v5, 4, v0
        v_lshl_add_u32 v4, v5, {16 if opt.tmode >= 3 or opt.woa else 17}, v4
        s_cmp_eq_u32 s{S_BR}, {1 if opt.woa else 2}
        s_cselect_b32 vcc_lo, 0, s93
        """)
        if opt.wob: a(f"""
        s_add_u32 s48, s46, s{S_PAIR}
        s_add_u32 s48, s48, {opt.wob & 1}
        s_and_b32 s48, s48, 1
        s_xor_b32 s49, s{S_BR}, {0 if opt.wob < 3 else 1}
        s_and_b32 s48, s48, s49
        s_cselect_b32 vcc_lo, -1, 0
        """)
        a(f"""
        s_mov_b32 vcc_hi, {"vcc_lo" if opt.tmode >= 3 or opt.woa else 0}
        v_cndmask_b32 v34, v7, v4, vcc
        """)
    if opt.wovec:
        a(f"""
        s_mov_b32 s68, s14
        s_and_b32 s69, s15, 0xffff
        s_mov_b32 s70, 0x200000
        s_mov_b32 s71, 0x20000
        s_sub_u32 s88, 3, s46
        s_lshl_b32 s88, s88, 5
        s_add_u32 s88, s88, s{S_J}
        s_lshl_b32 s88, s88, 14
        s_and_b32 s48, s{S_XCD}, 1
        s_lshl_b32 s48, s48, 10
        s_add_u32 s88, s88, s48
        v_lshrrev_b32 v39, 3, v0
        v_lshlrev_b32 v39, 4, v39
        v_and_or_b32 v39, v0, 7, v39
        v_lshlrev_b32 v39, 7, v39
        s_lshr_b32 s89, s46, 1
        s_add_u32 s89, s89, 9
        """)
    if opt.prew:
        a(f"""
        s_lshl_b32 s73, s{S_RB}, 1
        s_add_u32 s73, s73, s{S_BR}
        s_lshl_b32 s73, s73, 4
        s_add_u32 s73, s73, s{S_PAIR}
        s_lshl_b32 s73, s73, 2
        s_add_u32 s73, s73, s46
        s_lshl_b32 s73, s73, 13
        s_lshl_b32 s74, s{S_PAIR}, 3
        s_add_u32 s74, s74, s{S_RB}
        s_mul_i32 s74, s74, {opt.kvs}
        s_lshl_b32 s48, s46, 14
        s_add_u32 s74, s74, s48
        s_add_u32 s74, s74, {WS_KV}
        s_cmp_eq_u32 s{S_BR}, 0
        s_cselect_b32 s74, 0x10000000, s74
        v_lshlrev_b32 v8, {7 if opt.prew in (1, 3) else 4}, v0
        """)
    f_setup(a, opt)
    a(f"""
    s_lshl_b32 s47, s46, 10
    s_add_u32 s47, s47, s{S_FLAG}
    s_cmp_lt_u32 s46, 2
    s_cselect_b32 s47, s47, 0x10000000
    """)
    a(f"""
    s_waitcnt lgkmcnt(0)
    s_barrier
    s_setprio 3
    """)
    if opt.prof: a("v_mov_b32 v255, 0")
    stamp(a, 21, opt)
    a(f"buffer_store_dwordx4 v[48:51], v44, {SRD_WS}, s47 offen sc1")
    a(f"""
    s_cmp_eq_u32 s{S_BR}, 0
    s_cbranch_scc0 L_nosent
    s_lshl_b32 s47, s{S_PAIR}, 3
    s_add_u32 s47, s47, s{S_RB}
    s_lshl_b32 s47, s47, 2
    s_add_u32 s47, s47, s46
    s_lshl_b32 s47, s47, 12
    s_add_u32 s47, s47, {WS_PART}
    v_mov_b32 v40, -1
    v_mov_b32 v41, -1
    v_mov_b32 v42, -1
    v_mov_b32 v43, -1
    buffer_store_dwordx4 v[40:43], v44, {SRD_WS}, s47 offen sc1
    s_mov_b64 exec, 0xff
    buffer_store_dwordx4 v[40:43], v44, {SRD_WS}, s47 offen offset:1024 sc1
    s_mov_b64 exec, -1
    """)
    a.label("L_nosent")
    a("s_mov_b32 s56, 128"); a(f"s_add_u32 s59, s54, {XSLOT}")
    if opt.ord0 < 3: issue_w(a, "s57", "s58"); issue_x(a, "s56", "s59")
    else:
        issue_x(a, "s56", "s59", (0,)); issue_w(a, "s57", "s58", (0, 1)); issue_x(a, "s56", "s59", (1,)); issue_w(a, "s57", "s58", (2,))
    a("s_mov_b32 s57, 256"); a(f"s_add_u32 s58, s54, {2*XSLOT}")
    if opt.x2wait is not None: a(f"s_waitcnt vmcnt({opt.x2wait})")
    issue_x(a, "s57", "s58")
    a(f"s_cmp_lt_u32 s46, {opt.early}\ns_cbranch_scc1 L_nolate0")
    touch()
    a.label("L_nolate0")
    a(f"""
    s_mov_b32 s50, 0
    s_mov_b32 s56, {2*64*6144}
    s_mov_b32 s57, {3*128}
    s_mov_b32 s58, s55
    s_mov_b32 s59, s54
    s_mov_b32 s51, 0
    """)
    a(f"s_cmp_lt_u32 s46, {opt.early}\ns_cbranch_scc1 L_nolate")
    a(f"s_waitcnt vmcnt({8 + NT})\ns_branch L_late")
    a.label("L_nolate")
    a("s_waitcnt vmcnt(8)")
    a.label("L_late")
    a("s_barrier")
    stamp(a, 0, opt); cstamp(a, 30, opt)
    if opt.prof:
        a("s_getreg_b32 s94, hwreg(HW_REG_XCC_ID)\nv_writelane_b32 v255, s94, 33")
    if opt.exp & 64: a("s_mov_b64 exec, 1")
    a.label("L_prod")
    issue_w(a, "s56", "s58")
    ga, gb = {0: ((), (0, 1)), 1: ((0,), (1,)), 2: ((0, 1), ())}[opt.tpos]
    issue_x(a, "s57", "s59", ga)
    a(f"""
    s_and_b32 s47, s50, 3
    s_cmp_eq_u32 s47, s46
    s_cbranch_scc0 L_notouch
    s_cmp_lt_u32 s62, 16
    s_cbranch_scc0 L_lateturn
    """)
    touch()
    if opt.atom == 0:
        a(f"""
        s_cmp_eq_u32 s50, 1
        s_cbranch_scc0 L_noatom
        s_mov_b64 exec, 1
        buffer_atomic_add v36, off, {SRD_DBG}, s101 sc1
        s_mov_b64 exec, {1 if opt.exp & 64 else -1}
        s_branch L_three
        """)
    a.label("L_noatom")
    a(f"""
    s_sub_u32 s47, s50, {opt.wo_from}
    s_cmp_lt_u32 s47, 8
    s_cselect_b32 s47, s100, 0x200000
    s_cselect_b32 s49, 2048, 0
    buffer_load_dword v35, v34, s[96:99], s47 offen
    s_add_u32 s100, s100, s49
    """)
    a.label("L_three")
    issue_x(a, "s57", "s59", gb)
    a(f"s_waitcnt vmcnt({9 + NT})\ns_branch L_touched")
    a.label("L_lateturn")
    if opt.codepf & 2:
        a(f"s_cmp_eq_u32 s50, {12 - min(opt.dist0, 1)}\ns_cbranch_scc0 L_late12\nglobal_load_dword v38, v37, s[68:69]")
        issue_x(a, "s57", "s59", gb)
        a("s_waitcnt vmcnt(9)\ns_branch L_touched")
        a.label("L_late12")
        if opt.tlb:
            a(f"""
            v_min_u32 v38, {(20 << 20 >> opt.tlb) - 1}, v0
            v_lshlrev_b32 v38, {opt.tlb}, v38
            buffer_load_dword v35, v38, {SRD_WS}, 0 offen
            v_and_b32 v38, 0x3fffff, v38
            global_load_dword v35, v38, s[18:19]
            """)
            issue_x(a, "s57", "s59", gb)
            a("s_waitcnt vmcnt(10)\ns_branch L_touched")
    a.label("L_notouch")
    issue_x(a, "s57", "s59", gb)
    a("s_waitcnt vmcnt(8)")
    a.label("L_touched")
    if opt.atom > 0:
        a(f"""
        s_cmp_eq_u32 s50, s92
        s_cbranch_scc0 L_noatom2
        s_mov_b64 exec, 1
        buffer_atomic_add v36, off, {SRD_DBG}, s101 sc1
        s_mov_b64 exec, -1
        L_noatom2:
        """)
    a("""
    s_cmp_ge_u32 s50, 9
    s_cbranch_scc1 L_wl
    L_aback:
    """)
    if opt.prew == 1:
        a(f"""
        s_sub_u32 s47, s50, {opt.prew_at}
        s_cmp_lt_u32 s47, 3
        s_cbranch_scc0 L_noprew
        s_cmp_eq_u32 s47, 2
        s_cselect_b32 s47, s73, s74
        buffer_store_dword v0, v8, {SRD_WS}, s47 offen sc1
        s_add_u32 s74, s74, 8192
        L_noprew:
        """)
    if opt.prew == 3:
        a(f"""
        s_sub_u32 s47, s50, {opt.prew_at}
        s_cmp_lt_u32 s47, 2
        s_cbranch_scc0 L_noprew
        buffer_load_dword v9, v8, {SRD_WS}, s74 offen
        s_add_u32 s74, s74, 8192
        L_noprew:
        """)
    if opt.prew == 4:
        a(f"""
        s_sub_u32 s47, s50, {opt.prew_at}
        s_cmp_lt_u32 s47, 4
        s_cbranch_scc0 L_noprew
        buffer_store_dwordx4 v[0:3], v8, {SRD_WS}, s74 offen sc1
        buffer_store_dwordx4 v[0:3], v8, {SRD_WS}, s74 offen offset:1024 sc1
        buffer_store_dwordx4 v[0:3], v8, {SRD_WS}, s74 offen offset:2048 sc1
        buffer_store_dwordx4 v[0:3], v8, {SRD_WS}, s74 offen offset:3072 sc1
        s_add_u32 s74, s74, 4096
        L_noprew:
        """)
    if opt.prew == 2:
        a(f"""
        s_sub_u32 s47, s50, {opt.prew_at}
        s_cmp_lt_u32 s47, 8
        s_cbranch_scc0 L_noprew
        buffer_store_dwordx4 v[0:3], v8, {SRD_WS}, s74 offen sc1
        buffer_store_dwordx4 v[0:3], v8, {SRD_WS}, s74 offen offset:1024 sc1
        buffer_store_dwordx4 v[0:3], v8, {SRD_WS}, s73 offen sc1
        s_add_u32 s74, s74, 2048
        s_add_u32 s73, s73, 1024
        L_noprew:
        """)
    if opt.wovec:
        a(f"""
        s_cmp_eq_u32 s50, s89
        s_cbranch_scc0 L_nowo2
        buffer_load_dword v35, v39, s[68:71], s88 offen
        s_add_u32 s89, s89, 2
        s_mov_b32 s68, s8
        s_and_b32 s69, s9, 0xffff
        s_xor_b32 s88, s88, {3 << 19}
        L_nowo2:
        """)
    a(f"""
    s_add_u32 s56, s56, {64*6144}
    s_add_u32 s57, s57, 128
    s_cmp_eq_u32 s58, s55
    s_cselect_b32 s58, {WSLOT}, 0
    s_add_u32 s58, s58, s55
    s_add_u32 s51, s51, 1
    s_cmp_eq_u32 s51, 3
    s_cselect_b32 s51, 0, s51
    s_lshl_b32 s59, s51, 15
    s_add_u32 s59, s59, s54
    s_add_u32 s50, s50, 1
    s_barrier
    """)
    if opt.prof:
        a("s_mov_b32 m0, s50"); stamp(a, "m0", opt)
    a("""
    s_cmp_lt_u32 s50, 13
    s_cbranch_scc1 L_prod
    s_mov_b64 exec, -1
    """)
    issue_w(a, "s56", "s58")
    a(f"""
    s_lshl_b32 s47, s{S_RB}, 1
    s_add_u32 s47, s47, s{S_BR}
    s_lshl_b32 s47, s47, 4
    s_add_u32 s47, s47, s{S_PAIR}
    s_lshl_b32 s47, s47, 2
    s_add_u32 s47, s47, s46
    s_lshl_b32 s48, s47, 12
    v_lshlrev_b32 v1, 5, v0
    s_mov_b32 s64, s16
    s_and_b32 s65, s17, 0xffff
    s_mov_b32 s66, 2048
    s_mov_b32 s67, 0x20000
    v_and_b32 v254, 31, v0
    v_lshlrev_b32 v254, 3, v254
    buffer_load_dwordx4 v[40:43], v1, s[64:67], 0 offen
    buffer_load_dwordx4 v[44:47], v1, s[64:67], 0 offen offset:16
    buffer_load_dwordx4 v[48:51], v1, {SRD_X}, s48 offen
    buffer_load_dwordx4 v[52:55], v1, {SRD_X}, s48 offen offset:16
    buffer_load_dwordx4 v[56:59], v1, {SRD_X}, s48 offen offset:2048
    buffer_load_dwordx4 v[60:63], v1, {SRD_X}, s48 offen offset:2064
    buffer_load_dword v253, v254, {SRD_DBG}, 0 offen sc1
    """)
    a("s_mov_b32 s93, s47")
    top = 32 - opt.nd - sum(opt.cl)
    f_regload(a, top - opt.n13, top)
    a(f"s_waitcnt vmcnt({7 + 2*opt.n13})\ns_barrier")
    f_regload(a, top - opt.n13 - opt.n14, top - opt.n13)
    a(f"s_mov_b32 s47, s93\ns_setprio {opt.tailprio}")
    stamp(a, 14, opt); cstamp(a, 31, opt)

def producer_gate(a, opt, tag=''):
    nw = 2 * (opt.n13 + opt.n14)
    a(f"v_mov_b32 v6, 0\nv_mov_b32 v7, 0")
    for i in range(8):
        a(f"v_dot2c_f32_bf16 v6, v{48+i}, v{40+i}")
        a(f"v_dot2c_f32_bf16 v7, v{56+i}, v{40+i}")
    a("s_nop 2")
    a("""
    v_permlane32_swap_b32 v6, v7
    s_nop 1
    v_add_f32 v6, v6, v7
    v_mov_b32 v7, v6
    s_nop 1
    v_permlane16_swap_b32 v6, v7
    s_nop 1
    v_add_f32 v6, v6, v7
    """)
    for sh in (8, 4, 2, 1):
        a("s_nop 1")
        a(f"v_add_f32_dpp v6, v6, v6 row_ror:{sh} row_mask:0xf bank_mask:0xf")
    a(f"""
    v_mul_f32 v6, {hex(f2u(-LOG2E))}, v6
    v_exp_f32 v6, v6
    v_lshlrev_b32 v7, 2, v{V_LANE}
    v_add_f32 v6, 1.0, v6
    v_rcp_f32 v6, v6
    s_lshl_b32 s47, s93, 8
    s_add_u32 s47, s47, {WS_G}
    buffer_store_dword v6, v7, {SRD_WS}, s47 offen sc1
    s_mov_b32 s48, {SPIN_MAX}
    """)
    a.label(f"L_initpoll{tag}")
    a(f"""
    v_cmp_gt_u32 vcc, {0 if opt.atom < 0 else 8}, v253
    s_cbranch_vccz L_initdone{tag}
    s_sub_u32 s48, s48, 1
    s_cmp_eq_u32 s48, 0
    s_cbranch_scc1 L_initdone{tag}
    buffer_load_dword v253, v254, {SRD_DBG}, 0 offen sc1
    s_waitcnt vmcnt(0)
    s_branch L_initpoll{tag}
    """)
    a.label(f"L_initdone{tag}")

T_S, T_P, T_K, T_V = 0, 32, 48, 56
class U:
    def __init__(s, sr_, q, o, l, sq): s.s, s.q, s.o, s.l, s.sq = sr_, q, o, l, sq
UA = U(0, 64, 72, 88, 70); UB = U(16, 92, 100, 116, 71)
T_MD, T_ME, T_SEL, T_PAT, T_PATK, T_ADR, T_ADRK = 120, 136, 152, 156, 157, 158, 159
T_IDX, T_T0, T_Z = 242, 244, 64
T_C = 16
M32 = "v_mfma_f32_32x32x16_bf16"
def PV(u, h): return f"v_smfmac_f32_32x32x32_bf16 {vr(u.o,16)}, {vr(T_V+4*h,4)}, {vr(T_P+8*h,8)}, v{T_IDX}"
def LS(u, h): return f"v_smfmac_f32_16x16x64_bf16 {vr(u.l,4)}, {vr(T_SEL,4)}, {vr(T_P+8*h,8)}, v{T_IDX}"
def keyof(i): return (i & 3) | ((i >> 3) << 2) | ((i >> 2 & 1) << 4)
S_HB = 72
LQ = 131072
def swap34(i): return (i & 7) | ((i >> 4 & 1) << 3) | ((i >> 3 & 1) << 4)

def b_consts(a):
    al8(a)
    a(f"v_mov_b32 v{T_T0}, {hex(f2u(-1e30))}")
    for n in range(16):
        g, r = n >> 2, n & 3
        m = 0
        for l in range(64):
            j, h = l & 31, l >> 5
            if keyof(8 * g + 4 * h + r) <= swap34(j): m |= 1 << l
        s = 64 + 2 * (n & 1)
        a(f"s_mov_b32 s{s}, {hex(m & 0xffffffff)}")
        a(f"s_mov_b32 s{s+1}, {hex(m >> 32)}")
        a(f"v_cndmask_b32_e64 v{T_MD+n}, v{T_T0}, 0, s[{s}:{s+1}]")
        a(f"v_cndmask_b32_e64 v{T_ME+n}, 0, v{T_T0}, s[{s}:{s+1}]")
    L = V_LANE
    a(f"""
    v_bfe_u32 v{T_T0}, v{L}, 2, 1
    v_mul_u32_u24 v{T_SEL+2}, 0x3f80, v{T_T0}
    v_lshl_add_u32 v{T_SEL+2}, v{T_SEL+2}, 16, v{T_SEL+2}
    v_xor_b32 v{T_SEL}, 0x3f803f80, v{T_SEL+2}
    v_mov_b32 v{T_SEL+3}, v{T_SEL+2}
    v_mov_b32 v{T_SEL+1}, v{T_SEL}
    v_pk_mul_f32 {vr(T_Z,2)}, 0, 0
    v_pk_mul_f32 {vr(T_Z+2,2)}, 0, 0
    v_mov_b32 v{T_IDX}, 0xdddddddd
    v_and_b32 v{T_PATK}, 3, v{L}
    v_lshlrev_b32 v{T_PATK}, 4, v{T_PATK}
    v_lshl_add_u32 v{T_PATK}, v{T_T0}, 10, v{T_PATK}
    v_lshrrev_b32 v{T_T0}, 3, v{L}
    v_lshl_add_u32 v{T_PATK}, v{T_T0}, 6, v{T_PATK}
    v_and_b32 v{T_PAT}, 7, v{L}
    v_lshlrev_b32 v{T_PAT}, 4, v{T_PAT}
    v_lshrrev_b32 v{T_T0}, 4, v{L}
    v_lshl_add_u32 v{T_PAT}, v{T_T0}, 7, v{T_PAT}
    v_bfe_u32 v{T_T0}, v{L}, 3, 1
    v_lshl_add_u32 v{T_PAT}, v{T_T0}, 10, v{T_PAT}
    s_and_b32 s46, s{S_WAVE}, 1
    s_lshl_b32 s{S_HB}, s46, 15
    s_and_b32 s46, s{S_WAVE}, 2
    s_sub_u32 s{UA.sq}, 6, s46
    s_cmp_lt_u32 s{S_WAVE}, 4
    s_cselect_b32 s{UA.sq}, s46, s{UA.sq}
    s_add_u32 s{UB.sq}, s{UA.sq}, 1
    s_lshl_b32 s46, s{S_RB}, 5
    s_add_u32 s46, s46, s{S_PAIR}
    s_lshl_b32 s46, s46, 1
    s_and_b32 s73, s{S_WAVE}, 1
    s_add_u32 s46, s46, s73
    s_add_u32 s46, s46, 32
    s_mul_i32 s46, s46, {OS}
    s_lshl_b32 s73, s{UA.sq}, 11
    s_add_u32 s73, s73, s46
    """)
    for u in (UA, UB):
        a(f"v_mfma_f32_32x32x16_bf16 {vr(u.o,16)}, {vr(T_Z,4)}, {vr(T_Z,4)}, 0")
        a(f"v_mfma_f32_16x16x32_bf16 {vr(u.l,4)}, {vr(T_Z,4)}, {vr(T_Z,4)}, 0")

def b_epilogue(a, opt, part):
    L = V_LANE
    c = LOG2E / 32 ** 0.5
    if part == 0: a(f"""
    s_lshr_b32 s46, s{S_WAVE}, 1
    s_and_b32 s47, s{S_WAVE}, 1
    s_lshl_b32 s48, s47, 15
    s_lshl_b32 s49, s46, 12
    s_add_u32 s48, s48, s49
    s_add_u32 s48, s48, 65536
    v_lshlrev_b32 v253, 4, v{L}
    {"s_mov_b32 s68, s48" if opt.kvfirst else "v_add_u32 v248, s48, v253"}
    s_lshl_b32 s48, s47, 14
    s_add_u32 s48, s48, s49
    s_add_u32 s48, s48, {LQ}
    {"s_mov_b32 s69, s48" if opt.kvfirst else "v_add_u32 v249, s48, v253"}
    s_lshl_b32 s48, s{S_PAIR}, 3
    s_add_u32 s48, s48, s{S_RB}
    s_mul_i32 s48, s48, {opt.kvs}
    s_lshl_b32 s47, s47, 15
    s_add_u32 s48, s48, s47
    s_add_u32 s48, s48, s49
    s_add_u32 s48, s48, {WS_KV if not (opt.exp & 1) else 0x10000000}
    s_cmp_eq_u32 s{S_RB}, {7 if opt.exp & 32 else 99}
    s_cselect_b32 s48, 0x10000000, s48
    s_mov_b32 s49, s48
    s_add_u32 s48, s49, 8192
    s_add_u32 s50, s49, {16384+8192}
    s_add_u32 s51, s49, 16384
    s_mov_b32 s64, {hex(f2u(c))}
    """)
    def pack(dst, x, y):
        a(f"v_cvt_pk_bf16_f32 v{dst}, v{x}, v{x+1}")
        a(f"v_cvt_pk_bf16_f32 v{dst+1}, v{x+2}, v{x+3}")
        a(f"v_cvt_pk_bf16_f32 v{dst+2}, v{y}, v{y+1}")
        a(f"v_cvt_pk_bf16_f32 v{dst+3}, v{y+2}, v{y+3}")
    def qpack(sb):
        d = acc(sb, 0)
        for r in range(0, 8, 2):
            a(f"v_pk_mul_f32 {vr(d+r,2)}, {vr(d+r,2)}, s[64:65] op_sel_hi:[1,0]")
        pack(d, acc(sb, 0), acc(sb, 1))
    if opt.kvfirst:
        blocks = lambda g: [(acc(sb, 2), acc(sb, 3), 48, sb, 0) for sb in range(4*g, 4*g + 4)] + [(acc(i & ~1, 4 + (i & 1)), acc(i | 1, 4 + (i & 1)), 50, i, 16384) for i in range(4*g, 4*g + 4)]
        st = lambda x, sreg, i: f"buffer_store_dwordx4 {vr(x,4)}, v253, {SRD_WS}, s{sreg + (i >> 2)} offen offset:{(i & 3)*1024} {opt.kvst}"
        wr = lambda x, i, off: f"ds_write_b128 v254, {vr(x,4)} offset:{off + blk(i)*1024}"
        allb = blocks(0) + blocks(1)
        early_w = [n for n in range(16) if not 4 <= n < 8] if opt.kvfirst == 2 else []
        if part == 0:
            a("v_add_u32 v254, s68, v253")
            return
        if part >= 2:
            for n in range(8 * (part - 2), 8 * (part - 1)):
                x, y, sreg, i, off = allb[n]
                pack(x, x, y)
                if n < 16 - opt.stlate: a(st(x, sreg, i))
                if n in early_w: a(wr(x, i, off))
            return
        a("v_add_u32 v249, s69, v253")
        rest = [wr(allb[n][0], allb[n][3], allb[n][4]) for n in range(16) if n not in early_w]
        per = len(rest) // 4
        for sb in range(4):
            for l in rest[sb*per:(sb+1)*per]: a(l)
            qpack(sb)
            a(f"ds_write_b128 v249, {vr(acc(sb,0),4)} offset:{blk(sb)*1024}")
        a("s_setprio 2\ns_waitcnt lgkmcnt(0)\ns_barrier")
        for n in range(16 - opt.stlate, 16): a(st(allb[n][0], allb[n][2], allb[n][3]))
        for sb in range(4, 8):
            qpack(sb)
            a(f"ds_write_b128 v249, {vr(acc(sb,0),4)} offset:{blk(sb)*1024}")
        return
    if part == 0: opt._late = []
    late = opt._late
    def store(n, txt):
        if (n % 2 == 1 if opt.stalt else n >= 16 - opt.stlate): late.append(txt)
        else:
            if opt.stwin0 and n >= opt.stwin0: a(f"s_waitcnt vmcnt({opt.stwin0 - 1})")
            a(txt)
    n = 8 * part
    al8(a)
    for m in (2 * part, 2 * part + 1):
        for sb in (2 * m, 2 * m + 1):
            d = acc(sb, 2)
            pack(d, acc(sb, 2), acc(sb, 3))
            store(n, f"buffer_store_dwordx4 {vr(d,4)}, v253, {SRD_WS}, s{48 + (sb >> 2)} offen offset:{(sb & 3)*1024} {opt.kvst}"); n += 1
            a(f"ds_write_b128 v248, {vr(d,4)} offset:{blk(sb)*1024}")
            if part:
                qpack(sb - 4)
                a(f"ds_write_b128 v249, {vr(acc(sb-4,0),4)} offset:{blk(sb-4)*1024}")
        for nb in range(2):
            d = acc(2 * m, 4 + nb); i = 2 * m + nb
            pack(d, acc(2 * m, 4 + nb), acc(2 * m + 1, 4 + nb))
            store(n, f"buffer_store_dwordx4 {vr(d,4)}, v253, {SRD_WS}, s{50 + (i >> 2)} offen offset:{(i & 3)*1024} {opt.kvst}"); n += 1
            a(f"ds_write_b128 v248, {vr(d,4)} offset:{16384 + blk(i)*1024}")
    if part == 0: return
    inj(a, opt, "T1")
    a("s_setprio 2\ns_waitcnt lgkmcnt(0)\ns_barrier")
    al8(a)
    qs = list(range(4, 8))
    def ownq():
        sb = qs.pop(0); qpack(sb)
        a(f"ds_write_b128 v249, {vr(acc(sb,0),4)} offset:{blk(sb)*1024}")
    for k, t in enumerate(late):
        if opt.stwin: a(f"s_waitcnt vmcnt({opt.stwin - 1})")
        a(t)
        if opt.stmix and k % 2 == 1 and qs: ownq()
    while qs: ownq()
    a("s_nop 1")

def b_phase(a, X, Y, kind, step, mask=None):
    e = lambda *ns: [a(f"v_exp_f32 v{T_P+n}, v{X.s+n}") for n in ns]
    if kind == 'B': a("s_waitcnt lgkmcnt(0)")
    a(f"{M32} {vr(Y.s,16)}, {vr(T_K,4)}, {vr(Y.q,4)}, {vr(mask,16) if mask is not None else 0}")
    if kind == 'A': a(f"v_pk_add_u16 v{T_ADRK}, v{T_ADRK}, v{T_ADRK}" if False else f"v_add_u32 v{T_ADRK}, {step & 0xffffffff}, v{T_ADRK}")
    e(0, 1, 2)
    a(f"{M32} {vr(Y.s,16)}, {vr(T_K+4,4)}, {vr(Y.q+4,4)}, {vr(Y.s,16)}")
    if kind == 'A':
        a(f"ds_read_b128 {vr(T_K,4)}, v{T_ADRK}")
        a(f"ds_read_b128 {vr(T_K+4,4)}, v{T_ADRK} offset:512")
    e(3, 4, 5)
    if kind != 'F': a(LS(Y, 1))
    e(6)
    if kind != 'F':
        a(PV(Y, 1))
        if kind == 'A': a(f"ds_read_b128 {vr(T_V+4,4)}, v{T_ADR} offset:{16384 + 512}")
    if kind == 'B': a(f"v_add_u32 v{T_ADR}, {step & 0xffffffff}, v{T_ADR}")
    e(7, 8, 9)
    if kind == 'A': a("s_waitcnt lgkmcnt(3)")
    a(PV(X, 0))
    if kind != 'A': a(f"ds_read_b128 {vr(T_V,4)}, v{T_ADR} offset:16384")
    e(10, 11, 12)
    a(LS(X, 0))
    e(13, 14)
    if kind == 'B': a("s_sub_u32 s50, s50, 1")
    e(15)

def b_section(a, own):
    X, Y = (UB, UA) if own else (UA, UB)
    step = -2048 if own else 2048
    mask = T_MD if own else T_ME
    tag = "own" if own else "halo"
    if own: a(f"s_add_u32 s46, s{UA.sq}, 32\ns_mov_b32 s50, s{UA.sq}")
    else: a(f"s_add_u32 s46, s{UA.sq}, 1\ns_sub_u32 s50, 6, s{UA.sq}")
    a(f"""
    s_lshl_b32 s46, s46, 11
    s_add_u32 s46, s46, s{S_HB}
    v_add_u32 v{T_ADRK}, s46, v{T_PATK}
    v_add_u32 v{T_T0}, {-step & 0xffffffff}, v{T_ADRK}
    ds_read_b128 {vr(T_P,4)}, v{T_T0}
    ds_read_b128 {vr(T_P+4,4)}, v{T_T0} offset:512
    v_add_u32 v{T_ADR}, s46, v{T_PAT}
    ds_read_b128 {vr(T_K,4)}, v{T_ADRK}
    ds_read_b128 {vr(T_K+4,4)}, v{T_ADRK} offset:512
    ds_read_b128 {vr(T_V,4)}, v{T_ADR} offset:{16384 - step}
    ds_read_b128 {vr(T_V+4,4)}, v{T_ADR} offset:{16384 + 512 - step}
    s_waitcnt lgkmcnt(5)
    {M32} {vr(X.s,16)}, {vr(T_P,4)}, {vr(X.q,4)}, {vr(mask,16)}
    s_waitcnt lgkmcnt(4)
    {M32} {vr(X.s,16)}, {vr(T_P+4,4)}, {vr(X.q+4,4)}, {vr(X.s,16)}
    s_waitcnt lgkmcnt(0)
    s_nop 7
    s_nop 1
    """)
    b_phase(a, X, Y, 'F', step, mask)
    align(a, ALT)
    a.label(f"L_pair_{tag}")
    b_phase(a, Y, X, 'A', step)
    b_phase(a, X, Y, 'B', step)
    a(f"""
    s_cbranch_scc0 L_pair_{tag}
    s_nop 0
    {PV(X, 1)}
    {LS(X, 1)}
    """)

def b_final(a, u, tag, opt):
    lo, hi = (2.0 ** -40, 2.0 ** 40) if not opt.force_slow else (2.0 ** 3, 2.0 ** 9)
    a(f"""
    v_subrev_u32 v{T_T0}, {hex(f2u(lo))}, v{u.l}
    v_cmp_lt_u32 vcc, {hex(f2u(hi) - f2u(lo))}, v{T_T0}
    {"s_nop 0" if opt.exp else f"s_cbranch_vccnz L_slow_{tag}"}
    """)
    al8(a)
    a.label(f"L_back_{tag}")
    a(f"v_rcp_f32 v{T_T0}, v{u.l}")
    a("s_nop 0")
    for r in range(0, 16, 2):
        a(f"v_pk_mul_f32 {vr(u.o+r,2)}, {vr(u.o+r,2)}, {vr(T_T0,2)} op_sel_hi:[1,0]")
    for k in range(8):
        a(f"v_cvt_pk_bf16_f32 v{u.o+k}, v{u.o+2*k}, v{u.o+2*k+1}")
    if opt.f0early != 2: b_store(a, u)

def b_store(a, u):
    a(f"buffer_store_dwordx4 {vr(u.o,4)}, v{T_PAT}, {SRD_WS}, s73 offen offset:{2048 if u is UB else 0} sc1")
    a(f"buffer_store_dwordx4 {vr(u.o+4,4)}, v{T_PAT}, {SRD_WS}, s73 offen offset:{2560 if u is UB else 512} sc1")

def b_slow(a, u, tag, opt):
    S, P, M = T_S, T_P, T_T0 + 2
    a.label(f"L_slow_{tag}")
    a(f"""
    s_nop 7
    s_nop 7
    """)
    for r in range(0, 20, 2): a(f"v_pk_mul_f32 {vr(u.o+r,2)}, 0, 0")
    a(f"""
    v_mov_b32 v{M}, {hex(f2u(-3e38))}
    s_add_u32 s52, s{u.sq}, 8
    """)
    for ps in range(2):
        a(f"""
        s_cmp_eq_u32 s{S_RB}, 0
        s_cselect_b32 s51, 8, s{u.sq}
        """)
        a.label(f"L_slowl_{tag}{ps}")
        a(f"""
        s_lshl_b32 s46, s{S_PAIR}, 3
        s_add_u32 s46, s46, s{S_RB}
        s_lshr_b32 s47, s51, 3
        s_add_u32 s46, s46, s47
        s_mul_i32 s46, s46, {opt.kvs}
        s_and_b32 s47, s51, 7
        s_lshl_b32 s47, s47, 11
        s_add_u32 s46, s46, s47
        s_add_u32 s46, s46, s{S_HB}
        s_add_u32 s46, s46, {WS_KV - opt.kvs}
        s_add_u32 s47, s46, 16384
        buffer_load_dwordx4 {vr(T_K,4)}, v{T_PATK}, {SRD_WS}, s46 offen sc1
        buffer_load_dwordx4 {vr(T_K+4,4)}, v{T_PATK}, {SRD_WS}, s46 offen offset:512 sc1
        buffer_load_dwordx4 {vr(T_V,4)}, v{T_PAT}, {SRD_WS}, s47 offen sc1
        buffer_load_dwordx4 {vr(T_V+4,4)}, v{T_PAT}, {SRD_WS}, s47 offen offset:512 sc1
        s_cmp_eq_u32 s51, s52
        s_cselect_b32 s47, 1.0, 0
        s_cmp_eq_u32 s51, s{u.sq}
        s_cselect_b32 s48, 1.0, 0
        """)
        for n in range(16):
            a(f"v_mul_f32 v{T_C+n}, s47, v{T_MD+n}")
            a(f"v_fmac_f32 v{T_C+n}, s48, v{T_ME+n}")
        a(f"""
        s_waitcnt vmcnt(0)
        s_nop 1
        v_mfma_f32_32x32x16_bf16 {vr(S,16)}, {vr(T_K,4)}, {vr(u.q,4)}, {vr(T_C,16)}
        v_mfma_f32_32x32x16_bf16 {vr(S,16)}, {vr(T_K+4,4)}, {vr(u.q+4,4)}, {vr(S,16)}
        s_nop 7
        s_nop 7
        """)
        if ps == 0:
            for n in range(0, 16, 2):
                a(f"v_max3_f32 v{M}, v{S+n}, v{S+n+1}, v{M}")
        else:
            for n in range(16): a(f"v_sub_f32 v{S+n}, v{S+n}, v{M}")
            for n in range(16): a(f"v_exp_f32 v{P+n}, v{S+n}")
            a("s_nop 1")
            for l in (PV(u, 0), PV(u, 1), LS(u, 0), LS(u, 1)): a(l)
        a(f"""
        s_add_u32 s51, s51, 1
        s_cmp_le_u32 s51, s52
        s_cbranch_scc1 L_slowl_{tag}{ps}
        """)
        if ps == 0:
            a(f"""
            v_mov_b32 v{M+1}, v{M}
            s_nop 1
            v_permlane32_swap_b32 v{M}, v{M+1}
            s_nop 1
            v_max_f32 v{M}, v{M}, v{M+1}
            """)
    a(f"s_nop 7\ns_nop 7\ns_branch L_back_{tag}")

def b_attention(a, opt):
    a(f"""
    s_lshl_b32 s46, s{S_WAVE}, 7
    s_add_u32 s46, s46, s{S_FLAG}
    v_mov_b32 v{T_T0}, 1
    v_lshlrev_b32 v{T_T0+1}, 2, v{V_LANE}
    s_mov_b32 exec_hi, 0
    s_waitcnt vmcnt(0)
    buffer_store_dword v{T_T0}, v{T_T0+1}, {SRD_WS}, s46 offen sc1
    s_mov_b32 exec_hi, -1
    """)
    stamp(a, 25, opt); diag(a, opt, "flag")
    if opt.flagfirst:
        a("s_mov_b32 s68, s46"); b_consts(a); a("s_mov_b32 s46, s68")
    a(f"""
    s_cmp_ge_u32 s{S_WAVE}, 2
    s_cbranch_scc1 L_bnopoll
    s_cmp_eq_u32 s{S_RB}, 0
    s_cbranch_scc1 L_bnopoll
    s_sub_u32 s46, s46, 2048
    s_mov_b32 s48, {SPIN_MAX}
    v_and_b32 v{T_C+1}, 1, v{V_LANE}
    v_lshlrev_b32 v{T_C+1}, 8, v{T_C+1}
    s_lshl_b32 s47, s{S_PAIR}, 3
    s_add_u32 s47, s47, s{S_RB}
    s_mul_i32 s47, s47, {opt.kvs}
    s_add_u32 s47, s47, s{S_HB}
    s_add_u32 s47, s47, {WS_KV - opt.kvs}
    v_lshlrev_b32 v{T_T0}, 4, v{V_LANE}
    """)
    if opt.bwait: a("s_waitcnt vmcnt(0)")
    a.label("L_bpoll_l")
    a(f"""
    buffer_load_dword v{T_C}, v{T_C+1}, {SRD_WS}, s46 offen sc1
    s_sub_u32 s48, s48, 1
    s_cmp_eq_u32 s48, 0
    s_cbranch_scc1 L_bpoll_d
    s_waitcnt vmcnt(0)
    v_cmp_ne_u32 vcc, 1, v{T_C}
    s_cbranch_vccnz L_bpoll_l
    """)
    a.label("L_bpoll_d")
    inj(a, opt, "halo")
    stamp(a, 26, opt)
    a(f"s_mov_b32 m0, s{S_HB}\ns_mov_b32 s48, 8")
    a.label("L_bdma")
    for k in range(4):
        if not (opt.exp & 2): a(f"buffer_load_dwordx4 v{T_T0}, {SRD_WS}, s47 offen offset:{k*1024} {opt.kvld} lds")
    a("""
    s_add_u32 m0, m0, 4096
    s_add_u32 s47, s47, 4096
    s_sub_u32 s48, s48, 1
    s_cmp_lg_u32 s48, 0
    s_cbranch_scc1 L_bdma
    """)
    a.label("L_bnopoll")
    a(f"s_setprio {opt.oprio}")
    a.label("L_battn1")
    stamp(a, 24, opt); cstamp(a, 34, opt)
    a(f"""
    s_lshr_b32 s46, s{S_HB}, 1
    s_add_u32 s46, s46, {LQ}
    s_lshl_b32 s47, s{UA.sq}, 11
    s_add_u32 s47, s47, s46
    v_add_u32 v{T_ADR}, s47, v{T_PAT}
    ds_read_b128 {vr(UB.q,4)}, v{T_ADR} offset:2048
    ds_read_b128 {vr(UB.q+4,4)}, v{T_ADR} offset:{2048+512}
    ds_read_b128 {vr(UA.q,4)}, v{T_ADR}
    ds_read_b128 {vr(UA.q+4,4)}, v{T_ADR} offset:512
    """)
    b_section(a, True)
    stamp(a, 27, opt)
    a(f"s_cmp_ge_u32 s{S_WAVE}, 4\ns_cbranch_scc1 L_nofsetup")
    f_consumer(a, opt, 0)
    a.label("L_nofsetup")
    a(f"""
    s_setprio 0
    s_waitcnt vmcnt(0) lgkmcnt(0)
    s_barrier
    s_cmp_lt_u32 s{S_WAVE}, 4
    s_cbranch_scc1 L_nofill
    s_setprio {opt.bprio}
    """)
    if opt.fill2: a(f"s_cmp_ge_u32 s{S_WAVE}, 6\ns_cbranch_scc1 L_nofill")
    f_prefill(a, opt, "B")
    a.label("L_nofill")
    stamp(a, 28, opt); diag(a, opt, "T2")
    a(f"""
    s_cmp_eq_u32 s{S_RB}, 0
    s_cbranch_scc0 L_bhalo
    s_nop 7
    s_branch L_bfin
    L_bhalo:
    """)
    b_section(a, False)
    a.label("L_bfin")
    a("s_waitcnt lgkmcnt(0)\ns_nop 1")
    if opt.f0early:
        a(f"s_cmp_ge_u32 s{S_WAVE}, 4\ns_cbranch_scc1 L_nof0")
        f_consumer(a, opt, 1)
        a.label("L_nof0")
    b_final(a, UB, "b", opt)
    b_final(a, UA, "a", opt)
    if opt.f0early == 2:
        a(f"s_cmp_ge_u32 s{S_WAVE}, 4\ns_cbranch_scc1 L_nof1")
        f_consumer(a, opt, 3)
        a.label("L_nof1")
        b_store(a, UB); b_store(a, UA)
    stamp(a, 29, opt); cstamp(a, 35, opt)
    a(f"""
    s_cmp_ge_u32 s{S_WAVE}, 4
    s_cbranch_scc1 L_fprod
    """)
    inj(a, opt, "bfin")
    if not opt.f0early: f_consumer(a, opt, 1)
    a("s_branch L_fcons")
    b_slow(a, UA, "a", opt)
    b_slow(a, UB, "b", opt)

def phi_pack(a, dst, x, y, t):
    for i, b in enumerate((x, x + 2, y, y + 2)):
        a(f"v_pk_fma_f32 {vr(t+2*i,2)}, {vr(b,2)}, s[64:65], s[64:65] op_sel_hi:[1,0,0] neg_lo:[0,0,1] neg_hi:[0,0,1]")
    for i in range(8): a(f"v_exp_f32_e64 v{t+i}, v{t+i} clamp")
    for i in range(8): a(f"v_max_f32 v{t+i}, v{t+i}, v{(x if i < 4 else y) + (i & 3)}")
    for i in range(4): a(f"v_pk_add_f32 {vr(t+2*i,2)}, {vr(t+2*i,2)}, s[66:67] op_sel_hi:[1,0]")
    for i in range(4): a(f"v_cvt_pk_bf16_f32 v{dst+i}, v{t+2*i}, v{t+2*i+1}")

A_KV = 192
A_T = 216; A_ONE = 224; A_OP = 228
LA_FIN = 32768
def a_valu(a, m, t):
    for nb in range(2):
        phi_pack(a, acc(2*m, 2+nb), acc(2*m, 2+nb), acc(2*m+1, 2+nb), t)
    for nb in range(2):
        d, x, y = acc(2*m, 4+nb), acc(2*m, 4+nb), acc(2*m+1, 4+nb)
        a(f"v_cvt_pk_bf16_f32 v{d}, v{x}, v{x+1}\nv_cvt_pk_bf16_f32 v{d+1}, v{x+2}, v{x+3}\nv_cvt_pk_bf16_f32 v{d+2}, v{y}, v{y+1}\nv_cvt_pk_bf16_f32 v{d+3}, v{y+2}, v{y+3}")
def a_pre(a, opt):
    L = V_LANE
    a(f"""
    s_mov_b32 s64, {hex(f2u(LOG2E))}
    s_mov_b32 s66, {hex(f2u(1e-6))}
    s_mul_i32 s46, s{S_WAVE}, 6144
    v_lshlrev_b32 v253, 4, v{L}
    v_add_u32 v248, s46, v253
    s_and_b32 s47, s{S_WAVE}, 1
    s_mul_i32 s46, s47, 3072
    s_add_u32 s46, s46, {LA_FIN}
    v_add_u32 v249, s46, v253
    """)
    al8(a)
    a_valu(a, 0, XA)

def a_consumer(a, opt):
    L = V_LANE
    for i in range(4): a(f"v_mov_b32 v{A_ONE+i}, 0x3f803f80")
    kvb = lambda db, eb: A_KV + eb * 12 + db * 4
    zb = lambda db: A_KV + db * 12 + 8
    def kvm(m):
        out = []
        for db in range(2):
            c = vr(zb(db), 4)
            out.append(f"v_mfma_f32_16x16x32_bf16 {c}, {vr(acc(2*m,2+db),4)}, {vr(A_ONE,4)}, {c if m else 0}")
        for eb in range(2):
            for db in range(2):
                c = vr(kvb(db, eb), 4)
                out.append(f"v_mfma_f32_16x16x32_bf16 {c}, {vr(acc(2*m,2+db),4)}, {vr(acc(2*m,4+eb),4)}, {c if m else 0}")
        return out
    for m in range(1, 4):
        v = lines_of(a_valu, m, A_T); mf = kvm(m - 1)
        for k, l in enumerate(v):
            a(l)
            if k >= 2 and k % 3 == 2 and mf: a(mf.pop(0))
    for l in kvm(3): a(l)
    a("s_nop 7")
    for i in (2, 5, 0, 1, 3, 4):
        a(f"ds_write_b128 v248, {vr(A_KV+4*i,4)} offset:{i*1024}")
    inj(a, opt, "A1")
    a("s_waitcnt lgkmcnt(0)\ns_barrier")
    stamp(a, 24, opt)
    al8(a)
    for sb in range(8):
        phi_pack(a, acc(sb, 0), acc(sb, 0), acc(sb, 1), A_T)
    a(f"""
    s_lshl_b32 s46, s{S_RB}, 6
    s_lshl_b32 s48, s{S_PAIR}, 1
    s_add_u32 s46, s46, s48
    s_add_u32 s46, s46, s47
    s_mul_i32 s46, s46, {opt.os}
    s_lshr_b32 s48, s{S_WAVE}, 1
    s_lshl_b32 s49, s48, 12
    s_add_u32 s49, s49, s46
    s_add_u32 s48, s49, 8192
    """)
    stamp(a, 25, opt)
    a("s_setprio 3\ns_barrier")
    stamp(a, 28, opt); diag(a, opt, "A2")
    for i in range(3): a(f"ds_read_b128 {vr(A_OP+4*i,4)}, v249 offset:{i*1024}")
    a("s_waitcnt lgkmcnt(0)")
    mf = [f"v_mfma_f32_16x16x32_bf16 {vr(acc(sb,2+i),4)}, {vr(A_OP+4*i,4)}, {vr(acc(sb,0),4)}, 0" for sb in range(8) for i in (2, 0, 1)]
    for _ in range(6): a(mf.pop(0))
    a("s_nop 2")
    al8(a)
    for sb in range(8):
        n0, dn = acc(sb, 2), acc(sb, 4)
        a(f"v_add_f32 v{dn}, s66, v{dn}")
        a(f"v_rcp_f32 v{dn}, v{dn}")
        a(mf.pop(0) if mf else "v_nop_e64")
        for r in range(0, 8, 2):
            a(f"v_pk_mul_f32 {vr(n0+r,2)}, {vr(n0+r,2)}, {vr(dn,2)} op_sel_hi:[1,0]")
            if r == 4 and mf: a(mf.pop(0))
        for k in range(4):
            a(f"v_cvt_pk_bf16_f32 v{n0+k}, v{n0+2*k}, v{n0+2*k+1}")
            if k == 1 and mf: a(mf.pop(0))
        a(f"buffer_store_dwordx4 {vr(n0,4)}, v253, {SRD_WS}, s{48 + (sb>>2)} offen offset:{(sb&3)*1024} sc1")
    stamp(a, 29, opt)
    if opt.a3 == 1: a("s_barrier")
    f_flag(a)
    if opt.a3 == 2: a("s_barrier")
    a("s_setprio 0")

def a_help(a):
    a(f"""
    s_lshl_b32 s57, s{S_J}, 1
    s_add_u32 s57, s57, s{S_WAVE}
    s_sub_u32 s57, s57, 4
    s_cmp_lt_u32 s57, 24
    s_cselect_b32 s56, 0, 0x200000
    s_lshl_b32 s57, s57, 15
    s_and_b32 s49, s{S_XCD}, 1
    s_lshl_b32 s49, s49, 10
    s_add_u32 s57, s57, s49
    s_add_u32 s56, s56, s57
    v_lshrrev_b32 v64, 2, v{V_LANE}
    v_lshlrev_b32 v64, 3, v64
    v_and_or_b32 v64, v{V_LANE}, 3, v64
    v_lshlrev_b32 v64, 8, v64
    buffer_load_dword v65, v64, {SRD_WO}, s57 offen
    buffer_load_dword v65, v64, s[84:87], s56 offen
    """)

def a_producer(a, opt):
    L = V_LANE
    V16, VR, VKV, VZ, VQ, VZA, Z = 242, 243, 244, 245, 246, 247, 248
    a(f"""
    s_sub_u32 s46, s{S_WAVE}, 4
    s_and_b32 s47, s46, 1
    s_lshr_b32 s48, s46, 1
    s_mul_i32 s49, s47, 6144
    s_mul_i32 s50, s48, 3072
    s_add_u32 s49, s49, s50
    v_lshlrev_b32 v{V16}, 4, v{L}
    v_add_u32 v{VR}, s49, v{V16}
    s_mul_i32 s49, s47, 3072
    s_add_u32 s49, s49, {LA_FIN}
    s_lshl_b32 s50, s48, 10
    s_add_u32 s50, s50, s49
    v_add_u32 v{VKV}, s50, v{V16}
    s_lshl_b32 s50, s48, 3
    s_add_u32 s50, s50, s49
    v_add_u32 v{VZ}, s50, v{V16}
    v_and_b32 v{VQ}, 48, v{L}
    v_and_b32 v{VZA}, 7, v{L}
    v_lshl_add_u32 v{VZA}, v{VZA}, 14, v{VQ}
    v_and_b32 v6, 3, v{L}
    v_sub_u32 v{VQ}, v{VR}, v{V16}
    v_lshl_add_u32 v{VQ}, v6, 8, v{VQ}
    s_lshl_b32 s51, s{S_PAIR}, 5
    s_add_u32 s51, s51, s46
    s_lshl_b32 s51, s51, 12
    s_add_u32 s51, s51, {WS_PART}
    s_lshl_b32 s52, s{S_RB}, 14
    s_add_u32 s52, s52, s51
    v_mov_b32 v0, 0
    v_mov_b32 v1, 0
    v_mov_b32 v4, 0
    v_mov_b32 v5, 0
    v_and_b32 v6, 1, v{L}
    v_lshlrev_b32 v6, 4, v6
    v_mov_b32 v7, 0x3f80
    v_lshlrev_b32 v6, v6, v7
    s_mov_b32 vcc_lo, 0x00300003
    s_mov_b32 vcc_hi, 0x30000300
    v_cndmask_b32 v2, 0, v6, vcc
    s_mov_b32 vcc_lo, 0x00c0000c
    s_mov_b32 vcc_hi, 0xc0000c00
    v_cndmask_b32 v3, 0, v6, vcc
    s_setprio 2
    s_barrier
    """)
    stamp(a, 24, opt)
    for i in range(3):
        a(f"ds_read_b128 {vr(16+4*i,4)}, v{VR if i < 2 else VQ} offset:{i*1024}")
        a(f"ds_read_b128 {vr(28+4*i,4)}, v{VR if i < 2 else VQ} offset:{12288 + i*1024}")
    a("s_waitcnt lgkmcnt(2)")
    for r in range(0, 8, 2): a(f"v_pk_add_f32 {vr(16+r,2)}, {vr(16+r,2)}, {vr(28+r,2)}")
    for k in range(4): a(f"v_cvt_pk_bf16_f32 v{8+k}, v{16+2*k}, v{17+2*k}")
    a(f"""
    buffer_store_dwordx4 v[8:11], v{V16}, {SRD_WS}, s52 offen sc1
    s_waitcnt lgkmcnt(0)
    v_pk_add_f32 v[12:13], v[24:25], v[36:37]
    v_pk_add_f32 v[14:15], v[26:27], v[38:39]
    s_mov_b32 s48, {SPIN_MAX // 8}
    s_mov_b64 exec, 0xff
    buffer_store_dwordx4 v[12:15], v{V16}, {SRD_WS}, s52 offen offset:1024 sc1
    s_mov_b64 exec, -1
    """)
    if opt.gatelate and opt.agate:
        producer_gate(a, opt, "A")
        a(f"s_mov_b32 s48, {SPIN_MAX // 8}")
    if opt.bhelp == 2: a_help(a)
    f_prefill(a, opt, "A1", opt.afill, opt.afill + opt.afill2)
    if opt.await0: a(f"s_waitcnt vmcnt({2 * opt.afill2 + (2 if opt.bhelp == 2 else 0) + (1 if opt.gatelate and opt.agate else 0)})")
    stamp(a, 25, opt)
    a.label("L_agather")
    a(f"buffer_load_dwordx4 {vr(Z,4)}, v{VZA}, {SRD_WS}, s51 offen offset:1024 sc1")
    a("s_mov_b32 s53, s51")
    for src in range(8):
        a(f"buffer_load_dwordx4 {vr(16+4*src,4)}, v{V16}, {SRD_WS}, s53 offen sc1")
        if src < 7: a("s_add_u32 s53, s53, 16384")
    a("s_waitcnt vmcnt(8)")
    for sh in (4, 2, 1):
        for r in range(4): a(f"v_add_f32_dpp v{Z+r}, v{Z+r}, v{Z+r} row_ror:{sh} row_mask:0xf bank_mask:0xf")
    for src in range(8):
        a(f"s_waitcnt vmcnt({7-src})")
        a(f"v_mfma_f32_16x16x32_bf16 v[8:11], v[2:5], {vr(16+4*src,4)}, {'v[8:11]' if src else 0}")
        a(f"v_mfma_f32_16x16x32_bf16 v[12:15], v[0:3], {vr(16+4*src,4)}, {'v[12:15]' if src else 0}")
    a(f"""
    v_pk_add_f32 v[6:7], {vr(Z,2)}, {vr(Z+2,2)}
    v_add_f32 v6, v6, v7
    v_cvt_pk_bf16_f32 v{Z}, v{Z}, v{Z+1}
    v_cvt_pk_bf16_f32 v{Z+1}, v{Z+2}, v{Z+3}
    s_nop 3
    v_cmp_u_f32 vcc, v6, v12
    s_cbranch_vccz L_apoll_d
    """)
    a.label("L_apoll")
    a(f"""
    s_sub_u32 s48, s48, 1
    s_cmp_eq_u32 s48, 0
    s_cbranch_scc1 L_apoll_d
    buffer_load_dword v7, v{VZA}, {SRD_WS}, s51 offen offset:1024 sc1
    s_waitcnt vmcnt(0)
    v_cmp_eq_u32 vcc, -1, v7
    s_cbranch_vccnz L_apoll
    s_branch L_agather
    """)
    a.label("L_apoll_d")
    stamp(a, 26, opt)
    if opt.prof: a(f"s_sub_u32 s94, {SPIN_MAX//8+1}, s48\nv_writelane_b32 v255, s94, 38")
    for k in range(4): a(f"v_cvt_pk_bf16_f32 v{8+k}, v{8+2*k}, v{9+2*k}")
    a(f"""
    ds_write_b64 v{VZ}, {vr(Z,2)} offset:2048
    ds_write_b128 v{VKV}, v[8:11]
    s_waitcnt lgkmcnt(0)
    """)
    stamp(a, 27, opt)
    a("s_barrier")
    a("s_setprio 0")
    if opt.a3: a("s_barrier")

F_FL, F_FA = 244, 248
def f_flag(a, wait="s_waitcnt vmcnt(0)"):
    a(f"""
    s_lshl_b32 s46, s{S_WAVE}, 7
    s_add_u32 s46, s46, s{S_FLAG}
    v_mov_b32 v{F_FL+6}, 1
    v_lshlrev_b32 v{F_FL+7}, 2, v{V_LANE}
    s_mov_b32 exec_hi, 0
    {wait}
    buffer_store_dword v{F_FL+6}, v{F_FL+7}, {SRD_WS}, s46 offen offset:1024 sc1
    s_mov_b32 exec_hi, -1
    """)
def f_gate_addr(a, which, opt):
    a(f"""
    v_and_b32 v{F_FA}, 15, v{V_LANE}
    v_lshlrev_b32 v{F_FA}, 14, v{F_FA}
    {f"v_mov_b32 v{F_FL}, 4" if which == "B" else f"v_lshrrev_b32 v{F_FL}, 4, v{V_LANE}"}
    v_lshl_add_u32 v{F_FA}, v{F_FL}, 7, v{F_FA}
    s_lshl_b32 s{S_GA}, s{S_RT}, 11
    s_add_u32 s{S_GA}, s{S_GA}, {WS_FLAG + (262144 if which == "B" else 0)}
    """)
def f_gate(a, which, opt, probed=None):
    assert opt.bflag1
    a(f"s_cmp_lg_u32 s{S_WAVE}, {opt.gwave}\ns_cbranch_scc1 L_gated{which}\ns_mov_b32 s48, {SPIN_MAX}")
    if probed is None: f_gate_addr(a, which, opt)
    else: a(f"s_waitcnt vmcnt({probed})\nv_cmp_ne_u32 vcc, 1, v{F_FL}\ns_cbranch_vccz L_gated{which}")
    a(f"s_branch L_gate_e{which}")
    a.label(f"L_gate{which}")
    if opt.backoff: a(f"s_sleep {opt.backoff}")
    a.label(f"L_gate_e{which}")
    a(f"""
    buffer_load_dword v{F_FL}, v{F_FA}, {SRD_WS}, s{S_GA} offen offset:1024 sc1
    s_sub_u32 s48, s48, 1
    s_cmp_eq_u32 s48, 0
    s_cbranch_scc1 L_gated{which}
    s_waitcnt vmcnt(0)
    v_cmp_ne_u32 vcc, 1, v{F_FL}
    s_cbranch_vccnz L_gate{which}
    """)
    a.label(f"L_gated{which}")
FV_W0, FV_W1 = 240, 241
S_FW, S_FWL = 90, 91
SRD_WO = "s[80:83]"
NPRE = 12
def grp_addr(g): return ((g + 2) % 5) * 32768
LG = grp_addr(3)

def f_rot(a, opt, dst):
    a(f"s_lshl_b32 s{dst}, s{S_CT}, 1\ns_and_b32 s{dst}, s{dst}, {opt.fstag}")

WR = 80
def f_regload(a, lo, hi, opt=None, tmp=57):
    for st in range(lo, hi):
        r = WR + 8 * (st - NPRE)
        srd = SRD_WO if st < 16 else "s[84:87]"
        a(f"""
        s_mov_b32 s{tmp}, {(st & 15) << 17}
        buffer_load_dwordx4 {vr(r,4)}, v{FV_W0}, {srd}, s{tmp} offen
        buffer_load_dwordx4 {vr(r+4,4)}, v{FV_W1}, {srd}, s{tmp} offen offset:1024
        """)
        if opt and st == lo + opt.flagat - 1 and not opt.bflag1: f_flag(a, f"s_waitcnt vmcnt({2*opt.flagat})")

def f_setup(a, opt):
    L = V_LANE
    a(f"""
    s_sub_u32 s46, s{S_WAVE}, 4
    v_lshrrev_b32 v{FV_W1}, {2 if opt.f32 else 3}, v{L}
    v_xor_b32 v{FV_W0}, v{FV_W1}, v{L}
    v_and_b32 v{FV_W0}, {4 if opt.f32 else 6}, v{FV_W0}
    v_and_or_b32 v{FV_W0}, v{L}, {3 if opt.f32 else 1}, v{FV_W0}
    v_lshrrev_b32 v{FV_W1}, 3, v{L}
    v_lshlrev_b32 v{FV_W0}, 4, v{FV_W0}
    v_lshl_add_u32 v{FV_W0}, v{FV_W1}, 11, v{FV_W0}
    s_lshl_b32 s47, s{S_CT}, 7
    s_lshl_b32 s48, s46, 15
    s_add_u32 s47, s47, s48
    v_add_u32 v{FV_W0}, s47, v{FV_W0}
    v_add_u32 v{FV_W1}, {16384 - 1024}, v{FV_W0}
    v_mov_b32 v224, 0
    s_lshl_b32 s{S_FWL}, s46, 11
    s_add_u32 s{S_FWL}, s{S_FWL}, 65536
    s_mov_b32 s80, s8
    s_and_b32 s81, s9, 0xffff
    s_mov_b32 s82, 0x200000
    s_mov_b32 s83, 0x20000
    s_mov_b32 s84, s14
    s_and_b32 s85, s15, 0xffff
    s_mov_b32 s86, 0x200000
    s_mov_b32 s87, 0x20000
    """)

def f_prefill(a, opt, ty, lo=0, hi=NPRE):
    if opt.exp & 16 or hi <= lo: return
    a(f"s_mov_b32 s49, {hi - lo}\ns_mov_b32 s{S_FW}, {lo}")
    a.label(f"L_fill{ty}")
    a(f"""
    s_lshl_b32 s57, s{S_FW}, 17
    s_xor_b32 s57, s57, s{S_ROT}
    s_mov_b32 m0, s{S_FWL}
    s_add_u32 s{S_FWL}, s{S_FWL}, 8192
    s_add_u32 s{S_FW}, s{S_FW}, 1
    buffer_load_dwordx4 v{FV_W0}, {SRD_WO}, s57 offen lds
    buffer_load_dwordx4 v{FV_W1}, {SRD_WO}, s57 offen offset:1024 lds
    """)
    if ty == "B" and opt.fill2:
        a(f"""
        s_add_u32 m0, m0, 4096
        s_add_u32 s57, s57, 65536
        buffer_load_dwordx4 v{FV_W0}, {SRD_WO}, s57 offen lds
        buffer_load_dwordx4 v{FV_W1}, {SRD_WO}, s57 offen offset:1024 lds
        """)
    a(f"""
    s_sub_u32 s49, s49, 1
    s_cmp_lg_u32 s49, 0
    s_cbranch_scc1 L_fill{ty}
    """)

def f_producer(a, opt):
    L = V_LANE
    hi = 32 - opt.nd - opt.n13 - opt.n14 - sum(opt.cl)
    assert hi >= NPRE + opt.na15
    rest = 2 * (hi - NPRE - opt.na15)
    inj(a, opt, "aregs")
    a("s_branch L_fprodA")
    a.label("L_fprod")
    inj(a, opt, "bregs")
    a("s_setprio 0\ns_waitcnt vmcnt(4)")
    f_regload(a, NPRE, NPRE + opt.na15)
    a.label("L_fprodA")
    if opt.aprobe:
        f_gate_addr(a, "A", opt)
        a(f"""
        s_cmp_eq_u32 s{S_WAVE}, {opt.gwave}
        s_cbranch_scc0 L_noprobe
        buffer_load_dword v{F_FL}, v{F_FA}, {SRD_WS}, s{S_GA} offen offset:1024 sc1
        L_noprobe:
        """)
    f_regload(a, NPRE + opt.na15, hi)
    a(f"s_cmp_eq_u32 s{S_BR}, 0\ns_cbranch_scc0 L_nowaitfill\ns_waitcnt vmcnt({rest})\nL_nowaitfill:")
    a(f"""
    s_sub_u32 s47, s{S_WAVE}, 4
    s_lshl_b32 s58, s47, 11
    v_lshlrev_b32 v10, 4, v{L}
    v_add_u32 v10, s58, v10
    v_add_u32 v11, 65536, v10
    v_add_u32 v12, 131072, v10
    """)
    stamp(a, 39, opt)
    def gate(which): f_gate(a, which, opt)
    def dma(st):
        a(f"""
        s_add_u32 m0, s58, {grp_addr(st >> 2) + (st & 3) * 8192}
        s_mov_b32 s57, {(st & 15) << 17}
        buffer_load_dwordx4 v{FV_W0}, s[84:87], s57 offen lds
        buffer_load_dwordx4 v{FV_W1}, s[84:87], s57 offen offset:1024 lds
        """)
    late = {0: {}, 4: {3: (28,), 4: (29, 30), 5: (31,)}, 8: {2: (24, 25), 3: (26, 27), 4: (28, 29), 5: (30, 31)}}[opt.nd]
    def put(g):
        if 4 * g >= 32 - opt.nd: return
        ad = grp_addr(g)
        for k in range(8):
            off = (ad & 65535) + (k >> 1) * 8192 + (k & 1) * 1024
            a(f"ds_write_b128 v{10 + (ad >> 16)}, {vr(WR + (g-3)*32 + 4*k, 4)} offset:{off}")
    f_gate(a, "A", opt, rest if opt.aprobe else None)
    a("s_barrier")
    stamp(a, 40, opt); cstamp(a, 36, opt)
    a("s_waitcnt vmcnt(0)")
    for k in range(8):
        if k == 1 and opt.bflag1:
            a(f"s_cmp_lg_u32 s{S_WAVE}, 4\ns_cbranch_scc1 L_noflag1\ns_setprio 3")
            inj(a, opt, "bflag"); f_flag(a, "")
            a("s_setprio 0")
            a.label("L_noflag1")
        if opt.putsh is None:
            if k == 0: put(3); put(4)
            elif k <= 3: put(4 + k)
        elif 3 <= k + opt.putsh <= 7: put(k + opt.putsh)
        if k == 2:
            a("s_setprio 3"); gate("B"); a("s_setprio 0")
            stamp(a, 41, opt)
        if k == 3:
            a(f"""
            s_lshl_b32 s47, s{S_RT}, 1
            s_add_u32 s47, s47, s{S_RH}
            s_lshl_b32 s47, s47, 2
            s_add_u32 s47, s47, s{S_WAVE}
            s_lshl_b32 s47, s47, 12
            s_add_u32 s47, s47, {WS_G - 4*4096}
            v_and_b32 v2, 31, v{L}
            v_lshlrev_b32 v1, 7, v2
            buffer_load_dword v3, v1, {SRD_WS}, s47 offen sc1
            v_lshlrev_b32 v2, 2, v2
            s_lshl_b32 s47, s{S_WAVE}, 7
            v_add_u32 v2, s47, v2
            """)
        if k == 5:
            a(f"s_waitcnt vmcnt(0)\nds_write_b32 v2, v3 offset:{LG}")
        for st in late.get(k, ()): dma(st)
        if k == 6 and late: a("s_waitcnt vmcnt(0)")
        a("s_waitcnt lgkmcnt(0)\ns_barrier")
        stamp(a, 44 + k, opt)
    stamp(a, 42, opt); cstamp(a, 37, opt)
    prof_dump(a, opt, WS_PROF)
    a("s_endpgm")

def f_consumer(a, opt, part):
    L = V_LANE
    AC, ST, WB, OB = 0, 32, 64, 160
    VO, VW, T = 224, 226, 230
    F32 = opt.f32
    if part: pass
    elif F32:
        a(f"""
        v_and_b32 v{VO}, 15, v{L}
        v_lshlrev_b32 v{VO}, 4, v{VO}
        v_bfe_u32 v{T}, v{L}, 4, 1
        v_lshl_add_u32 v{VO}, v{T}, 10, v{VO}
        v_lshrrev_b32 v{T+1}, 5, v{L}
        v_lshl_add_u32 v{VO}, v{T+1}, 8, v{VO}
        v_lshlrev_b32 v{T}, 5, v{T}
        v_lshl_add_u32 v{T}, v{T+1}, 9, v{T}
        v_bfe_u32 v{T+1}, v{L}, 2, 2
        v_lshl_add_u32 v{T}, v{T+1}, 7, v{T}
        v_bfe_u32 v{T+1}, v{L}, 3, 1
        v_lshl_add_u32 v{T}, v{T+1}, 6, v{T}
        v_and_b32 v{T+1}, 3, v{L}
        v_lshl_add_u32 v{T}, v{T+1}, 3, v{T}
        v_add_u32 v{VW}, {grp_addr(0)}, v{T}
        v_xor_b32 v{VW+1}, 64, v{VW}
        """)
    else:
        a(f"""
        v_lshlrev_b32 v{VO}, 4, v{L}
        v_lshrrev_b32 v{T}, 2, v{L}
        v_lshlrev_b32 v{T}, 7, v{T}
        v_bfe_u32 v{T+1}, v{L}, 3, 2
        v_lshl_add_u32 v{T}, v{T+1}, 5, v{T}
        v_and_b32 v{T+1}, 3, v{L}
        v_lshl_add_u32 v{T}, v{T+1}, 3, v{T}
        v_add_u32 v{VW}, {grp_addr(0)}, v{T}
        v_xor_b32 v{VW+1}, 32, v{VW}
        v_xor_b32 v{VW+2}, 64, v{VW}
        v_xor_b32 v{VW+3}, 96, v{VW}
        """)
    if part == 0: a(f"""
    s_mul_i32 s59, s{S_RT}, {64 * opt.os}
    s_add_u32 s26, s59, {64 * opt.os}
    s_lshl_b32 s47, s{S_RH}, 13
    s_add_u32 s59, s59, s47
    s_lshl_b32 s47, s{S_WAVE}, 11
    s_add_u32 s59, s59, s47
    v_mov_b32 v{T}, 0
    v_mov_b32 v{T+1}, 0
    v_mov_b32 v{T+2}, 0
    v_mov_b32 v{T+3}, 0
    s_mov_b32 s28, s18
    s_and_b32 s29, s19, 0xffff
    s_mov_b32 s30, 0x400000
    s_mov_b32 s53, 32768
    s_mov_b32 s24, s32
    s_mov_b32 s25, s33
    s_movk_i32 s61, 0x108
    """)
    if part == 0: return
    NO = 6 if opt.fpair else 7
    def oload(t, i): return f"buffer_load_dwordx4 {vr(OB + (t % 8)*8 + 4*i, 4)}, v{VO}, s[24:27], s59 offen offset:{i*(512 if F32 else 1024)} sc1"
    def wread(t, f, u):
        if F32: ad, off = VW + (f & 1), (f >> 1) * 1024
        else: ad, off = VW + f, 0
        return dict(txt=f"ds_read_b64_tr_b16 {vr(WB + (t & 1)*16 + f*4 + 2*u, 2)}, v{ad} offset:{(t % 8)*4096 + u*2048 + off}", loads=('w', t & 1, f, u))
    if part == 1:
        assert opt.bflag1
        a("s_barrier")
        stamp(a, 40, opt); diag(a, opt, "F0")
        for t in range(min(opt.nearly, NO)):
            a(oload(t, 0)); a(oload(t, 1))
            a(f"s_add_u32 s59, s59, {opt.os}")
        return
    if opt.f0early != 2: a.label("L_fcons")
    for t in range(opt.nearly, NO):
        a(oload(t, 0)); a(oload(t, 1))
        a(f"s_add_u32 s59, s59, {opt.os}")
    if part == 3: return
    if opt.f0early == 2: a.label("L_fcons")
    for r in (0, 16): a(f"v_mfma_f32_32x32x16_bf16 {vr(AC+r,16)}, {vr(T,4)}, {vr(T,4)}, 0")
    a("s_mov_b32 s50, 0")
    pre = [wread(0, f, u) for f in range(4) for u in range(2)]
    if opt.fpair: pre = [wread(k, f, u) for f in range(3) for k in range(2) for u in range(2)]
    lines, q0 = schedule_waits(pre)
    for l in lines: a(l)
    E = 96
    a(f"""
    v_and_b32 v{E}, {31 if F32 else 15}, v{L}
    v_lshlrev_b32 v{E+1}, 2, v{E}
    s_lshl_b32 s47, s{S_WAVE}, 7
    v_add_u32 v{E+14}, s47, v{E+1}
    v_lshlrev_b32 v{E}, 11, v{E}
    """)
    if not F32: a(f"v_bfe_u32 v{E+1}, v{L}, 4, 1\nv_lshl_add_u32 v{E}, v{E+1}, 5, v{E}")
    a(f"""
    v_lshrrev_b32 v{E+1}, 5, v{L}
    v_lshl_add_u32 v{E}, v{E+1}, 4, v{E}
    s_lshl_b32 s48, s{S_RT}, 1
    s_add_u32 s48, s48, s{S_RH}
    s_lshl_b32 s48, s48, 2
    s_add_u32 s48, s48, s{S_WAVE}
    s_lshl_b32 s48, s48, 16
    s_lshl_b32 s49, s{S_CT}, 7
    s_add_u32 s48, s48, s49
    """)
    TW, TR, TG = E + 10, E + 12, E + 13
    if opt.outt:
        assert not F32
        a(f"""
        v_and_b32 v{TR}, 7, v{L}
        v_bfe_u32 v{TW}, v{E}, 4, 2
        v_xor_b32 v{TW}, v{TW}, v{TR}
        v_lshlrev_b32 v{TW}, 4, v{TW}
        v_and_b32 v{TG}, 15, v{L}
        v_lshl_add_u32 v{TW}, v{TG}, 7, v{TW}
        s_lshl_b32 s47, s{S_WAVE}, 12
        s_add_u32 s47, s47, {grp_addr(4)}
        v_add_u32 v{TW}, s47, v{TW}
        v_xor_b32 v{TW+1}, 64, v{TW}
        v_lshrrev_b32 v{E+1}, 3, v{L}
        v_lshlrev_b32 v{TG}, 4, v{TR}
        v_lshl_add_u32 v{TG}, v{E+1}, 11, v{TG}
        v_xor_b32 v{TR}, v{TR}, v{E+1}
        v_lshlrev_b32 v{TR}, 4, v{TR}
        v_lshl_add_u32 v{TR}, v{E+1}, 7, v{TR}
        v_add_u32 v{TR}, s47, v{TR}
        """)
    align(a, opt.alf)
    a.label("L2_loop")
    body = []
    X = lambda *l: [dict(txt=x) for x in l]
    nva = 2 if F32 else 4
    for p in range(4 if opt.fpair else 0):
        nxt = f"s_add_u32 s59, s59, {opt.os}"
        rd = lambda pp, nb: [wread(2*pp + k, nb, u) for k in range(2) for u in range(2)]
        gap = {m: [] for m in range(16)}
        for k, r in enumerate(rd(p, 3)): gap[k].append(r)
        if p < 3:
            for nb in range(3):
                for k, r in enumerate(rd(p + 1, nb)): gap[4 + 4*nb + k].append(r)
        else:
            gap[4] += X(f"v_add_u32 v{VW}, s52, v{VW}", f"v_add_u32 v{VW+1}, s52, v{VW+1}")
            gap[6] += X(f"v_add_u32 v{VW+2}, s52, v{VW+2}", f"v_add_u32 v{VW+3}, s52, v{VW+3}")
            gap[7].append(dict(txt="s_barrier", drain=True))
            for k, r in enumerate(rd(4, 0) + rd(4, 1)): gap[7 + (k * 5) // 8].append(r)
            for k, r in enumerate(rd(4, 2)): gap[12 + k].append(r)
        for k, m in enumerate((1, 5, 9, 13) if p < 3 else (1, 3, 5, 13)):
            gap[m].append(dict(txt=oload(2*p + 6 + (k >> 1), k & 1)))
            if k & 1: gap[m + 1] += X(nxt)
        if p == 0: gap[11] += [dict(txt=f"ds_read_b32 v{E+2}, v{E+14} offset:{LG + 512}", loads=('g', 0))]
        if p == 1: gap[11] += [dict(txt=f"ds_read_b32 v{E+6}, v{E+14} offset:{LG + 576}", loads=('g', 1))]; gap[3] += X("s_add_u32 s50, s50, 1")
        if p == 2: gap[10] += X("s_bitcmp1_b32 s61, s50"); gap[11] += X(f"s_cselect_b32 s52, {-4*32768 & 0xffffffff}, s53")
        if p == 3: gap[15] += X("s_and_b32 s47, s50, 3")
        body.append(dict(txt="s_waitcnt vmcnt(8)"))
        m = 0
        for nb in range(4):
            for n, i in enumerate((0, 1) if nb % 2 == 0 else (1, 0)):
                for k in ((0, 1) if n == 0 else (1, 0)):
                    c = vr(AC + (i * 4 + nb) * 4, 4)
                    body.append(dict(txt=f"v_mfma_f32_16x16x32_bf16 {c}, {vr(WB + k*16 + nb*4, 4)}, {vr(OB + (2*p + k)*8 + 4*i, 4)}, {c}", reads={('w', 1, nb, 1)}))
                    body += gap[m]; m += 1
    for t in range(0 if opt.fpair else 8):
        body.append(dict(txt="s_waitcnt vmcnt(12)"))
        assert opt.frot == 0
        nxt = f"s_add_u32 s59, s59, {opt.os}"
        misc = {2: [dict(txt=f"ds_read_b32 v{E+2+4*k}, v{E+14} offset:{LG + 512 + (0 if F32 else 64*k)}", loads=('g', k)) for k in range(2)],
                4: X("s_add_u32 s50, s50, 1"),
                5: X("s_bitcmp1_b32 s61, s50", f"s_cselect_b32 s52, {-4*32768 & 0xffffffff}, s53"),
                6: X(*[f"v_add_u32 v{VW+k}, s52, v{VW+k}" for k in range(nva)]), 7: X("s_and_b32 s47, s50, 3")}.get(t, [])
        if F32:
            for m in range(4):
                u, cb = m >> 1, m & 1
                c = vr(AC + cb * 16, 16)
                body.append(dict(txt=f"v_mfma_f32_32x32x16_bf16 {c}, {vr(WB + (t&1)*16 + m*4, 4)}, {vr(OB + t*8 + 4*u, 4)}, {c}", reads={('w', t & 1, m | 1, 1)}))
                if t == 7 and m == 0: body.append(dict(txt="s_barrier", drain=True))
                if m < 2: body += [wread(t + 1, 2 * m + k, u_) for k in range(2) for u_ in range(2)]
                if m >= 2: body.append(dict(txt=oload(t + 7, m - 2)))
                if m == 3: body += X(nxt) + misc
        else:
            m = 0
            for nb in range(4):
                for i in ((0, 1) if nb % 2 == 0 else (1, 0)):
                    c = vr(AC + (i * 4 + nb) * 4, 4)
                    body.append(dict(txt=f"v_mfma_f32_16x16x32_bf16 {c}, {vr(WB + (t&1)*16 + nb*4, 4)}, {vr(OB + t*8 + 4*i, 4)}, {c}", reads={('w', t & 1, nb | 1, 1)}))
                    if opt.f1ds:
                        if t == 7:
                            if m < 2: body += X(oload(t + 7, m), f"v_add_u32 v{VW+2*m}, s52, v{VW+2*m}", f"v_add_u32 v{VW+2*m+1}, s52, v{VW+2*m+1}")
                            if m == 2: body += X(nxt) + misc
                            if m == 3: body.append(dict(txt="s_barrier", drain=True))
                            if m >= 3 and m < 7: body += [wread(t + 1, m - 3, 0), wread(t + 1, m - 3, 1)]
                        else:
                            body.append(wread(t + 1, m >> 1, m & 1))
                            if m in opt.f1ds: body.append(dict(txt=oload(t + 7, opt.f1ds.index(m))))
                            if m == 6: body += X(nxt)
                            if m == 2 and t != 6: body += misc
                        m += 1
                        continue
                    if t == 7 and m == 0: body.append(dict(txt="s_barrier", drain=True))
                    if m < 4: body += [wread(t + 1, m, 0), wread(t + 1, m, 1)]
                    if m in (4, 5): body.append(dict(txt=oload(t + 7, m - 4)))
                    if m == 5: body += X(nxt)
                    if m == 6: body += misc[:2]
                    if m == 7: body += misc[2:]
                    m += 1
    lines, q1 = schedule_waits(body, q0)
    assert q1 == q0, (q0, q1)
    k = 0
    while k < len(lines):
        if k + 1 < len(lines) and lines[k].startswith("s_waitcnt vmcnt") and lines[k+1].startswith("s_waitcnt lgkmcnt"):
            a(lines[k] + " " + lines[k+1].split()[1]); k += 2
        else:
            a(lines[k]); k += 1
    a(f"""
    s_cbranch_scc1 L2_loop
    s_cmp_eq_u32 s50, 8
    s_cbranch_scc1 L2_done
    s_nop 4
    """)
    al8(a)
    for r in range(0, 32, 2): a(f"v_pk_mul_f32 {vr(ST+r,2)}, {vr(AC+r,2)}, 1.0 op_sel_hi:[1,0]")
    a("s_branch L2_loop")
    a.label("L2_done")
    a("s_nop 1")
    for i in range(2):
        g = E + 2 + 4 * i
        a(f"v_sub_f32 v{g+2}, 1.0, v{g}")
        a(f"v_sub_f32 v{g}, v{g}, v{g+2}")
        for hf in range(2):
            al8(a)
            b0 = AC + i * 16 + hf * 8; b1 = ST + i * 16 + hf * 8
            for r in range(0, 8, 2):
                a(f"v_pk_mul_f32 {vr(b1+r,2)}, {vr(b1+r,2)}, {vr(g,2)} op_sel_hi:[1,0]")
            for r in range(0, 8, 2):
                a(f"v_pk_fma_f32 {vr(b0+r,2)}, {vr(b0+r,2)}, {vr(g+2,2)}, {vr(b1+r,2)} op_sel_hi:[1,0,1]")
            for k in range(4): a(f"v_cvt_pk_bf16_f32 v{b0+k}, v{b0+2*k}, v{b0+2*k+1}")
            a("s_nop 1")
            sw = "v_permlane32_swap_b32" if F32 else "v_permlane16_swap_b32"
            a(f"{sw} v{b0}, v{b0+2}")
            a(f"{sw} v{b0+1}, v{b0+3}")
            if opt.outt: a(f"ds_write_b128 v{TW+hf}, {vr(b0,4)} offset:{i*2048}")
            else: a(f"buffer_store_dwordx4 {vr(b0,4)}, v{E}, s[28:31], s48 offen offset:{i*64 + hf*32 if F32 else hf*64} {opt.outaux}")
            if opt.outt and i == 1 and hf == 0:
                for k in range(2):
                    a(f"s_waitcnt lgkmcnt({2-k})\nbuffer_store_dwordx4 {vr(WB+4*k,4)}, v{TG}, s[28:31], s48 offen {opt.outaux}\ns_add_u32 s48, s48, {8*2048}")
        if opt.outt:
            for k in range(2): a(f"ds_read_b128 {vr(WB + 8*i + 4*k,4)}, v{TR} offset:{i*2048 + k*1024}")
        elif i == 0 and not F32: a(f"s_add_u32 s48, s48, {16*2048}")
    if opt.outt:
        for k in range(2):
            a(f"s_waitcnt lgkmcnt({1-k})\nbuffer_store_dwordx4 {vr(WB+8+4*k,4)}, v{TG}, s[28:31], s48 offen {opt.outaux}\ns_add_u32 s48, s48, {8*2048}")
    stamp(a, 43, opt)
    diag_end(a, opt)
    prof_dump(a, opt, WS_PROF)

def gen_k1(opt):
    global GAUX, ALT, AL8, OS, WR
    WR = 80 + 8 * opt.nd
    OS = opt.os
    assert not opt.prew
    GAUX = opt.gaux; ALT = opt.alt; AL8 = opt.al8
    a = Asm()
    k1_prologue(a, opt)
    dma_addrs(a)
    k1_srds(a)
    a(f"s_cmp_ge_u32 s{S_WAVE}, 4")
    a("s_cbranch_scc1 L_producer")
    consumer_setup(a, opt)
    a(f"s_cmp_eq_u32 s{S_BR}, 0")
    a("s_cbranch_scc1 L_consA")
    consumer_gemm(a, True, "B", [lines_of(b_epilogue, opt, p_) for p_ in (0, 2, 3)] if opt.kvfirst else lines_of(b_epilogue, opt, 0), opt)
    diag(a, opt, "G")
    b_epilogue(a, opt, 1)
    if not opt.flagfirst: b_consts(a)
    b_attention(a, opt)
    a.label("L_consA")
    consumer_gemm(a, False, "A", lines_of(a_pre, opt), opt)
    diag(a, opt, "G")
    a_consumer(a, opt)
    for part in range(3): f_consumer(a, opt, part)
    a.label("L1_end")
    a("s_endpgm")
    a.label("L_producer")
    producer_gemm(a, opt)
    a(f"s_waitcnt vmcnt({2 * (opt.n13 + opt.n14)})")
    if not opt.gatelate: producer_gate(a, opt)
    if not opt.constearly: b_consts(a)
    a("s_setprio 0")
    a("s_barrier")
    stamp(a, 15, opt)
    a(f"s_cmp_eq_u32 s{S_BR}, 0\ns_cbranch_scc0 L_no15")
    f_regload(a, NPRE + sum(opt.al), NPRE + opt.na15)
    if opt.bhelp == 1: a_help(a)
    a.label("L_no15")
    if opt.gatelate and not opt.agate: producer_gate(a, opt)
    a(f"s_cmp_eq_u32 s{S_BR}, 0")
    a("s_cbranch_scc1 L_prodA")
    if opt.gatelate and opt.agate: producer_gate(a, opt)
    a("s_barrier"); inj(a, opt, "own"); a("s_branch L_battn1")
    a.label("L_prodA")
    f_prefill(a, opt, "A0", 0, opt.afill)
    a_producer(a, opt)
    f_prefill(a, opt, "A", opt.afill + opt.afill2, NPRE)
    f_producer(a, opt)
    assert opt.constearly and opt.na15 >= sum(opt.al) and not opt.wovec
    assert sum(opt.cl) + opt.n13 + opt.n14 <= 10
    a.label("L_wl")
    hi_, lo_ = 32 - opt.nd, NPRE + sum(opt.al)
    for k in range(4):
        if k < 3: a(f"s_cmp_eq_u32 s50, {9 + k}\ns_cbranch_scc0 L_wl{k+1}")
        for half, at in enumerate(opt.c3):
            if at == 9 + k:
                a(f"""
                s_lshr_b32 s47, s{S_J}, 4
                s_lshl_b32 s47, s47, 2
                s_add_u32 s47, s47, s46
                s_cmp_eq_u32 s47, {4 * half + ((at + 1) & 3)}
                s_cbranch_scc0 L_noc3{half}
                s_and_b32 s47, s{S_J}, 15
                s_lshl_b32 s47, s47, 17
                s_and_b32 s48, s{S_XCD}, 1
                s_lshl_b32 s48, s48, 10
                s_add_u32 s47, s47, s48
                v_lshlrev_b32 v39, 11, v0
                buffer_load_dword v35, v39, {"s[84:87]" if half else SRD_WO}, s47 offen offset:384
                L_noc3{half}:
                """)
        f_regload(a, hi_ - opt.cl[k], hi_, tmp=47); hi_ -= opt.cl[k]
        if opt.al[k]:
            a(f"s_cmp_eq_u32 s{S_BR}, 0\ns_cbranch_scc0 L_aback")
            f_regload(a, lo_ - opt.al[k], lo_, tmp=47); lo_ -= opt.al[k]
        a("s_branch L_aback")
        if k < 3: a.label(f"L_wl{k+1}")
    a.label("L_code_end")
    return a.text()

def kd(name, nv):
    return f""".amdhsa_kernel {name}
  .amdhsa_next_free_vgpr {nv}
  .amdhsa_next_free_sgpr 102
  .amdhsa_accum_offset {nv}
  .amdhsa_group_segment_fixed_size 0
  .amdhsa_kernarg_size 80
  .amdhsa_user_sgpr_count 2
  .amdhsa_user_sgpr_kernarg_segment_ptr 1
  .amdhsa_system_sgpr_workgroup_id_x 1
.end_amdhsa_kernel
"""

def gen_all(opt):
    k1 = NAME + "_kernel"
    launch = f"; @launch kernel={k1} grid=(256,1,1) block=(512,1,1) lds=163840" if opt.aslist else "; @launch grid=(256,1,1) block=(512,1,1) lds=163840"
    s = f"""; Hand-scheduled gfx950 kernel, emitted by my own generator script.
; Kernarg: 0 A_x, 8 A_wqkv, 16 A_wo, 24 B_x, 32 B_wqkv, 40 B_wo, 48 gate_w, 56 out, 64 debug, 72 ws
; One persistent launch, 256 workgroups x 8 waves (one per CU). WG = (256-row block, head pair, branch A|B).
;        exp2 runs without a shift; a unit whose row sum leaves [2^-40, 2^40] (or is NaN) is
;  F: out = g*(oa@A_wo) + (1-g)*(ob@B_wo), 128x64 tile per WG
; Hand-offs: write-through (sc1) stores, sc1 loads, flag lines in ws that every WG clears first;
{launch}
.amdgcn_target "amdgcn-amd-amdhsa--gfx950"
.text
.globl {k1}
.p2align 8
.type {k1},@function
{k1}:
{gen_k1(opt)}
.section .rodata,"a"
.p2align 6
{kd(k1, 256)}"""
    return s

if __name__ == "__main__":
    opt = Opt()
    out = f"cdna_kernels/{NAME}.s"
    for arg in sys.argv[1:]:
        k, v = arg.split("=")
        if k == "out": out = v
        else: setattr(opt, k, eval(v))
    open(out, "w").write(gen_all(opt))
    print("wrote", out)
```
